```python
import torch

def _softmax(x, axis=-1):
    return torch.softmax(x, dim=axis)

def _gelu(x):
    return torch.nn.functional.gelu(x, approximate='tanh')

def _silu(x):
    return torch.nn.functional.silu(x)

def _sigmoid(x):
    return torch.sigmoid(x)

def _layernorm(x, axis=-1, eps=1e-05):
    m = x.mean(dim=axis, keepdim=True)
    v = x.var(dim=axis, keepdim=True, unbiased=False)
    return (x - m) / torch.sqrt(v + eps)

def _scatter_add(tgt, idx, src, axis=0):
    return tgt.clone().index_add_(axis, idx, src)

def _segment_sum(src, seg, n):
    out = torch.zeros((n,) + src.shape[1:], dtype=src.dtype)
    return out.index_add_(0, seg, src)

def _pad(x, pw):
    flat = tuple((v for pair in reversed(pw) for v in pair))
    return torch.nn.functional.pad(x, flat)
kernel_name = 'gated_mix__softmax_full_mha__mixer_gmlp__prompt'

def setup_inputs():

    _w = lambda a: (lambda t: t.to(torch.bfloat16) if t.is_floating_point() else t)(torch.as_tensor(a))

    def _A_setup():
        B, S, D = (1, 2048, 512)
        return {'x': _w((lambda *s: torch.randn(*s, dtype=torch.bfloat16) * 0.05)(B, S, D)), 'wqkv': _w((lambda *s: torch.randn(*s, dtype=torch.bfloat16) * 1.6)(D, 3 * D)), 'wo': _w((lambda *s: torch.randn(*s, dtype=torch.bfloat16) * 0.1)(D, D))}
    _A_in = _A_setup()

    def _B_setup():
        B, S, D, F = (1, 2048, 512, 1792)
        Fh = F // 2
        return {'x': _w((lambda *s: torch.randn(*s, dtype=torch.bfloat16) * 0.05)(B, S, D)), 'w_in': _w((lambda *s: torch.randn(*s, dtype=torch.bfloat16) * 0.8)(D, 2 * Fh)), 'w_sp': _w(0.01 * (lambda *s: torch.randn(*s, dtype=torch.bfloat16) * 0.8)(S, S)), 'b_sp': _w(1.0 + 0.01 * (lambda *s: torch.randn(*s, dtype=torch.bfloat16) * 0.05)(S)), 'w_out': _w((lambda *s: torch.randn(*s, dtype=torch.bfloat16) * 0.05)(Fh, D))}
    _B_in = _B_setup()
    return {'A_x': _A_in['x'], 'A_wqkv': _A_in['wqkv'], 'A_wo': _A_in['wo'], 'B_x': _B_in['x'], 'B_w_in': _B_in['w_in'], 'B_w_sp': _B_in['w_sp'], 'B_b_sp': _B_in['b_sp'], 'B_w_out': _B_in['w_out'], 'gate_w': _w((lambda *s: torch.randn(*s, dtype=torch.bfloat16) * 0.05)(512) * 16.0)}

def reference(A_x, A_wqkv, A_wo, B_x, B_w_in, B_w_sp, B_b_sp, B_w_out, gate_w):

    def _A_ref(x, wqkv, wo):
        B, S, D = x.shape
        H = 32
        Dh = D // H
        qkv = (lambda x, *d: x.permute(*d))((x @ wqkv).reshape(B, S, 3, H, Dh), 2, 0, 3, 1, 4)
        q, k, v = (qkv[0], qkv[1], qkv[2])
        scale = Dh ** (-0.5)
        scores = torch.einsum('bhqd,bhkd->bhqk', q, k) * scale
        p = _softmax(scores, axis=-1)
        o = torch.einsum('bhqk,bhkd->bhqd', p, v)
        return (lambda x, *d: x.permute(*d))(o, 0, 2, 1, 3).reshape(B, S, D) @ wo

    def _B_ref(x, w_in, w_sp, b_sp, w_out):
        B, S, D = x.shape
        F = w_in.shape[-1]
        Fh = F // 2
        z = _gelu(torch.einsum('bsd,df->bsf', x, w_in))
        z1 = z[..., :Fh].clone()
        z2 = _layernorm(z[..., Fh:], axis=-1)
        g = torch.einsum('ts,bsf->btf', w_sp, z2) + b_sp[None, :, None]
        return torch.einsum('bsf,fd->bsd', z1 * g, w_out)
    x = A_x
    g = _sigmoid((x * gate_w).sum(-1, keepdims=True))
    a = _A_ref(x, A_wqkv, A_wo)
    b = _B_ref(x, B_w_in, B_w_sp, B_b_sp, B_w_out)
    return g * a + (1 - g) * b
```

```python
import re

class Asm:
    def __init__(self):
        self.lines = []
    def __call__(self, s):
        for l in s.split("\n"):
            l = l.strip()
            if l:
                self.lines.append("    " + l)
    def label(self, s):
        self.lines.append(s + ":")
    def raw(self, s):
        self.lines.append(s)
    def text(self):
        return "\n".join(self.lines) + "\n"

def vr(b, n=1, p="v"):
    return f"{p}{b}" if n == 1 else f"{p}[{b}:{b+n-1}]"
def sr(b, n=1):
    return vr(b, n, "s")

_reg = re.compile(r"^-?(?:abs\()?\|?([vas])(?:(\d+)|\[(\d+):(\d+)\])\|?\)?$")
def regs(op):
    op = op.strip()
    if op in ("vcc", "exec", "m0"):
        return {op}
    m = _reg.match(op)
    if not m:
        return set()
    k = m.group(1)
    if m.group(2) is not None:
        return {k + m.group(2)}
    return {k + str(i) for i in range(int(m.group(3)), int(m.group(4)) + 1)}

TRANS = ("v_exp_", "v_log_", "v_rcp_", "v_rsq_", "v_sqrt_", "v_sin_", "v_cos_")
def parse(line):
    line = line.split(";")[0].strip()
    if not line or line.endswith(":") or line.startswith("."):
        return None
    parts = line.split(None, 1)
    op = parts[0]
    rest = parts[1] if len(parts) > 1 else ""
    ops = [o.strip() for o in re.split(r",(?![^\[]*\])", rest)]
    if ops:
        last = ops[-1].split()
        mods = last[1:] if last else []
        ops[-1] = last[0] if last else ""
    else:
        mods = []
    I = dict(op=op, ops=ops, mods=mods, w=set(), r=set(), kind="other", line=line)
    R = [regs(o) for o in ops]
    allr = lambda l: set().union(*l) if l else set()
    if op.startswith("v_mfma") or op.startswith("v_smfmac"):
        I["kind"] = "mfma"
        I["w"] = R[0]; I["ab"] = R[1] | R[2]
        if op.startswith("v_smfmac"):
            I["c"] = R[0]; I["ab"] |= R[3]
        else:
            I["c"] = R[3]
        I["r"] = I["ab"] | I["c"]
        I["passes"] = 8 if "32x32" in op else 4
    elif op.startswith("v_"):
        I["kind"] = "valu"
        I["trans"] = op.startswith(TRANS)
        if op.startswith("v_permlane"):
            I["w"] = R[0] | R[1]; I["r"] = R[0] | R[1]
        elif op.startswith("v_add_co") or op.startswith("v_addc_co") or op.startswith("v_sub_co"):
            I["w"] = R[0] | R[1]; I["r"] = allr(R[2:])
        else:
            I["w"] = R[0]; I["r"] = allr(R[1:])
            if op.startswith(("v_fmac", "v_pk_fmac", "v_dot2c")) or "sdwa" in op or "dpp" in op:
                I["r"] |= R[0]
            if op.startswith("v_cndmask") and len(ops) == 3: I["r"] |= {"vcc"}
    elif op.startswith("ds_"):
        I["kind"] = "ds"
        if op.startswith(("ds_read", "ds_bpermute", "ds_permute", "ds_swizzle")) or "_rtn" in op:
            I["w"] = R[0]; I["r"] = allr(R[1:])
        else:
            I["r"] = allr(R)
    elif op.startswith(("buffer_", "global_")):
        I["kind"] = "vmem"
        isload = "load" in op
        if isload and ("lds" in mods or "_lds_" in op):
            I["r"] = allr(R) | {"m0"}; I["dma"] = True
        elif isload:
            I["w"] = R[0]; I["r"] = allr(R[1:])
        else:
            I["r"] = allr(R)
            if "atomic" in op and "sc0" in mods: I["w"] = R[0]
            if op.startswith("buffer_store") and ("x4" in op or "x3" in op): I["wide"] = R[0]
            if op.startswith("global_store") and ("x4" in op or "x3" in op): I["wide"] = R[1]
    elif op.startswith("s_"):
        I["kind"] = "salu"
        if op == "s_nop":
            I["n"] = int(ops[0], 0) + 1
        elif op.startswith(("s_cmp", "s_cbranch", "s_branch", "s_waitcnt", "s_barrier", "s_endpgm", "s_setprio", "s_sleep", "s_bitcmp")):
            I["r"] = allr(R)
        else:
            I["w"] = R[0]; I["r"] = allr(R[1:])
            if "saveexec" in op: I["w"] |= {"exec"}
    return I

def need(p, c):
    n = 0
    isv = lambda s: {x for x in s if x[0] in "va" and x != "vcc"}
    iss = lambda s: {x for x in s if x[0] == "s" or x == "vcc"}
    if p["kind"] == "valu":
        wv = isv(p["w"]); ws = iss(p["w"])
        if c["kind"] == "mfma" and wv & c["r"]: n = max(n, 2)
        if c["kind"] == "valu":
            if c["op"].startswith("v_permlane") and wv & c["r"]: n = max(n, 2)
            if "dpp" in c["op"] or any(m.startswith(("row_", "quad_perm")) for m in c["mods"]):
                if wv & c["r"]: n = max(n, 2)
            if c["op"].startswith(("v_readfirstlane", "v_readlane")) and wv & c["r"]: n = max(n, 1)
            if p.get("trans") and not c.get("trans") and wv & c["r"]: n = max(n, 1)
            if ws & c["r"]: n = max(n, 2)
            if "sdwa" in p["op"] and wv & (c["r"] | c["w"]): n = max(n, 1)
        if c["kind"] == "vmem" and ws & c["r"]: n = max(n, 5)
        if c["kind"] == "salu" and ws & c["r"]: n = max(n, 1)
        if "exec" in p["w"] and c["kind"] in ("mfma", "valu"): n = max(n, 4)
    if p["kind"] == "mfma":
        big = p["passes"] == 8
        d = p["w"]
        if c["kind"] == "mfma":
            if d & c["ab"]: n = max(n, 12 if big else 8)
            if d & c["c"] and not (d == c["c"] and p["passes"] == c["passes"]): n = max(n, 10 if big else 6)
            if d & c["w"] and not d & c["c"]: n = max(n, 0)
        elif c["kind"] in ("valu", "ds", "vmem"):
            if d & (c["r"] | c["w"]): n = max(n, 12 if big else 8)
        if c["kind"] == "valu" and p["c"] & c["w"]: n = max(n, 7 if big else 3)
    if p["kind"] == "vmem" and p.get("wide"):
        if c["kind"] == "valu" and p["wide"] & c["w"]: n = max(n, 2)
        elif p["wide"] & c["w"]: n = max(n, 1)
    if p["kind"] == "salu" and "m0" in p["w"] and c.get("dma"): n = max(n, 1)
    return n

def check(lines, name=""):
    labels = {}
    for i, l in enumerate(lines):
        s = l.strip()
        if s.endswith(":"): labels[s[:-1]] = i
    P = [parse(l) for l in lines]
    bad = 0
    def scan(seq, only_cross=None):
        nonlocal bad
        for ci in range(len(seq)):
            c = P[seq[ci]]
            if c is None: continue
            if only_cross is not None and ci < only_cross: continue
            dist = 0
            for pi in range(ci - 1, -1, -1):
                p = P[seq[pi]]
                if p is None: continue
                if p["op"] in ("s_branch", "s_endpgm") and not (only_cross is not None and pi == only_cross - 1): break
                if only_cross is None or pi < only_cross:
                    nd = need(p, c)
                    if nd > dist:
                        print(f"HAZARD {name}: need {nd} have {dist}\n   {seq[pi]+1}: {p['line']}\n   {seq[ci]+1}: {c['line']}")
                        bad += 1
                dist += p.get("n", 1)
                if dist > 20: break
    scan(list(range(len(lines))))
    for i, p in enumerate(P):
        if p and p["op"].startswith(("s_cbranch", "s_branch")):
            t = labels.get(p["ops"][0])
            if t is None: continue
            pre = list(range(max(0, i - 40), i + 1))
            post = list(range(t, min(len(lines), t + 40)))
            scan(pre + post, only_cross=len(pre))
    return bad
```

```python
import sys, struct
from asmlib import Asm, vr, sr, check

NAME = "gated_mix__softmax_full_mha__mixer_gmlp__prompt"
MB = 1 << 20
QF, KVF, Z1F, Z2F, AF, WF = 0, 2*MB, 6*MB, 10*MB, 14*MB, 20*MB
GG = 22*MB
STATS = 22*MB + 65536
STAMP = 23*MB
WS_SIZE = 24*MB
def f32(x): return "0x%08x" % struct.unpack("<I", struct.pack("<f", x))[0]
LOG2E = 1.4426950408889634
QSCALE = 0.25 * LOG2E
GC1 = -2.0 * LOG2E * 0.7978845608028654
GC2 = GC1 * 0.044715
SPIN = 1 << 16

OPT = dict(stamp=False, st="")
for a_ in sys.argv[2:]:
    k_, v_ = a_.split("=")
    OPT[k_] = eval(v_)

def srd(a, d, p, size):
    a(f"s_mov_b32 s{d}, s{p}")
    a(f"s_mov_b32 s{d+1}, s{p+1}")
    a(f"s_mov_b32 s{d+2}, {size}")
    a(f"s_mov_b32 s{d+3}, 0x20000")

def prologue(a, endlabel):
    a(f"s_cmp_ge_u32 s2, 256")
    a(f"s_cbranch_scc1 {endlabel}")
    if OPT["stamp"]: a("s_memrealtime s[96:97]")
    a("s_load_dwordx16 s[4:19], s[0:1], 0")
    a("s_load_dwordx8 s[20:27], s[0:1], 64")
    a("v_lshrrev_b32 v1, 6, v0")
    a("s_and_b32 s52, s2, 7")
    a("v_readfirstlane_b32 s56, v1")
    a("s_lshr_b32 s53, s2, 3")
    a("v_and_b32 v0, 63, v0")
    a("s_and_b32 s57, s56, 3")

def stamp(a, phase, slot, ws=40, v=254):
    if not OPT["stamp"]: return
    if slot:
        a("s_memrealtime s[96:97]")
    a("s_waitcnt lgkmcnt(0)")
    a("s_lshl_b32 s98, s2, 3")
    a("s_add_u32 s98, s98, s56")
    a("s_lshl_b32 s98, s98, 5")
    a(f"s_add_u32 s98, s98, {STAMP + phase*65536 + slot*4}")
    a(f"v_mov_b32 v{v}, s96")
    a(f"v_mov_b32 v{v+1}, 0")
    a(f"buffer_store_dword v{v}, v{v+1}, s[{ws}:{ws+3}], s98 offen")

def mfma(a, d, A, B, c=None):
    cc = vr(d, 16) if c is None else (c if isinstance(c, str) else vr(c, 16))
    a(f"v_mfma_f32_32x32x16_bf16 {vr(d,16)}, {vr(A,4)}, {vr(B,4)}, {cc}")

def store4(a, v, voff, srd_, soff, off=0, flags=None):
    fl = OPT["st"] if flags is None else flags
    a(f"buffer_store_dwordx4 {vr(v,4)}, v{voff}, s[{srd_}:{srd_+3}], {soff} offen offset:{off} {fl}")

def swz_row_voffs(a, base, stride_shift=None, stride=None, tmp=1):
    t, u = tmp, base + 3
    a(f"v_lshrrev_b32 v{t}, 4, v0")
    a(f"v_and_b32 v{u}, 7, v0")
    a(f"v_xor_b32 v{u}, v{u}, v{t}")
    a(f"v_lshrrev_b32 v{t}, 3, v0")
    a(f"v_lshlrev_b32 v{t}, {stride_shift}, v{t}")
    a(f"v_lshl_add_u32 v{base}, v{u}, 4, v{t}")
    a(f"v_xor_b32 v{u}, 4, v{u}")
    a(f"v_lshl_add_u32 v{base+1}, v{u}, 4, v{t}")
    st = 1 << stride_shift
    a(f"v_add_u32 v{base+1}, {8*st - 1024}, v{base+1}")
    a(f"v_add_u32 v{base+2}, {16*st - 2048}, v{base}")
    a(f"v_add_u32 v{base+3}, {16*st - 2048}, v{base+1}")

def swz_read_addrs(a, base, sbase, tmp=1):
    t, u = tmp, base + 3
    a(f"v_bfe_u32 v{t}, v0, 1, 3")
    a(f"v_lshrrev_b32 v{u}, 5, v0")
    a(f"v_xor_b32 v{t}, v{t}, v{u}")
    a(f"v_lshlrev_b32 v{t}, 4, v{t}")
    a(f"v_and_b32 v{u}, 31, v0")
    a(f"v_lshl_add_u32 v{t}, v{u}, 7, v{t}")
    a(f"v_add_u32 v{base}, s{sbase}, v{t}")
    for ks in (1, 2, 3):
        a(f"v_xor_b32 v{base+ks}, {ks*32}, v{base}")

def gelu(a, x, t, C1, C2, ONE, n=16):
    for p in range(0, n, 2): a(f"v_pk_mul_f32 {vr(t+p,2)}, {vr(x+p,2)}, {vr(x+p,2)}")
    for p in range(0, n, 2): a(f"v_pk_fma_f32 {vr(t+p,2)}, {vr(t+p,2)}, {vr(C2,2)}, {vr(C1,2)}")
    for p in range(0, n, 2): a(f"v_pk_mul_f32 {vr(t+p,2)}, {vr(t+p,2)}, {vr(x+p,2)}")
    for p in range(n): a(f"v_exp_f32 v{t+p}, v{t+p}")
    for p in range(0, n, 2): a(f"v_pk_add_f32 {vr(t+p,2)}, {vr(t+p,2)}, {vr(ONE,2)}")
    for p in range(n): a(f"v_rcp_f32 v{t+p}, v{t+p}")
    for p in range(0, n, 2): a(f"v_pk_mul_f32 {vr(x+p,2)}, {vr(x+p,2)}, {vr(t+p,2)}")

def halfsum(a, v, t, op="v_add_f32"):
    a(f"v_mov_b32 v{t}, v{v}")
    a("s_nop 1")
    a(f"v_permlane32_swap_b32 v{v}, v{t}")
    a(f"{op} v{v}, v{v}, v{t}")

def gen_p1(a):
    X, WQ, WI, WS, DBG, MISC = 28, 32, 36, 40, 44, 48
    prologue(a, "L1_end")
    a("s_and_b32 s54, s52, 1")
    a("s_lshl_b32 s54, s54, 3")
    a("s_and_b32 s59, s53, 7")
    a("s_add_u32 s54, s54, s59")
    a("s_lshr_b32 s55, s52, 1")
    a("s_lshl_b32 s55, s55, 2")
    a("s_lshr_b32 s59, s53, 3")
    a("s_add_u32 s55, s55, s59")
    a("s_lshl_b32 s58, s54, 2")
    a("s_add_u32 s58, s58, s57")
    a("s_lshl_b32 s60, s57, 12")
    a("s_cmp_ge_u32 s56, 4")
    a("s_cbranch_scc1 L1_z")
    swz_row_voffs(a, 2, stride_shift=10)
    a("v_lshrrev_b32 v1, 2, v0")
    a("v_and_b32 v1, 4, v1")
    a("v_and_b32 v6, 7, v0")
    a("v_xor_b32 v6, v6, v1")
    a("v_lshlrev_b32 v6, 4, v6")
    a("v_lshrrev_b32 v1, 3, v0")
    a("v_mul_u32_u24 v1, 3584, v1")
    a("v_add_u32 v6, v6, v1")
    a(f"v_add_u32 v7, {1792-1024}, v6")
    a(f"v_add_u32 v8, {8*3584-2048}, v6")
    a(f"v_add_u32 v9, {8*3584+1792-3072}, v6")
    a("s_lshl_b32 s61, s58, 15")
    a("s_mul_i32 s62, s57, %d" % (16*3584))
    a("s_lshl_b32 s59, s55, 7")
    a("s_add_u32 s62, s62, s59")
    a("s_waitcnt lgkmcnt(0)")
    srd(a, X, 4, 2048*1024)
    srd(a, WI, 12, 512*3584)
    a("s_cmp_ge_u32 s55, 14")
    a("s_cbranch_scc1 L1_ql")
    p1_qkv(a, False)
    a.label("L1_ql")
    p1_qkv(a, True)
    a.label("L1_z")
    a("s_cmp_ge_u32 s55, 14")
    a("s_cbranch_scc1 L1_aux")
    p1_z(a)
    a.label("L1_aux")
    p1_aux(a)
    a.label("L1_end")
    a("s_endpgm")

def p1_qkv(a, light):
    X, WQ, WI, WS, DBG, MISC = 28, 32, 36, 40, 44, 48
    XF, ACC, WFR, T = 128, 36, 20, 84
    def chunk_dma(c):
        slot = (c % 5) * 32768
        a(f"s_add_u32 m0, s60, {slot}")
        a("s_nop 0")
        for q in range(4):
            a(f"buffer_load_dwordx4 v{2+q}, s[{X}:{X+3}], s61 offen offset:{q*1024} lds")
        a("s_add_u32 s61, s61, 128")
        if not light:
            a(f"s_add_u32 m0, s60, {slot + 16384}")
            a("s_nop 0")
            for i in range(4):
                a(f"buffer_load_dwordx4 v{6+i}, s[{WI}:{WI+3}], s62 offen offset:{i*1024} lds")
            a(f"s_add_u32 s62, s62, {64*3584}")
    def wq_dma(x, slot):
        for g in range(2):
            a(f"s_add_u32 m0, s63, {slot*32768 + g*4096}")
            a(f"s_add_u32 s59, s64, {x*1024 + g*64*3072}")
            for i in range(4):
                a(f"buffer_load_dwordx4 v{10+i}, s[{WQ}:{WQ+3}], s59 offen offset:{i*1024} lds")
    for c in range(5): chunk_dma(c)
    srd(a, WQ, 6, 512*3072)
    srd(a, WS, 26, WS_SIZE)
    stamp(a, 0, 0, v=106)
    a("v_lshrrev_b32 v1, 2, v0")
    a("v_mul_u32_u24 v1, 3072, v1")
    a("v_and_b32 v10, 3, v0")
    a("v_lshl_add_u32 v10, v10, 4, v1")
    for i in (1, 2, 3): a(f"v_add_u32 v{10+i}, {i*(16*3072-1024)}, v10")
    a("s_lshl_b32 s63, s57, 13")
    a("s_mul_i32 s64, s57, %d" % (128*3072))
    a("s_lshl_b32 s59, s55, 6")
    a("s_add_u32 s64, s64, s59")
    swz_read_addrs(a, 14, 60)
    a("v_lshrrev_b32 v1, 5, v0")
    a("v_lshlrev_b32 v19, 9, v1")
    a("v_bfe_u32 v1, v0, 2, 2")
    a("v_lshl_add_u32 v19, v1, 6, v19")
    a("v_bfe_u32 v1, v0, 4, 1")
    a("v_lshl_add_u32 v19, v1, 5, v19")
    a("v_and_b32 v1, 3, v0")
    a("v_lshl_add_u32 v19, v1, 3, v19")
    a("v_add_u32 v18, 98304, v19")
    a("v_lshlrev_b32 v100, 4, v0")
    a("v_and_b32 v101, 0x33, v0")
    a("v_bfe_u32 v1, v0, 2, 1")
    a("v_lshl_or_b32 v101, v1, 3, v101")
    a("v_bfe_u32 v1, v0, 3, 1")
    a("v_lshl_or_b32 v101, v1, 2, v101")
    a("v_lshlrev_b32 v101, 4, v101")
    a("v_and_b32 v102, 15, v0")
    a("v_lshrrev_b32 v1, 5, v0")
    a("v_lshl_or_b32 v102, v1, 4, v102")
    a("v_lshlrev_b32 v102, 4, v102")
    a("v_bfe_u32 v1, v0, 4, 1")
    a("v_lshl_or_b32 v102, v1, 17, v102")
    a("s_lshl_b32 s59, s55, 7")
    a("s_add_u32 s59, s59, s58")
    a("s_lshl_b32 s65, s59, 10")
    if QF: a(f"s_add_u32 s65, s65, {QF}")
    a("s_add_u32 s66, s65, 65536")
    a("s_lshl_b32 s67, s59, 11")
    a(f"s_add_u32 s67, s67, {KVF}")
    a("s_add_u32 s68, s67, 131072")
    a(f"v_mov_b32 v104, {f32(QSCALE)}")
    a(f"v_mov_b32 v105, {f32(QSCALE)}")
    G = 4 if light else 8
    ext = 1 if OPT["stamp"] else 0
    win = 0
    for c in range(8):
        if c == 0: n = 4*G + ext
        elif c <= 4: n = min(3*G, 63)
        else: n = (7 - c) * G + (c - 4) * 8
        a(f"s_waitcnt vmcnt({n}) lgkmcnt(0)")
        a("s_barrier")
        if 1 <= c <= 3: chunk_dma(c + 4)
        elif c == 4: wq_dma(0, 3)
        elif c == 5: wq_dma(1, 4)
        elif c == 6: wq_dma(2, 0)
        slot = c % 5
        w = slot // 2
        if w != win:
            for ks in range(4): a(f"v_add_u32 v{14+ks}, {((w - win) * 65536) & 0xffffffff}, v{14+ks}")
            win = w
        for ks in range(4):
            a(f"ds_read_b128 {vr(XF + 16*c + 4*ks, 4)}, v{14+ks} offset:{(slot % 2) * 32768}")
    a("s_waitcnt vmcnt(16) lgkmcnt(0)")
    a("s_barrier")
    stamp(a, 0, 1, v=106)
    def rd(n):
        x, ks = n // 32, n % 32
        reg, off = (18, x * 32768) if x < 2 else (19, 0)
        f = WFR + 4 * (n % 4)
        a(f"ds_read_b64_tr_b16 {vr(f,2)}, v{reg} offset:{off + ks*1024}")
        a(f"ds_read_b64_tr_b16 {vr(f+2,2)}, v{reg} offset:{off + ks*1024 + 256}")
    def epi(x):
        acc = ACC + 16*x
        L = []
        if x == 0:
            L += [f"v_pk_mul_f32 {vr(acc+p,2)}, {vr(acc+p,2)}, v[104:105]" for p in range(0, 16, 2)]
        t = T + 8*(x % 2)
        L += [f"v_cvt_pk_bf16_f32 v{t+p}, v{acc+2*p}, v{acc+2*p+1}" for p in range(8)]
        fl = OPT["st"]
        if x == 0:
            L += [f"buffer_store_dwordx4 {vr(t,4)}, v100, s[{WS}:{WS+3}], s65 offen {fl}",
                  f"buffer_store_dwordx4 {vr(t+4,4)}, v100, s[{WS}:{WS+3}], s66 offen {fl}"]
        elif x == 1:
            L += [f"buffer_store_dwordx4 {vr(t,4)}, v101, s[{WS}:{WS+3}], s67 offen {fl}",
                  f"buffer_store_dwordx4 {vr(t+4,4)}, v101, s[{WS}:{WS+3}], s68 offen {fl}"]
        else:
            L += [f"buffer_store_dwordx4 {vr(t,4)}, v102, s[{WS}:{WS+3}], s67 offen offset:1024 {fl}",
                  f"buffer_store_dwordx4 {vr(t+4,4)}, v102, s[{WS}:{WS+3}], s67 offen offset:1536 {fl}"]
        return L
    for n in range(3): rd(n)
    pend = []
    for n in range(96):
        x, ks = n // 32, n % 32
        if n + 3 == 32:
            a("s_waitcnt vmcnt(0)")
            a("s_barrier")
        if n + 3 < 96:
            rd(n + 3)
            a("s_waitcnt lgkmcnt(6)")
        else:
            a(f"s_waitcnt lgkmcnt({2*(95-n)})")
        f = WFR + 4*(n % 4); xf = XF + 4*ks; acc = ACC + 16*x
        c = "0" if ks == 0 else None
        if x < 2: mfma(a, acc, f, xf, c)
        else: mfma(a, acc, xf, f, c)
        if ks == 3 and x > 0: pend = epi(x - 1)
        for _ in range(2):
            if pend: a(pend.pop(0))
    a("s_nop 7"); a("s_nop 3")
    for l in epi(2): a(l)
    stamp(a, 0, 2, v=106)
    if light:
        a("s_cmp_lg_u32 s55, 14")
        a("s_cbranch_scc1 L1_end")
        srd(a, MISC, 20, 1024)
        a("v_lshrrev_b32 v1, 5, v0")
        a("v_lshlrev_b32 v1, 4, v1")
        GA = 36
        for b in range(4):
            for k in range(8):
                a(f"buffer_load_dwordx4 {vr(GA+4*k,4)}, v1, s[{MISC}:{MISC+3}], 0 offen offset:{(b*8+k)*32}")
            for k in range(8):
                a(f"s_waitcnt vmcnt({7-k})")
                mfma(a, 68, GA+4*k, XF + 4*(b*8+k), "0" if b+k == 0 else None)
        a("s_nop 7"); a("s_nop 3")
        a(f"v_mul_f32 v1, {f32(-LOG2E)}, v68")
        a("v_exp_f32 v1, v1")
        a("v_and_b32 v2, 31, v0")
        a("v_add_f32 v1, 1.0, v1")
        a("v_rcp_f32 v1, v1")
        a("v_lshlrev_b32 v2, 2, v2")
        a("s_lshl_b32 s59, s58, 7")
        a(f"s_add_u32 s59, s59, {GG}")
        a(f"buffer_store_dword v1, v2, s[{WS}:{WS+3}], s59 offen")
    a("s_endpgm")

def p1_z(a):
    X, WQ, WI, WS, DBG, MISC = 28, 32, 36, 40, 44, 48
    XFR, WFR, ACC, T = 8, 16, 48, 112
    C1, C2, ONE, SUM, SQ = 160, 162, 164, 166, 168
    swz_read_addrs(a, 2, 60)
    a("v_lshrrev_b32 v1, 5, v0")
    a("v_lshlrev_b32 v6, 11, v1")
    a("v_bfe_u32 v1, v0, 2, 2")
    a("v_lshl_add_u32 v6, v1, 7, v6")
    a("v_bfe_u32 v1, v0, 3, 1")
    a("v_lshl_add_u32 v6, v1, 6, v6")
    a("v_bfe_u32 v1, v0, 4, 1")
    a("v_lshl_add_u32 v6, v1, 5, v6")
    a("v_and_b32 v1, 3, v0")
    a("v_lshl_add_u32 v6, v1, 3, v6")
    a("v_add_u32 v6, 16384, v6")
    a("v_xor_b32 v7, 64, v6")
    for r, v in ((C1, GC1), (C2, GC2), (ONE, 1.0), (SUM, 0.0), (SQ, 0.0)):
        a(f"v_mov_b32 v{r}, {f32(v)}"); a(f"v_mov_b32 v{r+1}, {f32(v)}")
    a("v_lshlrev_b32 v170, 4, v0")
    a("v_and_b32 v1, 31, v0")
    a("v_lshlrev_b32 v171, 3, v1")
    a("v_lshrrev_b32 v172, 5, v0")
    a("v_mul_u32_u24 v172, 7168, v172")
    a("v_add_u32 v172, v172, v171")
    a("v_lshlrev_b32 v173, 6, v1")
    a("v_lshrrev_b32 v1, 5, v0")
    a("v_lshl_add_u32 v173, v1, 3, v173")
    a("s_add_u32 s59, s60, 32768")
    a("v_add_u32 v173, s59, v173")
    a("v_lshlrev_b32 v174, 9, v1")
    a("v_bfe_u32 v1, v0, 2, 2")
    a("v_lshl_add_u32 v174, v1, 6, v174")
    a("v_bfe_u32 v1, v0, 4, 1")
    a("v_lshl_add_u32 v174, v1, 5, v174")
    a("v_and_b32 v1, 3, v0")
    a("v_lshl_add_u32 v174, v1, 3, v174")
    a("v_add_u32 v174, s59, v174")
    a("v_mov_b32 v175, 0")
    a("s_mul_i32 s61, s54, 14336")
    a("s_lshl_b32 s59, s57, 8")
    a("s_add_u32 s61, s61, s59")
    a(f"s_add_u32 s61, s61, {STATS}")
    a("s_add_u32 s69, s61, 4096")
    a("s_lshl_b32 s59, s55, 10")
    a("s_add_u32 s62, s61, s59")
    a("s_mul_i32 s63, s58, 28")
    a("s_lshl_b32 s59, s55, 1")
    a("s_add_u32 s63, s63, s59")
    a("s_lshl_b32 s63, s63, 11")
    a(f"s_add_u32 s63, s63, {Z1F}")
    a("s_lshl_b32 s64, s55, 18")
    a("s_lshl_b32 s59, s58, 11")
    a("s_add_u32 s64, s64, s59")
    a(f"s_add_u32 s64, s64, {Z2F}")
    a("s_add_u32 s65, s64, 131072")
    a("s_lshl_b32 s66, s54, 2")
    a("s_waitcnt lgkmcnt(0)")
    srd(a, WS, 26, WS_SIZE)
    srd(a, DBG, 24, 256)
    stamp(a, 0, 0)
    tiles = [(1, 0), (1, 1), (0, 0), (0, 1)]
    state = dict(win=0)
    def reads(n):
        c, ks = n >> 2, n & 3
        slot = c % 5
        L = []
        w = slot // 2
        if w != state["win"]:
            L += [f"v_add_u32 v{r}, {((w - state['win']) * 65536) & 0xffffffff}, v{r}" for r in range(2, 8)]
            state["win"] = w
        pre = L
        so = (slot % 2) * 32768
        R = [f"ds_read_b128 {vr(XFR + 4*(n&1), 4)}, v{2+ks} offset:{so}"]
        for ti, (slab, tile) in enumerate(tiles):
            f = WFR + 16*(n&1) + 4*ti
            for v in range(2):
                R.append(f"ds_read_b64_tr_b16 {vr(f+2*v,2)}, v{6+tile} offset:{so + ks*4096 + slab*1024 + v*512}")
        return pre, R
    a("s_barrier")
    pre, R = reads(0)
    for l in pre + R: a(l)
    for n in range(32):
        ks = n & 3
        M = lambda ti: mfma(a, ACC + 16*ti, WFR + 16*(n&1) + 4*ti, XFR + 4*(n&1), "0" if n == 0 else None)
        pre, R = reads(n + 1) if n < 31 else ([], [])
        a("s_waitcnt lgkmcnt(6)")
        M(0)
        if ks == 3:
            a("s_waitcnt lgkmcnt(0)")
            a("s_barrier")
            for l in pre + R[0:3]: a(l)
            M(1)
            for l in R[3:6]: a(l)
            M(2)
            for l in R[6:9]: a(l)
            M(3)
        else:
            for l in R[0:3]: a(l)
            a("s_waitcnt lgkmcnt(7)"); M(1)
            for l in R[3:6]: a(l)
            a("s_waitcnt lgkmcnt(8)"); M(2)
            for l in R[6:9]: a(l)
            a("s_waitcnt lgkmcnt(9)"); M(3)
    stamp(a, 0, 1)
    a(f"buffer_load_dword v176, v175, s[{DBG}:{DBG+3}], s66 offen sc1")
    a("s_nop 7")
    for ti in range(2):
        x = ACC + 16*ti
        gelu(a, x, T, C1, C2, ONE)
        for p in range(0, 16, 2):
            a(f"v_pk_add_f32 {vr(SUM,2)}, {vr(SUM,2)}, {vr(x+p,2)}")
            a(f"v_pk_fma_f32 {vr(SQ,2)}, {vr(x+p,2)}, {vr(x+p,2)}, {vr(SQ,2)}")
        if ti == OPT.get("zbar", 1): a("s_barrier")
    a(f"v_add_f32 v{SUM}, v{SUM}, v{SUM+1}")
    a(f"v_add_f32 v{SUM+1}, v{SQ}, v{SQ+1}")
    halfsum(a, SUM, T)
    halfsum(a, SUM+1, T+1)
    a(f"v_and_b32 v{SUM+1}, 0x7fffffff, v{SUM+1}")
    a(f"s_mov_b32 s67, {SPIN}")
    a.label("L1_clr")
    a("s_waitcnt vmcnt(0)")
    a("v_readfirstlane_b32 s59, v176")
    a("s_sub_u32 s67, s67, 1")
    a("s_cbranch_scc1 L1_clrd")
    a("s_cmp_lg_u32 s59, 0")
    a("s_cbranch_scc1 L1_clrd")
    a(f"buffer_load_dword v176, v175, s[{DBG}:{DBG+3}], s66 offen sc1")
    a("s_branch L1_clr")
    a.label("L1_clrd")
    a(f"buffer_store_dwordx2 {vr(SUM,2)}, v171, s[{WS}:{WS+3}], s62 offen sc1")
    for ti in range(2, 4):
        x = ACC + 16*ti
        gelu(a, x, T, C1, C2, ONE)
        o = 128 + 8*(ti - 2)
        for p in range(8): a(f"v_cvt_pk_bf16_f32 v{o+p}, v{x+2*p}, v{x+2*p+1}")
        store4(a, o, 170, WS, "s63", (ti-2)*2048)
        store4(a, o+4, 170, WS, "s63", (ti-2)*2048 + 1024)
    stamp(a, 0, 2)
    S = 144
    a(f"s_mov_b32 s67, {SPIN}")
    a.label("L1_poll")
    for i in range(7):
        a(f"buffer_load_dwordx2 {vr(S+2*i,2)}, v172, s[{WS}:{WS+3}], {'s61' if i < 4 else 's69'} offen offset:{(i%4)*1024} sc1")
    a("s_waitcnt vmcnt(0)")
    a(f"v_or3_b32 v1, v{S+1}, v{S+3}, v{S+5}")
    a(f"v_or3_b32 v1, v1, v{S+7}, v{S+9}")
    a(f"v_or3_b32 v1, v1, v{S+11}, v{S+13}")
    a("v_cmp_gt_i32 vcc, 0, v1")
    a("s_sub_u32 s67, s67, 1")
    a("s_cbranch_scc1 L1_polld")
    a("s_cmp_lg_u64 vcc, 0")
    a("s_cbranch_scc1 L1_poll")
    a.label("L1_polld")
    for i in range(1, 7): a(f"v_pk_add_f32 {vr(S,2)}, {vr(S,2)}, {vr(S+2*i,2)}")
    halfsum(a, S, T)
    halfsum(a, S+1, T+1)
    a(f"v_mul_f32 v{S}, {f32(1.0/896)}, v{S}")
    a(f"v_mul_f32 v{S+1}, {f32(1.0/896)}, v{S+1}")
    a(f"v_fma_f32 v{S+1}, -v{S}, v{S}, v{S+1}")
    a(f"v_max_f32 v{S+1}, 0, v{S+1}")
    a(f"v_add_f32 v{S+1}, {f32(1e-5)}, v{S+1}")
    a(f"v_rsq_f32 v{S+2}, v{S+1}")
    a("s_nop 0")
    a(f"v_mov_b32 v{S+3}, v{S+2}")
    a(f"v_mul_f32 v{S+4}, -v{S}, v{S+2}")
    a(f"v_mov_b32 v{S+5}, v{S+4}")
    for ti in range(2):
        x = ACC + 16*ti
        for p in range(0, 16, 2): a(f"v_pk_fma_f32 {vr(x+p,2)}, {vr(x+p,2)}, {vr(S+2,2)}, {vr(S+4,2)}")
        o = T + 8*ti
        for p in range(8): a(f"v_cvt_pk_bf16_f32 v{o+p}, v{x+2*p}, v{x+2*p+1}")
        for i in range(4): a(f"ds_write_b64 v173, {vr(o+2*i,2)} offset:{ti*2048 + i*16}")
    a("s_waitcnt lgkmcnt(0)")
    for ti in range(2):
        for k in range(2):
            for v in range(2):
                a(f"ds_read_b64_tr_b16 {vr(16 + ti*8 + k*4 + v*2, 2)}, v174 offset:{ti*2048 + k*1024 + v*256}")
    for ti in range(2):
        for k in range(2):
            a(f"s_waitcnt lgkmcnt({6 - 2*(ti*2+k)})")
            store4(a, 16 + ti*8 + k*4, 170, WS, "s64" if ti == 0 else "s65", k*1024)
    stamp(a, 0, 3)
    a("s_endpgm")

def p1_aux(a):
    X, WQ, WI, WS, DBG, MISC = 28, 32, 36, 40, 44, 48
    a("v_lshlrev_b32 v2, 4, v0")
    a("s_waitcnt lgkmcnt(0)")
    srd(a, WS, 26, WS_SIZE)
    srd(a, DBG, 24, 256)
    a("s_cmp_lg_u32 s55, 15")
    a("s_cbranch_scc1 L1_noclr")
    a("s_cmp_lg_u32 s57, 0")
    a("s_cbranch_scc1 L1_noclr")
    for r in range(4, 8): a(f"v_mov_b32 v{r}, -1")
    a("s_mul_i32 s61, s54, 14336")
    a(f"s_add_u32 s61, s61, {STATS}")
    for i in range(14):
        a(f"buffer_store_dwordx4 v[4:7], v2, s[{WS}:{WS+3}], s61 offen offset:{(i%4)*1024} sc1")
        if i % 4 == 3: a("s_add_u32 s61, s61, 4096")
    a("v_mov_b32 v8, 0")
    a("v_mov_b32 v9, 1")
    a("s_lshl_b32 s66, s54, 2")
    a("s_waitcnt vmcnt(0)")
    a(f"buffer_store_dword v9, v8, s[{DBG}:{DBG+3}], s66 offen sc1")
    a.label("L1_noclr")
    a("s_sub_u32 s59, s55, 14")
    a("s_lshl_b32 s59, s59, 4")
    a("s_add_u32 s59, s59, s54")
    a("s_lshl_b32 s59, s59, 2")
    a("s_add_u32 s61, s59, s57")
    a("s_cmp_ge_u32 s61, 88")
    a("s_cbranch_scc1 L1_end")
    a("s_lshl_b32 s62, s61, 14")
    srd(a, MISC, 8, 512*1024)
    a("s_cmp_lt_u32 s61, 32")
    a("s_cbranch_scc1 L1_wo")
    srd(a, MISC, 18, 896*1024)
    a(f"s_sub_u32 s62, s62, {32*16384}")
    a.label("L1_wo")
    a("s_lshl_b32 s63, s57, 15")
    a("s_add_u32 s63, s63, 16384")
    for g in range(4):
        a(f"s_add_u32 m0, s63, {g*4096}")
        a("s_nop 0")
        for i in range(4):
            a(f"buffer_load_dwordx4 v2, s[{MISC}:{MISC+3}], s62 offen offset:{i*1024} lds")
        a("s_add_u32 s62, s62, 4096")
    a("v_lshrrev_b32 v1, 5, v0")
    a("v_lshlrev_b32 v3, 12, v1")
    a("v_bfe_u32 v1, v0, 2, 2")
    a("v_lshl_add_u32 v3, v1, 10, v3")
    a("v_bfe_u32 v1, v0, 4, 1")
    a("v_lshl_add_u32 v3, v1, 5, v3")
    a("v_and_b32 v1, 3, v0")
    a("v_lshl_add_u32 v3, v1, 3, v3")
    a("v_add_u32 v3, s63, v3")
    a("s_lshl_b32 s62, s61, 10")
    a(f"s_add_u32 s62, s62, {WF}")
    a("s_waitcnt vmcnt(0)")
    for nt in range(16):
        for v in range(2):
            a(f"ds_read_b64_tr_b16 {vr(16 + nt*4 + v*2, 2)}, v3 offset:{v*8192 + nt*64}")
    a("s_waitcnt lgkmcnt(0)")
    for nt in range(16):
        store4(a, 16 + nt*4, 2, WS, "s62", 0)
        a(f"s_add_u32 s62, s62, {88*1024}")

def gen_p2(a):
    prologue(a, "L2_end")
    a("s_cmp_ge_u32 s56, 4")
    a("s_cbranch_scc1 L2_sp")
    p2_att(a)
    a.label("L2_sp")
    p2_sp(a)
    a.label("L2_end")
    a("s_endpgm")

def p2_att(a):
    WS = 40
    Q, KS, VS, S, NM, O, T = 8, 16, 32, 64, 96, 128, 160
    a("s_lshl_b32 s54, s52, 2")
    a("s_lshr_b32 s59, s53, 3")
    a("s_add_u32 s54, s54, s59")
    a("s_and_b32 s55, s53, 7")
    a("s_lshl_b32 s55, s55, 3")
    a("s_lshl_b32 s59, s57, 1")
    a("s_add_u32 s55, s55, s59")
    a("s_lshl_b32 s60, s54, 6")
    a("s_add_u32 s60, s60, s55")
    a("s_lshl_b32 s60, s60, 10")
    if QF: a(f"s_add_u32 s60, s60, {QF}")
    a("s_lshl_b32 s61, s54, 17")
    a(f"s_add_u32 s61, s61, {KVF}")
    a("s_lshl_b32 s62, s57, 11")
    a("s_add_u32 s63, s61, s62")
    a("s_lshl_b32 s64, s55, 7")
    a(f"s_add_u32 s64, s64, {GG}")
    a("v_lshlrev_b32 v4, 4, v0")
    a("v_and_b32 v5, 31, v0")
    a("v_lshlrev_b32 v5, 2, v5")
    a("s_waitcnt lgkmcnt(0)")
    srd(a, WS, 26, WS_SIZE)
    a(f"buffer_load_dwordx4 {vr(Q,4)}, v4, s[{WS}:{WS+3}], s60 offen")
    a(f"buffer_load_dwordx4 {vr(Q+4,4)}, v4, s[{WS}:{WS+3}], s60 offen offset:1024")
    a(f"buffer_load_dwordx4 {vr(KS,4)}, v4, s[{WS}:{WS+3}], s61 offen")
    a(f"buffer_load_dword v6, v5, s[{WS}:{WS+3}], s64 offen")
    a(f"buffer_load_dword v7, v5, s[{WS}:{WS+3}], s64 offen offset:128")
    stamp(a, 1, 0)
    a("s_mov_b32 m0, s62")
    a("s_cmp_eq_u32 s57, 0")
    a("s_cbranch_scc1 L2_skipk0")
    a(f"buffer_load_dwordx4 v4, s[{WS}:{WS+3}], s63 offen lds")
    a.label("L2_skipk0")
    a(f"buffer_load_dwordx4 v4, s[{WS}:{WS+3}], s63 offen offset:1024 lds")
    for n in range(1, 16):
        a(f"s_add_u32 m0, s62, {n*8192}")
        a("s_add_u32 s63, s63, 8192")
        a(f"buffer_load_dwordx4 v4, s[{WS}:{WS+3}], s63 offen lds")
        a(f"buffer_load_dwordx4 v4, s[{WS}:{WS+3}], s63 offen offset:1024 lds")
    a("v_mov_b32 v1, 0")
    a("ds_write_b32 v5, v1")
    a("v_mov_b32 v3, 0xdddd")
    a("v_mov_b32 v1, v4")
    a("v_and_b32 v2, 15, v0")
    a(f"v_lshrrev_b32 v{T}, 5, v0")
    a(f"v_lshl_or_b32 v2, v{T}, 4, v2")
    a("v_lshlrev_b32 v2, 4, v2")
    a("v_add_u32 v2, 1024, v2")
    a("v_add_u32 v176, 0x10000, v1")
    a("v_add_u32 v177, 0x10000, v2")
    a("v_mov_b32 v178, 1")
    a("s_lshl_b32 s59, s57, 2")
    a("v_mov_b32 v179, s59")
    for r in range(VS, VS + 32): a(f"v_mov_b32 v{r}, 0x3f803f80")
    for r in range(O, O + 32): a(f"v_mov_b32 v{r}, 0")
    a("s_mov_b32 s66, 0xffff")
    a("s_mov_b32 s67, 0xffff")
    a("s_mul_i32 s65, s55, 88")
    a("s_add_u32 s65, s65, s54")
    a("s_lshl_b32 s65, s65, 10")
    a(f"s_add_u32 s65, s65, {AF}")
    a(f"s_add_u32 s68, s65, {88*1024}")
    a("s_waitcnt vmcnt(31)")
    mfma(a, S, KS, Q, "0")
    mfma(a, S + 16, KS, Q + 4, "0")
    a("s_nop 7"); a("s_nop 2")
    def rowmax(s, d):
        a(f"v_max3_f32 v{d}, v{s}, v{s+1}, v{s+2}")
        for p in range(3, 15, 2): a(f"v_max3_f32 v{d}, v{d}, v{s+p}, v{s+p+1}")
        a(f"v_max_f32 v{d}, v{d}, v{s+15}")
    for q in range(2):
        rowmax(S + 16*q, T + q)
        halfsum(a, T + q, T + 2, "v_max_f32")
        for r in range(16): a(f"v_sub_f32 v{NM + 16*q + r}, 0, v{T+q}")
    a("s_waitcnt vmcnt(28) lgkmcnt(0)")
    a("s_barrier")
    def kreg(kt): return KS + 4*(kt & 3)
    def vreg(kt): return VS + 8*(kt & 3)
    def rd(kts, skipk=()):
        L = []
        for kt in kts:
            if kt < 64 and kt not in skipk:
                L.append(f"ds_read_b128 {vr(kreg(kt),4)}, v{1 if kt < 32 else 176} offset:{(kt % 32)*2048}")
        L.append("s_mov_b64 exec, s[66:67]")
        for kt in kts:
            if kt < 64:
                for s_ in range(2):
                    L.append(f"ds_read_b128 {vr(vreg(kt)+4*s_,4)}, v{2 if kt < 32 else 177} offset:{(kt % 32)*2048 + s_*512}")
        L.append("s_mov_b64 exec, -1")
        return L
    for l in rd([0, 1], skipk=(0,)): a(l)
    mfma(a, S, KS, Q, NM)
    a("s_waitcnt lgkmcnt(0)")
    a("s_nop 7"); a("s_nop 2")
    stamp(a, 1, 1)
    pa, pb, pc = OPT.get("pos", (2, 5, 12))
    for k in range(128):
        q, kt = k & 1, k >> 1
        sA, sB = S + 16*(k & 1), S + 16*((k + 1) & 1)
        ev = {pa: [], pb: [], pc: []}
        if k > 0:
            qp, ktp = (k - 1) & 1, (k - 1) >> 1
            ev[pa].append(f"v_smfmac_f32_32x32x32_bf16 {vr(O+16*qp,16)}, {vr(vreg(ktp)+4,4)}, {vr(sB+8,8)}, v3")
        if k % 4 == 0 and kt + 2 < 64:
            if kt + 2 == 8:
                ev[pa] += ["s_waitcnt vmcnt(0)", "s_barrier"]
            ev[pa] += rd([kt + 2, kt + 3])
        if k % 4 == 3 and k < 127:
            ev[pa].append("s_waitcnt lgkmcnt(0)")
            if kt == 41: ev[pa].append("ds_write_b32 v179, v178")
        if k < 127:
            qn, ktn = (k + 1) & 1, (k + 1) >> 1
            ev[pb].append(f"v_mfma_f32_32x32x16_bf16 {vr(sB,16)}, {vr(kreg(ktn),4)}, {vr(Q+4*qn,4)}, {vr(NM+16*qn,16)}")
        ev[pc].append(f"v_smfmac_f32_32x32x32_bf16 {vr(O+16*q,16)}, {vr(vreg(kt),4)}, {vr(sA,8)}, v3")
        for i in range(16):
            for l in ev.get(i, []): a(l)
            a(f"v_exp_f32 v{sA+i}, v{sA+i}")
    a("s_nop 1")
    a(f"v_smfmac_f32_32x32x32_bf16 {vr(O+16,16)}, {vr(vreg(63)+4,4)}, {vr(S+16+8,8)}, v3")
    a(f"s_mov_b32 s70, {f32(2.0**64)}")
    a(f"s_mov_b32 s71, {f32(2.0**-64)}")
    a("s_nop 7"); a("s_nop 1")
    a(f"v_max_f32 v{T}, v{O+8}, v{O+24}")
    a(f"v_min_f32 v{T+1}, v{O+8}, v{O+24}")
    a(f"v_add_f32 v{T+2}, v{O+8}, v{O+24}")
    a(f"v_cmp_gt_f32 s[72:73], s70, v{T}")
    a(f"v_cmp_lt_f32 s[74:75], s71, v{T+1}")
    a(f"v_cmp_o_f32 vcc, v{T+2}, v{T+2}")
    a("s_nop 1")
    a("s_and_b64 s[72:73], s[72:73], s[74:75]")
    a("s_and_b64 s[72:73], s[72:73], vcc")
    a("s_cmp_eq_u64 s[72:73], -1")
    a("s_cbranch_scc0 L2_slow")
    a.label("L2_fin")
    stamp(a, 1, 2)
    for q in range(2):
        o = O + 16*q
        a(f"v_rcp_f32 v{T}, v{o+8}")
        a("s_nop 0")
        a(f"v_mul_f32 v{T}, v{T}, v{6+q}")
        for r in range(8): a(f"v_mul_f32 v{o+r}, v{o+r}, v{T}")
        for p in range(4): a(f"v_cvt_pk_bf16_f32 v{T+4+4*q+p}, v{o+2*p}, v{o+2*p+1}")
        store4(a, T + 4 + 4*q, 4, WS, "s65" if q == 0 else "s68")
    stamp(a, 1, 3)
    a("s_endpgm")
    a.label("L2_slow")
    a(f"v_mov_b32 v{T}, 0xff800000")
    a(f"v_mov_b32 v{T+1}, 0xff800000")
    a("s_mov_b32 s63, s61")
    a("s_mov_b32 s69, 64")
    a.label("L2_s1")
    a(f"buffer_load_dwordx4 {vr(KS,4)}, v4, s[{WS}:{WS+3}], s63 offen")
    a("s_waitcnt vmcnt(0)")
    mfma(a, S, KS, Q, "0")
    mfma(a, S + 16, KS, Q + 4, "0")
    a("s_nop 7"); a("s_nop 3")
    for q in range(2):
        for p in range(0, 16, 2): a(f"v_max3_f32 v{T+q}, v{T+q}, v{S+16*q+p}, v{S+16*q+p+1}")
    a("s_add_u32 s63, s63, 2048")
    a("s_sub_u32 s69, s69, 1")
    a("s_cmp_lg_u32 s69, 0")
    a("s_cbranch_scc1 L2_s1")
    for q in range(2): halfsum(a, T + q, T + 2, "v_max_f32")
    for r in range(O, O + 32): a(f"v_mov_b32 v{r}, 0")
    a("s_mov_b32 s63, s61")
    a("s_mov_b32 s69, 64")
    a.label("L2_s2")
    a(f"buffer_load_dwordx4 {vr(KS,4)}, v4, s[{WS}:{WS+3}], s63 offen")
    a("s_mov_b64 exec, s[66:67]")
    a(f"buffer_load_dwordx4 {vr(VS,4)}, v2, s[{WS}:{WS+3}], s63 offen")
    a(f"buffer_load_dwordx4 {vr(VS+4,4)}, v2, s[{WS}:{WS+3}], s63 offen offset:512")
    a("s_mov_b64 exec, -1")
    a("s_waitcnt vmcnt(0)")
    mfma(a, S, KS, Q, "0")
    mfma(a, S + 16, KS, Q + 4, "0")
    a("s_nop 7"); a("s_nop 3")
    for q in range(2):
        for p in range(16): a(f"v_sub_f32 v{S+16*q+p}, v{S+16*q+p}, v{T+q}")
        for p in range(16): a(f"v_exp_f32 v{S+16*q+p}, v{S+16*q+p}")
    a("s_nop 1")
    for q in range(2):
        for s_ in range(2):
            a(f"v_smfmac_f32_32x32x32_bf16 {vr(O+16*q,16)}, {vr(VS+4*s_,4)}, {vr(S+16*q+8*s_,8)}, v3")
    a("s_add_u32 s63, s63, 2048")
    a("s_sub_u32 s69, s69, 1")
    a("s_cmp_lg_u32 s69, 0")
    a("s_cbranch_scc1 L2_s2")
    a("s_nop 7"); a("s_nop 3")
    a("s_branch L2_fin")

def p2_sp(a):
    WS, WSP, BSP = 40, 28, 32
    WFR, ZS, ACC, T = 16, 48, 112, 224
    a("s_lshr_b32 s54, s52, 1")
    a("s_lshl_b32 s54, s54, 3")
    a("s_and_b32 s59, s53, 7")
    a("s_add_u32 s54, s54, s59")
    a("s_and_b32 s55, s52, 1")
    a("s_lshl_b32 s55, s55, 2")
    a("s_lshr_b32 s59, s53, 3")
    a("s_add_u32 s55, s55, s59")
    a("s_and_b32 s58, s55, 1")
    a("s_lshl_b32 s60, s54, 1")
    a("s_add_u32 s60, s60, s58")
    a("s_xor_b32 s61, s60, 1")
    a("s_lshr_b32 s59, s55, 1")
    a("s_mul_i32 s59, s59, 7")
    a("s_add_u32 s65, s59, 3")
    a("s_lshl_b32 s62, s58, 2")
    a("s_add_u32 s62, s62, s59")
    a("s_add_u32 s63, s62, 1")
    a("s_add_u32 s64, s62, 2")
    a("s_lshl_b32 s59, s57, 15")
    a(f"s_add_u32 s59, s59, {Z2F}")
    for i in range(4):
        a(f"s_lshl_b32 s{66+i}, s{62+i}, 17")
        a(f"s_add_u32 s{66+i}, s{66+i}, s59")
    a("s_lshl_b32 s59, s57, 10")
    for i in range(2):
        a(f"s_lshl_b32 s{70+i}, s{60+i}, 17")
        a(f"s_add_u32 s{70+i}, s{70+i}, s59")
    a("s_lshl_b32 s72, s57, 13")
    a("s_add_u32 s72, s72, 0x20000")
    a("s_add_u32 s73, s72, 4096")
    swz_row_voffs(a, 2, stride_shift=12)
    a("v_lshlrev_b32 v1, 4, v0")
    a("s_waitcnt lgkmcnt(0)")
    srd(a, WS, 26, WS_SIZE)
    srd(a, WSP, 14, 2048*4096)
    def wdma():
        for t in range(2):
            a(f"s_mov_b32 m0, s{72+t}")
            a("s_nop 0")
            for q in range(4):
                a(f"buffer_load_dwordx4 v{2+q}, s[{WSP}:{WSP+3}], s{70+t} offen offset:{q*1024} lds")
            a(f"s_add_u32 s{70+t}, s{70+t}, 128")
    def zload(ks):
        for i in range(4):
            a(f"buffer_load_dwordx4 {vr(ZS + 16*ks + 4*i, 4)}, v1, s[{WS}:{WS+3}], s{66+i} offen offset:{ks*1024}")
        if ks == 3:
            for i in range(4): a(f"s_add_u32 s{66+i}, s{66+i}, 4096")
    stamp(a, 1, 0)
    wdma()
    for ks in range(4): zload(ks)
    swz_read_addrs(a, 6, 72, tmp=10)
    srd(a, BSP, 16, 4096)
    tiles = [(0, 0), (0, 1), (0, 2), (0, 3), (1, 0), (1, 1), (1, 2)]
    for n, (t, f) in enumerate(tiles):
        a(f"s_mul_i32 s59, s{60+t}, 28")
        a(f"s_add_u32 s59, s59, s{62+f}")
        a(f"s_lshl_b32 s59, s59, 11")
        a(f"s_add_u32 s{76+n}, s59, {Z1F}")
        a(f"s_mul_i32 s59, s{60+t}, 44")
        a(f"s_add_u32 s59, s59, s{62+f}")
        a(f"s_lshl_b32 s59, s59, 11")
        a(f"s_add_u32 s{84+n}, s59, {AF + 32*1024}")
    a("s_barrier")
    for st in range(8):
        last = st == 7
        a("s_waitcnt vmcnt(16)")
        for t in range(2):
            for ks in range(4):
                a(f"ds_read_b128 {vr(WFR + 16*t + 4*ks, 4)}, v{6+ks} offset:{t*4096}")
        a("s_waitcnt lgkmcnt(0)")
        if not last: wdma()
        for ks in range(4):
            a(f"s_waitcnt vmcnt({(3-ks)*4 if last else 20})")
            for n, (t, f) in enumerate(tiles):
                mfma(a, ACC + 16*n, ZS + 16*ks + 4*f, WFR + 16*t + 4*ks, "0" if st + ks == 0 else None)
            if not last: zload(ks)
        if st == 0: a("s_barrier")
    stamp(a, 1, 1)
    a("v_and_b32 v14, 31, v0")
    a("v_lshlrev_b32 v15, 2, v14")
    a("v_lshlrev_b32 v14, 1, v14")
    for t in range(2):
        a(f"s_lshl_b32 s59, s{60+t}, 6")
        a(f"buffer_load_ushort v{10+t}, v14, s[{BSP}:{BSP+3}], s59 offen")
        a(f"s_lshl_b32 s59, s{60+t}, 7")
        a(f"s_add_u32 s59, s59, {GG}")
        a(f"buffer_load_dword v{12+t}, v15, s[{WS}:{WS+3}], s59 offen")
    a("v_mov_b32 v2, 0")
    a("v_add_u32 v3, 0x10000, v1")
    a("v_mov_b32 v4, 1")
    a("s_lshl_b32 s59, s57, 2")
    a("s_add_u32 s59, s59, 16")
    a("v_mov_b32 v5, s59")
    def poll(lbl, off):
        a(f"s_mov_b32 s74, {SPIN}")
        a.label(lbl)
        a(f"ds_read_b128 v[6:9], v2 offset:{off}")
        a("s_waitcnt lgkmcnt(0)")
        a("v_and_b32 v6, v6, v7")
        a("v_and_b32 v8, v8, v9")
        a("v_and_b32 v6, v6, v8")
        a("s_sub_u32 s74, s74, 1")
        a("v_readfirstlane_b32 s59, v6")
        a(f"s_cbranch_scc1 {lbl}d")
        a("s_cmp_lg_u32 s59, 0")
        a(f"s_cbranch_scc1 {lbl}d")
        a("s_sleep 2")
        a(f"s_branch {lbl}")
        a.label(lbl + "d")
    owner = [0,0,0,0,1,1,1,1,2,2,2,3,3,3]
    def slot(n, src):
        si = src if src < owner[n] else src - 1
        ad = 2048 + (n*3 + si)*2048
        return (1, ad) if ad + 1024 < 65536 else (3, ad - 65536)
    for w in range(4):
        if w < 3:
            a(f"s_cmp_lg_u32 s57, {w}")
            a(f"s_cbranch_scc1 L2_w{w+1}")
        mine = [n for n in range(14) if owner[n] == w]
        Z1R = 16
        for i, n in enumerate(mine):
            a(f"buffer_load_dwordx4 {vr(Z1R+4*i,4)}, v1, s[{WS}:{WS+3}], s{76 + (n>>1)} offen offset:{(n&1)*1024}")
        poll(f"L2_pa{w}", 0)
        for n in range(14):
            if owner[n] != w:
                r, ad = slot(n, w)
                a(f"ds_write_b128 v{r}, {vr(ACC+8*n,4)} offset:{ad}")
                a(f"ds_write_b128 v{r}, {vr(ACC+8*n+4,4)} offset:{ad+1024}")
        a("s_waitcnt lgkmcnt(0)")
        a("ds_write_b32 v5, v4")
        a("s_waitcnt vmcnt(0)")
        for t in range(2):
            a(f"v_sub_f32 v{32+4*t}, 1.0, v{12+t}")
            a(f"v_lshlrev_b32 v{10+t}, 16, v{10+t}")
            a(f"v_mov_b32 v{33+4*t}, v{32+4*t}")
            a(f"v_mul_f32 v{34+4*t}, v{10+t}, v{32+4*t}")
            a(f"v_mov_b32 v{35+4*t}, v{34+4*t}")
        poll(f"L2_pb{w}", 16)
        P = 48
        def rdp(i):
            n = mine[i]
            for si, src in enumerate([s_ for s_ in range(4) if s_ != w]):
                r, ad = slot(n, src)
                a(f"ds_read_b128 {vr(P + 24*(i&1) + 8*si, 4)}, v{r} offset:{ad}")
                a(f"ds_read_b128 {vr(P + 24*(i&1) + 8*si + 4, 4)}, v{r} offset:{ad+1024}")
        rdp(0)
        for i, n in enumerate(mine):
            if i + 1 < len(mine):
                rdp(i + 1); a("s_waitcnt lgkmcnt(6)")
            else:
                a("s_waitcnt lgkmcnt(0)")
            x = ACC + 8*n; p0 = P + 24*(i&1); t = tiles[n >> 1][0]
            for si in range(3):
                for p in range(0, 8, 2): a(f"v_pk_add_f32 {vr(x+p,2)}, {vr(x+p,2)}, {vr(p0+8*si+p,2)}")
            for p in range(0, 8, 2): a(f"v_pk_fma_f32 {vr(x+p,2)}, {vr(x+p,2)}, {vr(32+4*t,2)}, {vr(34+4*t,2)}")
            for p in range(4):
                a(f"v_lshlrev_b32 v{T+2*p}, 16, v{Z1R+4*i+p}")
                a(f"v_and_b32 v{T+2*p+1}, 0xffff0000, v{Z1R+4*i+p}")
            for p in range(0, 8, 2): a(f"v_pk_mul_f32 {vr(x+p,2)}, {vr(x+p,2)}, {vr(T+p,2)}")
            o = T + 8 + 4*i
            for p in range(4): a(f"v_cvt_pk_bf16_f32 v{o+p}, v{x+2*p}, v{x+2*p+1}")
            store4(a, o, 1, WS, f"s{84 + (n>>1)}", (n&1)*1024)
        stamp(a, 1, 2)
        a("s_endpgm")
        if w < 3: a.label(f"L2_w{w+1}")

def gen_p3(a):
    WS, OUT = 40, 28
    R, ACC = 8, 184
    D = 11
    prologue(a, "L3_end")
    a("s_lshr_b32 s54, s52, 1")
    a("s_lshl_b32 s54, s54, 3")
    a("s_and_b32 s59, s53, 7")
    a("s_add_u32 s54, s54, s59")
    a("s_and_b32 s55, s52, 1")
    a("s_lshl_b32 s55, s55, 2")
    a("s_lshr_b32 s59, s53, 3")
    a("s_add_u32 s55, s55, s59")
    a("s_lshl_b32 s60, s54, 1")
    a("s_lshr_b32 s59, s57, 1")
    a("s_add_u32 s60, s60, s59")
    a("s_xor_b32 s61, s60, 1")
    a("s_lshl_b32 s62, s55, 1")
    a("s_and_b32 s59, s57, 1")
    a("s_add_u32 s62, s62, s59")
    a("s_xor_b32 s63, s62, 1")
    a("s_mul_i32 s59, s57, %d" % (22*1024))
    for i in range(4):
        a(f"s_mul_i32 s{64+i}, s{60+i}, {88*1024}")
        a(f"s_add_u32 s{64+i}, s{64+i}, s59")
        a(f"s_add_u32 s{64+i}, s{64+i}, {AF if i < 2 else WF}")
    a("v_lshlrev_b32 v1, 4, v0")
    a("s_waitcnt lgkmcnt(0)")
    srd(a, WS, 26, WS_SIZE)
    stamp(a, 2, 0)
    def load(ks):
        for i in range(4):
            a(f"buffer_load_dwordx4 {vr(R + 16*(ks % D) + 4*i, 4)}, v1, s[{WS}:{WS+3}], s{64+i} offen offset:{(ks%4)*1024}")
        if ks % 4 == 3:
            for i in range(4): a(f"s_add_u32 s{64+i}, s{64+i}, 4096")
    for ks in range(D): load(ks)
    srd(a, OUT, 22, 2048*1024)
    for lam in (1, 2, 3):
        a(f"s_xor_b32 s59, s57, {lam}")
        a(f"s_mul_i32 s59, s59, 12288")
        a(f"s_add_u32 s59, s59, {(lam-1)*4096}")
        a(f"v_add_u32 v{1+lam}, s59, v1")
    a("s_mul_i32 s59, s57, 12288")
    a("v_add_u32 v5, s59, v1")
    a("v_and_b32 v6, 31, v0")
    a("v_lshlrev_b32 v6, 10, v6")
    a("v_lshrrev_b32 v7, 5, v0")
    a("v_lshl_add_u32 v6, v7, 4, v6")
    a("s_lshl_b32 s68, s60, 15")
    a("s_lshl_b32 s59, s62, 6")
    a("s_add_u32 s68, s68, s59")
    for ks in range(22):
        rem = min(21 - ks, D - 1)
        a(f"s_waitcnt vmcnt({4*rem})")
        r = R + 16*(ks % D)
        for lam in (1, 2, 3, 0):
            mfma(a, ACC + 16*lam, r + 8 + 4*(lam & 1), r + 4*(lam >> 1), "0" if ks == 0 else None)
        if ks + D < 22: load(ks + D)
    stamp(a, 2, 1)
    a("s_nop 7"); a("s_nop 1")
    for lam in (1, 2, 3):
        for i in range(4):
            a(f"ds_write_b128 v{1+lam}, {vr(ACC + 16*lam + 4*i, 4)} offset:{i*1024}")
    a("s_waitcnt lgkmcnt(0)")
    a("s_barrier")
    for i in range(12):
        a(f"ds_read_b128 {vr(R + 4*i, 4)}, v5 offset:{i*1024}")
    for s_ in range(3):
        a(f"s_waitcnt lgkmcnt({8 - 4*s_})")
        for p in range(0, 16, 2): a(f"v_pk_add_f32 {vr(ACC+p,2)}, {vr(ACC+p,2)}, {vr(R+16*s_+p,2)}")
    for p in range(8): a(f"v_cvt_pk_bf16_f32 v{64+p}, v{ACC+2*p}, v{ACC+2*p+1}")
    a("s_nop 1")
    for b in (64, 68):
        a(f"v_permlane32_swap_b32 v{b}, v{b+2}")
        a(f"v_permlane32_swap_b32 v{b+1}, v{b+3}")
    a(f"buffer_store_dwordx4 v[64:67], v6, s[{OUT}:{OUT+3}], s68 offen")
    a(f"buffer_store_dwordx4 v[68:71], v6, s[{OUT}:{OUT+3}], s68 offen offset:32")
    stamp(a, 2, 2)
    a.label("L3_end")
    a("s_endpgm")

KERNELS = [("p1_kernel", gen_p1, 512, 163840, 256), ("p2_kernel", gen_p2, 512, 163840, 256), ("p3_kernel", gen_p3, 256, 49152, 256)]

def main():
    ref = open(f"cdna_kernels/{NAME}.s.ref").read().split("\n")
    hdr = [l for l in ref if l.startswith(";") and "@launch" not in l and "Override launch" not in l and "grid=ceil" not in l]
    out = list(hdr)
    for k, _, blk, lds, _ in KERNELS:
        out.append(f"; @launch kernel={k} grid=(256,1,1) block=({blk},1,1) lds={lds}")
    out.append('.amdgcn_target "amdgcn-amd-amdhsa--gfx950"')
    out.append(".text")
    bad = 0
    for k, g, _, _, _ in KERNELS:
        a = Asm(); g(a)
        bad += check(a.lines, k)
        out += [f".globl {k}", ".p2align 8", f".type {k},@function", f"{k}:"] + a.lines
    out.append('.section .rodata,"a"')
    for k, _, _, _, vg in KERNELS:
        out += [".p2align 6", f".amdhsa_kernel {k}", f"  .amdhsa_next_free_vgpr {vg}", "  .amdhsa_next_free_sgpr 102",
                f"  .amdhsa_accum_offset {(vg+3)//4*4}", "  .amdhsa_group_segment_fixed_size 0", "  .amdhsa_kernarg_size 96",
                "  .amdhsa_user_sgpr_count 2", "  .amdhsa_user_sgpr_kernarg_segment_ptr 1", "  .amdhsa_system_sgpr_workgroup_id_x 1",
                "  .amdhsa_float_denorm_mode_32 3", ".end_amdhsa_kernel"]
    open(sys.argv[1], "w").write("\n".join(out) + "\n")
    print("hazards:", bad, "lines:", len(out))
main()
```

```python
import sys, struct
from asmlib import Asm, vr, sr, check

NAME = "gated_mix__softmax_full_mha__mixer_gmlp__prompt"
MB = 1 << 20
QF, KVF, Z1F, Z2F, AF, WF = 0, 2*MB, 6*MB, 10*MB, 14*MB, 20*MB
GG = 22*MB
STATS = 22*MB + 65536
STAMP = 23*MB
WS_SIZE = 24*MB
def f32(x): return "0x%08x" % struct.unpack("<I", struct.pack("<f", x))[0]
LOG2E = 1.4426950408889634
QSCALE = 0.25 * LOG2E
GC1 = -2.0 * LOG2E * 0.7978845608028654
GC2 = GC1 * 0.044715
SPIN = 1 << 16

OPT = dict(stamp=False, st="")
for a_ in sys.argv[2:]:
    k_, v_ = a_.split("=")
    OPT[k_] = eval(v_)

def srd(a, d, p, size):
    if p == 26 and OPT.get("wsoff", 0):
        a(f"s_add_u32 s{d}, s{p}, {OPT['wsoff']*MB}")
        a(f"s_addc_u32 s{d+1}, s{p+1}, 0")
    else:
        a(f"s_mov_b32 s{d}, s{p}")
        a(f"s_mov_b32 s{d+1}, s{p+1}")
    a(f"s_mov_b32 s{d+2}, {size}")
    a(f"s_mov_b32 s{d+3}, 0x20000")

def prologue(a, endlabel):
    a(f"s_cmp_ge_u32 s2, 256")
    a(f"s_cbranch_scc1 {endlabel}")
    if OPT["stamp"]:
        a("s_memrealtime s[96:97]")
        a("s_memtime s[94:95]")
    a("s_load_dwordx16 s[4:19], s[0:1], 0")
    a("s_load_dwordx8 s[20:27], s[0:1], 64")
    a("v_lshrrev_b32 v1, 6, v0")
    a("s_and_b32 s52, s2, 7")
    a("v_readfirstlane_b32 s56, v1")
    a("s_lshr_b32 s53, s2, 3")
    a("v_and_b32 v0, 63, v0")
    a("s_and_b32 s57, s56, 3")

def stamp(a, phase, slot, ws=40, v=254):
    if not OPT["stamp"]: return
    if slot:
        a("s_memrealtime s[96:97]")
        a("s_memtime s[94:95]")
    a("s_waitcnt lgkmcnt(0)")
    a("s_lshl_b32 s98, s2, 3")
    a("s_add_u32 s98, s98, s56")
    a("s_lshl_b32 s98, s98, 5")
    a(f"s_add_u32 s98, s98, {STAMP + phase*65536 + slot*4}")
    a(f"v_mov_b32 v{v}, s96")
    a(f"v_mov_b32 v{v+1}, 0")
    a(f"buffer_store_dword v{v}, v{v+1}, s[{ws}:{ws+3}], s98 offen")
    a(f"v_mov_b32 v{v}, s94")
    a(f"buffer_store_dword v{v}, v{v+1}, s[{ws}:{ws+3}], s98 offen offset:16")

def mfma(a, d, A, B, c=None):
    cc = vr(d, 16) if c is None else (c if isinstance(c, str) else vr(c, 16))
    a(f"v_mfma_f32_32x32x16_bf16 {vr(d,16)}, {vr(A,4)}, {vr(B,4)}, {cc}")

def store4(a, v, voff, srd_, soff, off=0, flags=None):
    fl = OPT["st"] if flags is None else flags
    a(f"buffer_store_dwordx4 {vr(v,4)}, v{voff}, s[{srd_}:{srd_+3}], {soff} offen offset:{off} {fl}")

def swz_row_voffs(a, base, stride_shift=None, stride=None, tmp=1):
    t, u = tmp, base + 3
    a(f"v_lshrrev_b32 v{t}, 4, v0")
    a(f"v_and_b32 v{u}, 7, v0")
    a(f"v_xor_b32 v{u}, v{u}, v{t}")
    a(f"v_lshrrev_b32 v{t}, 3, v0")
    a(f"v_lshlrev_b32 v{t}, {stride_shift}, v{t}")
    a(f"v_lshl_add_u32 v{base}, v{u}, 4, v{t}")
    a(f"v_xor_b32 v{u}, 4, v{u}")
    a(f"v_lshl_add_u32 v{base+1}, v{u}, 4, v{t}")
    st = 1 << stride_shift
    a(f"v_add_u32 v{base+1}, {8*st - 1024}, v{base+1}")
    a(f"v_add_u32 v{base+2}, {16*st - 2048}, v{base}")
    a(f"v_add_u32 v{base+3}, {16*st - 2048}, v{base+1}")

def swz_read_addrs(a, base, sbase, tmp=1):
    t, u = tmp, base + 3
    a(f"v_bfe_u32 v{t}, v0, 1, 3")
    a(f"v_lshrrev_b32 v{u}, 5, v0")
    a(f"v_xor_b32 v{t}, v{t}, v{u}")
    a(f"v_lshlrev_b32 v{t}, 4, v{t}")
    a(f"v_and_b32 v{u}, 31, v0")
    a(f"v_lshl_add_u32 v{t}, v{u}, 7, v{t}")
    a(f"v_add_u32 v{base}, s{sbase}, v{t}")
    for ks in (1, 2, 3):
        a(f"v_xor_b32 v{base+ks}, {ks*32}, v{base}")

def gelu(a, x, t, C1, C2, ONE, n=16):
    for p in range(0, n, 2): a(f"v_pk_mul_f32 {vr(t+p,2)}, {vr(x+p,2)}, {vr(x+p,2)}")
    for p in range(0, n, 2): a(f"v_pk_fma_f32 {vr(t+p,2)}, {vr(t+p,2)}, {vr(C2,2)}, {vr(C1,2)}")
    for p in range(0, n, 2): a(f"v_pk_mul_f32 {vr(t+p,2)}, {vr(t+p,2)}, {vr(x+p,2)}")
    for p in range(n): a(f"v_exp_f32 v{t+p}, v{t+p}")
    for p in range(0, n, 2): a(f"v_pk_add_f32 {vr(t+p,2)}, {vr(t+p,2)}, {vr(ONE,2)}")
    for p in range(n): a(f"v_rcp_f32 v{t+p}, v{t+p}")
    for p in range(0, n, 2): a(f"v_pk_mul_f32 {vr(x+p,2)}, {vr(x+p,2)}, {vr(t+p,2)}")

def halfsum(a, v, t, op="v_add_f32"):
    a(f"v_mov_b32 v{t}, v{v}")
    a("s_nop 1")
    a(f"v_permlane32_swap_b32 v{v}, v{t}")
    a(f"{op} v{v}, v{v}, v{t}")

def gen_p1(a):
    X, WQ, WI, WS, DBG, MISC = 28, 32, 36, 40, 44, 48
    prologue(a, "L1_end")
    a("s_and_b32 s54, s52, 1")
    a("s_lshl_b32 s54, s54, 3")
    a("s_and_b32 s59, s53, 7")
    a("s_add_u32 s54, s54, s59")
    a("s_lshr_b32 s55, s52, 1")
    a("s_lshl_b32 s55, s55, 2")
    a("s_lshr_b32 s59, s53, 3")
    a("s_add_u32 s55, s55, s59")
    a("s_lshl_b32 s58, s54, 2")
    a("s_add_u32 s58, s58, s57")
    a("s_lshl_b32 s60, s57, 12")
    a("s_lshr_b32 s59, s53, 3")
    a("s_lshl_b32 s59, s59, 1")
    a("s_add_u32 s70, s59, s53")
    a("s_and_b32 s70, s70, %d" % (7 if OPT.get("rot", 1) else 0))
    a("s_cmp_ge_u32 s56, 4")
    a("s_cbranch_scc1 L1_z")
    swz_row_voffs(a, 2, stride_shift=10)
    a("v_lshrrev_b32 v1, 2, v0")
    a("v_and_b32 v1, 4, v1")
    a("v_and_b32 v6, 7, v0")
    a("v_xor_b32 v6, v6, v1")
    a("v_lshlrev_b32 v6, 4, v6")
    a("v_lshrrev_b32 v1, 3, v0")
    a("v_mul_u32_u24 v1, 3584, v1")
    a("v_add_u32 v6, v6, v1")
    a(f"v_add_u32 v7, {1792-1024}, v6")
    a(f"v_add_u32 v8, {8*3584-2048}, v6")
    a(f"v_add_u32 v9, {8*3584+1792-3072}, v6")
    a("s_lshl_b32 s61, s58, 15")
    a("s_mul_i32 s62, s57, %d" % (16*3584))
    a("s_lshl_b32 s59, s55, 7")
    a("s_add_u32 s62, s62, s59")
    a("s_waitcnt lgkmcnt(0)")
    srd(a, X, 4, 2048*1024)
    srd(a, WI, 12, 512*3584)
    a("s_cmp_ge_u32 s55, 14")
    a("s_cbranch_scc1 L1_ql")
    p1_qkv(a, False)
    a.label("L1_ql")
    p1_qkv(a, True)
    a.label("L1_z")
    a("s_cmp_ge_u32 s55, 14")
    a("s_cbranch_scc1 L1_aux")
    p1_z(a)
    a.label("L1_aux")
    p1_aux(a)
    a.label("L1_end")
    a("s_endpgm")

def p1_qkv(a, light):
    X, WQ, WI, WS, DBG, MISC = 28, 32, 36, 40, 44, 48
    XF, ACC, WFR, T = 128, 36, 20, 84
    def chunk_dma(c):
        slot = (c % 5) * 32768
        a(f"s_add_u32 s71, s70, {c}")
        a("s_and_b32 s71, s71, 7")
        a("s_lshl_b32 s59, s71, 7")
        a(f"s_add_u32 m0, s60, {slot}")
        a("s_add_u32 s59, s59, s61")
        for q in range(4):
            a(f"buffer_load_dwordx4 v{2+q}, s[{X}:{X+3}], s59 offen offset:{q*1024} lds")
        if not light:
            a(f"s_mul_i32 s59, s71, {64*3584}")
            a(f"s_add_u32 m0, s60, {slot + 16384}")
            a("s_add_u32 s59, s59, s62")
            for i in range(4):
                a(f"buffer_load_dwordx4 v{6+i}, s[{WI}:{WI+3}], s59 offen offset:{i*1024} lds")
    def wq_dma(x, slot):
        for g in range(2):
            a(f"s_add_u32 m0, s63, {slot*32768 + g*4096}")
            a(f"s_add_u32 s59, s{72+g}, {x*1024}")
            for i in range(4):
                a(f"buffer_load_dwordx4 v{10+i}, s[{WQ}:{WQ+3}], s59 offen offset:{i*1024} lds")
    G = 4 if light else 8
    gsize = [G]*8 + [8]*3
    DIST = OPT.get("dist", 2)
    def group(g):
        if g < 8: chunk_dma(g)
        elif g < 11: wq_dma(g - 8, g % 5)
    for c in range(DIST): group(c)
    srd(a, WQ, 6, 512*3072)
    srd(a, WS, 26, WS_SIZE)
    stamp(a, 0, 0, v=106)
    a("v_lshrrev_b32 v1, 2, v0")
    a("v_mul_u32_u24 v1, 3072, v1")
    a("v_and_b32 v10, 3, v0")
    a("v_lshl_add_u32 v10, v10, 4, v1")
    for i in (1, 2, 3): a(f"v_add_u32 v{10+i}, {i*(16*3072-1024)}, v10")
    a("s_lshl_b32 s63, s57, 13")
    a("s_lshl_b32 s64, s55, 6")
    for g in range(2):
        a("s_lshl_b32 s59, s57, 1")
        a(f"s_add_u32 s59, s59, {g}")
        a("s_add_u32 s59, s59, s70")
        a("s_and_b32 s59, s59, 7")
        a(f"s_mul_i32 s59, s59, {64*3072}")
        a(f"s_add_u32 s{72+g}, s59, s64")
    swz_read_addrs(a, 14, 60)
    a("v_lshrrev_b32 v1, 5, v0")
    a("v_lshlrev_b32 v19, 9, v1")
    a("v_bfe_u32 v1, v0, 2, 2")
    a("v_lshl_add_u32 v19, v1, 6, v19")
    a("v_bfe_u32 v1, v0, 4, 1")
    a("v_lshl_add_u32 v19, v1, 5, v19")
    a("v_and_b32 v1, 3, v0")
    a("v_lshl_add_u32 v19, v1, 3, v19")
    a("v_add_u32 v18, 98304, v19")
    a("v_lshlrev_b32 v100, 4, v0")
    a("v_and_b32 v101, 0x33, v0")
    a("v_bfe_u32 v1, v0, 2, 1")
    a("v_lshl_or_b32 v101, v1, 3, v101")
    a("v_bfe_u32 v1, v0, 3, 1")
    a("v_lshl_or_b32 v101, v1, 2, v101")
    a("v_lshlrev_b32 v101, 4, v101")
    a("v_and_b32 v102, 15, v0")
    a("v_lshrrev_b32 v1, 5, v0")
    a("v_lshl_or_b32 v102, v1, 4, v102")
    a("v_lshlrev_b32 v102, 4, v102")
    a("v_bfe_u32 v1, v0, 4, 1")
    a("v_lshl_or_b32 v102, v1, 17, v102")
    a("s_lshl_b32 s59, s55, 7")
    a("s_add_u32 s59, s59, s58")
    a("s_lshl_b32 s65, s59, 10")
    if QF: a(f"s_add_u32 s65, s65, {QF}")
    a("s_add_u32 s66, s65, 65536")
    a("s_lshl_b32 s67, s59, 11")
    a(f"s_add_u32 s67, s67, {KVF}")
    a("s_add_u32 s68, s67, 131072")
    a(f"v_mov_b32 v104, {f32(QSCALE)}")
    a(f"v_mov_b32 v105, {f32(QSCALE)}")
    ext = 2 if OPT["stamp"] else 0
    win = 0
    allow = lambda c: sum(gsize[c+1:c+DIST])
    for c in range(8):
        a(f"s_waitcnt vmcnt({allow(c) + (ext if c == 0 else 0)}) lgkmcnt(0)")
        a("s_barrier")
        group(c + DIST)
        slot = c % 5
        w = slot // 2
        if w != win:
            for ks in range(4): a(f"v_add_u32 v{14+ks}, {((w - win) * 65536) & 0xffffffff}, v{14+ks}")
            win = w
        for ks in range(4):
            a(f"ds_read_b128 {vr(XF + 16*c + 4*ks, 4)}, v{14+ks} offset:{(slot % 2) * 32768}")
    a(f"s_waitcnt vmcnt({allow(8)}) lgkmcnt(0)")
    a("s_barrier")
    for g in range(8 + DIST, 11): group(g)
    stamp(a, 0, 1, v=106)
    def rd(n):
        x, ks = n // 32, n % 32
        reg, off = (18, x * 32768) if x < 2 else (19, 0)
        f = WFR + 4 * (n % 4)
        a(f"ds_read_b64_tr_b16 {vr(f,2)}, v{reg} offset:{off + ks*1024}")
        a(f"ds_read_b64_tr_b16 {vr(f+2,2)}, v{reg} offset:{off + ks*1024 + 256}")
    def epi(x):
        acc = ACC + 16*x
        L = []
        if x == 0:
            L += [f"v_pk_mul_f32 {vr(acc+p,2)}, {vr(acc+p,2)}, v[104:105]" for p in range(0, 16, 2)]
        t = T + 8*(x % 2)
        L += [f"v_cvt_pk_bf16_f32 v{t+p}, v{acc+2*p}, v{acc+2*p+1}" for p in range(8)]
        fl = OPT["st"]
        if x == 0:
            L += [f"buffer_store_dwordx4 {vr(t,4)}, v100, s[{WS}:{WS+3}], s65 offen {fl}",
                  f"buffer_store_dwordx4 {vr(t+4,4)}, v100, s[{WS}:{WS+3}], s66 offen {fl}"]
        elif x == 1:
            L += [f"buffer_store_dwordx4 {vr(t,4)}, v101, s[{WS}:{WS+3}], s67 offen {fl}",
                  f"buffer_store_dwordx4 {vr(t+4,4)}, v101, s[{WS}:{WS+3}], s68 offen {fl}"]
        else:
            L += [f"buffer_store_dwordx4 {vr(t,4)}, v102, s[{WS}:{WS+3}], s67 offen offset:1024 {fl}",
                  f"buffer_store_dwordx4 {vr(t+4,4)}, v102, s[{WS}:{WS+3}], s67 offen offset:1536 {fl}"]
        return L
    for n in range(3): rd(n)
    pend = []
    for n in range(96):
        x, ks = n // 32, n % 32
        if n + 3 == 32:
            a("s_waitcnt vmcnt(0)")
            a("s_barrier")
            if OPT.get("pfsp", 1):
                srd(a, MISC, 14, 2048*4096)
                a("s_lshl_b32 s59, s52, 5")
                a("s_add_u32 s59, s59, s53")
                a("s_lshl_b32 s59, s59, 2")
                a("s_add_u32 s59, s59, s57")
                a("s_lshl_b32 s59, s59, 13")
                a("s_add_u32 m0, s60, 65536")
                for g in range(2):
                    if g: a("s_add_u32 s59, s59, 4096")
                    else: a("s_nop 0")
                    for i in range(4):
                        a(f"buffer_load_dwordx4 v100, s[{MISC}:{MISC+3}], s59 offen offset:{i*1024} lds")
        if n + 3 < 96:
            rd(n + 3)
            a("s_waitcnt lgkmcnt(6)")
        else:
            a(f"s_waitcnt lgkmcnt({2*(95-n)})")
        f = WFR + 4*(n % 4); xf = XF + 4*ks; acc = ACC + 16*x
        c = "0" if ks == 0 else None
        if x < 2: mfma(a, acc, f, xf, c)
        else: mfma(a, acc, xf, f, c)
        if ks == 3 and x > 0: pend = epi(x - 1)
        for _ in range(2):
            if pend: a(pend.pop(0))
    a("s_nop 7"); a("s_nop 3")
    for l in epi(2): a(l)
    stamp(a, 0, 2, v=106)
    if light:
        a("s_cmp_lg_u32 s55, 14")
        a("s_cbranch_scc1 L1_end")
        srd(a, MISC, 20, 1024)
        a("v_lshrrev_b32 v1, 5, v0")
        a("v_lshlrev_b32 v1, 4, v1")
        GA = 36
        for b in range(4):
            for k in range(8):
                if k % 4 == 0:
                    a(f"s_add_u32 s59, s70, {b*2 + k//4}")
                    a("s_and_b32 s59, s59, 7")
                    a("s_lshl_b32 s59, s59, 7")
                a(f"buffer_load_dwordx4 {vr(GA+4*k,4)}, v1, s[{MISC}:{MISC+3}], s59 offen offset:{(k%4)*32}")
            for k in range(8):
                a(f"s_waitcnt vmcnt({7-k})")
                mfma(a, 68, GA+4*k, XF + 4*(b*8+k), "0" if b+k == 0 else None)
        a("s_nop 7"); a("s_nop 3")
        a(f"v_mul_f32 v1, {f32(-LOG2E)}, v68")
        a("v_exp_f32 v1, v1")
        a("v_and_b32 v2, 31, v0")
        a("v_add_f32 v1, 1.0, v1")
        a("v_rcp_f32 v1, v1")
        a("v_lshlrev_b32 v2, 2, v2")
        a("s_lshl_b32 s59, s58, 7")
        a(f"s_add_u32 s59, s59, {GG}")
        a(f"buffer_store_dword v1, v2, s[{WS}:{WS+3}], s59 offen")
    a("s_endpgm")

def p1_z(a):
    X, WQ, WI, WS, DBG, MISC = 28, 32, 36, 40, 44, 48
    XFR, WFR, ACC, T = 8, 16, 48, 112
    C1, C2, ONE, SUM, SQ = 160, 162, 164, 166, 168
    if OPT.get("pfq", 1):
        a("v_lshrrev_b32 v1, 2, v0")
        a("v_mul_u32_u24 v1, 3072, v1")
        a("v_and_b32 v2, 3, v0")
        a("v_lshl_add_u32 v1, v2, 4, v1")
        a("s_and_b32 s59, s53, 7")
        a("s_lshl_b32 s59, s59, 2")
        a("s_add_u32 s59, s59, s57")
        a(f"s_mul_i32 s59, s59, {16*3072}")
        a("s_lshl_b32 s61, s55, 6")
        a("s_add_u32 s59, s59, s61")
        a("s_waitcnt lgkmcnt(0)")
        srd(a, WQ, 6, 512*3072)
        for x in range(3):
            a(f"buffer_load_dwordx4 {vr(200+4*x,4)}, v1, s[{WQ}:{WQ+3}], s59 offen offset:{x*1024}")
    swz_read_addrs(a, 2, 60)
    a("v_lshrrev_b32 v1, 5, v0")
    a("v_lshlrev_b32 v6, 11, v1")
    a("v_bfe_u32 v1, v0, 2, 2")
    a("v_lshl_add_u32 v6, v1, 7, v6")
    a("v_bfe_u32 v1, v0, 3, 1")
    a("v_lshl_add_u32 v6, v1, 6, v6")
    a("v_bfe_u32 v1, v0, 4, 1")
    a("v_lshl_add_u32 v6, v1, 5, v6")
    a("v_and_b32 v1, 3, v0")
    a("v_lshl_add_u32 v6, v1, 3, v6")
    a("v_add_u32 v6, 16384, v6")
    a("v_xor_b32 v7, 64, v6")
    for r, v in ((C1, GC1), (C2, GC2), (ONE, 1.0), (SUM, 0.0), (SQ, 0.0)):
        a(f"v_mov_b32 v{r}, {f32(v)}"); a(f"v_mov_b32 v{r+1}, {f32(v)}")
    a("v_lshlrev_b32 v170, 4, v0")
    a("v_and_b32 v1, 31, v0")
    a("v_lshlrev_b32 v171, 3, v1")
    a("v_lshrrev_b32 v172, 5, v0")
    a("v_mul_u32_u24 v172, 7168, v172")
    a("v_add_u32 v172, v172, v171")
    a("v_lshlrev_b32 v173, 6, v1")
    a("v_lshrrev_b32 v1, 5, v0")
    a("v_lshl_add_u32 v173, v1, 3, v173")
    a("s_add_u32 s59, s60, 32768")
    a("v_add_u32 v173, s59, v173")
    a("v_lshlrev_b32 v174, 9, v1")
    a("v_bfe_u32 v1, v0, 2, 2")
    a("v_lshl_add_u32 v174, v1, 6, v174")
    a("v_bfe_u32 v1, v0, 4, 1")
    a("v_lshl_add_u32 v174, v1, 5, v174")
    a("v_and_b32 v1, 3, v0")
    a("v_lshl_add_u32 v174, v1, 3, v174")
    a("v_add_u32 v174, s59, v174")
    a("v_mov_b32 v175, 0")
    a("s_mul_i32 s61, s54, 14336")
    a("s_lshl_b32 s59, s57, 8")
    a("s_add_u32 s61, s61, s59")
    a(f"s_add_u32 s61, s61, {STATS}")
    a("s_add_u32 s69, s61, 4096")
    a("s_lshl_b32 s59, s55, 10")
    a("s_add_u32 s62, s61, s59")
    a("s_mul_i32 s63, s58, 28")
    a("s_lshl_b32 s59, s55, 1")
    a("s_add_u32 s63, s63, s59")
    a("s_lshl_b32 s63, s63, 11")
    a(f"s_add_u32 s63, s63, {Z1F}")
    a("s_lshl_b32 s64, s55, 18")
    a("s_lshl_b32 s59, s58, 11")
    a("s_add_u32 s64, s64, s59")
    a(f"s_add_u32 s64, s64, {Z2F}")
    a("s_add_u32 s65, s64, 131072")
    a("s_lshl_b32 s66, s54, 2")
    a("s_waitcnt lgkmcnt(0)")
    srd(a, WS, 26, WS_SIZE)
    srd(a, DBG, 24, 256)
    stamp(a, 0, 0)
    tiles = [(1, 0), (1, 1), (0, 0), (0, 1)]
    state = dict(win=0)
    def reads(n):
        c, ks = n >> 2, n & 3
        slot = c % 5
        L = []
        w = slot // 2
        if w != state["win"]:
            L += [f"v_add_u32 v{r}, {((w - state['win']) * 65536) & 0xffffffff}, v{r}" for r in range(2, 8)]
            state["win"] = w
        pre = L
        so = (slot % 2) * 32768
        R = [f"ds_read_b128 {vr(XFR + 4*(n&1), 4)}, v{2+ks} offset:{so}"]
        for ti, (slab, tile) in enumerate(tiles):
            f = WFR + 16*(n&1) + 4*ti
            for v in range(2):
                R.append(f"ds_read_b64_tr_b16 {vr(f+2*v,2)}, v{6+tile} offset:{so + ks*4096 + slab*1024 + v*512}")
        return pre, R
    a("s_barrier")
    pre, R = reads(0)
    for l in pre + R: a(l)
    for n in range(32):
        ks = n & 3
        M = lambda ti: mfma(a, ACC + 16*ti, WFR + 16*(n&1) + 4*ti, XFR + 4*(n&1), "0" if n == 0 else None)
        pre, R = reads(n + 1) if n < 31 else ([], [])
        a("s_waitcnt lgkmcnt(6)")
        M(0)
        if ks == 3:
            a("s_waitcnt lgkmcnt(0)")
            a("s_barrier")
            for l in pre + R[0:3]: a(l)
            M(1)
            for l in R[3:6]: a(l)
            M(2)
            for l in R[6:9]: a(l)
            M(3)
        else:
            for l in R[0:3]: a(l)
            a("s_waitcnt lgkmcnt(7)"); M(1)
            for l in R[3:6]: a(l)
            a("s_waitcnt lgkmcnt(8)"); M(2)
            for l in R[6:9]: a(l)
            a("s_waitcnt lgkmcnt(9)"); M(3)
    stamp(a, 0, 1)
    a(f"buffer_load_dword v176, v175, s[{DBG}:{DBG+3}], s66 offen sc1")
    a("s_nop 7")
    for ti in range(2):
        x = ACC + 16*ti
        gelu(a, x, T, C1, C2, ONE)
        for p in range(0, 16, 2):
            a(f"v_pk_add_f32 {vr(SUM,2)}, {vr(SUM,2)}, {vr(x+p,2)}")
            a(f"v_pk_fma_f32 {vr(SQ,2)}, {vr(x+p,2)}, {vr(x+p,2)}, {vr(SQ,2)}")
        if ti == OPT.get("zbar", 1): a("s_barrier")
    a(f"v_add_f32 v{SUM}, v{SUM}, v{SUM+1}")
    a(f"v_add_f32 v{SUM+1}, v{SQ}, v{SQ+1}")
    halfsum(a, SUM, T)
    halfsum(a, SUM+1, T+1)
    a(f"v_and_b32 v{SUM+1}, 0x7fffffff, v{SUM+1}")
    a(f"s_mov_b32 s67, {SPIN}")
    a.label("L1_clr")
    a("s_waitcnt vmcnt(0)")
    a("v_readfirstlane_b32 s59, v176")
    a("s_sub_u32 s67, s67, 1")
    a("s_cbranch_scc1 L1_clrd")
    a("s_cmp_lg_u32 s59, 0")
    a("s_cbranch_scc1 L1_clrd")
    a(f"buffer_load_dword v176, v175, s[{DBG}:{DBG+3}], s66 offen sc1")
    a("s_branch L1_clr")
    a.label("L1_clrd")
    a(f"buffer_store_dwordx2 {vr(SUM,2)}, v171, s[{WS}:{WS+3}], s62 offen sc1")
    for ti in range(2, 4):
        x = ACC + 16*ti
        gelu(a, x, T, C1, C2, ONE)
        o = 128 + 8*(ti - 2)
        for p in range(8): a(f"v_cvt_pk_bf16_f32 v{o+p}, v{x+2*p}, v{x+2*p+1}")
        store4(a, o, 170, WS, "s63", (ti-2)*2048)
        store4(a, o+4, 170, WS, "s63", (ti-2)*2048 + 1024)
    stamp(a, 0, 2)
    S = 144
    a(f"s_mov_b32 s67, {SPIN}")
    a.label("L1_poll")
    for i in range(7):
        a(f"buffer_load_dwordx2 {vr(S+2*i,2)}, v172, s[{WS}:{WS+3}], {'s61' if i < 4 else 's69'} offen offset:{(i%4)*1024} sc1")
    a("s_waitcnt vmcnt(0)")
    a(f"v_or3_b32 v1, v{S+1}, v{S+3}, v{S+5}")
    a(f"v_or3_b32 v1, v1, v{S+7}, v{S+9}")
    a(f"v_or3_b32 v1, v1, v{S+11}, v{S+13}")
    a("v_cmp_gt_i32 vcc, 0, v1")
    a("s_sub_u32 s67, s67, 1")
    a("s_cbranch_scc1 L1_polld")
    a("s_cmp_lg_u64 vcc, 0")
    a("s_cbranch_scc1 L1_poll")
    a.label("L1_polld")
    for i in range(1, 7): a(f"v_pk_add_f32 {vr(S,2)}, {vr(S,2)}, {vr(S+2*i,2)}")
    halfsum(a, S, T)
    halfsum(a, S+1, T+1)
    a(f"v_mul_f32 v{S}, {f32(1.0/896)}, v{S}")
    a(f"v_mul_f32 v{S+1}, {f32(1.0/896)}, v{S+1}")
    a(f"v_fma_f32 v{S+1}, -v{S}, v{S}, v{S+1}")
    a(f"v_max_f32 v{S+1}, 0, v{S+1}")
    a(f"v_add_f32 v{S+1}, {f32(1e-5)}, v{S+1}")
    a(f"v_rsq_f32 v{S+2}, v{S+1}")
    a("s_nop 0")
    a(f"v_mov_b32 v{S+3}, v{S+2}")
    a(f"v_mul_f32 v{S+4}, -v{S}, v{S+2}")
    a(f"v_mov_b32 v{S+5}, v{S+4}")
    for ti in range(2):
        x = ACC + 16*ti
        for p in range(0, 16, 2): a(f"v_pk_fma_f32 {vr(x+p,2)}, {vr(x+p,2)}, {vr(S+2,2)}, {vr(S+4,2)}")
        o = T + 8*ti
        for p in range(8): a(f"v_cvt_pk_bf16_f32 v{o+p}, v{x+2*p}, v{x+2*p+1}")
        for i in range(4): a(f"ds_write_b64 v173, {vr(o+2*i,2)} offset:{ti*2048 + i*16}")
    a("s_waitcnt lgkmcnt(0)")
    for ti in range(2):
        for k in range(2):
            for v in range(2):
                a(f"ds_read_b64_tr_b16 {vr(16 + ti*8 + k*4 + v*2, 2)}, v174 offset:{ti*2048 + k*1024 + v*256}")
    for ti in range(2):
        for k in range(2):
            a(f"s_waitcnt lgkmcnt({6 - 2*(ti*2+k)})")
            store4(a, 16 + ti*8 + k*4, 170, WS, "s64" if ti == 0 else "s65", k*1024)
    stamp(a, 0, 3)
    a("s_endpgm")

def p1_aux(a):
    X, WQ, WI, WS, DBG, MISC = 28, 32, 36, 40, 44, 48
    a("v_lshlrev_b32 v2, 4, v0")
    a("s_waitcnt lgkmcnt(0)")
    srd(a, WS, 26, WS_SIZE)
    srd(a, DBG, 24, 256)
    a("s_cmp_lg_u32 s55, 15")
    a("s_cbranch_scc1 L1_noclr")
    a("s_cmp_lg_u32 s57, 0")
    a("s_cbranch_scc1 L1_noclr")
    for r in range(4, 8): a(f"v_mov_b32 v{r}, -1")
    a("s_mul_i32 s61, s54, 14336")
    a(f"s_add_u32 s61, s61, {STATS}")
    for i in range(14):
        a(f"buffer_store_dwordx4 v[4:7], v2, s[{WS}:{WS+3}], s61 offen offset:{(i%4)*1024} sc1")
        if i % 4 == 3: a("s_add_u32 s61, s61, 4096")
    a("v_mov_b32 v8, 0")
    a("v_mov_b32 v9, 1")
    a("s_lshl_b32 s66, s54, 2")
    a("s_waitcnt vmcnt(0)")
    a(f"buffer_store_dword v9, v8, s[{DBG}:{DBG+3}], s66 offen sc1")
    a.label("L1_noclr")
    a("s_sub_u32 s59, s55, 14")
    a("s_lshl_b32 s59, s59, 4")
    a("s_add_u32 s59, s59, s54")
    a("s_lshl_b32 s59, s59, 2")
    a("s_add_u32 s61, s59, s57")
    a("s_cmp_ge_u32 s61, 88")
    a("s_cbranch_scc1 L1_end")
    a("s_lshl_b32 s62, s61, 14")
    srd(a, MISC, 8, 512*1024)
    a("s_cmp_lt_u32 s61, 32")
    a("s_cbranch_scc1 L1_wo")
    srd(a, MISC, 18, 896*1024)
    a(f"s_sub_u32 s62, s62, {32*16384}")
    a.label("L1_wo")
    a("s_lshl_b32 s63, s57, 15")
    a("s_add_u32 s63, s63, 16384")
    for g in range(4):
        a(f"s_add_u32 m0, s63, {g*4096}")
        a("s_nop 0")
        for i in range(4):
            a(f"buffer_load_dwordx4 v2, s[{MISC}:{MISC+3}], s62 offen offset:{i*1024} lds")
        a("s_add_u32 s62, s62, 4096")
    a("v_lshrrev_b32 v1, 5, v0")
    a("v_lshlrev_b32 v3, 12, v1")
    a("v_bfe_u32 v1, v0, 2, 2")
    a("v_lshl_add_u32 v3, v1, 10, v3")
    a("v_bfe_u32 v1, v0, 4, 1")
    a("v_lshl_add_u32 v3, v1, 5, v3")
    a("v_and_b32 v1, 3, v0")
    a("v_lshl_add_u32 v3, v1, 3, v3")
    a("v_add_u32 v3, s63, v3")
    a("s_lshl_b32 s62, s61, 10")
    a(f"s_add_u32 s62, s62, {WF}")
    a("s_waitcnt vmcnt(0)")
    for nt in range(16):
        for v in range(2):
            a(f"ds_read_b64_tr_b16 {vr(16 + nt*4 + v*2, 2)}, v3 offset:{v*8192 + nt*64}")
    a("s_waitcnt lgkmcnt(0)")
    for nt in range(16):
        store4(a, 16 + nt*4, 2, WS, "s62", 0)
        a(f"s_add_u32 s62, s62, {88*1024}")

def gen_p2(a):
    prologue(a, "L2_end")
    a("s_cmp_ge_u32 s56, 4")
    a("s_cbranch_scc1 L2_sp")
    p2_att(a)
    a.label("L2_sp")
    p2_sp(a)
    a.label("L2_end")
    a("s_endpgm")

def p2_att(a):
    WS = 40
    Q, KS, VS, S, NM, O, T = 8, 16, 32, 64, 96, 128, 160
    a("s_lshl_b32 s54, s52, 2")
    a("s_lshr_b32 s59, s53, 3")
    a("s_add_u32 s54, s54, s59")
    a("s_and_b32 s55, s53, 7")
    a("s_lshl_b32 s55, s55, 3")
    a("s_lshl_b32 s59, s57, 1")
    a("s_add_u32 s55, s55, s59")
    a("s_lshl_b32 s60, s54, 6")
    a("s_add_u32 s60, s60, s55")
    a("s_lshl_b32 s60, s60, 10")
    if QF: a(f"s_add_u32 s60, s60, {QF}")
    a("s_lshl_b32 s61, s54, 17")
    a(f"s_add_u32 s61, s61, {KVF}")
    a("s_lshl_b32 s62, s57, 11")
    a("s_add_u32 s63, s61, s62")
    a("s_lshl_b32 s64, s55, 7")
    a(f"s_add_u32 s64, s64, {GG}")
    a("v_lshlrev_b32 v4, 4, v0")
    a("v_and_b32 v5, 31, v0")
    a("v_lshlrev_b32 v5, 2, v5")
    a("s_waitcnt lgkmcnt(0)")
    srd(a, WS, 26, WS_SIZE)
    a(f"buffer_load_dwordx4 {vr(Q,4)}, v4, s[{WS}:{WS+3}], s60 offen")
    a(f"buffer_load_dwordx4 {vr(Q+4,4)}, v4, s[{WS}:{WS+3}], s60 offen offset:1024")
    a(f"buffer_load_dwordx4 {vr(KS,4)}, v4, s[{WS}:{WS+3}], s61 offen")
    a(f"buffer_load_dword v6, v5, s[{WS}:{WS+3}], s64 offen")
    a(f"buffer_load_dword v7, v5, s[{WS}:{WS+3}], s64 offen offset:128")
    stamp(a, 1, 0)
    a("v_mov_b32 v1, 0")
    a("ds_write_b32 v5, v1")
    a("v_mov_b32 v3, 0xdddd")
    a("v_mov_b32 v1, v4")
    a("v_and_b32 v2, 15, v0")
    a(f"v_lshrrev_b32 v{T}, 5, v0")
    a(f"v_lshl_or_b32 v2, v{T}, 4, v2")
    a("v_lshlrev_b32 v2, 4, v2")
    a("v_add_u32 v2, 1024, v2")
    a("v_add_u32 v176, 0x10000, v1")
    a("v_add_u32 v177, 0x10000, v2")
    a("v_mov_b32 v178, 1")
    a("s_lshl_b32 s59, s57, 2")
    a("v_mov_b32 v179, s59")
    a(f"v_and_b32 v{T}, 27, v0")
    a(f"v_cmp_eq_u32 vcc, 16, v{T}")
    a(f"v_mov_b32 v{T}, 0x3f803f80")
    a("s_nop 0")
    a(f"v_cndmask_b32 v{VS}, 0, v{T}, vcc")
    for r in range(VS + 1, VS + 32): a(f"v_mov_b32 v{r}, v{VS}")
    for r in range(O, O + 32): a(f"v_mov_b32 v{r}, 0")
    a("s_mov_b32 s66, 0xffff")
    a("s_mov_b32 s67, 0xffff")
    a("s_mul_i32 s65, s55, 88")
    a("s_add_u32 s65, s65, s54")
    a("s_lshl_b32 s65, s65, 10")
    a(f"s_add_u32 s65, s65, {AF}")
    a(f"s_add_u32 s68, s65, {88*1024}")
    a("s_waitcnt vmcnt(0)")
    mfma(a, S, KS, Q, "0")
    mfma(a, S + 16, KS, Q + 4, "0")
    a("s_nop 7"); a("s_nop 2")
    def rowmax(s, d):
        a(f"v_max3_f32 v{d}, v{s}, v{s+1}, v{s+2}")
        for p in range(3, 15, 2): a(f"v_max3_f32 v{d}, v{d}, v{s+p}, v{s+p+1}")
        a(f"v_max_f32 v{d}, v{d}, v{s+15}")
    for q in range(2):
        rowmax(S + 16*q, T + q)
        halfsum(a, T + q, T + 2, "v_max_f32")
        for r in range(16): a(f"v_sub_f32 v{NM + 16*q + r}, 0, v{T+q}")
    a("s_waitcnt lgkmcnt(0)")
    a("s_barrier")
    def kreg(kt): return KS + 4*(kt & 3)
    def vreg(kt): return VS + 8*(kt & 3)
    def rd(kts, skipk=()):
        L = []
        for kt in kts:
            if kt < 64 and kt not in skipk:
                L.append(f"ds_read_b128 {vr(kreg(kt),4)}, v{1 if kt < 32 else 176} offset:{(kt % 32)*2048}")
        L.append("s_mov_b64 exec, s[66:67]")
        for kt in kts:
            if kt < 64:
                for s_ in range(2):
                    L.append(f"ds_read_b128 {vr(vreg(kt)+4*s_,4)}, v{2 if kt < 32 else 177} offset:{(kt % 32)*2048 + s_*512}")
        L.append("s_mov_b64 exec, -1")
        return L
    for l in rd([0, 1], skipk=(0,)): a(l)
    mfma(a, S, KS, Q, NM)
    a("s_waitcnt lgkmcnt(0)")
    a("s_nop 7"); a("s_nop 2")
    stamp(a, 1, 1)
    pa, pb, pc = OPT.get("pos", (2, 5, 12))
    for k in range(128):
        q, kt = k & 1, k >> 1
        sA, sB = S + 16*(k & 1), S + 16*((k + 1) & 1)
        ev = {pa: [], pb: [], pc: []}
        if k > 0:
            qp, ktp = (k - 1) & 1, (k - 1) >> 1
            ev[pa].append(f"v_smfmac_f32_32x32x32_bf16 {vr(O+16*qp,16)}, {vr(vreg(ktp)+4,4)}, {vr(sB+8,8)}, v3")
        if k % 4 == 0 and kt + 2 < 64:
            if kt + 2 == 8:
                ev[pa] += ["s_barrier"]
            ev[pa] += rd([kt + 2, kt + 3])
        if k % 4 == 3 and k < 127:
            ev[pa].append("s_waitcnt lgkmcnt(0)")
            if kt == 41: ev[pa].append("ds_write_b32 v179, v178")
        if k < 127:
            qn, ktn = (k + 1) & 1, (k + 1) >> 1
            ev[pb].append(f"v_mfma_f32_32x32x16_bf16 {vr(sB,16)}, {vr(kreg(ktn),4)}, {vr(Q+4*qn,4)}, {vr(NM+16*qn,16)}")
        ev[pc].append(f"v_smfmac_f32_32x32x32_bf16 {vr(O+16*q,16)}, {vr(vreg(kt),4)}, {vr(sA,8)}, v3")
        for i in range(16):
            for l in ev.get(i, []): a(l)
            a(f"v_exp_f32 v{sA+i}, v{sA+i}")
    a("s_nop 1")
    a(f"v_smfmac_f32_32x32x32_bf16 {vr(O+16,16)}, {vr(vreg(63)+4,4)}, {vr(S+16+8,8)}, v3")
    a(f"s_mov_b32 s70, {f32(2.0**64)}")
    a(f"s_mov_b32 s71, {f32(2.0**-64)}")
    a("s_nop 7"); a("s_nop 1")
    a(f"v_max_f32 v{T}, v{O+8}, v{O+24}")
    a(f"v_min_f32 v{T+1}, v{O+8}, v{O+24}")
    a(f"v_add_f32 v{T+2}, v{O+8}, v{O+24}")
    a(f"v_cmp_gt_f32 s[72:73], s70, v{T}")
    a(f"v_cmp_lt_f32 s[74:75], s71, v{T+1}")
    a(f"v_cmp_o_f32 vcc, v{T+2}, v{T+2}")
    a("s_nop 1")
    a("s_and_b64 s[72:73], s[72:73], s[74:75]")
    a("s_and_b64 s[72:73], s[72:73], vcc")
    a("s_cmp_eq_u64 s[72:73], -1")
    a("s_cbranch_scc0 L2_slow")
    a.label("L2_fin")
    stamp(a, 1, 2)
    for q in range(2):
        o = O + 16*q
        a(f"v_rcp_f32 v{T}, v{o+8}")
        a("s_nop 0")
        a(f"v_mul_f32 v{T}, v{T}, v{6+q}")
        for r in range(8): a(f"v_mul_f32 v{o+r}, v{o+r}, v{T}")
        for p in range(4): a(f"v_cvt_pk_bf16_f32 v{T+4+4*q+p}, v{o+2*p}, v{o+2*p+1}")
        store4(a, T + 4 + 4*q, 4, WS, "s65" if q == 0 else "s68")
    stamp(a, 1, 3)
    a("s_endpgm")
    a.label("L2_slow")
    a(f"v_mov_b32 v{T}, 0xff800000")
    a(f"v_mov_b32 v{T+1}, 0xff800000")
    a("s_mov_b32 s63, s61")
    a("s_mov_b32 s69, 64")
    a.label("L2_s1")
    a(f"buffer_load_dwordx4 {vr(KS,4)}, v4, s[{WS}:{WS+3}], s63 offen")
    a("s_waitcnt vmcnt(0)")
    mfma(a, S, KS, Q, "0")
    mfma(a, S + 16, KS, Q + 4, "0")
    a("s_nop 7"); a("s_nop 3")
    for q in range(2):
        for p in range(0, 16, 2): a(f"v_max3_f32 v{T+q}, v{T+q}, v{S+16*q+p}, v{S+16*q+p+1}")
    a("s_add_u32 s63, s63, 2048")
    a("s_sub_u32 s69, s69, 1")
    a("s_cmp_lg_u32 s69, 0")
    a("s_cbranch_scc1 L2_s1")
    for q in range(2): halfsum(a, T + q, T + 2, "v_max_f32")
    for r in range(O, O + 32): a(f"v_mov_b32 v{r}, 0")
    a("s_mov_b32 s63, s61")
    a("s_mov_b32 s69, 64")
    a.label("L2_s2")
    a(f"buffer_load_dwordx4 {vr(KS,4)}, v4, s[{WS}:{WS+3}], s63 offen")
    a("s_mov_b64 exec, s[66:67]")
    a(f"buffer_load_dwordx4 {vr(VS,4)}, v2, s[{WS}:{WS+3}], s63 offen")
    a(f"buffer_load_dwordx4 {vr(VS+4,4)}, v2, s[{WS}:{WS+3}], s63 offen offset:512")
    a("s_mov_b64 exec, -1")
    a("s_waitcnt vmcnt(0)")
    mfma(a, S, KS, Q, "0")
    mfma(a, S + 16, KS, Q + 4, "0")
    a("s_nop 7"); a("s_nop 3")
    for q in range(2):
        for p in range(16): a(f"v_sub_f32 v{S+16*q+p}, v{S+16*q+p}, v{T+q}")
        for p in range(16): a(f"v_exp_f32 v{S+16*q+p}, v{S+16*q+p}")
    a("s_nop 1")
    for q in range(2):
        for s_ in range(2):
            a(f"v_smfmac_f32_32x32x32_bf16 {vr(O+16*q,16)}, {vr(VS+4*s_,4)}, {vr(S+16*q+8*s_,8)}, v3")
    a("s_add_u32 s63, s63, 2048")
    a("s_sub_u32 s69, s69, 1")
    a("s_cmp_lg_u32 s69, 0")
    a("s_cbranch_scc1 L2_s2")
    a("s_nop 7"); a("s_nop 3")
    a("s_branch L2_fin")

def p2_sp(a):
    WS, WSP, BSP = 40, 28, 32
    WFR, ZS, ACC, T = 16, 48, 112, 224
    a("s_lshl_b32 s54, s52, 2")
    a("s_lshr_b32 s59, s53, 3")
    a("s_add_u32 s54, s54, s59")
    a("s_lshl_b32 s92, s54, 17")
    a("s_lshl_b32 s93, s57, 11")
    a("s_add_u32 s92, s92, s93")
    a(f"s_add_u32 s92, s92, {KVF}")
    a("v_lshlrev_b32 v11, 4, v0")
    a("s_mov_b32 m0, s93")
    a("s_waitcnt lgkmcnt(0)")
    srd(a, WS, 26, WS_SIZE)
    a("s_cmp_eq_u32 s57, 0")
    a("s_cbranch_scc1 L2_skipk0")
    a(f"buffer_load_dwordx4 v11, s[{WS}:{WS+3}], s92 offen lds")
    a.label("L2_skipk0")
    a(f"buffer_load_dwordx4 v11, s[{WS}:{WS+3}], s92 offen offset:1024 lds")
    def kvdma(n):
        a(f"s_add_u32 m0, s93, {n*8192}")
        a("s_add_u32 s92, s92, 8192")
        a(f"buffer_load_dwordx4 v11, s[{WS}:{WS+3}], s92 offen lds")
        a(f"buffer_load_dwordx4 v11, s[{WS}:{WS+3}], s92 offen offset:1024 lds")
    KV1 = OPT.get("kv1", 4)
    for n in range(1, KV1): kvdma(n)
    a("s_lshr_b32 s54, s52, 1")
    a("s_lshl_b32 s54, s54, 3")
    a("s_and_b32 s59, s53, 7")
    a("s_add_u32 s54, s54, s59")
    a("s_and_b32 s55, s52, 1")
    a("s_lshl_b32 s55, s55, 2")
    a("s_lshr_b32 s59, s53, 3")
    a("s_add_u32 s55, s55, s59")
    a("s_and_b32 s58, s55, 1")
    a("s_lshl_b32 s60, s54, 1")
    a("s_add_u32 s60, s60, s58")
    a("s_xor_b32 s61, s60, 1")
    a("s_lshr_b32 s59, s55, 1")
    a("s_mul_i32 s59, s59, 7")
    a("s_add_u32 s65, s59, 3")
    a("s_lshl_b32 s62, s58, 2")
    a("s_add_u32 s62, s62, s59")
    a("s_add_u32 s63, s62, 1")
    a("s_add_u32 s64, s62, 2")
    a("s_lshl_b32 s59, s57, 15")
    a(f"s_add_u32 s59, s59, {Z2F}")
    for i in range(4):
        a(f"s_lshl_b32 s{66+i}, s{62+i}, 17")
        a(f"s_add_u32 s{66+i}, s{66+i}, s59")
    a("s_lshl_b32 s59, s57, 10")
    for i in range(2):
        a(f"s_lshl_b32 s{70+i}, s{60+i}, 17")
        a(f"s_add_u32 s{70+i}, s{70+i}, s59")
    a("s_lshl_b32 s72, s57, 13")
    a("s_add_u32 s72, s72, 0x20000")
    a("s_add_u32 s73, s72, 4096")
    swz_row_voffs(a, 2, stride_shift=12)
    a("v_lshlrev_b32 v1, 4, v0")
    srd(a, WSP, 14, 2048*4096)
    def wdma():
        for t in range(2):
            a(f"s_mov_b32 m0, s{72+t}")
            a("s_nop 0")
            for q in range(4):
                a(f"buffer_load_dwordx4 v{2+q}, s[{WSP}:{WSP+3}], s{70+t} offen offset:{q*1024} lds")
            a(f"s_add_u32 s{70+t}, s{70+t}, 128")
    def zload(ks):
        for i in range(4):
            a(f"buffer_load_dwordx4 {vr(ZS + 16*ks + 4*i, 4)}, v1, s[{WS}:{WS+3}], s{66+i} offen offset:{ks*1024}")
        if ks == 3:
            for i in range(4): a(f"s_add_u32 s{66+i}, s{66+i}, 4096")
    swz_read_addrs(a, 6, 72, tmp=10)
    srd(a, BSP, 16, 4096)
    tiles = [(0, 0), (0, 1), (0, 2), (0, 3), (1, 0), (1, 1), (1, 2)]
    for n, (t, f) in enumerate(tiles):
        a(f"s_mul_i32 s59, s{60+t}, 28")
        a(f"s_add_u32 s59, s59, s{62+f}")
        a(f"s_lshl_b32 s59, s59, 11")
        a(f"s_add_u32 s{76+n}, s59, {Z1F}")
        a(f"s_mul_i32 s59, s{60+t}, 44")
        a(f"s_add_u32 s59, s59, s{62+f}")
        a(f"s_lshl_b32 s59, s59, 11")
        a(f"s_add_u32 s{84+n}, s59, {AF + 32*1024}")
    a(f"s_waitcnt vmcnt({2*(KV1-2)})")
    a("s_barrier")
    stamp(a, 1, 0)
    for n in range(KV1, 16): kvdma(n)
    wdma()
    zload(0)
    a("s_waitcnt vmcnt(12)")
    a("s_barrier")
    for ks in range(1, 4): zload(ks)
    for st in range(8):
        last = st == 7
        a("s_waitcnt vmcnt(16)")
        for t in range(2):
            for ks in range(4):
                a(f"ds_read_b128 {vr(WFR + 16*t + 4*ks, 4)}, v{6+ks} offset:{t*4096}")
        a("s_waitcnt lgkmcnt(0)")
        if not last: wdma()
        for ks in range(4):
            a(f"s_waitcnt vmcnt({(3-ks)*4 if last else 20})")
            for n, (t, f) in enumerate(tiles):
                mfma(a, ACC + 16*n, ZS + 16*ks + 4*f, WFR + 16*t + 4*ks, "0" if st + ks == 0 else None)
            if not last: zload(ks)
    stamp(a, 1, 1)
    a("s_setprio 3")
    a("v_and_b32 v14, 31, v0")
    a("v_lshlrev_b32 v15, 2, v14")
    a("v_lshlrev_b32 v14, 1, v14")
    for t in range(2):
        a(f"s_lshl_b32 s59, s{60+t}, 6")
        a(f"buffer_load_ushort v{10+t}, v14, s[{BSP}:{BSP+3}], s59 offen")
        a(f"s_lshl_b32 s59, s{60+t}, 7")
        a(f"s_add_u32 s59, s59, {GG}")
        a(f"buffer_load_dword v{12+t}, v15, s[{WS}:{WS+3}], s59 offen")
    a("v_mov_b32 v2, 0")
    a("v_add_u32 v3, 0x10000, v1")
    a("v_mov_b32 v4, 1")
    a("s_lshl_b32 s59, s57, 2")
    a("s_add_u32 s59, s59, 16")
    a("v_mov_b32 v5, s59")
    def poll(lbl, off):
        a(f"s_mov_b32 s74, {SPIN}")
        a.label(lbl)
        a(f"ds_read_b128 v[6:9], v2 offset:{off}")
        a("s_waitcnt lgkmcnt(0)")
        a("v_and_b32 v6, v6, v7")
        a("v_and_b32 v8, v8, v9")
        a("v_and_b32 v6, v6, v8")
        a("s_sub_u32 s74, s74, 1")
        a("v_readfirstlane_b32 s59, v6")
        a(f"s_cbranch_scc1 {lbl}d")
        a("s_cmp_lg_u32 s59, 0")
        a(f"s_cbranch_scc1 {lbl}d")
        a("s_sleep 2")
        a(f"s_branch {lbl}")
        a.label(lbl + "d")
    owner = [0,0,0,0,1,1,1,1,2,2,2,3,3,3]
    def slot(n, src):
        si = src if src < owner[n] else src - 1
        ad = 2048 + (n*3 + si)*2048
        return (1, ad) if ad + 1024 < 65536 else (3, ad - 65536)
    for w in range(4):
        if w < 3:
            a(f"s_cmp_lg_u32 s57, {w}")
            a(f"s_cbranch_scc1 L2_w{w+1}")
        mine = [n for n in range(14) if owner[n] == w]
        Z1R = 16
        for i, n in enumerate(mine):
            a(f"buffer_load_dwordx4 {vr(Z1R+4*i,4)}, v1, s[{WS}:{WS+3}], s{76 + (n>>1)} offen offset:{(n&1)*1024}")
        poll(f"L2_pa{w}", 0)
        for n in range(14):
            if owner[n] != w:
                r, ad = slot(n, w)
                a(f"ds_write_b128 v{r}, {vr(ACC+8*n,4)} offset:{ad}")
                a(f"ds_write_b128 v{r}, {vr(ACC+8*n+4,4)} offset:{ad+1024}")
        a("s_waitcnt lgkmcnt(0)")
        a("ds_write_b32 v5, v4")
        a("s_waitcnt vmcnt(0)")
        for t in range(2):
            a(f"v_sub_f32 v{32+4*t}, 1.0, v{12+t}")
            a(f"v_lshlrev_b32 v{10+t}, 16, v{10+t}")
            a(f"v_mov_b32 v{33+4*t}, v{32+4*t}")
            a(f"v_mul_f32 v{34+4*t}, v{10+t}, v{32+4*t}")
            a(f"v_mov_b32 v{35+4*t}, v{34+4*t}")
        poll(f"L2_pb{w}", 16)
        P = 48
        def rdp(i):
            n = mine[i]
            for si, src in enumerate([s_ for s_ in range(4) if s_ != w]):
                r, ad = slot(n, src)
                a(f"ds_read_b128 {vr(P + 24*(i&1) + 8*si, 4)}, v{r} offset:{ad}")
                a(f"ds_read_b128 {vr(P + 24*(i&1) + 8*si + 4, 4)}, v{r} offset:{ad+1024}")
        rdp(0)
        for i, n in enumerate(mine):
            if i + 1 < len(mine):
                rdp(i + 1); a("s_waitcnt lgkmcnt(6)")
            else:
                a("s_waitcnt lgkmcnt(0)")
            x = ACC + 8*n; p0 = P + 24*(i&1); t = tiles[n >> 1][0]
            for si in range(3):
                for p in range(0, 8, 2): a(f"v_pk_add_f32 {vr(x+p,2)}, {vr(x+p,2)}, {vr(p0+8*si+p,2)}")
            for p in range(0, 8, 2): a(f"v_pk_fma_f32 {vr(x+p,2)}, {vr(x+p,2)}, {vr(32+4*t,2)}, {vr(34+4*t,2)}")
            for p in range(4):
                a(f"v_lshlrev_b32 v{T+2*p}, 16, v{Z1R+4*i+p}")
                a(f"v_and_b32 v{T+2*p+1}, 0xffff0000, v{Z1R+4*i+p}")
            for p in range(0, 8, 2): a(f"v_pk_mul_f32 {vr(x+p,2)}, {vr(x+p,2)}, {vr(T+p,2)}")
            o = T + 8 + 4*i
            for p in range(4): a(f"v_cvt_pk_bf16_f32 v{o+p}, v{x+2*p}, v{x+2*p+1}")
            store4(a, o, 1, WS, f"s{84 + (n>>1)}", (n&1)*1024)
        stamp(a, 1, 2)
        a("s_endpgm")
        if w < 3: a.label(f"L2_w{w+1}")

def gen_p3(a):
    WS, OUT = 40, 28
    R, ACC = 8, 184
    D = 11
    prologue(a, "L3_end")
    a("s_lshr_b32 s54, s52, 1")
    a("s_lshl_b32 s54, s54, 3")
    a("s_and_b32 s59, s53, 7")
    a("s_add_u32 s54, s54, s59")
    a("s_and_b32 s55, s52, 1")
    a("s_lshl_b32 s55, s55, 2")
    a("s_lshr_b32 s59, s53, 3")
    a("s_add_u32 s55, s55, s59")
    a("s_lshl_b32 s60, s54, 1")
    a("s_lshr_b32 s59, s57, 1")
    a("s_add_u32 s60, s60, s59")
    a("s_xor_b32 s61, s60, 1")
    a("s_lshl_b32 s62, s55, 1")
    a("s_and_b32 s59, s57, 1")
    a("s_add_u32 s62, s62, s59")
    a("s_xor_b32 s63, s62, 1")
    a("s_mul_i32 s59, s57, %d" % (22*1024))
    for i in range(4):
        a(f"s_mul_i32 s{64+i}, s{60+i}, {88*1024}")
        a(f"s_add_u32 s{64+i}, s{64+i}, s59")
        a(f"s_add_u32 s{64+i}, s{64+i}, {AF if i < 2 else WF}")
    a("v_lshlrev_b32 v1, 4, v0")
    a("s_waitcnt lgkmcnt(0)")
    srd(a, WS, 26, WS_SIZE)
    stamp(a, 2, 0)
    def load(ks):
        for i in range(4):
            a(f"buffer_load_dwordx4 {vr(R + 16*(ks % D) + 4*i, 4)}, v1, s[{WS}:{WS+3}], s{64+i} offen offset:{(ks%4)*1024}")
        if ks % 4 == 3:
            for i in range(4): a(f"s_add_u32 s{64+i}, s{64+i}, 4096")
    for ks in range(D): load(ks)
    srd(a, OUT, 22, 2048*1024)
    for lam in (1, 2, 3):
        a(f"s_xor_b32 s59, s57, {lam}")
        a(f"s_mul_i32 s59, s59, 12288")
        a(f"s_add_u32 s59, s59, {(lam-1)*4096}")
        a(f"v_add_u32 v{1+lam}, s59, v1")
    a("s_mul_i32 s59, s57, 12288")
    a("v_add_u32 v5, s59, v1")
    a("v_and_b32 v6, 31, v0")
    a("v_lshlrev_b32 v6, 10, v6")
    a("v_lshrrev_b32 v7, 5, v0")
    a("v_lshl_add_u32 v6, v7, 4, v6")
    a("s_lshl_b32 s68, s60, 15")
    a("s_lshl_b32 s59, s62, 6")
    a("s_add_u32 s68, s68, s59")
    for ks in range(22):
        rem = min(21 - ks, D - 1)
        a(f"s_waitcnt vmcnt({4*rem})")
        r = R + 16*(ks % D)
        for lam in (1, 2, 3, 0):
            mfma(a, ACC + 16*lam, r + 8 + 4*(lam & 1), r + 4*(lam >> 1), "0" if ks == 0 else None)
        if ks + D < 22: load(ks + D)
    stamp(a, 2, 1)
    a("s_nop 7"); a("s_nop 1")
    for lam in (1, 2, 3):
        for i in range(4):
            a(f"ds_write_b128 v{1+lam}, {vr(ACC + 16*lam + 4*i, 4)} offset:{i*1024}")
    a("s_waitcnt lgkmcnt(0)")
    a("s_barrier")
    for i in range(12):
        a(f"ds_read_b128 {vr(R + 4*i, 4)}, v5 offset:{i*1024}")
    for s_ in range(3):
        a(f"s_waitcnt lgkmcnt({8 - 4*s_})")
        for p in range(0, 16, 2): a(f"v_pk_add_f32 {vr(ACC+p,2)}, {vr(ACC+p,2)}, {vr(R+16*s_+p,2)}")
    for p in range(8): a(f"v_cvt_pk_bf16_f32 v{64+p}, v{ACC+2*p}, v{ACC+2*p+1}")
    a("s_nop 1")
    for b in (64, 68):
        a(f"v_permlane32_swap_b32 v{b}, v{b+2}")
        a(f"v_permlane32_swap_b32 v{b+1}, v{b+3}")
    a(f"buffer_store_dwordx4 v[64:67], v6, s[{OUT}:{OUT+3}], s68 offen")
    a(f"buffer_store_dwordx4 v[68:71], v6, s[{OUT}:{OUT+3}], s68 offen offset:32")
    stamp(a, 2, 2)
    a.label("L3_end")
    a("s_endpgm")

KERNELS = [("p1_kernel", gen_p1, 512, 163840, 256), ("p2_kernel", gen_p2, 512, 163840, 256), ("p3_kernel", gen_p3, 256, 49152, 256)]

def main():
    ref = open(f"cdna_kernels/{NAME}.s.ref").read().split("\n")
    hdr = [l for l in ref if l.startswith(";") and "@launch" not in l and "Override launch" not in l and "grid=ceil" not in l]
    out = list(hdr)
    for k, _, blk, lds, _ in KERNELS:
        out.append(f"; @launch kernel={k} grid=(256,1,1) block=({blk},1,1) lds={lds}")
    out.append('.amdgcn_target "amdgcn-amd-amdhsa--gfx950"')
    out.append(".text")
    bad = 0
    for k, g, _, _, _ in KERNELS:
        a = Asm(); g(a)
        bad += check(a.lines, k)
        out += [f".globl {k}", ".p2align 8", f".type {k},@function", f"{k}:"] + a.lines
    out.append('.section .rodata,"a"')
    for k, _, _, _, vg in KERNELS:
        out += [".p2align 6", f".amdhsa_kernel {k}", f"  .amdhsa_next_free_vgpr {vg}", "  .amdhsa_next_free_sgpr 102",
                f"  .amdhsa_accum_offset {(vg+3)//4*4}", "  .amdhsa_group_segment_fixed_size 0", "  .amdhsa_kernarg_size 96",
                "  .amdhsa_user_sgpr_count 2", "  .amdhsa_user_sgpr_kernarg_segment_ptr 1", "  .amdhsa_system_sgpr_workgroup_id_x 1",
                "  .amdhsa_float_denorm_mode_32 3", ".end_amdhsa_kernel"]
    open(sys.argv[1], "w").write("\n".join(out) + "\n")
    print("hazards:", bad, "lines:", len(out))
main()
```

```python
import sys, struct
from asmlib import Asm, vr, sr, check

NAME = "gated_mix__softmax_full_mha__mixer_gmlp__prompt"
MB = 1 << 20
QF, KVF, Z1F, Z2F, AF, WF = 0, 2*MB, 6*MB, 10*MB, 14*MB, 20*MB
GG = 22*MB
STATS = 22*MB + 65536
STAMP = 23*MB
WS_SIZE = 24*MB
def f32(x): return "0x%08x" % struct.unpack("<I", struct.pack("<f", x))[0]
LOG2E = 1.4426950408889634
QSCALE = 0.25 * LOG2E
GC1 = -2.0 * LOG2E * 0.7978845608028654
GC2 = GC1 * 0.044715
SPIN = 1 << 16

OPT = dict(stamp=False, st="sc1")
for a_ in sys.argv[2:]:
    k_, v_ = a_.split("=")
    OPT[k_] = eval(v_)

def srd(a, d, p, size):
    if p == 26 and OPT.get("wsoff", 0):
        a(f"s_add_u32 s{d}, s{p}, {OPT['wsoff']*MB}")
        a(f"s_addc_u32 s{d+1}, s{p+1}, 0")
    else:
        a(f"s_mov_b32 s{d}, s{p}")
        a(f"s_mov_b32 s{d+1}, s{p+1}")
    a(f"s_mov_b32 s{d+2}, {size}")
    a(f"s_mov_b32 s{d+3}, 0x20000")

def prologue(a, endlabel):
    a(f"s_cmp_ge_u32 s2, 256")
    a(f"s_cbranch_scc1 {endlabel}")
    if OPT["stamp"]:
        a("s_memrealtime s[96:97]")
        a("s_memtime s[94:95]")
    a("s_load_dwordx16 s[4:19], s[0:1], 0")
    a("s_load_dwordx8 s[20:27], s[0:1], 64")
    a("v_lshrrev_b32 v1, 6, v0")
    a("s_and_b32 s52, s2, 7")
    a("v_readfirstlane_b32 s56, v1")
    a("s_lshr_b32 s53, s2, 3")
    a("v_and_b32 v0, 63, v0")
    a("s_and_b32 s57, s56, 3")

def stamp(a, phase, slot, ws=40, v=254):
    if not OPT["stamp"]: return
    if slot:
        a("s_memrealtime s[96:97]")
        a("s_memtime s[94:95]")
    a("s_waitcnt lgkmcnt(0)")
    a("s_lshl_b32 s98, s2, 3")
    a("s_add_u32 s98, s98, s56")
    a("s_lshl_b32 s98, s98, 5")
    a(f"s_add_u32 s98, s98, {STAMP + phase*65536 + slot*4}")
    a(f"v_mov_b32 v{v}, s96")
    a(f"v_mov_b32 v{v+1}, 0")
    a(f"buffer_store_dword v{v}, v{v+1}, s[{ws}:{ws+3}], s98 offen")
    a(f"v_mov_b32 v{v}, s94")
    a(f"buffer_store_dword v{v}, v{v+1}, s[{ws}:{ws+3}], s98 offen offset:16")

def mfma(a, d, A, B, c=None):
    cc = vr(d, 16) if c is None else (c if isinstance(c, str) else vr(c, 16))
    a(f"v_mfma_f32_32x32x16_bf16 {vr(d,16)}, {vr(A,4)}, {vr(B,4)}, {cc}")

def store4(a, v, voff, srd_, soff, off=0, flags=None):
    fl = OPT["st"] if flags is None else flags
    a(f"buffer_store_dwordx4 {vr(v,4)}, v{voff}, s[{srd_}:{srd_+3}], {soff} offen offset:{off} {fl}")

def swz_row_voffs(a, base, stride_shift=None, stride=None, tmp=1):
    t, u = tmp, base + 3
    a(f"v_lshrrev_b32 v{t}, 4, v0")
    a(f"v_and_b32 v{u}, 7, v0")
    a(f"v_xor_b32 v{u}, v{u}, v{t}")
    a(f"v_lshrrev_b32 v{t}, 3, v0")
    a(f"v_lshlrev_b32 v{t}, {stride_shift}, v{t}")
    a(f"v_lshl_add_u32 v{base}, v{u}, 4, v{t}")
    a(f"v_xor_b32 v{u}, 4, v{u}")
    a(f"v_lshl_add_u32 v{base+1}, v{u}, 4, v{t}")
    st = 1 << stride_shift
    a(f"v_add_u32 v{base+1}, {8*st - 1024}, v{base+1}")
    a(f"v_add_u32 v{base+2}, {16*st - 2048}, v{base}")
    a(f"v_add_u32 v{base+3}, {16*st - 2048}, v{base+1}")

def swz_read_addrs(a, base, sbase, tmp=1):
    t, u = tmp, base + 3
    a(f"v_bfe_u32 v{t}, v0, 1, 3")
    a(f"v_lshrrev_b32 v{u}, 5, v0")
    a(f"v_xor_b32 v{t}, v{t}, v{u}")
    a(f"v_lshlrev_b32 v{t}, 4, v{t}")
    a(f"v_and_b32 v{u}, 31, v0")
    a(f"v_lshl_add_u32 v{t}, v{u}, 7, v{t}")
    a(f"v_add_u32 v{base}, s{sbase}, v{t}")
    for ks in (1, 2, 3):
        a(f"v_xor_b32 v{base+ks}, {ks*32}, v{base}")

def gelu(a, x, t, C1, C2, ONE, n=16):
    for p in range(0, n, 2): a(f"v_pk_mul_f32 {vr(t+p,2)}, {vr(x+p,2)}, {vr(x+p,2)}")
    for p in range(0, n, 2): a(f"v_pk_fma_f32 {vr(t+p,2)}, {vr(t+p,2)}, {vr(C2,2)}, {vr(C1,2)}")
    for p in range(0, n, 2): a(f"v_pk_mul_f32 {vr(t+p,2)}, {vr(t+p,2)}, {vr(x+p,2)}")
    for p in range(n): a(f"v_exp_f32 v{t+p}, v{t+p}")
    for p in range(0, n, 2): a(f"v_pk_add_f32 {vr(t+p,2)}, {vr(t+p,2)}, {vr(ONE,2)}")
    for p in range(n): a(f"v_rcp_f32 v{t+p}, v{t+p}")
    for p in range(0, n, 2): a(f"v_pk_mul_f32 {vr(x+p,2)}, {vr(x+p,2)}, {vr(t+p,2)}")

def halfsum(a, v, t, op="v_add_f32"):
    a(f"v_mov_b32 v{t}, v{v}")
    a("s_nop 1")
    a(f"v_permlane32_swap_b32 v{v}, v{t}")
    a(f"{op} v{v}, v{v}, v{t}")

def gen_p1(a):
    X, WQ, WI, WS, DBG, MISC = 28, 32, 36, 40, 44, 48
    prologue(a, "L1_end")
    a("s_and_b32 s54, s52, 1")
    a("s_lshl_b32 s54, s54, 3")
    a("s_and_b32 s59, s53, 7")
    a("s_add_u32 s54, s54, s59")
    a("s_lshr_b32 s55, s52, 1")
    a("s_lshl_b32 s55, s55, 2")
    a("s_lshr_b32 s59, s53, 3")
    a("s_add_u32 s55, s55, s59")
    a("s_lshl_b32 s58, s54, 2")
    a("s_add_u32 s58, s58, s57")
    a("s_lshl_b32 s60, s57, 12")
    a("s_lshr_b32 s59, s53, 3")
    a("s_lshl_b32 s59, s59, 1")
    a("s_add_u32 s70, s59, s53")
    a("s_and_b32 s70, s70, %d" % (7 if OPT.get("rot", 1) else 0))
    a("s_cmp_ge_u32 s56, 4")
    a("s_cbranch_scc1 L1_z")
    swz_row_voffs(a, 2, stride_shift=10)
    a("v_lshrrev_b32 v1, 2, v0")
    a("v_and_b32 v1, 4, v1")
    a("v_and_b32 v6, 7, v0")
    a("v_xor_b32 v6, v6, v1")
    a("v_lshlrev_b32 v6, 4, v6")
    a("v_lshrrev_b32 v1, 3, v0")
    a("v_mul_u32_u24 v1, 3584, v1")
    a("v_add_u32 v6, v6, v1")
    a(f"v_add_u32 v7, {1792-1024}, v6")
    a(f"v_add_u32 v8, {8*3584-2048}, v6")
    a(f"v_add_u32 v9, {8*3584+1792-3072}, v6")
    a("s_lshl_b32 s61, s58, 15")
    a("s_mul_i32 s62, s57, %d" % (16*3584))
    a("s_lshl_b32 s59, s55, 7")
    a("s_add_u32 s62, s62, s59")
    a("s_waitcnt lgkmcnt(0)")
    srd(a, X, 4, 2048*1024)
    srd(a, WI, 12, 512*3584)
    a("s_cmp_ge_u32 s55, 14")
    a("s_cbranch_scc1 L1_ql")
    p1_qkv(a, False)
    a.label("L1_ql")
    p1_qkv(a, True)
    a.label("L1_z")
    a("s_cmp_ge_u32 s55, 14")
    a("s_cbranch_scc1 L1_aux")
    p1_z(a)
    a.label("L1_aux")
    p1_aux(a)
    a.label("L1_end")
    a("s_endpgm")

def p1_qkv(a, light):
    X, WQ, WI, WS, DBG, MISC = 28, 32, 36, 40, 44, 48
    XF, ACC, WFR, T = 128, 36, 20, 84
    def chunk_dma(c):
        slot = (c % 5) * 32768
        a(f"s_add_u32 s71, s70, {c}")
        a("s_and_b32 s71, s71, 7")
        a("s_lshl_b32 s59, s71, 7")
        a(f"s_add_u32 m0, s60, {slot}")
        a("s_add_u32 s59, s59, s61")
        for q in range(4):
            a(f"buffer_load_dwordx4 v{2+q}, s[{X}:{X+3}], s59 offen offset:{q*1024} lds")
        if not light:
            a(f"s_mul_i32 s59, s71, {64*3584}")
            a(f"s_add_u32 m0, s60, {slot + 16384}")
            a("s_add_u32 s59, s59, s62")
            for i in range(4):
                a(f"buffer_load_dwordx4 v{6+i}, s[{WI}:{WI+3}], s59 offen offset:{i*1024} lds")
    def wq_dma(x, slot):
        for g in range(2):
            a(f"s_add_u32 m0, s63, {slot*32768 + g*4096}")
            a(f"s_add_u32 s59, s{72+g}, {x*1024}")
            for i in range(4):
                a(f"buffer_load_dwordx4 v{10+i}, s[{WQ}:{WQ+3}], s59 offen offset:{i*1024} lds")
    G = 4 if light else 8
    gsize = [G]*8 + [8]*3
    DIST = OPT.get("dist", 2)
    def group(g):
        if g < 8: chunk_dma(g)
        elif g < 11: wq_dma(g - 8, g % 5)
    for c in range(DIST): group(c)
    srd(a, WQ, 6, 512*3072)
    srd(a, WS, 26, WS_SIZE)
    stamp(a, 0, 0, v=106)
    a("v_lshrrev_b32 v1, 2, v0")
    a("v_mul_u32_u24 v1, 3072, v1")
    a("v_and_b32 v10, 3, v0")
    a("v_lshl_add_u32 v10, v10, 4, v1")
    for i in (1, 2, 3): a(f"v_add_u32 v{10+i}, {i*(16*3072-1024)}, v10")
    a("s_lshl_b32 s63, s57, 13")
    a("s_lshl_b32 s64, s55, 6")
    for g in range(2):
        a("s_lshl_b32 s59, s57, 1")
        a(f"s_add_u32 s59, s59, {g}")
        a("s_add_u32 s59, s59, s70")
        a("s_and_b32 s59, s59, 7")
        a(f"s_mul_i32 s59, s59, {64*3072}")
        a(f"s_add_u32 s{72+g}, s59, s64")
    swz_read_addrs(a, 14, 60)
    a("v_lshrrev_b32 v1, 5, v0")
    a("v_lshlrev_b32 v19, 9, v1")
    a("v_bfe_u32 v1, v0, 2, 2")
    a("v_lshl_add_u32 v19, v1, 6, v19")
    a("v_bfe_u32 v1, v0, 4, 1")
    a("v_lshl_add_u32 v19, v1, 5, v19")
    a("v_and_b32 v1, 3, v0")
    a("v_lshl_add_u32 v19, v1, 3, v19")
    a("v_add_u32 v18, 98304, v19")
    a("v_lshlrev_b32 v100, 4, v0")
    a("v_and_b32 v101, 0x33, v0")
    a("v_bfe_u32 v1, v0, 2, 1")
    a("v_lshl_or_b32 v101, v1, 3, v101")
    a("v_bfe_u32 v1, v0, 3, 1")
    a("v_lshl_or_b32 v101, v1, 2, v101")
    a("v_lshlrev_b32 v101, 4, v101")
    a("v_and_b32 v102, 15, v0")
    a("v_lshrrev_b32 v1, 5, v0")
    a("v_lshl_or_b32 v102, v1, 4, v102")
    a("v_lshlrev_b32 v102, 4, v102")
    a("v_bfe_u32 v1, v0, 4, 1")
    a("v_lshl_or_b32 v102, v1, 17, v102")
    a("s_lshl_b32 s59, s55, 7")
    a("s_add_u32 s59, s59, s58")
    a("s_lshl_b32 s65, s59, 10")
    if QF: a(f"s_add_u32 s65, s65, {QF}")
    a("s_add_u32 s66, s65, 65536")
    a("s_lshl_b32 s67, s59, 11")
    a(f"s_add_u32 s67, s67, {KVF}")
    a("s_add_u32 s68, s67, 131072")
    a(f"v_mov_b32 v104, {f32(QSCALE)}")
    a(f"v_mov_b32 v105, {f32(QSCALE)}")
    ext = 2 if OPT["stamp"] else 0
    win = 0
    allow = lambda c: sum(gsize[c+1:c+DIST])
    for c in range(8):
        a(f"s_waitcnt vmcnt({allow(c) + (ext if c == 0 else 0)}) lgkmcnt(0)")
        a("s_barrier")
        group(c + DIST)
        slot = c % 5
        w = slot // 2
        if w != win:
            for ks in range(4): a(f"v_add_u32 v{14+ks}, {((w - win) * 65536) & 0xffffffff}, v{14+ks}")
            win = w
        for ks in range(4):
            a(f"ds_read_b128 {vr(XF + 16*c + 4*ks, 4)}, v{14+ks} offset:{(slot % 2) * 32768}")
    a(f"s_waitcnt vmcnt({allow(8)}) lgkmcnt(0)")
    a("s_barrier")
    for g in range(8 + DIST, 11): group(g)
    stamp(a, 0, 1, v=106)
    def rd(n):
        x, ks = n // 32, n % 32
        reg, off = (18, x * 32768) if x < 2 else (19, 0)
        f = WFR + 4 * (n % 4)
        a(f"ds_read_b64_tr_b16 {vr(f,2)}, v{reg} offset:{off + ks*1024}")
        a(f"ds_read_b64_tr_b16 {vr(f+2,2)}, v{reg} offset:{off + ks*1024 + 256}")
    def epi(x):
        acc = ACC + 16*x
        L = []
        if x == 0:
            L += [f"v_pk_mul_f32 {vr(acc+p,2)}, {vr(acc+p,2)}, v[104:105]" for p in range(0, 16, 2)]
        t = T + 8*(x % 2)
        L += [f"v_cvt_pk_bf16_f32 v{t+p}, v{acc+2*p}, v{acc+2*p+1}" for p in range(8)]
        fl = OPT["st"]
        if x == 0:
            L += [f"buffer_store_dwordx4 {vr(t,4)}, v100, s[{WS}:{WS+3}], s65 offen {fl}",
                  f"buffer_store_dwordx4 {vr(t+4,4)}, v100, s[{WS}:{WS+3}], s66 offen {fl}"]
        elif x == 1:
            L += [f"buffer_store_dwordx4 {vr(t,4)}, v101, s[{WS}:{WS+3}], s67 offen {fl}",
                  f"buffer_store_dwordx4 {vr(t+4,4)}, v101, s[{WS}:{WS+3}], s68 offen {fl}"]
        else:
            L += [f"buffer_store_dwordx4 {vr(t,4)}, v102, s[{WS}:{WS+3}], s67 offen offset:1024 {fl}",
                  f"buffer_store_dwordx4 {vr(t+4,4)}, v102, s[{WS}:{WS+3}], s67 offen offset:1536 {fl}"]
        return L
    for n in range(3): rd(n)
    pend = []
    for n in range(96):
        x, ks = n // 32, n % 32
        if n + 3 == 32:
            a("s_waitcnt vmcnt(0)")
            a("s_barrier")
            if OPT.get("pfsp", 1):
                srd(a, MISC, 14, 2048*4096)
                a("s_lshl_b32 s59, s52, 5")
                a("s_add_u32 s59, s59, s53")
                a("s_lshl_b32 s59, s59, 2")
                a("s_add_u32 s59, s59, s57")
                a("s_lshl_b32 s59, s59, 13")
                a("s_add_u32 m0, s60, 65536")
                for g in range(2):
                    if g: a("s_add_u32 s59, s59, 4096")
                    else: a("s_nop 0")
                    for i in range(4):
                        a(f"buffer_load_dwordx4 v100, s[{MISC}:{MISC+3}], s59 offen offset:{i*1024} lds")
        if n + 3 < 96:
            rd(n + 3)
            a("s_waitcnt lgkmcnt(6)")
        else:
            a(f"s_waitcnt lgkmcnt({2*(95-n)})")
        f = WFR + 4*(n % 4); xf = XF + 4*ks; acc = ACC + 16*x
        c = "0" if ks == 0 else None
        if x < 2: mfma(a, acc, f, xf, c)
        else: mfma(a, acc, xf, f, c)
        if ks == 3 and x > 0: pend = epi(x - 1)
        for _ in range(2):
            if pend: a(pend.pop(0))
    a("s_nop 7"); a("s_nop 3")
    for l in epi(2): a(l)
    stamp(a, 0, 2, v=106)
    if light:
        a("s_cmp_lg_u32 s55, 14")
        a("s_cbranch_scc1 L1_end")
        srd(a, MISC, 20, 1024)
        a("v_lshrrev_b32 v1, 5, v0")
        a("v_lshlrev_b32 v1, 4, v1")
        GA = 36
        for b in range(4):
            for k in range(8):
                if k % 4 == 0:
                    a(f"s_add_u32 s59, s70, {b*2 + k//4}")
                    a("s_and_b32 s59, s59, 7")
                    a("s_lshl_b32 s59, s59, 7")
                a(f"buffer_load_dwordx4 {vr(GA+4*k,4)}, v1, s[{MISC}:{MISC+3}], s59 offen offset:{(k%4)*32}")
            for k in range(8):
                a(f"s_waitcnt vmcnt({7-k})")
                mfma(a, 68, GA+4*k, XF + 4*(b*8+k), "0" if b+k == 0 else None)
        a("s_nop 7"); a("s_nop 3")
        a(f"v_mul_f32 v1, {f32(-LOG2E)}, v68")
        a("v_exp_f32 v1, v1")
        a("v_and_b32 v2, 31, v0")
        a("v_add_f32 v1, 1.0, v1")
        a("v_rcp_f32 v1, v1")
        a("v_lshlrev_b32 v2, 2, v2")
        a("s_lshl_b32 s59, s58, 7")
        a(f"s_add_u32 s59, s59, {GG}")
        a(f"buffer_store_dword v1, v2, s[{WS}:{WS+3}], s59 offen")
    a("s_endpgm")

def p1_z(a):
    X, WQ, WI, WS, DBG, MISC = 28, 32, 36, 40, 44, 48
    XFR, WFR, ACC, T = 8, 16, 48, 112
    C1, C2, ONE, SUM, SQ = 160, 162, 164, 166, 168
    if OPT.get("pfq", 1):
        a("v_lshrrev_b32 v1, 2, v0")
        a("v_mul_u32_u24 v1, 3072, v1")
        a("v_and_b32 v2, 3, v0")
        a("v_lshl_add_u32 v1, v2, 4, v1")
        a("s_and_b32 s59, s53, 7")
        a("s_lshl_b32 s59, s59, 2")
        a("s_add_u32 s59, s59, s57")
        a(f"s_mul_i32 s59, s59, {16*3072}")
        a("s_lshl_b32 s61, s55, 6")
        a("s_add_u32 s59, s59, s61")
        a("s_waitcnt lgkmcnt(0)")
        srd(a, WQ, 6, 512*3072)
        for x in range(3):
            a(f"buffer_load_dwordx4 {vr(200+4*x,4)}, v1, s[{WQ}:{WQ+3}], s59 offen offset:{x*1024}")
    swz_read_addrs(a, 2, 60)
    a("v_lshrrev_b32 v1, 5, v0")
    a("v_lshlrev_b32 v6, 11, v1")
    a("v_bfe_u32 v1, v0, 2, 2")
    a("v_lshl_add_u32 v6, v1, 7, v6")
    a("v_bfe_u32 v1, v0, 3, 1")
    a("v_lshl_add_u32 v6, v1, 6, v6")
    a("v_bfe_u32 v1, v0, 4, 1")
    a("v_lshl_add_u32 v6, v1, 5, v6")
    a("v_and_b32 v1, 3, v0")
    a("v_lshl_add_u32 v6, v1, 3, v6")
    a("v_add_u32 v6, 16384, v6")
    a("v_xor_b32 v7, 64, v6")
    for r, v in ((C1, GC1), (C2, GC2), (ONE, 1.0), (SUM, 0.0), (SQ, 0.0)):
        a(f"v_mov_b32 v{r}, {f32(v)}"); a(f"v_mov_b32 v{r+1}, {f32(v)}")
    a("v_lshlrev_b32 v170, 4, v0")
    a("v_and_b32 v1, 31, v0")
    a("v_lshlrev_b32 v171, 3, v1")
    a("v_lshrrev_b32 v172, 5, v0")
    a("v_mul_u32_u24 v172, 7168, v172")
    a("v_add_u32 v172, v172, v171")
    a("v_lshlrev_b32 v173, 6, v1")
    a("v_lshrrev_b32 v1, 5, v0")
    a("v_lshl_add_u32 v173, v1, 3, v173")
    a("s_add_u32 s59, s60, 32768")
    a("v_add_u32 v173, s59, v173")
    a("v_lshlrev_b32 v174, 9, v1")
    a("v_bfe_u32 v1, v0, 2, 2")
    a("v_lshl_add_u32 v174, v1, 6, v174")
    a("v_bfe_u32 v1, v0, 4, 1")
    a("v_lshl_add_u32 v174, v1, 5, v174")
    a("v_and_b32 v1, 3, v0")
    a("v_lshl_add_u32 v174, v1, 3, v174")
    a("v_add_u32 v174, s59, v174")
    a("v_mov_b32 v175, 0")
    a("s_mul_i32 s61, s54, 14336")
    a("s_lshl_b32 s59, s57, 8")
    a("s_add_u32 s61, s61, s59")
    a(f"s_add_u32 s61, s61, {STATS}")
    a("s_add_u32 s69, s61, 4096")
    a("s_lshl_b32 s59, s55, 10")
    a("s_add_u32 s62, s61, s59")
    a("s_mul_i32 s63, s58, 28")
    a("s_lshl_b32 s59, s55, 1")
    a("s_add_u32 s63, s63, s59")
    a("s_lshl_b32 s63, s63, 11")
    a(f"s_add_u32 s63, s63, {Z1F}")
    a("s_lshl_b32 s64, s55, 18")
    a("s_lshl_b32 s59, s58, 11")
    a("s_add_u32 s64, s64, s59")
    a(f"s_add_u32 s64, s64, {Z2F}")
    a("s_add_u32 s65, s64, 131072")
    a("s_lshl_b32 s66, s54, 2")
    a("s_waitcnt lgkmcnt(0)")
    srd(a, WS, 26, WS_SIZE)
    srd(a, DBG, 24, 256)
    stamp(a, 0, 0)
    tiles = [(1, 0), (1, 1), (0, 0), (0, 1)]
    state = dict(win=0)
    def reads(n):
        c, ks = n >> 2, n & 3
        slot = c % 5
        L = []
        w = slot // 2
        if w != state["win"]:
            L += [f"v_add_u32 v{r}, {((w - state['win']) * 65536) & 0xffffffff}, v{r}" for r in range(2, 8)]
            state["win"] = w
        pre = L
        so = (slot % 2) * 32768
        R = [f"ds_read_b128 {vr(XFR + 4*(n&1), 4)}, v{2+ks} offset:{so}"]
        for ti, (slab, tile) in enumerate(tiles):
            f = WFR + 16*(n&1) + 4*ti
            for v in range(2):
                R.append(f"ds_read_b64_tr_b16 {vr(f+2*v,2)}, v{6+tile} offset:{so + ks*4096 + slab*1024 + v*512}")
        return pre, R
    a("s_barrier")
    pre, R = reads(0)
    for l in pre + R: a(l)
    for n in range(32):
        ks = n & 3
        M = lambda ti: mfma(a, ACC + 16*ti, WFR + 16*(n&1) + 4*ti, XFR + 4*(n&1), "0" if n == 0 else None)
        pre, R = reads(n + 1) if n < 31 else ([], [])
        a("s_waitcnt lgkmcnt(6)")
        M(0)
        if ks == 3:
            a("s_waitcnt lgkmcnt(0)")
            a("s_barrier")
            for l in pre + R[0:3]: a(l)
            M(1)
            for l in R[3:6]: a(l)
            M(2)
            for l in R[6:9]: a(l)
            M(3)
        else:
            for l in R[0:3]: a(l)
            a("s_waitcnt lgkmcnt(7)"); M(1)
            for l in R[3:6]: a(l)
            a("s_waitcnt lgkmcnt(8)"); M(2)
            for l in R[6:9]: a(l)
            a("s_waitcnt lgkmcnt(9)"); M(3)
    stamp(a, 0, 1)
    a(f"buffer_load_dword v176, v175, s[{DBG}:{DBG+3}], s66 offen sc1")
    a("s_nop 7")
    for ti in range(2):
        x = ACC + 16*ti
        gelu(a, x, T, C1, C2, ONE)
        for p in range(0, 16, 2):
            a(f"v_pk_add_f32 {vr(SUM,2)}, {vr(SUM,2)}, {vr(x+p,2)}")
            a(f"v_pk_fma_f32 {vr(SQ,2)}, {vr(x+p,2)}, {vr(x+p,2)}, {vr(SQ,2)}")
        if ti == OPT.get("zbar", 1): a("s_barrier")
    a(f"v_add_f32 v{SUM}, v{SUM}, v{SUM+1}")
    a(f"v_add_f32 v{SUM+1}, v{SQ}, v{SQ+1}")
    halfsum(a, SUM, T)
    halfsum(a, SUM+1, T+1)
    a(f"v_and_b32 v{SUM+1}, 0x7fffffff, v{SUM+1}")
    a(f"s_mov_b32 s67, {SPIN}")
    a.label("L1_clr")
    a("s_waitcnt vmcnt(0)")
    a("v_readfirstlane_b32 s59, v176")
    a("s_sub_u32 s67, s67, 1")
    a("s_cbranch_scc1 L1_clrd")
    a("s_cmp_lg_u32 s59, 0")
    a("s_cbranch_scc1 L1_clrd")
    a(f"buffer_load_dword v176, v175, s[{DBG}:{DBG+3}], s66 offen sc1")
    a("s_branch L1_clr")
    a.label("L1_clrd")
    a(f"buffer_store_dwordx2 {vr(SUM,2)}, v171, s[{WS}:{WS+3}], s62 offen sc1")
    for ti in range(2, 4):
        x = ACC + 16*ti
        gelu(a, x, T, C1, C2, ONE)
        o = 128 + 8*(ti - 2)
        for p in range(8): a(f"v_cvt_pk_bf16_f32 v{o+p}, v{x+2*p}, v{x+2*p+1}")
        store4(a, o, 170, WS, "s63", (ti-2)*2048)
        store4(a, o+4, 170, WS, "s63", (ti-2)*2048 + 1024)
    stamp(a, 0, 2)
    S = 144
    a(f"s_mov_b32 s67, {SPIN}")
    a.label("L1_poll")
    for i in range(7):
        a(f"buffer_load_dwordx2 {vr(S+2*i,2)}, v172, s[{WS}:{WS+3}], {'s61' if i < 4 else 's69'} offen offset:{(i%4)*1024} sc1")
    a("s_waitcnt vmcnt(0)")
    a(f"v_or3_b32 v1, v{S+1}, v{S+3}, v{S+5}")
    a(f"v_or3_b32 v1, v1, v{S+7}, v{S+9}")
    a(f"v_or3_b32 v1, v1, v{S+11}, v{S+13}")
    a("v_cmp_gt_i32 vcc, 0, v1")
    a("s_sub_u32 s67, s67, 1")
    a("s_cbranch_scc1 L1_polld")
    a("s_cmp_lg_u64 vcc, 0")
    a("s_cbranch_scc1 L1_poll")
    a.label("L1_polld")
    for i in range(1, 7): a(f"v_pk_add_f32 {vr(S,2)}, {vr(S,2)}, {vr(S+2*i,2)}")
    halfsum(a, S, T)
    halfsum(a, S+1, T+1)
    a(f"v_mul_f32 v{S}, {f32(1.0/896)}, v{S}")
    a(f"v_mul_f32 v{S+1}, {f32(1.0/896)}, v{S+1}")
    a(f"v_fma_f32 v{S+1}, -v{S}, v{S}, v{S+1}")
    a(f"v_max_f32 v{S+1}, 0, v{S+1}")
    a(f"v_add_f32 v{S+1}, {f32(1e-5)}, v{S+1}")
    a(f"v_rsq_f32 v{S+2}, v{S+1}")
    a("s_nop 0")
    a(f"v_mov_b32 v{S+3}, v{S+2}")
    a(f"v_mul_f32 v{S+4}, -v{S}, v{S+2}")
    a(f"v_mov_b32 v{S+5}, v{S+4}")
    for ti in range(2):
        x = ACC + 16*ti
        for p in range(0, 16, 2): a(f"v_pk_fma_f32 {vr(x+p,2)}, {vr(x+p,2)}, {vr(S+2,2)}, {vr(S+4,2)}")
        o = T + 8*ti
        for p in range(8): a(f"v_cvt_pk_bf16_f32 v{o+p}, v{x+2*p}, v{x+2*p+1}")
        for i in range(4): a(f"ds_write_b64 v173, {vr(o+2*i,2)} offset:{ti*2048 + i*16}")
    a("s_waitcnt lgkmcnt(0)")
    for ti in range(2):
        for k in range(2):
            for v in range(2):
                a(f"ds_read_b64_tr_b16 {vr(16 + ti*8 + k*4 + v*2, 2)}, v174 offset:{ti*2048 + k*1024 + v*256}")
    for ti in range(2):
        for k in range(2):
            a(f"s_waitcnt lgkmcnt({6 - 2*(ti*2+k)})")
            store4(a, 16 + ti*8 + k*4, 170, WS, "s64" if ti == 0 else "s65", k*1024)
    stamp(a, 0, 3)
    a("s_endpgm")

def p1_aux(a):
    X, WQ, WI, WS, DBG, MISC = 28, 32, 36, 40, 44, 48
    a("v_lshlrev_b32 v2, 4, v0")
    a("s_waitcnt lgkmcnt(0)")
    srd(a, WS, 26, WS_SIZE)
    srd(a, DBG, 24, 256)
    a("s_cmp_lg_u32 s55, 15")
    a("s_cbranch_scc1 L1_noclr")
    a("s_cmp_lg_u32 s57, 0")
    a("s_cbranch_scc1 L1_noclr")
    for r in range(4, 8): a(f"v_mov_b32 v{r}, -1")
    a("s_mul_i32 s61, s54, 14336")
    a(f"s_add_u32 s61, s61, {STATS}")
    for i in range(14):
        a(f"buffer_store_dwordx4 v[4:7], v2, s[{WS}:{WS+3}], s61 offen offset:{(i%4)*1024} sc1")
        if i % 4 == 3: a("s_add_u32 s61, s61, 4096")
    a("v_mov_b32 v8, 0")
    a("v_mov_b32 v9, 1")
    a("s_lshl_b32 s66, s54, 2")
    a("s_waitcnt vmcnt(0)")
    a(f"buffer_store_dword v9, v8, s[{DBG}:{DBG+3}], s66 offen sc1")
    a.label("L1_noclr")
    a("s_sub_u32 s59, s55, 14")
    a("s_lshl_b32 s59, s59, 4")
    a("s_add_u32 s59, s59, s54")
    a("s_lshl_b32 s59, s59, 2")
    a("s_add_u32 s61, s59, s57")
    a("s_cmp_ge_u32 s61, 88")
    a("s_cbranch_scc1 L1_end")
    a("s_lshl_b32 s62, s61, 14")
    srd(a, MISC, 8, 512*1024)
    a("s_cmp_lt_u32 s61, 32")
    a("s_cbranch_scc1 L1_wo")
    srd(a, MISC, 18, 896*1024)
    a(f"s_sub_u32 s62, s62, {32*16384}")
    a.label("L1_wo")
    a("s_lshl_b32 s63, s57, 15")
    a("s_add_u32 s63, s63, 16384")
    for g in range(4):
        a(f"s_add_u32 m0, s63, {g*4096}")
        a("s_nop 0")
        for i in range(4):
            a(f"buffer_load_dwordx4 v2, s[{MISC}:{MISC+3}], s62 offen offset:{i*1024} lds")
        a("s_add_u32 s62, s62, 4096")
    a("v_lshrrev_b32 v1, 5, v0")
    a("v_lshlrev_b32 v3, 12, v1")
    a("v_bfe_u32 v1, v0, 2, 2")
    a("v_lshl_add_u32 v3, v1, 10, v3")
    a("v_bfe_u32 v1, v0, 4, 1")
    a("v_lshl_add_u32 v3, v1, 5, v3")
    a("v_and_b32 v1, 3, v0")
    a("v_lshl_add_u32 v3, v1, 3, v3")
    a("v_add_u32 v3, s63, v3")
    a("s_lshl_b32 s62, s61, 10")
    a(f"s_add_u32 s62, s62, {WF}")
    a("s_waitcnt vmcnt(0)")
    for nt in range(16):
        for v in range(2):
            a(f"ds_read_b64_tr_b16 {vr(16 + nt*4 + v*2, 2)}, v3 offset:{v*8192 + nt*64}")
    a("s_waitcnt lgkmcnt(0)")
    for nt in range(16):
        store4(a, 16 + nt*4, 2, WS, "s62", 0)
        a(f"s_add_u32 s62, s62, {88*1024}")

def gen_p2(a):
    prologue(a, "L2_end")
    a("s_cmp_ge_u32 s56, 4")
    a("s_cbranch_scc1 L2_sp")
    p2_att(a)
    a.label("L2_sp")
    p2_sp(a)
    a.label("L2_end")
    a("s_endpgm")

def p2_att(a):
    WS = 40
    Q, KS, VS, S, NM, O, T = 8, 16, 32, 64, 96, 128, 160
    a("s_lshl_b32 s54, s52, 2")
    a("s_lshr_b32 s59, s53, 3")
    a("s_add_u32 s54, s54, s59")
    a("s_and_b32 s55, s53, 7")
    a("s_lshl_b32 s55, s55, 3")
    a("s_lshl_b32 s59, s57, 1")
    a("s_add_u32 s55, s55, s59")
    a("s_lshl_b32 s60, s54, 6")
    a("s_add_u32 s60, s60, s55")
    a("s_lshl_b32 s60, s60, 10")
    if QF: a(f"s_add_u32 s60, s60, {QF}")
    a("s_lshl_b32 s61, s54, 17")
    a(f"s_add_u32 s61, s61, {KVF}")
    a("s_lshl_b32 s62, s57, 11")
    a("s_add_u32 s63, s61, s62")
    a("s_lshl_b32 s64, s55, 7")
    a(f"s_add_u32 s64, s64, {GG}")
    a("v_lshlrev_b32 v4, 4, v0")
    a("v_and_b32 v5, 31, v0")
    a("v_lshlrev_b32 v5, 2, v5")
    a("s_waitcnt lgkmcnt(0)")
    srd(a, WS, 26, WS_SIZE)
    a(f"buffer_load_dwordx4 {vr(Q,4)}, v4, s[{WS}:{WS+3}], s60 offen")
    a(f"buffer_load_dwordx4 {vr(Q+4,4)}, v4, s[{WS}:{WS+3}], s60 offen offset:1024")
    a(f"buffer_load_dwordx4 {vr(KS,4)}, v4, s[{WS}:{WS+3}], s61 offen")
    a(f"buffer_load_dword v6, v5, s[{WS}:{WS+3}], s64 offen")
    a(f"buffer_load_dword v7, v5, s[{WS}:{WS+3}], s64 offen offset:128")
    stamp(a, 1, 0)
    a("v_mov_b32 v1, 0")
    a("ds_write_b32 v5, v1")
    a("v_mov_b32 v3, 0xdddd")
    a("v_mov_b32 v1, v4")
    a("v_and_b32 v2, 15, v0")
    a(f"v_lshrrev_b32 v{T}, 5, v0")
    a(f"v_lshl_or_b32 v2, v{T}, 4, v2")
    a("v_lshlrev_b32 v2, 4, v2")
    a("v_add_u32 v2, 1024, v2")
    a("v_add_u32 v176, 0x10000, v1")
    a("v_add_u32 v177, 0x10000, v2")
    a("v_mov_b32 v178, 1")
    a("s_lshl_b32 s59, s57, 2")
    a("v_mov_b32 v179, s59")
    a(f"v_and_b32 v{T}, 27, v0")
    a(f"v_cmp_eq_u32 vcc, 16, v{T}")
    a(f"v_mov_b32 v{T}, 0x3f803f80")
    a("s_nop 0")
    a(f"v_cndmask_b32 v{VS}, 0, v{T}, vcc")
    for r in range(VS + 1, VS + 32): a(f"v_mov_b32 v{r}, v{VS}")
    for r in range(O, O + 32): a(f"v_mov_b32 v{r}, 0")
    a("s_mov_b32 s66, 0xffff")
    a("s_mov_b32 s67, 0xffff")
    a("s_mul_i32 s65, s55, 88")
    a("s_add_u32 s65, s65, s54")
    a("s_lshl_b32 s65, s65, 10")
    a(f"s_add_u32 s65, s65, {AF}")
    a(f"s_add_u32 s68, s65, {88*1024}")
    a("s_waitcnt vmcnt(0)")
    mfma(a, S, KS, Q, "0")
    mfma(a, S + 16, KS, Q + 4, "0")
    a("s_nop 7"); a("s_nop 2")
    def rowmax(s, d):
        a(f"v_max3_f32 v{d}, v{s}, v{s+1}, v{s+2}")
        for p in range(3, 15, 2): a(f"v_max3_f32 v{d}, v{d}, v{s+p}, v{s+p+1}")
        a(f"v_max_f32 v{d}, v{d}, v{s+15}")
    for q in range(2):
        rowmax(S + 16*q, T + q)
        halfsum(a, T + q, T + 2, "v_max_f32")
        for r in range(16): a(f"v_sub_f32 v{NM + 16*q + r}, 0, v{T+q}")
    a("s_waitcnt lgkmcnt(0)")
    a("s_barrier")
    def kreg(kt): return KS + 4*(kt & 3)
    def vreg(kt): return VS + 8*(kt & 3)
    def rd(kts, skipk=()):
        L = []
        for kt in kts:
            if kt < 64 and kt not in skipk:
                L.append(f"ds_read_b128 {vr(kreg(kt),4)}, v{1 if kt < 32 else 176} offset:{(kt % 32)*2048}")
        L.append("s_mov_b64 exec, s[66:67]")
        for kt in kts:
            if kt < 64:
                for s_ in range(2):
                    L.append(f"ds_read_b128 {vr(vreg(kt)+4*s_,4)}, v{2 if kt < 32 else 177} offset:{(kt % 32)*2048 + s_*512}")
        L.append("s_mov_b64 exec, -1")
        return L
    for l in rd([0, 1], skipk=(0,)): a(l)
    mfma(a, S, KS, Q, NM)
    a("s_waitcnt lgkmcnt(0)")
    a("s_nop 7"); a("s_nop 2")
    stamp(a, 1, 1)
    pa, pb, pc = OPT.get("pos", (2, 5, 12))
    for k in range(128):
        q, kt = k & 1, k >> 1
        sA, sB = S + 16*(k & 1), S + 16*((k + 1) & 1)
        ev = {pa: [], pb: [], pc: []}
        if k > 0:
            qp, ktp = (k - 1) & 1, (k - 1) >> 1
            ev[pa].append(f"v_smfmac_f32_32x32x32_bf16 {vr(O+16*qp,16)}, {vr(vreg(ktp)+4,4)}, {vr(sB+8,8)}, v3")
        if k % 4 == 0 and kt + 2 < 64:
            if kt + 2 == 8:
                ev[pa] += ["s_barrier"]
            ev[pa] += rd([kt + 2, kt + 3])
        if k % 4 == 3 and k < 127:
            ev[pa].append("s_waitcnt lgkmcnt(0)")
            if kt == 41: ev[pa].append("ds_write_b32 v179, v178")
        if k < 127:
            qn, ktn = (k + 1) & 1, (k + 1) >> 1
            ev[pb].append(f"v_mfma_f32_32x32x16_bf16 {vr(sB,16)}, {vr(kreg(ktn),4)}, {vr(Q+4*qn,4)}, {vr(NM+16*qn,16)}")
        ev[pc].append(f"v_smfmac_f32_32x32x32_bf16 {vr(O+16*q,16)}, {vr(vreg(kt),4)}, {vr(sA,8)}, v3")
        for i in range(16):
            for l in ev.get(i, []): a(l)
            a(f"v_exp_f32 v{sA+i}, v{sA+i}")
    a("s_nop 1")
    a(f"v_smfmac_f32_32x32x32_bf16 {vr(O+16,16)}, {vr(vreg(63)+4,4)}, {vr(S+16+8,8)}, v3")
    a(f"s_mov_b32 s70, {f32(2.0**64)}")
    a(f"s_mov_b32 s71, {f32(2.0**-64)}")
    a("s_nop 7"); a("s_nop 1")
    a(f"v_max_f32 v{T}, v{O+8}, v{O+24}")
    a(f"v_min_f32 v{T+1}, v{O+8}, v{O+24}")
    a(f"v_add_f32 v{T+2}, v{O+8}, v{O+24}")
    a(f"v_cmp_gt_f32 s[72:73], s70, v{T}")
    a(f"v_cmp_lt_f32 s[74:75], s71, v{T+1}")
    a(f"v_cmp_o_f32 vcc, v{T+2}, v{T+2}")
    a("s_nop 1")
    a("s_and_b64 s[72:73], s[72:73], s[74:75]")
    a("s_and_b64 s[72:73], s[72:73], vcc")
    a("s_cmp_eq_u64 s[72:73], -1")
    a("s_cbranch_scc0 L2_slow")
    a.label("L2_fin")
    stamp(a, 1, 2)
    for q in range(2):
        o = O + 16*q
        a(f"v_rcp_f32 v{T}, v{o+8}")
        a("s_nop 0")
        a(f"v_mul_f32 v{T}, v{T}, v{6+q}")
        for r in range(8): a(f"v_mul_f32 v{o+r}, v{o+r}, v{T}")
        for p in range(4): a(f"v_cvt_pk_bf16_f32 v{T+4+4*q+p}, v{o+2*p}, v{o+2*p+1}")
        store4(a, T + 4 + 4*q, 4, WS, "s65" if q == 0 else "s68")
    stamp(a, 1, 3)
    a("s_endpgm")
    a.label("L2_slow")
    a(f"v_mov_b32 v{T}, 0xff800000")
    a(f"v_mov_b32 v{T+1}, 0xff800000")
    a("s_mov_b32 s63, s61")
    a("s_mov_b32 s69, 64")
    a.label("L2_s1")
    a(f"buffer_load_dwordx4 {vr(KS,4)}, v4, s[{WS}:{WS+3}], s63 offen")
    a("s_waitcnt vmcnt(0)")
    mfma(a, S, KS, Q, "0")
    mfma(a, S + 16, KS, Q + 4, "0")
    a("s_nop 7"); a("s_nop 3")
    for q in range(2):
        for p in range(0, 16, 2): a(f"v_max3_f32 v{T+q}, v{T+q}, v{S+16*q+p}, v{S+16*q+p+1}")
    a("s_add_u32 s63, s63, 2048")
    a("s_sub_u32 s69, s69, 1")
    a("s_cmp_lg_u32 s69, 0")
    a("s_cbranch_scc1 L2_s1")
    for q in range(2): halfsum(a, T + q, T + 2, "v_max_f32")
    for r in range(O, O + 32): a(f"v_mov_b32 v{r}, 0")
    a("s_mov_b32 s63, s61")
    a("s_mov_b32 s69, 64")
    a.label("L2_s2")
    a(f"buffer_load_dwordx4 {vr(KS,4)}, v4, s[{WS}:{WS+3}], s63 offen")
    a("s_mov_b64 exec, s[66:67]")
    a(f"buffer_load_dwordx4 {vr(VS,4)}, v2, s[{WS}:{WS+3}], s63 offen")
    a(f"buffer_load_dwordx4 {vr(VS+4,4)}, v2, s[{WS}:{WS+3}], s63 offen offset:512")
    a("s_mov_b64 exec, -1")
    a("s_waitcnt vmcnt(0)")
    mfma(a, S, KS, Q, "0")
    mfma(a, S + 16, KS, Q + 4, "0")
    a("s_nop 7"); a("s_nop 3")
    for q in range(2):
        for p in range(16): a(f"v_sub_f32 v{S+16*q+p}, v{S+16*q+p}, v{T+q}")
        for p in range(16): a(f"v_exp_f32 v{S+16*q+p}, v{S+16*q+p}")
    a("s_nop 1")
    for q in range(2):
        for s_ in range(2):
            a(f"v_smfmac_f32_32x32x32_bf16 {vr(O+16*q,16)}, {vr(VS+4*s_,4)}, {vr(S+16*q+8*s_,8)}, v3")
    a("s_add_u32 s63, s63, 2048")
    a("s_sub_u32 s69, s69, 1")
    a("s_cmp_lg_u32 s69, 0")
    a("s_cbranch_scc1 L2_s2")
    a("s_nop 7"); a("s_nop 3")
    a("s_branch L2_fin")

def p2_sp(a):
    WS, WSP, BSP = 40, 28, 32
    WFR, ZS, ACC, T = 16, 48, 112, 224
    a("s_lshl_b32 s54, s52, 2")
    a("s_lshr_b32 s59, s53, 3")
    a("s_add_u32 s54, s54, s59")
    a("s_lshl_b32 s92, s54, 17")
    a("s_lshl_b32 s93, s57, 11")
    a("s_add_u32 s92, s92, s93")
    a(f"s_add_u32 s92, s92, {KVF}")
    a("v_lshlrev_b32 v11, 4, v0")
    a("s_mov_b32 m0, s93")
    a("s_waitcnt lgkmcnt(0)")
    srd(a, WS, 26, WS_SIZE)
    a("s_cmp_eq_u32 s57, 0")
    a("s_cbranch_scc1 L2_skipk0")
    a(f"buffer_load_dwordx4 v11, s[{WS}:{WS+3}], s92 offen lds")
    a.label("L2_skipk0")
    a(f"buffer_load_dwordx4 v11, s[{WS}:{WS+3}], s92 offen offset:1024 lds")
    def kvdma(n):
        a(f"s_add_u32 m0, s93, {n*8192}")
        a("s_add_u32 s92, s92, 8192")
        a(f"buffer_load_dwordx4 v11, s[{WS}:{WS+3}], s92 offen lds")
        a(f"buffer_load_dwordx4 v11, s[{WS}:{WS+3}], s92 offen offset:1024 lds")
    KV1 = OPT.get("kv1", 4)
    for n in range(1, KV1): kvdma(n)
    a("s_lshr_b32 s54, s52, 1")
    a("s_lshl_b32 s54, s54, 3")
    a("s_and_b32 s59, s53, 7")
    a("s_add_u32 s54, s54, s59")
    a("s_and_b32 s55, s52, 1")
    a("s_lshl_b32 s55, s55, 2")
    a("s_lshr_b32 s59, s53, 3")
    a("s_add_u32 s55, s55, s59")
    a("s_and_b32 s58, s55, 1")
    a("s_lshl_b32 s60, s54, 1")
    a("s_add_u32 s60, s60, s58")
    a("s_xor_b32 s61, s60, 1")
    a("s_lshr_b32 s59, s55, 1")
    a("s_mul_i32 s59, s59, 7")
    a("s_add_u32 s65, s59, 3")
    a("s_lshl_b32 s62, s58, 2")
    a("s_add_u32 s62, s62, s59")
    a("s_add_u32 s63, s62, 1")
    a("s_add_u32 s64, s62, 2")
    a("s_lshl_b32 s59, s57, 15")
    a(f"s_add_u32 s59, s59, {Z2F}")
    for i in range(4):
        a(f"s_lshl_b32 s{66+i}, s{62+i}, 17")
        a(f"s_add_u32 s{66+i}, s{66+i}, s59")
    a("s_lshl_b32 s59, s57, 10")
    for i in range(2):
        a(f"s_lshl_b32 s{70+i}, s{60+i}, 17")
        a(f"s_add_u32 s{70+i}, s{70+i}, s59")
    a("s_lshl_b32 s72, s57, 13")
    a("s_add_u32 s72, s72, 0x20000")
    a("s_add_u32 s73, s72, 4096")
    swz_row_voffs(a, 2, stride_shift=12)
    a("v_lshlrev_b32 v1, 4, v0")
    srd(a, WSP, 14, 2048*4096)
    def wdma():
        for t in range(2):
            a(f"s_mov_b32 m0, s{72+t}")
            a("s_nop 0")
            for q in range(4):
                a(f"buffer_load_dwordx4 v{2+q}, s[{WSP}:{WSP+3}], s{70+t} offen offset:{q*1024} lds")
            a(f"s_add_u32 s{70+t}, s{70+t}, 128")
    def zload(ks):
        for i in range(4):
            a(f"buffer_load_dwordx4 {vr(ZS + 16*ks + 4*i, 4)}, v1, s[{WS}:{WS+3}], s{66+i} offen offset:{ks*1024}")
        if ks == 3:
            for i in range(4): a(f"s_add_u32 s{66+i}, s{66+i}, 4096")
    swz_read_addrs(a, 6, 72, tmp=10)
    srd(a, BSP, 16, 4096)
    tiles = [(0, 0), (0, 1), (0, 2), (0, 3), (1, 0), (1, 1), (1, 2)]
    for n, (t, f) in enumerate(tiles):
        a(f"s_mul_i32 s59, s{60+t}, 28")
        a(f"s_add_u32 s59, s59, s{62+f}")
        a(f"s_lshl_b32 s59, s59, 11")
        a(f"s_add_u32 s{76+n}, s59, {Z1F}")
        a(f"s_mul_i32 s59, s{60+t}, 44")
        a(f"s_add_u32 s59, s59, s{62+f}")
        a(f"s_lshl_b32 s59, s59, 11")
        a(f"s_add_u32 s{84+n}, s59, {AF + 32*1024}")
    a(f"s_waitcnt vmcnt({2*(KV1-2)})")
    a("s_barrier")
    stamp(a, 1, 0)
    for n in range(KV1, 16): kvdma(n)
    wdma()
    zload(0)
    a("s_waitcnt vmcnt(12)")
    a("s_barrier")
    for ks in range(1, 4): zload(ks)
    for st in range(8):
        last = st == 7
        a("s_waitcnt vmcnt(16)")
        for t in range(2):
            for ks in range(4):
                a(f"ds_read_b128 {vr(WFR + 16*t + 4*ks, 4)}, v{6+ks} offset:{t*4096}")
        a("s_waitcnt lgkmcnt(0)")
        if not last: wdma()
        for ks in range(4):
            a(f"s_waitcnt vmcnt({(3-ks)*4 if last else 20})")
            for n, (t, f) in enumerate(tiles):
                mfma(a, ACC + 16*n, ZS + 16*ks + 4*f, WFR + 16*t + 4*ks, "0" if st + ks == 0 else None)
            if not last: zload(ks)
    stamp(a, 1, 1)
    a("s_setprio 3")
    a("v_and_b32 v14, 31, v0")
    a("v_lshlrev_b32 v15, 2, v14")
    a("v_lshlrev_b32 v14, 1, v14")
    for t in range(2):
        a(f"s_lshl_b32 s59, s{60+t}, 6")
        a(f"buffer_load_ushort v{10+t}, v14, s[{BSP}:{BSP+3}], s59 offen")
        a(f"s_lshl_b32 s59, s{60+t}, 7")
        a(f"s_add_u32 s59, s59, {GG}")
        a(f"buffer_load_dword v{12+t}, v15, s[{WS}:{WS+3}], s59 offen")
    a("v_mov_b32 v2, 0")
    a("v_add_u32 v3, 0x10000, v1")
    a("v_mov_b32 v4, 1")
    a("s_lshl_b32 s59, s57, 2")
    a("s_add_u32 s59, s59, 16")
    a("v_mov_b32 v5, s59")
    def poll(lbl, off):
        a(f"s_mov_b32 s74, {SPIN}")
        a.label(lbl)
        a(f"ds_read_b128 v[6:9], v2 offset:{off}")
        a("s_waitcnt lgkmcnt(0)")
        a("v_and_b32 v6, v6, v7")
        a("v_and_b32 v8, v8, v9")
        a("v_and_b32 v6, v6, v8")
        a("s_sub_u32 s74, s74, 1")
        a("v_readfirstlane_b32 s59, v6")
        a(f"s_cbranch_scc1 {lbl}d")
        a("s_cmp_lg_u32 s59, 0")
        a(f"s_cbranch_scc1 {lbl}d")
        a("s_sleep 2")
        a(f"s_branch {lbl}")
        a.label(lbl + "d")
    owner = [0,0,0,0,1,1,1,1,2,2,2,3,3,3]
    def slot(n, src):
        si = src if src < owner[n] else src - 1
        ad = 2048 + (n*3 + si)*2048
        return (1, ad) if ad + 1024 < 65536 else (3, ad - 65536)
    for w in range(4):
        if w < 3:
            a(f"s_cmp_lg_u32 s57, {w}")
            a(f"s_cbranch_scc1 L2_w{w+1}")
        mine = [n for n in range(14) if owner[n] == w]
        Z1R = 16
        for i, n in enumerate(mine):
            a(f"buffer_load_dwordx4 {vr(Z1R+4*i,4)}, v1, s[{WS}:{WS+3}], s{76 + (n>>1)} offen offset:{(n&1)*1024}")
        poll(f"L2_pa{w}", 0)
        for n in range(14):
            if owner[n] != w:
                r, ad = slot(n, w)
                a(f"ds_write_b128 v{r}, {vr(ACC+8*n,4)} offset:{ad}")
                a(f"ds_write_b128 v{r}, {vr(ACC+8*n+4,4)} offset:{ad+1024}")
        a("s_waitcnt lgkmcnt(0)")
        a("ds_write_b32 v5, v4")
        a("s_waitcnt vmcnt(0)")
        for t in range(2):
            a(f"v_sub_f32 v{32+4*t}, 1.0, v{12+t}")
            a(f"v_lshlrev_b32 v{10+t}, 16, v{10+t}")
            a(f"v_mov_b32 v{33+4*t}, v{32+4*t}")
            a(f"v_mul_f32 v{34+4*t}, v{10+t}, v{32+4*t}")
            a(f"v_mov_b32 v{35+4*t}, v{34+4*t}")
        poll(f"L2_pb{w}", 16)
        P = 48
        def rdp(i):
            n = mine[i]
            for si, src in enumerate([s_ for s_ in range(4) if s_ != w]):
                r, ad = slot(n, src)
                a(f"ds_read_b128 {vr(P + 24*(i&1) + 8*si, 4)}, v{r} offset:{ad}")
                a(f"ds_read_b128 {vr(P + 24*(i&1) + 8*si + 4, 4)}, v{r} offset:{ad+1024}")
        rdp(0)
        for i, n in enumerate(mine):
            if i + 1 < len(mine):
                rdp(i + 1); a("s_waitcnt lgkmcnt(6)")
            else:
                a("s_waitcnt lgkmcnt(0)")
            x = ACC + 8*n; p0 = P + 24*(i&1); t = tiles[n >> 1][0]
            for si in range(3):
                for p in range(0, 8, 2): a(f"v_pk_add_f32 {vr(x+p,2)}, {vr(x+p,2)}, {vr(p0+8*si+p,2)}")
            for p in range(0, 8, 2): a(f"v_pk_fma_f32 {vr(x+p,2)}, {vr(x+p,2)}, {vr(32+4*t,2)}, {vr(34+4*t,2)}")
            for p in range(4):
                a(f"v_lshlrev_b32 v{T+2*p}, 16, v{Z1R+4*i+p}")
                a(f"v_and_b32 v{T+2*p+1}, 0xffff0000, v{Z1R+4*i+p}")
            for p in range(0, 8, 2): a(f"v_pk_mul_f32 {vr(x+p,2)}, {vr(x+p,2)}, {vr(T+p,2)}")
            o = T + 8 + 4*i
            for p in range(4): a(f"v_cvt_pk_bf16_f32 v{o+p}, v{x+2*p}, v{x+2*p+1}")
            store4(a, o, 1, WS, f"s{84 + (n>>1)}", (n&1)*1024)
        stamp(a, 1, 2)
        a("s_endpgm")
        if w < 3: a.label(f"L2_w{w+1}")

def gen_p3(a):
    WS, OUT = 40, 28
    R, ACC = 8, 184
    D = 11
    prologue(a, "L3_end")
    a("s_lshr_b32 s54, s52, 1")
    a("s_lshl_b32 s54, s54, 3")
    a("s_and_b32 s59, s53, 7")
    a("s_add_u32 s54, s54, s59")
    a("s_and_b32 s55, s52, 1")
    a("s_lshl_b32 s55, s55, 2")
    a("s_lshr_b32 s59, s53, 3")
    a("s_add_u32 s55, s55, s59")
    a("s_lshl_b32 s60, s54, 1")
    a("s_lshr_b32 s59, s57, 1")
    a("s_add_u32 s60, s60, s59")
    a("s_xor_b32 s61, s60, 1")
    a("s_lshl_b32 s62, s55, 1")
    a("s_and_b32 s59, s57, 1")
    a("s_add_u32 s62, s62, s59")
    a("s_xor_b32 s63, s62, 1")
    a("s_mul_i32 s59, s57, %d" % (22*1024))
    for i in range(4):
        a(f"s_mul_i32 s{64+i}, s{60+i}, {88*1024}")
        a(f"s_add_u32 s{64+i}, s{64+i}, s59")
        a(f"s_add_u32 s{64+i}, s{64+i}, {AF if i < 2 else WF}")
    a("v_lshlrev_b32 v1, 4, v0")
    a("s_waitcnt lgkmcnt(0)")
    srd(a, WS, 26, WS_SIZE)
    stamp(a, 2, 0)
    def load(ks):
        for i in range(4):
            a(f"buffer_load_dwordx4 {vr(R + 16*(ks % D) + 4*i, 4)}, v1, s[{WS}:{WS+3}], s{64+i} offen offset:{(ks%4)*1024}")
        if ks % 4 == 3:
            for i in range(4): a(f"s_add_u32 s{64+i}, s{64+i}, 4096")
    for ks in range(D): load(ks)
    srd(a, OUT, 22, 2048*1024)
    for lam in (1, 2, 3):
        a(f"s_xor_b32 s59, s57, {lam}")
        a(f"s_mul_i32 s59, s59, 12288")
        a(f"s_add_u32 s59, s59, {(lam-1)*4096}")
        a(f"v_add_u32 v{1+lam}, s59, v1")
    a("s_mul_i32 s59, s57, 12288")
    a("v_add_u32 v5, s59, v1")
    a("v_and_b32 v6, 31, v0")
    a("v_lshlrev_b32 v6, 10, v6")
    a("v_lshrrev_b32 v7, 5, v0")
    a("v_lshl_add_u32 v6, v7, 4, v6")
    a("s_lshl_b32 s68, s60, 15")
    a("s_lshl_b32 s59, s62, 6")
    a("s_add_u32 s68, s68, s59")
    for ks in range(22):
        rem = min(21 - ks, D - 1)
        a(f"s_waitcnt vmcnt({4*rem})")
        r = R + 16*(ks % D)
        for lam in (1, 2, 3, 0):
            mfma(a, ACC + 16*lam, r + 8 + 4*(lam & 1), r + 4*(lam >> 1), "0" if ks == 0 else None)
        if ks + D < 22: load(ks + D)
    stamp(a, 2, 1)
    a("s_nop 7"); a("s_nop 1")
    for lam in (1, 2, 3):
        for i in range(4):
            a(f"ds_write_b128 v{1+lam}, {vr(ACC + 16*lam + 4*i, 4)} offset:{i*1024}")
    a("s_waitcnt lgkmcnt(0)")
    a("s_barrier")
    for i in range(12):
        a(f"ds_read_b128 {vr(R + 4*i, 4)}, v5 offset:{i*1024}")
    for s_ in range(3):
        a(f"s_waitcnt lgkmcnt({8 - 4*s_})")
        for p in range(0, 16, 2): a(f"v_pk_add_f32 {vr(ACC+p,2)}, {vr(ACC+p,2)}, {vr(R+16*s_+p,2)}")
    for p in range(8): a(f"v_cvt_pk_bf16_f32 v{64+p}, v{ACC+2*p}, v{ACC+2*p+1}")
    a("s_nop 1")
    for b in (64, 68):
        a(f"v_permlane32_swap_b32 v{b}, v{b+2}")
        a(f"v_permlane32_swap_b32 v{b+1}, v{b+3}")
    a(f"buffer_store_dwordx4 v[64:67], v6, s[{OUT}:{OUT+3}], s68 offen")
    a(f"buffer_store_dwordx4 v[68:71], v6, s[{OUT}:{OUT+3}], s68 offen offset:32")
    stamp(a, 2, 2)
    a.label("L3_end")
    a("s_endpgm")

KERNELS = [("p1_kernel", gen_p1, 512, 163840, 256), ("p2_kernel", gen_p2, 512, 163840, 256), ("p3_kernel", gen_p3, 256, 49152, 256)]

def main():
    ref = open(f"cdna_kernels/{NAME}.s.ref").read().split("\n")
    hdr = [l for l in ref if l.startswith(";") and "@launch" not in l and "Override launch" not in l and "grid=ceil" not in l]
    out = list(hdr)
    order = OPT.get("order", list(range(len(KERNELS))))
    if 3 in order: KERNELS.append(("nop_kernel", lambda a: a("s_endpgm"), 64, 0, 8))
    for k, _, blk, lds, _ in [KERNELS[i] for i in order]:
        out.append(f"; @launch kernel={k} grid=(256,1,1) block=({blk},1,1) lds={lds}")
    out.append('.amdgcn_target "amdgcn-amd-amdhsa--gfx950"')
    out.append(".text")
    bad = 0
    for k, g, _, _, _ in KERNELS:
        a = Asm(); g(a)
        bad += check(a.lines, k)
        out += [f".globl {k}", ".p2align 8", f".type {k},@function", f"{k}:"] + a.lines
    out.append('.section .rodata,"a"')
    for k, _, _, _, vg in KERNELS:
        out += [".p2align 6", f".amdhsa_kernel {k}", f"  .amdhsa_next_free_vgpr {vg}", "  .amdhsa_next_free_sgpr 102",
                f"  .amdhsa_accum_offset {(vg+3)//4*4}", "  .amdhsa_group_segment_fixed_size 0", "  .amdhsa_kernarg_size 96",
                "  .amdhsa_user_sgpr_count 2", "  .amdhsa_user_sgpr_kernarg_segment_ptr 1", "  .amdhsa_system_sgpr_workgroup_id_x 1",
                "  .amdhsa_float_denorm_mode_32 3", ".end_amdhsa_kernel"]
    open(sys.argv[1], "w").write("\n".join(out) + "\n")
    print("hazards:", bad, "lines:", len(out))
main()
```

```python
import sys, struct
from asmlib import Asm, vr, sr, check

NAME = "gated_mix__softmax_full_mha__mixer_gmlp__prompt"
MB = 1 << 20
QF, KVF, Z1F, Z2F, AF, WF = 0, 2*MB, 6*MB, 10*MB, 14*MB, 20*MB
GG = 22*MB
STATS = 22*MB + 65536
STAMP = 23*MB
WS_SIZE = 28*MB
def f32(x): return "0x%08x" % struct.unpack("<I", struct.pack("<f", x))[0]
LOG2E = 1.4426950408889634
QSCALE = 0.25 * LOG2E
GC1 = -2.0 * LOG2E * 0.7978845608028654
GC2 = GC1 * 0.044715
SPIN = 1 << 16

OPT = dict(stamp=False, st="sc1")
for a_ in sys.argv[2:]:
    k_, v_ = a_.split("=")
    OPT[k_] = eval(v_)

def srd(a, d, p, size):
    if p == 26 and OPT.get("wsoff", 0):
        a(f"s_add_u32 s{d}, s{p}, {OPT['wsoff']*MB}")
        a(f"s_addc_u32 s{d+1}, s{p+1}, 0")
    else:
        a(f"s_mov_b32 s{d}, s{p}")
        a(f"s_mov_b32 s{d+1}, s{p+1}")
    a(f"s_mov_b32 s{d+2}, {size}")
    a(f"s_mov_b32 s{d+3}, 0x20000")

def prologue(a, endlabel):
    if OPT.get("one") and endlabel != "L1_end":
        a.label("L_p" + endlabel[1])
        return
    a(f"s_cmp_ge_u32 s2, 256")
    a(f"s_cbranch_scc1 {endlabel}")
    if OPT["stamp"]:
        a("s_memrealtime s[96:97]")
        a("s_memtime s[94:95]")
    a("s_load_dwordx16 s[4:19], s[0:1], 0")
    a("s_load_dwordx8 s[20:27], s[0:1], 64")
    if OPT.get("one"):
        a("v_readlane_b32 s3, v0, 63")
        a("s_and_b32 s52, s2, 7")
        a("s_lshr_b32 s53, s2, 3")
        a("v_mbcnt_lo_u32_b32 v0, -1, 0")
        a("v_mbcnt_hi_u32_b32 v0, -1, v0")
        a("s_lshr_b32 s56, s3, 11")
        a("s_and_b32 s57, s56, 3")
        a("s_and_b32 s59, s3, 63")
        a("s_cmp_eq_u32 s59, 31")
        a("s_cbranch_scc1 L_p2")
        a("s_lshr_b32 s56, s3, 12")
        a("s_and_b32 s57, s56, 3")
        a("s_cmp_eq_u32 s59, 15")
        a("s_cbranch_scc1 L_p3")
        a("s_lshr_b32 s56, s3, 6")
        a("s_and_b32 s57, s56, 3")
        return
    a("v_lshrrev_b32 v1, 6, v0")
    a("s_and_b32 s52, s2, 7")
    a("v_readfirstlane_b32 s56, v1")
    a("s_lshr_b32 s53, s2, 3")
    a("v_and_b32 v0, 63, v0")
    a("s_and_b32 s57, s56, 3")

def stamp(a, phase, slot, ws=40, v=254):
    if not OPT["stamp"]: return
    if slot:
        a("s_memrealtime s[96:97]")
        a("s_memtime s[94:95]")
    a("s_waitcnt lgkmcnt(0)")
    a("s_lshl_b32 s98, s2, 3")
    a("s_add_u32 s98, s98, s56")
    a("s_lshl_b32 s98, s98, 5")
    a(f"s_add_u32 s98, s98, {STAMP + phase*65536 + slot*4}")
    a(f"v_mov_b32 v{v}, s96")
    a(f"v_mov_b32 v{v+1}, 0")
    a(f"buffer_store_dword v{v}, v{v+1}, s[{ws}:{ws+3}], s98 offen")
    a(f"v_mov_b32 v{v}, s94")
    a(f"buffer_store_dword v{v}, v{v+1}, s[{ws}:{ws+3}], s98 offen offset:16")

FINE = dict(n=0)
def fine(a):
    if not OPT.get("fine"): return
    a("s_memtime s[100:101]")
    a("s_waitcnt lgkmcnt(0)")
    a(f"v_writelane_b32 v{FINE['v']}, s100, {FINE['n']}")
    FINE["n"] += 1
def fine_init(a, v):
    if not OPT.get("fine"): return
    FINE["v"] = v; FINE["n"] = 1
    a(f"v_mov_b32 v{v}, 0")
    a(f"v_writelane_b32 v{v}, s94, 0")
def fine_dump(a, phase, ws=40):
    if not OPT.get("fine"): return
    v = FINE["v"]
    a("s_lshl_b32 s98, s2, 3")
    a("s_add_u32 s98, s98, s56")
    a("s_lshl_b32 s98, s98, 8")
    a(f"s_add_u32 s98, s98, {24*MB + phase*MB}")
    a(f"v_lshlrev_b32 v{v+1}, 2, v0")
    a(f"buffer_store_dword v{v}, v{v+1}, s[{ws}:{ws+3}], s98 offen")

def mfma(a, d, A, B, c=None):
    cc = vr(d, 16) if c is None else (c if isinstance(c, str) else vr(c, 16))
    a(f"v_mfma_f32_32x32x16_bf16 {vr(d,16)}, {vr(A,4)}, {vr(B,4)}, {cc}")

def store4(a, v, voff, srd_, soff, off=0, flags=None):
    fl = OPT["st"] if flags is None else flags
    a(f"buffer_store_dwordx4 {vr(v,4)}, v{voff}, s[{srd_}:{srd_+3}], {soff} offen offset:{off} {fl}")

def swz_row_voffs(a, base, stride_shift=None, stride=None, tmp=1):
    t, u = tmp, base + 3
    a(f"v_lshrrev_b32 v{t}, 4, v0")
    a(f"v_and_b32 v{u}, 7, v0")
    a(f"v_xor_b32 v{u}, v{u}, v{t}")
    a(f"v_lshrrev_b32 v{t}, 3, v0")
    a(f"v_lshlrev_b32 v{t}, {stride_shift}, v{t}")
    a(f"v_lshl_add_u32 v{base}, v{u}, 4, v{t}")
    a(f"v_xor_b32 v{u}, 4, v{u}")
    a(f"v_lshl_add_u32 v{base+1}, v{u}, 4, v{t}")
    st = 1 << stride_shift
    a(f"v_add_u32 v{base+1}, {8*st - 1024}, v{base+1}")
    a(f"v_add_u32 v{base+2}, {16*st - 2048}, v{base}")
    a(f"v_add_u32 v{base+3}, {16*st - 2048}, v{base+1}")

def swz_read_addrs(a, base, sbase, tmp=1):
    t, u = tmp, base + 3
    a(f"v_bfe_u32 v{t}, v0, 1, 3")
    a(f"v_lshrrev_b32 v{u}, 5, v0")
    a(f"v_xor_b32 v{t}, v{t}, v{u}")
    a(f"v_lshlrev_b32 v{t}, 4, v{t}")
    a(f"v_and_b32 v{u}, 31, v0")
    a(f"v_lshl_add_u32 v{t}, v{u}, 7, v{t}")
    a(f"v_add_u32 v{base}, s{sbase}, v{t}")
    for ks in (1, 2, 3):
        a(f"v_xor_b32 v{base+ks}, {ks*32}, v{base}")

def gelu(a, x, t, C1, C2, ONE, n=16, pk=False):
    if not pk:
        for p in range(n): a(f"v_mul_f32 v{t+p}, v{x+p}, v{x+p}")
        for p in range(n): a(f"v_fma_f32 v{t+p}, v{t+p}, v{C2}, v{C1}")
        for p in range(n): a(f"v_mul_f32 v{t+p}, v{t+p}, v{x+p}")
        for p in range(n): a(f"v_exp_f32 v{t+p}, v{t+p}")
        for p in range(n): a(f"v_add_f32 v{t+p}, 1.0, v{t+p}")
        for p in range(n): a(f"v_rcp_f32 v{t+p}, v{t+p}")
        for p in range(n): a(f"v_mul_f32 v{x+p}, v{x+p}, v{t+p}")
        return
    for p in range(0, n, 2): a(f"v_pk_mul_f32 {vr(t+p,2)}, {vr(x+p,2)}, {vr(x+p,2)}")
    for p in range(0, n, 2): a(f"v_pk_fma_f32 {vr(t+p,2)}, {vr(t+p,2)}, {vr(C2,2)}, {vr(C1,2)}")
    for p in range(0, n, 2): a(f"v_pk_mul_f32 {vr(t+p,2)}, {vr(t+p,2)}, {vr(x+p,2)}")
    for p in range(n): a(f"v_exp_f32 v{t+p}, v{t+p}")
    for p in range(0, n, 2): a(f"v_pk_add_f32 {vr(t+p,2)}, {vr(t+p,2)}, {vr(ONE,2)}")
    for p in range(n): a(f"v_rcp_f32 v{t+p}, v{t+p}")
    for p in range(0, n, 2): a(f"v_pk_mul_f32 {vr(x+p,2)}, {vr(x+p,2)}, {vr(t+p,2)}")

def halfsum(a, v, t, op="v_add_f32"):
    a(f"v_mov_b32 v{t}, v{v}")
    a("s_nop 1")
    a(f"v_permlane32_swap_b32 v{v}, v{t}")
    a(f"{op} v{v}, v{v}, v{t}")

def gen_p1(a):
    X, WQ, WI, WS, DBG, MISC = 28, 32, 36, 40, 44, 48
    prologue(a, "L1_end")
    a("s_and_b32 s54, s52, 1")
    a("s_lshl_b32 s54, s54, 3")
    a("s_and_b32 s59, s53, 7")
    a("s_add_u32 s54, s54, s59")
    a("s_lshr_b32 s55, s52, 1")
    a("s_lshl_b32 s55, s55, 2")
    a("s_lshr_b32 s59, s53, 3")
    a("s_add_u32 s55, s55, s59")
    a("s_lshl_b32 s58, s54, 2")
    a("s_add_u32 s58, s58, s57")
    a("s_lshl_b32 s60, s57, 12")
    a("s_lshr_b32 s59, s53, 3")
    a("s_lshl_b32 s59, s59, 1")
    a("s_add_u32 s70, s59, s53")
    a("s_and_b32 s70, s70, %d" % (7 if OPT.get("rot", 1) else 0))
    a("s_cmp_ge_u32 s56, 4")
    a("s_cbranch_scc1 L1_z")
    swz_row_voffs(a, 2, stride_shift=10)
    a("v_lshrrev_b32 v1, 2, v0")
    a("v_and_b32 v1, 4, v1")
    a("v_and_b32 v6, 7, v0")
    a("v_xor_b32 v6, v6, v1")
    a("v_lshlrev_b32 v6, 4, v6")
    a("v_lshrrev_b32 v1, 3, v0")
    a("v_mul_u32_u24 v1, 3584, v1")
    a("v_add_u32 v6, v6, v1")
    a(f"v_add_u32 v7, {1792-1024}, v6")
    a(f"v_add_u32 v8, {8*3584-2048}, v6")
    a(f"v_add_u32 v9, {8*3584+1792-3072}, v6")
    a("s_lshl_b32 s61, s58, 15")
    a("s_mul_i32 s62, s57, %d" % (16*3584))
    a("s_lshl_b32 s59, s55, 7")
    a("s_add_u32 s62, s62, s59")
    a("s_waitcnt lgkmcnt(0)")
    srd(a, X, 4, 2048*1024)
    srd(a, WI, 12, 512*3584)
    a("s_cmp_ge_u32 s55, 14")
    a("s_cbranch_scc1 L1_ql")
    p1_qkv(a, False)
    a.label("L1_ql")
    p1_qkv(a, True)
    a.label("L1_z")
    a("s_cmp_ge_u32 s55, 14")
    a("s_cbranch_scc1 L1_aux")
    p1_z(a)
    a.label("L1_aux")
    p1_aux(a)
    a.label("L1_end")
    a("s_endpgm")

def p1_qkv(a, light):
    X, WQ, WI, WS, DBG, MISC = 28, 32, 36, 40, 44, 48
    XF, ACC, WFR, T = 128, 36, 20, 84
    def chunk_dma(c):
        slot = (c % 5) * 32768
        a(f"s_add_u32 s71, s70, {c}")
        a("s_and_b32 s71, s71, 7")
        a("s_lshl_b32 s59, s71, 7")
        a(f"s_add_u32 m0, s60, {slot}")
        a("s_add_u32 s59, s59, s61")
        for q in range(4):
            a(f"buffer_load_dwordx4 v{2+q}, s[{X}:{X+3}], s59 offen offset:{q*1024} lds")
        if not light:
            a(f"s_mul_i32 s59, s71, {64*3584}")
            a(f"s_add_u32 m0, s60, {slot + 16384}")
            a("s_add_u32 s59, s59, s62")
            for i in range(4):
                a(f"buffer_load_dwordx4 v{6+i}, s[{WI}:{WI+3}], s59 offen offset:{i*1024} lds")
    def wq_dma(x, slot):
        for g in range(2):
            a(f"s_add_u32 m0, s63, {slot*32768 + g*4096}")
            a(f"s_add_u32 s59, s{72+g}, {x*1024}")
            for i in range(4):
                a(f"buffer_load_dwordx4 v{10+i}, s[{WQ}:{WQ+3}], s59 offen offset:{i*1024} lds")
    G = 4 if light else 8
    gsize = [G]*8 + [8]*3
    DIST = OPT.get("dist", 2)
    def group(g):
        if g < 8: chunk_dma(g)
        elif g < 11: wq_dma(g - 8, g % 5)
    group(0)
    srd(a, WQ, 6, 512*3072)
    srd(a, WS, 26, WS_SIZE)
    stamp(a, 0, 0, v=106)
    fine_init(a, 108); fine(a)
    a("v_lshrrev_b32 v1, 2, v0")
    a("v_mul_u32_u24 v1, 3072, v1")
    a("v_and_b32 v10, 3, v0")
    a("v_lshl_add_u32 v10, v10, 4, v1")
    for i in (1, 2, 3): a(f"v_add_u32 v{10+i}, {i*(16*3072-1024)}, v10")
    a("s_lshl_b32 s63, s57, 13")
    a("s_lshl_b32 s64, s55, 6")
    for g in range(2):
        a("s_lshl_b32 s59, s57, 1")
        a(f"s_add_u32 s59, s59, {g}")
        a("s_add_u32 s59, s59, s70")
        a("s_and_b32 s59, s59, 7")
        a(f"s_mul_i32 s59, s59, {64*3072}")
        a(f"s_add_u32 s{72+g}, s59, s64")
    swz_read_addrs(a, 14, 60)
    a("v_lshrrev_b32 v1, 5, v0")
    a("v_lshlrev_b32 v19, 9, v1")
    a("v_bfe_u32 v1, v0, 2, 2")
    a("v_lshl_add_u32 v19, v1, 6, v19")
    a("v_bfe_u32 v1, v0, 4, 1")
    a("v_lshl_add_u32 v19, v1, 5, v19")
    a("v_and_b32 v1, 3, v0")
    a("v_lshl_add_u32 v19, v1, 3, v19")
    a("v_add_u32 v18, 98304, v19")
    a("v_lshlrev_b32 v100, 4, v0")
    a("v_and_b32 v101, 0x33, v0")
    a("v_bfe_u32 v1, v0, 2, 1")
    a("v_lshl_or_b32 v101, v1, 3, v101")
    a("v_bfe_u32 v1, v0, 3, 1")
    a("v_lshl_or_b32 v101, v1, 2, v101")
    a("v_lshlrev_b32 v101, 4, v101")
    a("v_and_b32 v102, 15, v0")
    a("v_lshrrev_b32 v1, 5, v0")
    a("v_lshl_or_b32 v102, v1, 4, v102")
    a("v_lshlrev_b32 v102, 4, v102")
    a("v_bfe_u32 v1, v0, 4, 1")
    a("v_lshl_or_b32 v102, v1, 17, v102")
    a("s_lshl_b32 s59, s55, 7")
    a("s_add_u32 s59, s59, s58")
    a("s_lshl_b32 s65, s59, 10")
    if QF: a(f"s_add_u32 s65, s65, {QF}")
    a("s_add_u32 s66, s65, 65536")
    a("s_lshl_b32 s67, s59, 11")
    a(f"s_add_u32 s67, s67, {KVF}")
    a("s_add_u32 s68, s67, 131072")
    a(f"v_mov_b32 v104, {f32(QSCALE)}")
    a(f"v_mov_b32 v105, {f32(QSCALE)}")
    for c in range(1, DIST): group(c)
    ext = 0
    win = 0
    allow = lambda c: sum(gsize[c+1:c+DIST])
    for c in range(8):
        a(f"s_waitcnt vmcnt({allow(c) + (ext if c == 0 else 0)}) lgkmcnt(0)")
        fine(a)
        a("s_barrier")
        fine(a)
        group(c + DIST)
        fine(a)
        slot = c % 5
        w = slot // 2
        if w != win:
            for ks in range(4): a(f"v_add_u32 v{14+ks}, {((w - win) * 65536) & 0xffffffff}, v{14+ks}")
            win = w
        for ks in range(4):
            a(f"ds_read_b128 {vr(XF + 16*c + 4*ks, 4)}, v{14+ks} offset:{(slot % 2) * 32768}")
    a(f"s_waitcnt vmcnt({allow(8)}) lgkmcnt(0)")
    fine(a)
    a("s_barrier")
    fine(a)
    for g in range(8 + DIST, 11): group(g)
    fine(a)
    stamp(a, 0, 1, v=106)
    def rd(n):
        x, ks = n // 32, n % 32
        reg, off = (18, x * 32768) if x < 2 else (19, 0)
        f = WFR + 4 * (n % 4)
        a(f"ds_read_b64_tr_b16 {vr(f,2)}, v{reg} offset:{off + ks*1024}")
        a(f"ds_read_b64_tr_b16 {vr(f+2,2)}, v{reg} offset:{off + ks*1024 + 256}")
    def epi(x):
        acc = ACC + 16*x
        L = []
        if x == 0:
            L += [f"v_mul_f32 v{acc+p}, v{acc+p}, v104" for p in range(16)]
        t = T + 8*(x % 2)
        L += [f"v_cvt_pk_bf16_f32 v{t+p}, v{acc+2*p}, v{acc+2*p+1}" for p in range(8)]
        fl = OPT["st"]
        if x == 0:
            L += [f"buffer_store_dwordx4 {vr(t,4)}, v100, s[{WS}:{WS+3}], s65 offen {fl}",
                  f"buffer_store_dwordx4 {vr(t+4,4)}, v100, s[{WS}:{WS+3}], s66 offen {fl}"]
        elif x == 1:
            L += [f"buffer_store_dwordx4 {vr(t,4)}, v101, s[{WS}:{WS+3}], s67 offen {fl}",
                  f"buffer_store_dwordx4 {vr(t+4,4)}, v101, s[{WS}:{WS+3}], s68 offen {fl}"]
        else:
            L += [f"buffer_store_dwordx4 {vr(t,4)}, v102, s[{WS}:{WS+3}], s67 offen offset:1024 {fl}",
                  f"buffer_store_dwordx4 {vr(t+4,4)}, v102, s[{WS}:{WS+3}], s67 offen offset:1536 {fl}"]
        return L
    for n in range(3): rd(n)
    pend = []
    for n in range(96):
        x, ks = n // 32, n % 32
        if n + 3 == 32:
            fine(a)
            a("s_waitcnt vmcnt(0)")
            fine(a)
            a("s_barrier")
            fine(a)
            if OPT.get("pfsp", 1):
                srd(a, MISC, 14, 2048*4096)
                a("s_lshl_b32 s59, s52, 5")
                a("s_add_u32 s59, s59, s53")
                a("s_lshl_b32 s59, s59, 2")
                a("s_add_u32 s59, s59, s57")
                a("s_lshl_b32 s59, s59, 13")
                a("s_add_u32 m0, s60, 65536")
                for g in range(2):
                    if g: a("s_add_u32 s59, s59, 4096")
                    else: a("s_nop 0")
                    for i in range(4):
                        a(f"buffer_load_dwordx4 v100, s[{MISC}:{MISC+3}], s59 offen offset:{i*1024} lds")
        if n + 3 < 96:
            rd(n + 3)
            a("s_waitcnt lgkmcnt(6)")
        else:
            a(f"s_waitcnt lgkmcnt({2*(95-n)})")
        f = WFR + 4*(n % 4); xf = XF + 4*ks; acc = ACC + 16*x
        c = "0" if ks == 0 else None
        if x < 2: mfma(a, acc, f, xf, c)
        else: mfma(a, acc, xf, f, c)
        if ks == 31 or (ks == 0 and x == 1): fine(a)
        if ks == 3 and x > 0: pend = epi(x - 1)
        for _ in range(2):
            if pend: a(pend.pop(0))
    a("s_nop 7"); a("s_nop 3")
    for l in epi(2): a(l)
    stamp(a, 0, 2, v=106)
    fine(a); fine_dump(a, 0)
    if light:
        a("s_cmp_lg_u32 s55, 14")
        a("s_cbranch_scc1 L1_end")
        srd(a, MISC, 20, 1024)
        a("v_lshrrev_b32 v1, 5, v0")
        a("v_lshlrev_b32 v1, 4, v1")
        GA = 36
        for b in range(4):
            for k in range(8):
                if k % 4 == 0:
                    a(f"s_add_u32 s59, s70, {b*2 + k//4}")
                    a("s_and_b32 s59, s59, 7")
                    a("s_lshl_b32 s59, s59, 7")
                a(f"buffer_load_dwordx4 {vr(GA+4*k,4)}, v1, s[{MISC}:{MISC+3}], s59 offen offset:{(k%4)*32}")
            for k in range(8):
                a(f"s_waitcnt vmcnt({7-k})")
                mfma(a, 68, GA+4*k, XF + 4*(b*8+k), "0" if b+k == 0 else None)
        a("s_nop 7"); a("s_nop 3")
        a(f"v_mul_f32 v1, {f32(-LOG2E)}, v68")
        a("v_exp_f32 v1, v1")
        a("v_and_b32 v2, 31, v0")
        a("v_add_f32 v1, 1.0, v1")
        a("v_rcp_f32 v1, v1")
        a("v_lshlrev_b32 v2, 2, v2")
        a("s_lshl_b32 s59, s58, 7")
        a(f"s_add_u32 s59, s59, {GG}")
        a(f"buffer_store_dword v1, v2, s[{WS}:{WS+3}], s59 offen")
    a("s_endpgm")

def p1_z(a):
    X, WQ, WI, WS, DBG, MISC = 28, 32, 36, 40, 44, 48
    XFR, WFR, ACC, T = 8, 16, 48, 112
    C1, C2, ONE, SUM, SQ = 160, 162, 164, 166, 168
    if OPT.get("pfq", 1):
        a("v_lshrrev_b32 v1, 2, v0")
        a("v_mul_u32_u24 v1, 3072, v1")
        a("v_and_b32 v2, 3, v0")
        a("v_lshl_add_u32 v1, v2, 4, v1")
        a("s_and_b32 s59, s53, 7")
        a("s_lshl_b32 s59, s59, 2")
        a("s_add_u32 s59, s59, s57")
        a(f"s_mul_i32 s59, s59, {16*3072}")
        a("s_lshl_b32 s61, s55, 6")
        a("s_add_u32 s59, s59, s61")
        a("s_waitcnt lgkmcnt(0)")
        srd(a, WQ, 6, 512*3072)
        a("v_mov_b32 v199, v1")
        a("s_mov_b32 s75, s59")
    swz_read_addrs(a, 2, 60)
    a("v_lshrrev_b32 v1, 5, v0")
    a("v_lshlrev_b32 v6, 11, v1")
    a("v_bfe_u32 v1, v0, 2, 2")
    a("v_lshl_add_u32 v6, v1, 7, v6")
    a("v_bfe_u32 v1, v0, 3, 1")
    a("v_lshl_add_u32 v6, v1, 6, v6")
    a("v_bfe_u32 v1, v0, 4, 1")
    a("v_lshl_add_u32 v6, v1, 5, v6")
    a("v_and_b32 v1, 3, v0")
    a("v_lshl_add_u32 v6, v1, 3, v6")
    a("v_add_u32 v6, 16384, v6")
    a("v_xor_b32 v7, 64, v6")
    for r, v in ((C1, GC1), (C2, GC2), (ONE, 1.0), (SUM, 0.0), (SQ, 0.0)):
        a(f"v_mov_b32 v{r}, {f32(v)}"); a(f"v_mov_b32 v{r+1}, {f32(v)}")
    a("v_lshlrev_b32 v170, 4, v0")
    a("v_and_b32 v1, 31, v0")
    a("v_lshlrev_b32 v171, 3, v1")
    a("v_lshrrev_b32 v172, 5, v0")
    a("v_mul_u32_u24 v172, 7168, v172")
    a("v_add_u32 v172, v172, v171")
    a("v_lshlrev_b32 v173, 6, v1")
    a("v_lshrrev_b32 v1, 5, v0")
    a("v_lshl_add_u32 v173, v1, 3, v173")
    a("s_add_u32 s59, s60, 32768")
    a("v_add_u32 v173, s59, v173")
    a("v_lshlrev_b32 v174, 9, v1")
    a("v_bfe_u32 v1, v0, 2, 2")
    a("v_lshl_add_u32 v174, v1, 6, v174")
    a("v_bfe_u32 v1, v0, 4, 1")
    a("v_lshl_add_u32 v174, v1, 5, v174")
    a("v_and_b32 v1, 3, v0")
    a("v_lshl_add_u32 v174, v1, 3, v174")
    a("v_add_u32 v174, s59, v174")
    a("v_mov_b32 v175, 0")
    a("s_mul_i32 s61, s54, 14336")
    a("s_lshl_b32 s59, s57, 8")
    a("s_add_u32 s61, s61, s59")
    a(f"s_add_u32 s61, s61, {STATS}")
    a("s_add_u32 s69, s61, 4096")
    a("s_lshl_b32 s59, s55, 10")
    a("s_add_u32 s62, s61, s59")
    a("s_mul_i32 s63, s58, 28")
    a("s_lshl_b32 s59, s55, 1")
    a("s_add_u32 s63, s63, s59")
    a("s_lshl_b32 s63, s63, 11")
    a(f"s_add_u32 s63, s63, {Z1F}")
    a("s_lshl_b32 s64, s55, 18")
    a("s_lshl_b32 s59, s58, 11")
    a("s_add_u32 s64, s64, s59")
    a(f"s_add_u32 s64, s64, {Z2F}")
    a("s_add_u32 s65, s64, 131072")
    a("s_lshl_b32 s66, s54, 2")
    a("s_waitcnt lgkmcnt(0)")
    srd(a, WS, 26, WS_SIZE)
    srd(a, DBG, 24, 256)
    stamp(a, 0, 0)
    fine_init(a, 250); fine(a)
    tiles = [(1, 0), (1, 1), (0, 0), (0, 1)]
    state = dict(win=0)
    def reads(n):
        c, ks = n >> 2, n & 3
        slot = c % 5
        L = []
        w = slot // 2
        if w != state["win"]:
            L += [f"v_add_u32 v{r}, {((w - state['win']) * 65536) & 0xffffffff}, v{r}" for r in range(2, 8)]
            state["win"] = w
        pre = L
        so = (slot % 2) * 32768
        R = [f"ds_read_b128 {vr(XFR + 4*(n&1), 4)}, v{2+ks} offset:{so}"]
        for ti, (slab, tile) in enumerate(tiles):
            f = WFR + 16*(n&1) + 4*ti
            for v in range(2):
                R.append(f"ds_read_b64_tr_b16 {vr(f+2*v,2)}, v{6+tile} offset:{so + ks*4096 + slab*1024 + v*512}")
        return pre, R
    a("s_barrier")
    pre, R = reads(0)
    for l in pre + R: a(l)
    if OPT.get("pfq", 1):
        for x in range(3):
            a(f"buffer_load_dwordx4 {vr(200+4*x,4)}, v199, s[{WQ}:{WQ+3}], s75 offen offset:{x*1024}")
    for n in range(32):
        ks = n & 3
        M = lambda ti: mfma(a, ACC + 16*ti, WFR + 16*(n&1) + 4*ti, XFR + 4*(n&1), "0" if n == 0 else None)
        pre, R = reads(n + 1) if n < 31 else ([], [])
        a("s_waitcnt lgkmcnt(6)")
        M(0)
        if ks == 3:
            fine(a)
            a("s_barrier")
            fine(a)
        if n == 31:
            for t_ in (1, 2, 3):
                a(f"s_waitcnt lgkmcnt({6 - 2*t_})"); M(t_)
        else:
            for l in pre + R[0:3]: a(l)
            a("s_waitcnt lgkmcnt(7)"); M(1)
            for l in R[3:6]: a(l)
            a("s_waitcnt lgkmcnt(8)"); M(2)
            for l in R[6:9]: a(l)
            a("s_waitcnt lgkmcnt(9)"); M(3)
    stamp(a, 0, 1)
    a(f"buffer_load_dword v176, v175, s[{DBG}:{DBG+3}], s66 offen sc1")
    a("s_nop 7")
    for ti in range(2):
        x = ACC + 16*ti
        gelu(a, x, T, C1, C2, ONE)
        for p in range(16):
            a(f"v_add_f32 v{SUM+(p&1)}, v{SUM+(p&1)}, v{x+p}")
            a(f"v_fmac_f32 v{SQ+(p&1)}, v{x+p}, v{x+p}")
        fine(a)
        if ti == OPT.get("zbar", 0): a("s_barrier"); fine(a)
    a(f"v_add_f32 v{SUM}, v{SUM}, v{SUM+1}")
    a(f"v_add_f32 v{SUM+1}, v{SQ}, v{SQ+1}")
    halfsum(a, SUM, T)
    halfsum(a, SUM+1, T+1)
    a(f"v_and_b32 v{SUM+1}, 0x7fffffff, v{SUM+1}")
    a(f"s_mov_b32 s67, {SPIN}")
    a.label("L1_clr")
    a("s_waitcnt vmcnt(0)")
    a("v_readfirstlane_b32 s59, v176")
    a("s_sub_u32 s67, s67, 1")
    a("s_cbranch_scc1 L1_clrd")
    a("s_cmp_lg_u32 s59, 0")
    a("s_cbranch_scc1 L1_clrd")
    a(f"buffer_load_dword v176, v175, s[{DBG}:{DBG+3}], s66 offen sc1")
    a("s_branch L1_clr")
    a.label("L1_clrd")
    fine(a)
    a(f"buffer_store_dwordx2 {vr(SUM,2)}, v171, s[{WS}:{WS+3}], s62 offen sc1")
    for ti in range(2, 4):
        x = ACC + 16*ti
        gelu(a, x, T, C1, C2, ONE)
        o = 128 + 8*(ti - 2)
        for p in range(8): a(f"v_cvt_pk_bf16_f32 v{o+p}, v{x+2*p}, v{x+2*p+1}")
        store4(a, o, 170, WS, "s63", (ti-2)*2048)
        store4(a, o+4, 170, WS, "s63", (ti-2)*2048 + 1024)
        fine(a)
    stamp(a, 0, 2)
    S = 144
    a(f"s_mov_b32 s67, {SPIN}")
    a.label("L1_poll")
    for i in range(7):
        a(f"buffer_load_dwordx2 {vr(S+2*i,2)}, v172, s[{WS}:{WS+3}], {'s61' if i < 4 else 's69'} offen offset:{(i%4)*1024} sc1")
    a("s_waitcnt vmcnt(0)")
    a(f"v_or3_b32 v1, v{S+1}, v{S+3}, v{S+5}")
    a(f"v_or3_b32 v1, v1, v{S+7}, v{S+9}")
    a(f"v_or3_b32 v1, v1, v{S+11}, v{S+13}")
    a("v_cmp_gt_i32 vcc, 0, v1")
    a("s_sub_u32 s67, s67, 1")
    a("s_cbranch_scc1 L1_polld")
    a("s_cmp_lg_u64 vcc, 0")
    a("s_cbranch_scc1 L1_poll")
    a.label("L1_polld")
    fine(a)
    for i in range(1, 7): a(f"v_pk_add_f32 {vr(S,2)}, {vr(S,2)}, {vr(S+2*i,2)}")
    halfsum(a, S, T)
    halfsum(a, S+1, T+1)
    a(f"v_mul_f32 v{S}, {f32(1.0/896)}, v{S}")
    a(f"v_mul_f32 v{S+1}, {f32(1.0/896)}, v{S+1}")
    a(f"v_fma_f32 v{S+1}, -v{S}, v{S}, v{S+1}")
    a(f"v_max_f32 v{S+1}, 0, v{S+1}")
    a(f"v_add_f32 v{S+1}, {f32(1e-5)}, v{S+1}")
    a(f"v_rsq_f32 v{S+2}, v{S+1}")
    a("s_nop 0")
    a(f"v_mov_b32 v{S+3}, v{S+2}")
    a(f"v_mul_f32 v{S+4}, -v{S}, v{S+2}")
    a(f"v_mov_b32 v{S+5}, v{S+4}")
    for ti in range(2):
        x = ACC + 16*ti
        for p in range(0, 16, 2): a(f"v_pk_fma_f32 {vr(x+p,2)}, {vr(x+p,2)}, {vr(S+2,2)}, {vr(S+4,2)}")
        o = T + 8*ti
        for p in range(8): a(f"v_cvt_pk_bf16_f32 v{o+p}, v{x+2*p}, v{x+2*p+1}")
        for i in range(4): a(f"ds_write_b64 v173, {vr(o+2*i,2)} offset:{ti*2048 + i*16}")
    a("s_waitcnt lgkmcnt(0)")
    for ti in range(2):
        for k in range(2):
            for v in range(2):
                a(f"ds_read_b64_tr_b16 {vr(16 + ti*8 + k*4 + v*2, 2)}, v174 offset:{ti*2048 + k*1024 + v*256}")
    for ti in range(2):
        for k in range(2):
            a(f"s_waitcnt lgkmcnt({6 - 2*(ti*2+k)})")
            store4(a, 16 + ti*8 + k*4, 170, WS, "s64" if ti == 0 else "s65", k*1024)
    stamp(a, 0, 3)
    fine(a); fine_dump(a, 0)
    a("s_endpgm")

def p1_aux(a):
    X, WQ, WI, WS, DBG, MISC = 28, 32, 36, 40, 44, 48
    a("v_lshlrev_b32 v2, 4, v0")
    a("s_waitcnt lgkmcnt(0)")
    srd(a, WS, 26, WS_SIZE)
    srd(a, DBG, 24, 256)
    a("s_cmp_lg_u32 s55, 15")
    a("s_cbranch_scc1 L1_noclr")
    a("s_cmp_lg_u32 s57, 0")
    a("s_cbranch_scc1 L1_noclr")
    for r in range(4, 8): a(f"v_mov_b32 v{r}, -1")
    a("s_mul_i32 s61, s54, 14336")
    a(f"s_add_u32 s61, s61, {STATS}")
    for i in range(14):
        a(f"buffer_store_dwordx4 v[4:7], v2, s[{WS}:{WS+3}], s61 offen offset:{(i%4)*1024} sc1")
        if i % 4 == 3: a("s_add_u32 s61, s61, 4096")
    a("v_mov_b32 v8, 0")
    a("v_mov_b32 v9, 1")
    a("s_lshl_b32 s66, s54, 2")
    a("s_waitcnt vmcnt(0)")
    a(f"buffer_store_dword v9, v8, s[{DBG}:{DBG+3}], s66 offen sc1")
    a.label("L1_noclr")
    a("s_sub_u32 s59, s55, 14")
    a("s_lshl_b32 s59, s59, 4")
    a("s_add_u32 s59, s59, s54")
    a("s_lshl_b32 s59, s59, 2")
    a("s_add_u32 s61, s59, s57")
    a("s_cmp_ge_u32 s61, 88")
    a("s_cbranch_scc1 L1_end")
    a("s_lshl_b32 s62, s61, 14")
    srd(a, MISC, 8, 512*1024)
    a("s_cmp_lt_u32 s61, 32")
    a("s_cbranch_scc1 L1_wo")
    srd(a, MISC, 18, 896*1024)
    a(f"s_sub_u32 s62, s62, {32*16384}")
    a.label("L1_wo")
    a("s_lshl_b32 s63, s57, 15")
    a("s_add_u32 s63, s63, 16384")
    for g in range(4):
        a(f"s_add_u32 m0, s63, {g*4096}")
        a("s_nop 0")
        for i in range(4):
            a(f"buffer_load_dwordx4 v2, s[{MISC}:{MISC+3}], s62 offen offset:{i*1024} lds")
        a("s_add_u32 s62, s62, 4096")
    a("v_lshrrev_b32 v1, 5, v0")
    a("v_lshlrev_b32 v3, 12, v1")
    a("v_bfe_u32 v1, v0, 2, 2")
    a("v_lshl_add_u32 v3, v1, 10, v3")
    a("v_bfe_u32 v1, v0, 4, 1")
    a("v_lshl_add_u32 v3, v1, 5, v3")
    a("v_and_b32 v1, 3, v0")
    a("v_lshl_add_u32 v3, v1, 3, v3")
    a("v_add_u32 v3, s63, v3")
    a("s_lshl_b32 s62, s61, 10")
    a(f"s_add_u32 s62, s62, {WF}")
    a("s_waitcnt vmcnt(0)")
    for nt in range(16):
        for v in range(2):
            a(f"ds_read_b64_tr_b16 {vr(16 + nt*4 + v*2, 2)}, v3 offset:{v*8192 + nt*64}")
    a("s_waitcnt lgkmcnt(0)")
    for nt in range(16):
        store4(a, 16 + nt*4, 2, WS, "s62", 0)
        a(f"s_add_u32 s62, s62, {88*1024}")

def gen_p2(a):
    prologue(a, "L2_end")
    a("s_cmp_ge_u32 s56, 4")
    a("s_cbranch_scc1 L2_sp")
    p2_att(a)
    a.label("L2_sp")
    p2_sp(a)
    a.label("L2_end")
    a("s_endpgm")

def p2_att(a):
    WS = 40
    Q, KS, VS, S, NM, O, T = 8, 16, 32, 64, 96, 128, 160
    a("s_lshl_b32 s54, s52, 2")
    a("s_lshr_b32 s59, s53, 3")
    a("s_add_u32 s54, s54, s59")
    a("s_and_b32 s55, s53, 7")
    a("s_lshl_b32 s55, s55, 3")
    a("s_lshl_b32 s59, s57, 1")
    a("s_add_u32 s55, s55, s59")
    a("s_lshl_b32 s60, s54, 6")
    a("s_add_u32 s60, s60, s55")
    a("s_lshl_b32 s60, s60, 10")
    if QF: a(f"s_add_u32 s60, s60, {QF}")
    a("s_lshl_b32 s61, s54, 17")
    a(f"s_add_u32 s61, s61, {KVF}")
    a("s_lshl_b32 s62, s57, 11")
    a("s_add_u32 s63, s61, s62")
    a("s_lshl_b32 s64, s55, 7")
    a(f"s_add_u32 s64, s64, {GG}")
    a("v_lshlrev_b32 v4, 4, v0")
    a("v_and_b32 v5, 31, v0")
    a("v_lshlrev_b32 v5, 2, v5")
    a("s_waitcnt lgkmcnt(0)")
    srd(a, WS, 26, WS_SIZE)
    a(f"buffer_load_dwordx4 {vr(Q,4)}, v4, s[{WS}:{WS+3}], s60 offen")
    a(f"buffer_load_dwordx4 {vr(Q+4,4)}, v4, s[{WS}:{WS+3}], s60 offen offset:1024")
    a(f"buffer_load_dwordx4 {vr(KS,4)}, v4, s[{WS}:{WS+3}], s61 offen")
    a(f"buffer_load_dword v6, v5, s[{WS}:{WS+3}], s64 offen")
    a(f"buffer_load_dword v7, v5, s[{WS}:{WS+3}], s64 offen offset:128")
    stamp(a, 1, 0)
    a("v_mov_b32 v1, 0")
    a("ds_write_b32 v5, v1")
    a("v_mov_b32 v3, 0xdddd")
    a("v_mov_b32 v1, v4")
    a("v_and_b32 v2, 15, v0")
    a(f"v_lshrrev_b32 v{T}, 5, v0")
    a(f"v_lshl_or_b32 v2, v{T}, 4, v2")
    a("v_lshlrev_b32 v2, 4, v2")
    a("v_add_u32 v2, 1024, v2")
    a("v_add_u32 v176, 0x10000, v1")
    a("v_add_u32 v177, 0x10000, v2")
    a("v_mov_b32 v178, 1")
    a("s_lshl_b32 s59, s57, 2")
    a("v_mov_b32 v179, s59")
    a(f"v_and_b32 v{T}, 27, v0")
    a(f"v_cmp_eq_u32 vcc, 16, v{T}")
    a(f"v_mov_b32 v{T}, 0x3f803f80")
    a("s_nop 0")
    a(f"v_cndmask_b32 v{VS}, 0, v{T}, vcc")
    for r in range(VS + 1, VS + 32): a(f"v_mov_b32 v{r}, v{VS}")
    for r in range(O, O + 32): a(f"v_mov_b32 v{r}, 0")
    a("s_mov_b32 s66, 0xffff")
    a("s_mov_b32 s67, 0xffff")
    a("s_mul_i32 s65, s55, 88")
    a("s_add_u32 s65, s65, s54")
    a("s_lshl_b32 s65, s65, 10")
    a(f"s_add_u32 s65, s65, {AF}")
    a(f"s_add_u32 s68, s65, {88*1024}")
    a("s_waitcnt vmcnt(0)")
    mfma(a, S, KS, Q, "0")
    mfma(a, S + 16, KS, Q + 4, "0")
    a("s_nop 7"); a("s_nop 2")
    def rowmax(s, d):
        a(f"v_max3_f32 v{d}, v{s}, v{s+1}, v{s+2}")
        for p in range(3, 15, 2): a(f"v_max3_f32 v{d}, v{d}, v{s+p}, v{s+p+1}")
        a(f"v_max_f32 v{d}, v{d}, v{s+15}")
    for q in range(2):
        rowmax(S + 16*q, T + q)
        halfsum(a, T + q, T + 2, "v_max_f32")
        for r in range(16): a(f"v_sub_f32 v{NM + 16*q + r}, 0, v{T+q}")
    a("s_waitcnt lgkmcnt(0)")
    a("s_barrier")
    def kreg(kt): return KS + 4*(kt & 3)
    def vreg(kt): return VS + 8*(kt & 3)
    def rd(kts, skipk=()):
        L = []
        for kt in kts:
            if kt < 64 and kt not in skipk:
                L.append(f"ds_read_b128 {vr(kreg(kt),4)}, v{1 if kt < 32 else 176} offset:{(kt % 32)*2048}")
        L.append("s_mov_b64 exec, s[66:67]")
        for kt in kts:
            if kt < 64:
                for s_ in range(2):
                    L.append(f"ds_read_b128 {vr(vreg(kt)+4*s_,4)}, v{2 if kt < 32 else 177} offset:{(kt % 32)*2048 + s_*512}")
        L.append("s_mov_b64 exec, -1")
        return L
    for l in rd([0, 1], skipk=(0,)): a(l)
    mfma(a, S, KS, Q, NM)
    a("s_waitcnt lgkmcnt(0)")
    a("s_nop 7"); a("s_nop 2")
    stamp(a, 1, 1)
    pa, pb, pc = OPT.get("pos", (2, 5, 12))
    for k in range(128):
        q, kt = k & 1, k >> 1
        sA, sB = S + 16*(k & 1), S + 16*((k + 1) & 1)
        ev = {pa: [], pb: [], pc: []}
        if k > 0:
            qp, ktp = (k - 1) & 1, (k - 1) >> 1
            ev[pa].append(f"v_smfmac_f32_32x32x32_bf16 {vr(O+16*qp,16)}, {vr(vreg(ktp)+4,4)}, {vr(sB+8,8)}, v3")
        if k % 4 == 0 and kt + 2 < 64:
            if kt + 2 == 8:
                ev[pa] += ["s_barrier"]
            ev[pa] += rd([kt + 2, kt + 3])
        if k % 4 == 3 and k < 127:
            ev[pa].append("s_waitcnt lgkmcnt(0)")
            if kt == 41: ev[pa].append("ds_write_b32 v179, v178")
        if k < 127:
            qn, ktn = (k + 1) & 1, (k + 1) >> 1
            ev[pb].append(f"v_mfma_f32_32x32x16_bf16 {vr(sB,16)}, {vr(kreg(ktn),4)}, {vr(Q+4*qn,4)}, {vr(NM+16*qn,16)}")
        ev[pc].append(f"v_smfmac_f32_32x32x32_bf16 {vr(O+16*q,16)}, {vr(vreg(kt),4)}, {vr(sA,8)}, v3")
        for i in range(16):
            for l in ev.get(i, []): a(l)
            a(f"v_exp_f32 v{sA+i}, v{sA+i}")
    a("s_nop 1")
    a(f"v_smfmac_f32_32x32x32_bf16 {vr(O+16,16)}, {vr(vreg(63)+4,4)}, {vr(S+16+8,8)}, v3")
    a(f"s_mov_b32 s70, {f32(2.0**64)}")
    a(f"s_mov_b32 s71, {f32(2.0**-64)}")
    a("s_nop 7"); a("s_nop 1")
    a(f"v_max_f32 v{T}, v{O+8}, v{O+24}")
    a(f"v_min_f32 v{T+1}, v{O+8}, v{O+24}")
    a(f"v_add_f32 v{T+2}, v{O+8}, v{O+24}")
    a(f"v_cmp_gt_f32 s[72:73], s70, v{T}")
    a(f"v_cmp_lt_f32 s[74:75], s71, v{T+1}")
    a(f"v_cmp_o_f32 vcc, v{T+2}, v{T+2}")
    a("s_nop 1")
    a("s_and_b64 s[72:73], s[72:73], s[74:75]")
    a("s_and_b64 s[72:73], s[72:73], vcc")
    a("s_cmp_eq_u64 s[72:73], -1")
    a("s_cbranch_scc0 L2_slow")
    a.label("L2_fin")
    stamp(a, 1, 2)
    for q in range(2):
        o = O + 16*q
        a(f"v_rcp_f32 v{T}, v{o+8}")
        a("s_nop 0")
        a(f"v_mul_f32 v{T}, v{T}, v{6+q}")
        for r in range(8): a(f"v_mul_f32 v{o+r}, v{o+r}, v{T}")
        for p in range(4): a(f"v_cvt_pk_bf16_f32 v{T+4+4*q+p}, v{o+2*p}, v{o+2*p+1}")
        store4(a, T + 4 + 4*q, 4, WS, "s65" if q == 0 else "s68")
    stamp(a, 1, 3)
    a("s_endpgm")
    a.label("L2_slow")
    a(f"v_mov_b32 v{T}, 0xff800000")
    a(f"v_mov_b32 v{T+1}, 0xff800000")
    a("s_mov_b32 s63, s61")
    a("s_mov_b32 s69, 64")
    a.label("L2_s1")
    a(f"buffer_load_dwordx4 {vr(KS,4)}, v4, s[{WS}:{WS+3}], s63 offen")
    a("s_waitcnt vmcnt(0)")
    mfma(a, S, KS, Q, "0")
    mfma(a, S + 16, KS, Q + 4, "0")
    a("s_nop 7"); a("s_nop 3")
    for q in range(2):
        for p in range(0, 16, 2): a(f"v_max3_f32 v{T+q}, v{T+q}, v{S+16*q+p}, v{S+16*q+p+1}")
    a("s_add_u32 s63, s63, 2048")
    a("s_sub_u32 s69, s69, 1")
    a("s_cmp_lg_u32 s69, 0")
    a("s_cbranch_scc1 L2_s1")
    for q in range(2): halfsum(a, T + q, T + 2, "v_max_f32")
    for r in range(O, O + 32): a(f"v_mov_b32 v{r}, 0")
    a("s_mov_b32 s63, s61")
    a("s_mov_b32 s69, 64")
    a.label("L2_s2")
    a(f"buffer_load_dwordx4 {vr(KS,4)}, v4, s[{WS}:{WS+3}], s63 offen")
    a("s_mov_b64 exec, s[66:67]")
    a(f"buffer_load_dwordx4 {vr(VS,4)}, v2, s[{WS}:{WS+3}], s63 offen")
    a(f"buffer_load_dwordx4 {vr(VS+4,4)}, v2, s[{WS}:{WS+3}], s63 offen offset:512")
    a("s_mov_b64 exec, -1")
    a("s_waitcnt vmcnt(0)")
    mfma(a, S, KS, Q, "0")
    mfma(a, S + 16, KS, Q + 4, "0")
    a("s_nop 7"); a("s_nop 3")
    for q in range(2):
        for p in range(16): a(f"v_sub_f32 v{S+16*q+p}, v{S+16*q+p}, v{T+q}")
        for p in range(16): a(f"v_exp_f32 v{S+16*q+p}, v{S+16*q+p}")
    a("s_nop 1")
    for q in range(2):
        for s_ in range(2):
            a(f"v_smfmac_f32_32x32x32_bf16 {vr(O+16*q,16)}, {vr(VS+4*s_,4)}, {vr(S+16*q+8*s_,8)}, v3")
    a("s_add_u32 s63, s63, 2048")
    a("s_sub_u32 s69, s69, 1")
    a("s_cmp_lg_u32 s69, 0")
    a("s_cbranch_scc1 L2_s2")
    a("s_nop 7"); a("s_nop 3")
    a("s_branch L2_fin")

def p2_sp(a):
    WS, WSP, BSP = 40, 28, 32
    WFR, ZS, ACC, T = 16, 48, 112, 224
    a("s_lshl_b32 s54, s52, 2")
    a("s_lshr_b32 s59, s53, 3")
    a("s_add_u32 s54, s54, s59")
    a("s_lshl_b32 s92, s54, 17")
    a("s_lshl_b32 s93, s57, 11")
    a("s_add_u32 s92, s92, s93")
    a(f"s_add_u32 s92, s92, {KVF}")
    a("v_lshlrev_b32 v11, 4, v0")
    a("s_mov_b32 m0, s93")
    a("s_waitcnt lgkmcnt(0)")
    srd(a, WS, 26, WS_SIZE)
    a("s_cmp_eq_u32 s57, 0")
    a("s_cbranch_scc1 L2_skipk0")
    a(f"buffer_load_dwordx4 v11, s[{WS}:{WS+3}], s92 offen lds")
    a.label("L2_skipk0")
    a(f"buffer_load_dwordx4 v11, s[{WS}:{WS+3}], s92 offen offset:1024 lds")
    def kvdma(n):
        a(f"s_add_u32 m0, s93, {n*8192}")
        a("s_add_u32 s92, s92, 8192")
        a(f"buffer_load_dwordx4 v11, s[{WS}:{WS+3}], s92 offen lds")
        a(f"buffer_load_dwordx4 v11, s[{WS}:{WS+3}], s92 offen offset:1024 lds")
    KV1 = OPT.get("kv1", 4)
    for n in range(1, KV1): kvdma(n)
    a("s_lshr_b32 s54, s52, 1")
    a("s_lshl_b32 s54, s54, 3")
    a("s_and_b32 s59, s53, 7")
    a("s_add_u32 s54, s54, s59")
    a("s_and_b32 s55, s52, 1")
    a("s_lshl_b32 s55, s55, 2")
    a("s_lshr_b32 s59, s53, 3")
    a("s_add_u32 s55, s55, s59")
    a("s_and_b32 s58, s55, 1")
    a("s_lshl_b32 s60, s54, 1")
    a("s_add_u32 s60, s60, s58")
    a("s_xor_b32 s61, s60, 1")
    a("s_lshr_b32 s59, s55, 1")
    a("s_mul_i32 s59, s59, 7")
    a("s_add_u32 s65, s59, 3")
    a("s_lshl_b32 s62, s58, 2")
    a("s_add_u32 s62, s62, s59")
    a("s_add_u32 s63, s62, 1")
    a("s_add_u32 s64, s62, 2")
    a("s_lshl_b32 s59, s57, 15")
    a(f"s_add_u32 s59, s59, {Z2F}")
    for i in range(4):
        a(f"s_lshl_b32 s{66+i}, s{62+i}, 17")
        a(f"s_add_u32 s{66+i}, s{66+i}, s59")
    a("s_lshl_b32 s59, s57, 10")
    for i in range(2):
        a(f"s_lshl_b32 s{70+i}, s{60+i}, 17")
        a(f"s_add_u32 s{70+i}, s{70+i}, s59")
    a("s_lshl_b32 s72, s57, 13")
    a("s_add_u32 s72, s72, 0x20000")
    a("s_add_u32 s73, s72, 4096")
    swz_row_voffs(a, 2, stride_shift=12)
    a("v_lshlrev_b32 v1, 4, v0")
    srd(a, WSP, 14, 2048*4096)
    def wdma():
        for t in range(2):
            a(f"s_mov_b32 m0, s{72+t}")
            a("s_nop 0")
            for q in range(4):
                a(f"buffer_load_dwordx4 v{2+q}, s[{WSP}:{WSP+3}], s{70+t} offen offset:{q*1024} lds")
            a(f"s_add_u32 s{70+t}, s{70+t}, 128")
    def zload(ks):
        for i in range(4):
            a(f"buffer_load_dwordx4 {vr(ZS + 16*ks + 4*i, 4)}, v1, s[{WS}:{WS+3}], s{66+i} offen offset:{ks*1024}")
        if ks == 3:
            for i in range(4): a(f"s_add_u32 s{66+i}, s{66+i}, 4096")
    swz_read_addrs(a, 6, 72, tmp=10)
    srd(a, BSP, 16, 4096)
    tiles = [(0, 0), (0, 1), (0, 2), (0, 3), (1, 0), (1, 1), (1, 2)]
    for n, (t, f) in enumerate(tiles):
        a(f"s_mul_i32 s59, s{60+t}, 28")
        a(f"s_add_u32 s59, s59, s{62+f}")
        a(f"s_lshl_b32 s59, s59, 11")
        a(f"s_add_u32 s{76+n}, s59, {Z1F}")
        a(f"s_mul_i32 s59, s{60+t}, 44")
        a(f"s_add_u32 s59, s59, s{62+f}")
        a(f"s_lshl_b32 s59, s59, 11")
        a(f"s_add_u32 s{84+n}, s59, {AF + 32*1024}")
    a(f"s_waitcnt vmcnt({2*(KV1-2)})")
    a("s_barrier")
    stamp(a, 1, 0)
    for n in range(KV1, 16): kvdma(n)
    wdma()
    zload(0)
    a("s_waitcnt vmcnt(12)")
    a("s_barrier")
    for ks in range(1, 4): zload(ks)
    for st in range(8):
        last = st == 7
        a("s_waitcnt vmcnt(16)")
        for t in range(2):
            for ks in range(4):
                a(f"ds_read_b128 {vr(WFR + 16*t + 4*ks, 4)}, v{6+ks} offset:{t*4096}")
        a("s_waitcnt lgkmcnt(0)")
        if not last: wdma()
        for ks in range(4):
            a(f"s_waitcnt vmcnt({(3-ks)*4 if last else 20})")
            for n, (t, f) in enumerate(tiles):
                mfma(a, ACC + 16*n, ZS + 16*ks + 4*f, WFR + 16*t + 4*ks, "0" if st + ks == 0 else None)
            if not last: zload(ks)
    stamp(a, 1, 1)
    a("s_setprio 3")
    a("v_and_b32 v14, 31, v0")
    a("v_lshlrev_b32 v15, 2, v14")
    a("v_lshlrev_b32 v14, 1, v14")
    for t in range(2):
        a(f"s_lshl_b32 s59, s{60+t}, 6")
        a(f"buffer_load_ushort v{10+t}, v14, s[{BSP}:{BSP+3}], s59 offen")
        a(f"s_lshl_b32 s59, s{60+t}, 7")
        a(f"s_add_u32 s59, s59, {GG}")
        a(f"buffer_load_dword v{12+t}, v15, s[{WS}:{WS+3}], s59 offen")
    a("v_mov_b32 v2, 0")
    a("v_add_u32 v3, 0x10000, v1")
    a("v_mov_b32 v4, 1")
    a("s_lshl_b32 s59, s57, 2")
    a("s_add_u32 s59, s59, 16")
    a("v_mov_b32 v5, s59")
    def poll(lbl, off):
        a(f"s_mov_b32 s74, {SPIN}")
        a.label(lbl)
        a(f"ds_read_b128 v[6:9], v2 offset:{off}")
        a("s_waitcnt lgkmcnt(0)")
        a("v_and_b32 v6, v6, v7")
        a("v_and_b32 v8, v8, v9")
        a("v_and_b32 v6, v6, v8")
        a("s_sub_u32 s74, s74, 1")
        a("v_readfirstlane_b32 s59, v6")
        a(f"s_cbranch_scc1 {lbl}d")
        a("s_cmp_lg_u32 s59, 0")
        a(f"s_cbranch_scc1 {lbl}d")
        a("s_sleep 2")
        a(f"s_branch {lbl}")
        a.label(lbl + "d")
    owner = [0,0,0,0,1,1,1,1,2,2,2,3,3,3]
    def slot(n, src):
        si = src if src < owner[n] else src - 1
        ad = 2048 + (n*3 + si)*2048
        return (1, ad) if ad + 1024 < 65536 else (3, ad - 65536)
    for w in range(4):
        if w < 3:
            a(f"s_cmp_lg_u32 s57, {w}")
            a(f"s_cbranch_scc1 L2_w{w+1}")
        mine = [n for n in range(14) if owner[n] == w]
        Z1R = 16
        for i, n in enumerate(mine):
            a(f"buffer_load_dwordx4 {vr(Z1R+4*i,4)}, v1, s[{WS}:{WS+3}], s{76 + (n>>1)} offen offset:{(n&1)*1024}")
        poll(f"L2_pa{w}", 0)
        for n in range(14):
            if owner[n] != w:
                r, ad = slot(n, w)
                a(f"ds_write_b128 v{r}, {vr(ACC+8*n,4)} offset:{ad}")
                a(f"ds_write_b128 v{r}, {vr(ACC+8*n+4,4)} offset:{ad+1024}")
        a("s_waitcnt lgkmcnt(0)")
        a("ds_write_b32 v5, v4")
        a("s_waitcnt vmcnt(0)")
        for t in range(2):
            a(f"v_sub_f32 v{32+4*t}, 1.0, v{12+t}")
            a(f"v_lshlrev_b32 v{10+t}, 16, v{10+t}")
            a(f"v_mul_f32 v{34+4*t}, v{10+t}, v{32+4*t}")
        poll(f"L2_pb{w}", 16)
        P = 48
        def rdp(i):
            n = mine[i]
            for si, src in enumerate([s_ for s_ in range(4) if s_ != w]):
                r, ad = slot(n, src)
                a(f"ds_read_b128 {vr(P + 24*(i&1) + 8*si, 4)}, v{r} offset:{ad}")
                a(f"ds_read_b128 {vr(P + 24*(i&1) + 8*si + 4, 4)}, v{r} offset:{ad+1024}")
        rdp(0)
        for i, n in enumerate(mine):
            if i + 1 < len(mine):
                rdp(i + 1); a("s_waitcnt lgkmcnt(6)")
            else:
                a("s_waitcnt lgkmcnt(0)")
            x = ACC + 8*n; p0 = P + 24*(i&1); t = tiles[n >> 1][0]
            for si in range(3):
                for p in range(8): a(f"v_add_f32 v{x+p}, v{x+p}, v{p0+8*si+p}")
            for p in range(8): a(f"v_fma_f32 v{x+p}, v{x+p}, v{32+4*t}, v{34+4*t}")
            for p in range(4):
                a(f"v_lshlrev_b32 v{T+2*p}, 16, v{Z1R+4*i+p}")
                a(f"v_and_b32 v{T+2*p+1}, 0xffff0000, v{Z1R+4*i+p}")
            for p in range(8): a(f"v_mul_f32 v{x+p}, v{x+p}, v{T+p}")
            o = T + 8 + 4*i
            for p in range(4): a(f"v_cvt_pk_bf16_f32 v{o+p}, v{x+2*p}, v{x+2*p+1}")
            store4(a, o, 1, WS, f"s{84 + (n>>1)}", (n&1)*1024)
        stamp(a, 1, 2)
        a("s_endpgm")
        if w < 3: a.label(f"L2_w{w+1}")

def gen_p3(a):
    WS, OUT = 40, 28
    R, ACC = 8, 184
    D = 11
    prologue(a, "L3_end")
    a("s_lshr_b32 s54, s52, 1")
    a("s_lshl_b32 s54, s54, 3")
    a("s_and_b32 s59, s53, 7")
    a("s_add_u32 s54, s54, s59")
    a("s_and_b32 s55, s52, 1")
    a("s_lshl_b32 s55, s55, 2")
    a("s_lshr_b32 s59, s53, 3")
    a("s_add_u32 s55, s55, s59")
    a("s_lshl_b32 s60, s54, 1")
    a("s_lshr_b32 s59, s57, 1")
    a("s_add_u32 s60, s60, s59")
    a("s_xor_b32 s61, s60, 1")
    a("s_lshl_b32 s62, s55, 1")
    a("s_and_b32 s59, s57, 1")
    a("s_add_u32 s62, s62, s59")
    a("s_xor_b32 s63, s62, 1")
    a("s_mul_i32 s59, s57, %d" % (22*1024))
    for i in range(4):
        a(f"s_mul_i32 s{64+i}, s{60+i}, {88*1024}")
        a(f"s_add_u32 s{64+i}, s{64+i}, s59")
        a(f"s_add_u32 s{64+i}, s{64+i}, {AF if i < 2 else WF}")
    a("v_lshlrev_b32 v1, 4, v0")
    a("s_waitcnt lgkmcnt(0)")
    srd(a, WS, 26, WS_SIZE)
    stamp(a, 2, 0)
    def load(ks):
        for i in range(4):
            a(f"buffer_load_dwordx4 {vr(R + 16*(ks % D) + 4*i, 4)}, v1, s[{WS}:{WS+3}], s{64+i} offen offset:{(ks%4)*1024}")
        if ks % 4 == 3:
            for i in range(4): a(f"s_add_u32 s{64+i}, s{64+i}, 4096")
    for ks in range(D): load(ks)
    srd(a, OUT, 22, 2048*1024)
    for lam in (1, 2, 3):
        a(f"s_xor_b32 s59, s57, {lam}")
        a(f"s_mul_i32 s59, s59, 12288")
        a(f"s_add_u32 s59, s59, {(lam-1)*4096}")
        a(f"v_add_u32 v{1+lam}, s59, v1")
    a("s_mul_i32 s59, s57, 12288")
    a("v_add_u32 v5, s59, v1")
    a("v_and_b32 v6, 31, v0")
    a("v_lshlrev_b32 v6, 10, v6")
    a("v_lshrrev_b32 v7, 5, v0")
    a("v_lshl_add_u32 v6, v7, 4, v6")
    a("s_lshl_b32 s68, s60, 15")
    a("s_lshl_b32 s59, s62, 6")
    a("s_add_u32 s68, s68, s59")
    for ks in range(22):
        rem = min(21 - ks, D - 1)
        a(f"s_waitcnt vmcnt({4*rem})")
        r = R + 16*(ks % D)
        for lam in (1, 2, 3, 0):
            mfma(a, ACC + 16*lam, r + 8 + 4*(lam & 1), r + 4*(lam >> 1), "0" if ks == 0 else None)
        if ks + D < 22: load(ks + D)
    stamp(a, 2, 1)
    a("s_nop 7"); a("s_nop 1")
    for lam in (1, 2, 3):
        for i in range(4):
            a(f"ds_write_b128 v{1+lam}, {vr(ACC + 16*lam + 4*i, 4)} offset:{i*1024}")
    a("s_waitcnt lgkmcnt(0)")
    a("s_barrier")
    for i in range(12):
        a(f"ds_read_b128 {vr(R + 4*i, 4)}, v5 offset:{i*1024}")
    for s_ in range(3):
        a(f"s_waitcnt lgkmcnt({8 - 4*s_})")
        for p in range(0, 16, 2): a(f"v_pk_add_f32 {vr(ACC+p,2)}, {vr(ACC+p,2)}, {vr(R+16*s_+p,2)}")
    for p in range(8): a(f"v_cvt_pk_bf16_f32 v{64+p}, v{ACC+2*p}, v{ACC+2*p+1}")
    a("s_nop 1")
    for b in (64, 68):
        a(f"v_permlane32_swap_b32 v{b}, v{b+2}")
        a(f"v_permlane32_swap_b32 v{b+1}, v{b+3}")
    a(f"buffer_store_dwordx4 v[64:67], v6, s[{OUT}:{OUT+3}], s68 offen")
    a(f"buffer_store_dwordx4 v[68:71], v6, s[{OUT}:{OUT+3}], s68 offen offset:32")
    stamp(a, 2, 2)
    a.label("L3_end")
    a("s_endpgm")

KERNELS = [("p1_kernel", gen_p1, 512, 163840, 256), ("p2_kernel", gen_p2, 512, 163840, 256), ("p3_kernel", gen_p3, 256, 49152, 256)]

def main():
    ref = open(f"cdna_kernels/{NAME}.s.ref").read().split("\n")
    hdr = [l for l in ref if l.startswith(";") and "@launch" not in l and "Override launch" not in l and "grid=ceil" not in l]
    out = list(hdr)
    vid = []
    if OPT.get("one"):
        def allg(a): gen_p1(a); a.raw(".p2align 6"); gen_p2(a); a.raw(".p2align 6"); gen_p3(a)
        out += ["; @launch kernel=p_kernel grid=(256,1,1) block=(512,1,1) lds=163840",
                "; @launch kernel=p_kernel grid=(256,1,1) block=(32,16,1) lds=163840",
                "; @launch kernel=p_kernel grid=(256,1,1) block=(16,16,1) lds=49152"]
        KERNELS[:] = [("p_kernel", allg, 512, 0, 256)]
        OPT["order"] = []
        vid = ["  .amdhsa_system_vgpr_workitem_id 1"]
    order = OPT.get("order", list(range(len(KERNELS))))
    if 3 in order: KERNELS.append(("nop_kernel", lambda a: a("s_endpgm"), 64, 0, 8))
    for k, _, blk, lds, _ in [KERNELS[i] for i in order]:
        out.append(f"; @launch kernel={k} grid=(256,1,1) block=({blk},1,1) lds={lds}")
    out.append('.amdgcn_target "amdgcn-amd-amdhsa--gfx950"')
    out.append(".text")
    bad = 0
    for k, g, _, _, _ in KERNELS:
        a = Asm(); g(a)
        bad += check(a.lines, k)
        out += [f".globl {k}", ".p2align 8", f".type {k},@function", f"{k}:"] + a.lines
    out.append('.section .rodata,"a"')
    for k, _, _, _, vg in KERNELS:
        out += [".p2align 6", f".amdhsa_kernel {k}", f"  .amdhsa_next_free_vgpr {vg}", "  .amdhsa_next_free_sgpr 102",
                f"  .amdhsa_accum_offset {(vg+3)//4*4}", "  .amdhsa_group_segment_fixed_size 0", "  .amdhsa_kernarg_size 96",
                "  .amdhsa_user_sgpr_count 2", "  .amdhsa_user_sgpr_kernarg_segment_ptr 1", "  .amdhsa_system_sgpr_workgroup_id_x 1",
                "  .amdhsa_float_denorm_mode_32 3"] + vid + [".end_amdhsa_kernel"]
    open(sys.argv[1], "w").write("\n".join(out) + "\n")
    print("hazards:", bad, "lines:", len(out))
main()
```

```python
import sys, struct, re
from asmlib import Asm, vr, sr, check

NAME = "gated_mix__softmax_full_mha__mixer_gmlp__prompt"
MB = 1 << 20
QF, KVF, Z1F, Z2F, AF, WF = 0, 2*MB, 6*MB, 10*MB, 14*MB, 20*MB
GG = 22*MB
STATS = 22*MB + 65536
STAMP = 23*MB
WS_SIZE = 28*MB
def f32(x): return "0x%08x" % struct.unpack("<I", struct.pack("<f", x))[0]
LOG2E = 1.4426950408889634
QSCALE = 0.25 * LOG2E
GC1 = -2.0 * LOG2E * 0.7978845608028654
GC2 = GC1 * 0.044715
SPIN = 1 << 16

OPT = dict(stamp=False, st="sc1")
for a_ in sys.argv[2:]:
    k_, v_ = a_.split("=")
    OPT[k_] = eval(v_)

def srd(a, d, p, size):
    if p == 26 and OPT.get("wsoff", 0):
        a(f"s_add_u32 s{d}, s{p}, {OPT['wsoff']*MB}")
        a(f"s_addc_u32 s{d+1}, s{p+1}, 0")
    else:
        a(f"s_mov_b32 s{d}, s{p}")
        a(f"s_mov_b32 s{d+1}, s{p+1}")
    a(f"s_mov_b32 s{d+2}, {size}")
    a(f"s_mov_b32 s{d+3}, 0x20000")

def prologue(a, endlabel):
    if OPT.get("one") and endlabel != "L1_end":
        a.label("L_p" + endlabel[1])
        return
    a(f"s_cmp_ge_u32 s2, 256")
    a(f"s_cbranch_scc1 {endlabel}")
    if OPT["stamp"]:
        a("s_memrealtime s[96:97]")
        a("s_memtime s[94:95]")
    a("s_load_dwordx16 s[4:19], s[0:1], 0")
    a("s_load_dwordx8 s[20:27], s[0:1], 64")
    if OPT.get("one"):
        a("v_readlane_b32 s3, v0, 63")
        a("s_and_b32 s52, s2, 7")
        a("s_lshr_b32 s53, s2, 3")
        a("v_mbcnt_lo_u32_b32 v0, -1, 0")
        a("v_mbcnt_hi_u32_b32 v0, -1, v0")
        a("s_lshr_b32 s56, s3, 11")
        a("s_and_b32 s57, s56, 3")
        a("s_and_b32 s59, s3, 63")
        a("s_cmp_eq_u32 s59, 31")
        a("s_cbranch_scc1 L_p2")
        a("s_lshr_b32 s56, s3, 12")
        a("s_and_b32 s57, s56, 3")
        a("s_cmp_eq_u32 s59, 15")
        a("s_cbranch_scc1 L_p3")
        a("s_lshr_b32 s56, s3, 6")
        a("s_and_b32 s57, s56, 3")
        return
    a("v_lshrrev_b32 v1, 6, v0")
    a("s_and_b32 s52, s2, 7")
    a("v_readfirstlane_b32 s56, v1")
    a("s_lshr_b32 s53, s2, 3")
    a("v_and_b32 v0, 63, v0")
    a("s_and_b32 s57, s56, 3")

def stamp(a, phase, slot, ws=40, v=254):
    if not OPT["stamp"]: return
    if slot:
        a("s_memrealtime s[96:97]")
        a("s_memtime s[94:95]")
    a("s_waitcnt lgkmcnt(0)")
    a("s_lshl_b32 s98, s2, 3")
    a("s_add_u32 s98, s98, s56")
    a("s_lshl_b32 s98, s98, 5")
    a(f"s_add_u32 s98, s98, {STAMP + phase*65536 + slot*4}")
    a(f"v_mov_b32 v{v}, s96")
    a(f"v_mov_b32 v{v+1}, 0")
    a(f"buffer_store_dword v{v}, v{v+1}, s[{ws}:{ws+3}], s98 offen")
    a(f"v_mov_b32 v{v}, s94")
    a(f"buffer_store_dword v{v}, v{v+1}, s[{ws}:{ws+3}], s98 offen offset:16")

FINE = dict(n=0)
def fine(a):
    if not OPT.get("fine"): return
    a("s_memtime s[100:101]")
    a("s_waitcnt lgkmcnt(0)")
    a(f"v_writelane_b32 v{FINE['v']}, s100, {FINE['n']}")
    FINE["n"] += 1
def fine_init(a, v):
    if not OPT.get("fine"): return
    FINE["v"] = v; FINE["n"] = 1
    a(f"v_mov_b32 v{v}, 0")
    a(f"v_writelane_b32 v{v}, s94, 0")
def fine_dump(a, phase, ws=40):
    if not OPT.get("fine"): return
    v = FINE["v"]
    a("s_lshl_b32 s98, s2, 3")
    a("s_add_u32 s98, s98, s56")
    a("s_lshl_b32 s98, s98, 8")
    a(f"s_add_u32 s98, s98, {24*MB + phase*MB}")
    a(f"v_lshlrev_b32 v{v+1}, 2, v0")
    a(f"buffer_store_dword v{v}, v{v+1}, s[{ws}:{ws+3}], s98 offen")

def mfma(a, d, A, B, c=None):
    cc = vr(d, 16) if c is None else (c if isinstance(c, str) else vr(c, 16))
    a(f"v_mfma_f32_32x32x16_bf16 {vr(d,16)}, {vr(A,4)}, {vr(B,4)}, {cc}")

def store4(a, v, voff, srd_, soff, off=0, flags=None):
    fl = OPT["st"] if flags is None else flags
    a(f"buffer_store_dwordx4 {vr(v,4)}, v{voff}, s[{srd_}:{srd_+3}], {soff} offen offset:{off} {fl}")

def swz_row_voffs(a, base, stride_shift=None, stride=None, tmp=1):
    t, u = tmp, base + 3
    a(f"v_lshrrev_b32 v{t}, 4, v0")
    a(f"v_and_b32 v{u}, 7, v0")
    a(f"v_xor_b32 v{u}, v{u}, v{t}")
    a(f"v_lshrrev_b32 v{t}, 3, v0")
    a(f"v_lshlrev_b32 v{t}, {stride_shift}, v{t}")
    a(f"v_lshl_add_u32 v{base}, v{u}, 4, v{t}")
    a(f"v_xor_b32 v{u}, 4, v{u}")
    a(f"v_lshl_add_u32 v{base+1}, v{u}, 4, v{t}")
    st = 1 << stride_shift
    a(f"v_add_u32 v{base+1}, {8*st - 1024}, v{base+1}")
    a(f"v_add_u32 v{base+2}, {16*st - 2048}, v{base}")
    a(f"v_add_u32 v{base+3}, {16*st - 2048}, v{base+1}")

def swz_read_addrs(a, base, sbase, tmp=1):
    t, u = tmp, base + 3
    a(f"v_bfe_u32 v{t}, v0, 1, 3")
    a(f"v_lshrrev_b32 v{u}, 5, v0")
    a(f"v_xor_b32 v{t}, v{t}, v{u}")
    a(f"v_lshlrev_b32 v{t}, 4, v{t}")
    a(f"v_and_b32 v{u}, 31, v0")
    a(f"v_lshl_add_u32 v{t}, v{u}, 7, v{t}")
    a(f"v_add_u32 v{base}, s{sbase}, v{t}")
    for ks in (1, 2, 3):
        a(f"v_xor_b32 v{base+ks}, {ks*32}, v{base}")

def gelu(a, x, t, C1, C2, ONE, n=16, pk=False):
    if not pk:
        for p in range(n): a(f"v_mul_f32 v{t+p}, v{x+p}, v{x+p}")
        for p in range(n): a(f"v_fma_f32 v{t+p}, v{t+p}, v{C2}, v{C1}")
        for p in range(n): a(f"v_mul_f32 v{t+p}, v{t+p}, v{x+p}")
        for p in range(n): a(f"v_exp_f32 v{t+p}, v{t+p}")
        for p in range(n): a(f"v_add_f32 v{t+p}, 1.0, v{t+p}")
        for p in range(n): a(f"v_rcp_f32 v{t+p}, v{t+p}")
        for p in range(n): a(f"v_mul_f32 v{x+p}, v{x+p}, v{t+p}")
        return
    for p in range(0, n, 2): a(f"v_pk_mul_f32 {vr(t+p,2)}, {vr(x+p,2)}, {vr(x+p,2)}")
    for p in range(0, n, 2): a(f"v_pk_fma_f32 {vr(t+p,2)}, {vr(t+p,2)}, {vr(C2,2)}, {vr(C1,2)}")
    for p in range(0, n, 2): a(f"v_pk_mul_f32 {vr(t+p,2)}, {vr(t+p,2)}, {vr(x+p,2)}")
    for p in range(n): a(f"v_exp_f32 v{t+p}, v{t+p}")
    for p in range(0, n, 2): a(f"v_pk_add_f32 {vr(t+p,2)}, {vr(t+p,2)}, {vr(ONE,2)}")
    for p in range(n): a(f"v_rcp_f32 v{t+p}, v{t+p}")
    for p in range(0, n, 2): a(f"v_pk_mul_f32 {vr(x+p,2)}, {vr(x+p,2)}, {vr(t+p,2)}")

def halfsum(a, v, t, op="v_add_f32"):
    a(f"v_mov_b32 v{t}, v{v}")
    a("s_nop 1")
    a(f"v_permlane32_swap_b32 v{v}, v{t}")
    a(f"{op} v{v}, v{v}, v{t}")

def gen_p1(a):
    X, WQ, WI, WS, DBG, MISC = 28, 32, 36, 40, 44, 48
    prologue(a, "L1_end")
    a("s_and_b32 s54, s52, 1")
    a("s_lshl_b32 s54, s54, 3")
    a("s_and_b32 s59, s53, 7")
    a("s_add_u32 s54, s54, s59")
    a("s_lshr_b32 s55, s52, 1")
    a("s_lshl_b32 s55, s55, 2")
    a("s_lshr_b32 s59, s53, 3")
    a("s_add_u32 s55, s55, s59")
    a("s_lshl_b32 s58, s54, 2")
    a("s_add_u32 s58, s58, s57")
    a("s_lshl_b32 s60, s57, 12")
    a("s_lshr_b32 s59, s53, 3")
    a("s_lshl_b32 s59, s59, 1")
    a("s_add_u32 s70, s59, s53")
    a("s_and_b32 s70, s70, %d" % (7 if OPT.get("rot", 1) else 0))
    a("s_cmp_ge_u32 s56, 4")
    a("s_cbranch_scc1 L1_z")
    swz_row_voffs(a, 2, stride_shift=10)
    a("v_lshrrev_b32 v1, 2, v0")
    a("v_and_b32 v1, 4, v1")
    a("v_and_b32 v6, 7, v0")
    a("v_xor_b32 v6, v6, v1")
    a("v_lshlrev_b32 v6, 4, v6")
    a("v_lshrrev_b32 v1, 3, v0")
    a("v_mul_u32_u24 v1, 3584, v1")
    a("v_add_u32 v6, v6, v1")
    a(f"v_add_u32 v7, {1792-1024}, v6")
    a(f"v_add_u32 v8, {8*3584-2048}, v6")
    a(f"v_add_u32 v9, {8*3584+1792-3072}, v6")
    a("s_lshl_b32 s61, s58, 15")
    a("s_mul_i32 s62, s57, %d" % (16*3584))
    a("s_lshl_b32 s59, s55, 7")
    a("s_add_u32 s62, s62, s59")
    a("s_waitcnt lgkmcnt(0)")
    srd(a, X, 4, 2048*1024)
    srd(a, WI, 12, 512*3584)
    a("s_cmp_ge_u32 s55, 14")
    a("s_cbranch_scc1 L1_ql")
    p1_qkv(a, False)
    a.label("L1_ql")
    p1_qkv(a, True)
    a.label("L1_z")
    a("s_cmp_ge_u32 s55, 14")
    a("s_cbranch_scc1 L1_aux")
    p1_z(a)
    a.label("L1_aux")
    p1_aux(a)
    a.label("L1_end")
    a("s_endpgm")

def p1_qkv(a, light):
    X, WQ, WI, WS, DBG, MISC = 28, 32, 36, 40, 44, 48
    XF, ACC, WFR, T = 128, 36, 20, 84
    def chunk_dma(c):
        slot = (c % 5) * 32768
        a(f"s_add_u32 s71, s70, {c}")
        a("s_and_b32 s71, s71, 7")
        a("s_lshl_b32 s59, s71, 7")
        a(f"s_add_u32 m0, s60, {slot}")
        a("s_add_u32 s59, s59, s61")
        for q in range(4):
            a(f"buffer_load_dwordx4 v{2+q}, s[{X}:{X+3}], s59 offen offset:{q*1024} lds")
        if not light:
            a(f"s_mul_i32 s59, s71, {64*3584}")
            a(f"s_add_u32 m0, s60, {slot + 16384}")
            a("s_add_u32 s59, s59, s62")
            for i in range(4):
                a(f"buffer_load_dwordx4 v{6+i}, s[{WI}:{WI+3}], s59 offen offset:{i*1024} lds")
    def wq_dma(x, slot):
        for g in range(2):
            a(f"s_add_u32 m0, s63, {slot*32768 + g*4096}")
            a(f"s_add_u32 s59, s{72+g}, {x*1024}")
            for i in range(4):
                a(f"buffer_load_dwordx4 v{10+i}, s[{WQ}:{WQ+3}], s59 offen offset:{i*1024} lds")
    G = 4 if light else 8
    gsize = [G]*8 + [8]*3
    DIST = OPT.get("dist", 2)
    def group(g):
        if g < 8: chunk_dma(g)
        elif g < 11: wq_dma(g - 8, g % 5)
    group(0)
    srd(a, WQ, 6, 512*3072)
    srd(a, WS, 26, WS_SIZE)
    stamp(a, 0, 0, v=106)
    fine_init(a, 108); fine(a)
    a("v_lshrrev_b32 v1, 2, v0")
    a("v_mul_u32_u24 v1, 3072, v1")
    a("v_and_b32 v10, 3, v0")
    a("v_lshl_add_u32 v10, v10, 4, v1")
    for i in (1, 2, 3): a(f"v_add_u32 v{10+i}, {i*(16*3072-1024)}, v10")
    a("s_lshl_b32 s63, s57, 13")
    a("s_lshl_b32 s64, s55, 6")
    for g in range(2):
        a("s_lshl_b32 s59, s57, 1")
        a(f"s_add_u32 s59, s59, {g}")
        a("s_add_u32 s59, s59, s70")
        a("s_and_b32 s59, s59, 7")
        a(f"s_mul_i32 s59, s59, {64*3072}")
        a(f"s_add_u32 s{72+g}, s59, s64")
    swz_read_addrs(a, 14, 60)
    a("v_lshrrev_b32 v1, 5, v0")
    a("v_lshlrev_b32 v19, 9, v1")
    a("v_bfe_u32 v1, v0, 2, 2")
    a("v_lshl_add_u32 v19, v1, 6, v19")
    a("v_bfe_u32 v1, v0, 4, 1")
    a("v_lshl_add_u32 v19, v1, 5, v19")
    a("v_and_b32 v1, 3, v0")
    a("v_lshl_add_u32 v19, v1, 3, v19")
    a("v_add_u32 v18, 98304, v19")
    a("v_lshlrev_b32 v100, 4, v0")
    a("v_and_b32 v101, 0x33, v0")
    a("v_bfe_u32 v1, v0, 2, 1")
    a("v_lshl_or_b32 v101, v1, 3, v101")
    a("v_bfe_u32 v1, v0, 3, 1")
    a("v_lshl_or_b32 v101, v1, 2, v101")
    a("v_lshlrev_b32 v101, 4, v101")
    a("v_and_b32 v102, 15, v0")
    a("v_lshrrev_b32 v1, 5, v0")
    a("v_lshl_or_b32 v102, v1, 4, v102")
    a("v_lshlrev_b32 v102, 4, v102")
    a("v_bfe_u32 v1, v0, 4, 1")
    a("v_lshl_or_b32 v102, v1, 17, v102")
    a("s_lshl_b32 s59, s55, 7")
    a("s_add_u32 s59, s59, s58")
    a("s_lshl_b32 s65, s59, 10")
    if QF: a(f"s_add_u32 s65, s65, {QF}")
    a("s_add_u32 s66, s65, 65536")
    a("s_lshl_b32 s67, s59, 11")
    a(f"s_add_u32 s67, s67, {KVF}")
    a("s_add_u32 s68, s67, 131072")
    a(f"v_mov_b32 v104, {f32(QSCALE)}")
    a(f"v_mov_b32 v105, {f32(QSCALE)}")
    for c in range(1, DIST): group(c)
    ext = 0
    win = 0
    allow = lambda c: sum(gsize[c+1:c+DIST])
    for c in range(8):
        a(f"s_waitcnt vmcnt({allow(c) + (ext if c == 0 else 0)}) lgkmcnt(0)")
        fine(a)
        a("s_barrier")
        fine(a)
        group(c + DIST)
        fine(a)
        slot = c % 5
        w = slot // 2
        if w != win:
            for ks in range(4): a(f"v_add_u32 v{14+ks}, {((w - win) * 65536) & 0xffffffff}, v{14+ks}")
            win = w
        for ks in range(4):
            a(f"ds_read_b128 {vr(XF + 16*c + 4*ks, 4)}, v{14+ks} offset:{(slot % 2) * 32768}")
    a(f"s_waitcnt vmcnt({allow(8)}) lgkmcnt(0)")
    fine(a)
    a("s_barrier")
    fine(a)
    for g in range(8 + DIST, 11): group(g)
    fine(a)
    stamp(a, 0, 1, v=106)
    def rd(n):
        x, ks = n // 32, n % 32
        reg, off = (18, x * 32768) if x < 2 else (19, 0)
        f = WFR + 4 * (n % 4)
        a(f"ds_read_b64_tr_b16 {vr(f,2)}, v{reg} offset:{off + ks*1024}")
        a(f"ds_read_b64_tr_b16 {vr(f+2,2)}, v{reg} offset:{off + ks*1024 + 256}")
    def epi(x):
        acc = ACC + 16*x
        L = []
        if x == 0:
            L += [f"v_mul_f32 v{acc+p}, v{acc+p}, v104" for p in range(16)]
        t = T + 8*(x % 2)
        L += [f"v_cvt_pk_bf16_f32 v{t+p}, v{acc+2*p}, v{acc+2*p+1}" for p in range(8)]
        fl = OPT["st"]
        if x == 0:
            L += [f"buffer_store_dwordx4 {vr(t,4)}, v100, s[{WS}:{WS+3}], s65 offen {fl}",
                  f"buffer_store_dwordx4 {vr(t+4,4)}, v100, s[{WS}:{WS+3}], s66 offen {fl}"]
        elif x == 1:
            L += [f"buffer_store_dwordx4 {vr(t,4)}, v101, s[{WS}:{WS+3}], s67 offen {fl}",
                  f"buffer_store_dwordx4 {vr(t+4,4)}, v101, s[{WS}:{WS+3}], s68 offen {fl}"]
        else:
            L += [f"buffer_store_dwordx4 {vr(t,4)}, v102, s[{WS}:{WS+3}], s67 offen offset:1024 {fl}",
                  f"buffer_store_dwordx4 {vr(t+4,4)}, v102, s[{WS}:{WS+3}], s67 offen offset:1536 {fl}"]
        return L
    for n in range(3): rd(n)
    pend = []
    for n in range(96):
        x, ks = n // 32, n % 32
        if n + 3 == 32:
            fine(a)
            a("s_waitcnt vmcnt(0)")
            fine(a)
            a("s_barrier")
            fine(a)
            if OPT.get("pfsp", 0):
                srd(a, MISC, 14, 2048*4096)
                a("s_lshl_b32 s59, s52, 5")
                a("s_add_u32 s59, s59, s53")
                a("s_lshl_b32 s59, s59, 2")
                a("s_add_u32 s59, s59, s57")
                a("s_lshl_b32 s59, s59, 13")
                a("s_add_u32 m0, s60, 65536")
                for g in range(2):
                    if g: a("s_add_u32 s59, s59, 4096")
                    else: a("s_nop 0")
                    for i in range(4):
                        a(f"buffer_load_dwordx4 v100, s[{MISC}:{MISC+3}], s59 offen offset:{i*1024} lds")
        if n + 3 < 96:
            rd(n + 3)
            a("s_waitcnt lgkmcnt(6)")
        else:
            a(f"s_waitcnt lgkmcnt({2*(95-n)})")
        f = WFR + 4*(n % 4); xf = XF + 4*ks; acc = ACC + 16*x
        c = "0" if ks == 0 else None
        if x < 2: mfma(a, acc, f, xf, c)
        else: mfma(a, acc, xf, f, c)
        if ks == 31 or (ks == 0 and x == 1): fine(a)
        if ks == 3 and x > 0: pend = epi(x - 1)
        for _ in range(2):
            if pend: a(pend.pop(0))
    a("s_nop 7"); a("s_nop 3")
    for l in epi(2): a(l)
    stamp(a, 0, 2, v=106)
    fine(a); fine_dump(a, 0)
    if light:
        a("s_cmp_lg_u32 s55, 14")
        a("s_cbranch_scc1 L1_end")
        srd(a, MISC, 20, 1024)
        a("v_lshrrev_b32 v1, 5, v0")
        a("v_lshlrev_b32 v1, 4, v1")
        GA = 36
        for b in range(4):
            for k in range(8):
                if k % 4 == 0:
                    a(f"s_add_u32 s59, s70, {b*2 + k//4}")
                    a("s_and_b32 s59, s59, 7")
                    a("s_lshl_b32 s59, s59, 7")
                a(f"buffer_load_dwordx4 {vr(GA+4*k,4)}, v1, s[{MISC}:{MISC+3}], s59 offen offset:{(k%4)*32}")
            for k in range(8):
                a(f"s_waitcnt vmcnt({7-k})")
                mfma(a, 68, GA+4*k, XF + 4*(b*8+k), "0" if b+k == 0 else None)
        a("s_nop 7"); a("s_nop 3")
        a(f"v_mul_f32 v1, {f32(-LOG2E)}, v68")
        a("v_exp_f32 v1, v1")
        a("v_and_b32 v2, 31, v0")
        a("v_add_f32 v1, 1.0, v1")
        a("v_rcp_f32 v1, v1")
        a("v_lshlrev_b32 v2, 2, v2")
        a("s_lshl_b32 s59, s58, 7")
        a(f"s_add_u32 s59, s59, {GG}")
        a(f"buffer_store_dword v1, v2, s[{WS}:{WS+3}], s59 offen")
    a("s_endpgm")

def p1_z(a):
    X, WQ, WI, WS, DBG, MISC = 28, 32, 36, 40, 44, 48
    XFR, WFR, ACC, T = 8, 16, 48, 112
    C1, C2, ONE, SUM, SQ = 160, 162, 164, 166, 168
    if OPT.get("pfq", 0):
        a("v_lshrrev_b32 v1, 2, v0")
        a("v_mul_u32_u24 v1, 3072, v1")
        a("v_and_b32 v2, 3, v0")
        a("v_lshl_add_u32 v1, v2, 4, v1")
        a("s_and_b32 s59, s53, 7")
        a("s_lshl_b32 s59, s59, 2")
        a("s_add_u32 s59, s59, s57")
        a(f"s_mul_i32 s59, s59, {16*3072}")
        a("s_lshl_b32 s61, s55, 6")
        a("s_add_u32 s59, s59, s61")
        a("s_waitcnt lgkmcnt(0)")
        srd(a, WQ, 6, 512*3072)
        a("v_mov_b32 v199, v1")
        a("s_mov_b32 s75, s59")
    swz_read_addrs(a, 2, 60)
    a("v_lshrrev_b32 v1, 5, v0")
    a("v_lshlrev_b32 v6, 11, v1")
    a("v_bfe_u32 v1, v0, 2, 2")
    a("v_lshl_add_u32 v6, v1, 7, v6")
    a("v_bfe_u32 v1, v0, 3, 1")
    a("v_lshl_add_u32 v6, v1, 6, v6")
    a("v_bfe_u32 v1, v0, 4, 1")
    a("v_lshl_add_u32 v6, v1, 5, v6")
    a("v_and_b32 v1, 3, v0")
    a("v_lshl_add_u32 v6, v1, 3, v6")
    a("v_add_u32 v6, 16384, v6")
    a("v_xor_b32 v7, 64, v6")
    for r, v in ((C1, GC1), (C2, GC2), (ONE, 1.0), (SUM, 0.0), (SQ, 0.0)):
        a(f"v_mov_b32 v{r}, {f32(v)}"); a(f"v_mov_b32 v{r+1}, {f32(v)}")
    a("v_lshlrev_b32 v170, 4, v0")
    a("v_and_b32 v1, 31, v0")
    a("v_lshlrev_b32 v171, 3, v1")
    a("v_lshrrev_b32 v172, 5, v0")
    a("v_mul_u32_u24 v172, 7168, v172")
    a("v_add_u32 v172, v172, v171")
    a("v_lshlrev_b32 v173, 6, v1")
    a("v_lshrrev_b32 v1, 5, v0")
    a("v_lshl_add_u32 v173, v1, 3, v173")
    a("s_add_u32 s59, s60, 32768")
    a("v_add_u32 v173, s59, v173")
    a("v_lshlrev_b32 v174, 9, v1")
    a("v_bfe_u32 v1, v0, 2, 2")
    a("v_lshl_add_u32 v174, v1, 6, v174")
    a("v_bfe_u32 v1, v0, 4, 1")
    a("v_lshl_add_u32 v174, v1, 5, v174")
    a("v_and_b32 v1, 3, v0")
    a("v_lshl_add_u32 v174, v1, 3, v174")
    a("v_add_u32 v174, s59, v174")
    a("v_mov_b32 v175, 0")
    a("s_mul_i32 s61, s54, 14336")
    a("s_lshl_b32 s59, s57, 8")
    a("s_add_u32 s61, s61, s59")
    a(f"s_add_u32 s61, s61, {STATS}")
    a("s_add_u32 s69, s61, 4096")
    a("s_lshl_b32 s59, s55, 10")
    a("s_add_u32 s62, s61, s59")
    a("s_mul_i32 s63, s58, 28")
    a("s_lshl_b32 s59, s55, 1")
    a("s_add_u32 s63, s63, s59")
    a("s_lshl_b32 s63, s63, 11")
    a(f"s_add_u32 s63, s63, {Z1F}")
    a("s_lshl_b32 s64, s55, 18")
    a("s_lshl_b32 s59, s58, 11")
    a("s_add_u32 s64, s64, s59")
    a(f"s_add_u32 s64, s64, {Z2F}")
    a("s_add_u32 s65, s64, 131072")
    a("s_lshl_b32 s66, s54, 2")
    a("s_waitcnt lgkmcnt(0)")
    srd(a, WS, 26, WS_SIZE)
    srd(a, DBG, 24, 256)
    stamp(a, 0, 0)
    fine_init(a, 250); fine(a)
    tiles = [(1, 0), (1, 1), (0, 0), (0, 1)]
    state = dict(win=0)
    def reads(n):
        c, ks = n >> 2, n & 3
        slot = c % 5
        L = []
        w = slot // 2
        if w != state["win"]:
            L += [f"v_add_u32 v{r}, {((w - state['win']) * 65536) & 0xffffffff}, v{r}" for r in range(2, 8)]
            state["win"] = w
        pre = L
        so = (slot % 2) * 32768
        R = [f"ds_read_b128 {vr(XFR + 4*(n&1), 4)}, v{2+ks} offset:{so}"]
        for ti, (slab, tile) in enumerate(tiles):
            f = WFR + 16*(n&1) + 4*ti
            for v in range(2):
                R.append(f"ds_read_b64_tr_b16 {vr(f+2*v,2)}, v{6+tile} offset:{so + ks*4096 + slab*1024 + v*512}")
        return pre, R
    a("s_barrier")
    pre, R = reads(0)
    for l in pre + R: a(l)
    if OPT.get("pfq", 0):
        for x in range(3):
            a(f"buffer_load_dwordx4 {vr(200+4*x,4)}, v199, s[{WQ}:{WQ+3}], s75 offen offset:{x*1024}")
    for n in range(32):
        ks = n & 3
        M = lambda ti: mfma(a, ACC + 16*ti, WFR + 16*(n&1) + 4*ti, XFR + 4*(n&1), "0" if n == 0 else None)
        pre, R = reads(n + 1) if n < 31 else ([], [])
        a("s_waitcnt lgkmcnt(6)")
        M(0)
        if ks == 3:
            fine(a)
            a("s_barrier")
            fine(a)
        if n == 31:
            for t_ in (1, 2, 3):
                a(f"s_waitcnt lgkmcnt({6 - 2*t_})"); M(t_)
        else:
            for l in pre + R[0:3]: a(l)
            a("s_waitcnt lgkmcnt(7)"); M(1)
            for l in R[3:6]: a(l)
            a("s_waitcnt lgkmcnt(8)"); M(2)
            for l in R[6:9]: a(l)
            a("s_waitcnt lgkmcnt(9)"); M(3)
    stamp(a, 0, 1)
    a(f"buffer_load_dword v176, v175, s[{DBG}:{DBG+3}], s66 offen sc1")
    a("s_nop 7")
    for ti in range(2):
        x = ACC + 16*ti
        gelu(a, x, T, C1, C2, ONE)
        for p in range(16):
            a(f"v_add_f32 v{SUM+(p&1)}, v{SUM+(p&1)}, v{x+p}")
            a(f"v_fmac_f32 v{SQ+(p&1)}, v{x+p}, v{x+p}")
        fine(a)
        if ti == OPT.get("zbar", 0): a("s_barrier"); fine(a)
    a(f"v_add_f32 v{SUM}, v{SUM}, v{SUM+1}")
    a(f"v_add_f32 v{SUM+1}, v{SQ}, v{SQ+1}")
    halfsum(a, SUM, T)
    halfsum(a, SUM+1, T+1)
    a(f"v_and_b32 v{SUM+1}, 0x7fffffff, v{SUM+1}")
    a(f"s_mov_b32 s67, {SPIN}")
    a.label("L1_clr")
    a("s_waitcnt vmcnt(0)")
    a("v_readfirstlane_b32 s59, v176")
    a("s_sub_u32 s67, s67, 1")
    a("s_cbranch_scc1 L1_clrd")
    a("s_cmp_lg_u32 s59, 0")
    a("s_cbranch_scc1 L1_clrd")
    a(f"buffer_load_dword v176, v175, s[{DBG}:{DBG+3}], s66 offen sc1")
    a("s_branch L1_clr")
    a.label("L1_clrd")
    fine(a)
    a(f"buffer_store_dwordx2 {vr(SUM,2)}, v171, s[{WS}:{WS+3}], s62 offen sc1")
    for ti in range(2, 4):
        x = ACC + 16*ti
        gelu(a, x, T, C1, C2, ONE)
        o = 128 + 8*(ti - 2)
        for p in range(8): a(f"v_cvt_pk_bf16_f32 v{o+p}, v{x+2*p}, v{x+2*p+1}")
        store4(a, o, 170, WS, "s63", (ti-2)*2048)
        store4(a, o+4, 170, WS, "s63", (ti-2)*2048 + 1024)
        fine(a)
    stamp(a, 0, 2)
    S = 144
    a(f"s_mov_b32 s67, {SPIN}")
    a.label("L1_poll")
    for i in range(7):
        a(f"buffer_load_dwordx2 {vr(S+2*i,2)}, v172, s[{WS}:{WS+3}], {'s61' if i < 4 else 's69'} offen offset:{(i%4)*1024} sc1")
    a("s_waitcnt vmcnt(0)")
    a(f"v_or3_b32 v1, v{S+1}, v{S+3}, v{S+5}")
    a(f"v_or3_b32 v1, v1, v{S+7}, v{S+9}")
    a(f"v_or3_b32 v1, v1, v{S+11}, v{S+13}")
    a("v_cmp_gt_i32 vcc, 0, v1")
    a("s_sub_u32 s67, s67, 1")
    a("s_cbranch_scc1 L1_polld")
    a("s_cmp_lg_u64 vcc, 0")
    a("s_cbranch_scc1 L1_poll")
    a.label("L1_polld")
    fine(a)
    for i in range(1, 7): a(f"v_pk_add_f32 {vr(S,2)}, {vr(S,2)}, {vr(S+2*i,2)}")
    halfsum(a, S, T)
    halfsum(a, S+1, T+1)
    a(f"v_mul_f32 v{S}, {f32(1.0/896)}, v{S}")
    a(f"v_mul_f32 v{S+1}, {f32(1.0/896)}, v{S+1}")
    a(f"v_fma_f32 v{S+1}, -v{S}, v{S}, v{S+1}")
    a(f"v_max_f32 v{S+1}, 0, v{S+1}")
    a(f"v_add_f32 v{S+1}, {f32(1e-5)}, v{S+1}")
    a(f"v_rsq_f32 v{S+2}, v{S+1}")
    a("s_nop 0")
    a(f"v_mov_b32 v{S+3}, v{S+2}")
    a(f"v_mul_f32 v{S+4}, -v{S}, v{S+2}")
    a(f"v_mov_b32 v{S+5}, v{S+4}")
    for ti in range(2):
        x = ACC + 16*ti
        for p in range(0, 16, 2): a(f"v_pk_fma_f32 {vr(x+p,2)}, {vr(x+p,2)}, {vr(S+2,2)}, {vr(S+4,2)}")
        o = T + 8*ti
        for p in range(8): a(f"v_cvt_pk_bf16_f32 v{o+p}, v{x+2*p}, v{x+2*p+1}")
        for i in range(4): a(f"ds_write_b64 v173, {vr(o+2*i,2)} offset:{ti*2048 + i*16}")
    a("s_waitcnt lgkmcnt(0)")
    for ti in range(2):
        for k in range(2):
            for v in range(2):
                a(f"ds_read_b64_tr_b16 {vr(16 + ti*8 + k*4 + v*2, 2)}, v174 offset:{ti*2048 + k*1024 + v*256}")
    for ti in range(2):
        for k in range(2):
            a(f"s_waitcnt lgkmcnt({6 - 2*(ti*2+k)})")
            store4(a, 16 + ti*8 + k*4, 170, WS, "s64" if ti == 0 else "s65", k*1024)
    stamp(a, 0, 3)
    fine(a); fine_dump(a, 0)
    a("s_endpgm")

def p1_aux(a):
    X, WQ, WI, WS, DBG, MISC = 28, 32, 36, 40, 44, 48
    a("v_lshlrev_b32 v2, 4, v0")
    a("s_waitcnt lgkmcnt(0)")
    srd(a, WS, 26, WS_SIZE)
    srd(a, DBG, 24, 256)
    a("s_cmp_lg_u32 s55, 15")
    a("s_cbranch_scc1 L1_noclr")
    a("s_cmp_lg_u32 s57, 0")
    a("s_cbranch_scc1 L1_noclr")
    for r in range(4, 8): a(f"v_mov_b32 v{r}, -1")
    a("s_mul_i32 s61, s54, 14336")
    a(f"s_add_u32 s61, s61, {STATS}")
    for i in range(14):
        a(f"buffer_store_dwordx4 v[4:7], v2, s[{WS}:{WS+3}], s61 offen offset:{(i%4)*1024} sc1")
        if i % 4 == 3: a("s_add_u32 s61, s61, 4096")
    a("v_mov_b32 v8, 0")
    a("v_mov_b32 v9, 1")
    a("s_lshl_b32 s66, s54, 2")
    a("s_waitcnt vmcnt(0)")
    a(f"buffer_store_dword v9, v8, s[{DBG}:{DBG+3}], s66 offen sc1")
    a.label("L1_noclr")
    a("s_sub_u32 s59, s55, 14")
    a("s_lshl_b32 s59, s59, 4")
    a("s_add_u32 s59, s59, s54")
    a("s_lshl_b32 s59, s59, 2")
    a("s_add_u32 s61, s59, s57")
    a("s_cmp_ge_u32 s61, 88")
    a("s_cbranch_scc1 L1_end")
    a("s_lshl_b32 s62, s61, 14")
    srd(a, MISC, 8, 512*1024)
    a("s_cmp_lt_u32 s61, 32")
    a("s_cbranch_scc1 L1_wo")
    srd(a, MISC, 18, 896*1024)
    a(f"s_sub_u32 s62, s62, {32*16384}")
    a.label("L1_wo")
    a("s_lshl_b32 s63, s57, 15")
    a("s_add_u32 s63, s63, 16384")
    for g in range(4):
        a(f"s_add_u32 m0, s63, {g*4096}")
        a("s_nop 0")
        for i in range(4):
            a(f"buffer_load_dwordx4 v2, s[{MISC}:{MISC+3}], s62 offen offset:{i*1024} lds")
        a("s_add_u32 s62, s62, 4096")
    a("v_lshrrev_b32 v1, 5, v0")
    a("v_lshlrev_b32 v3, 12, v1")
    a("v_bfe_u32 v1, v0, 2, 2")
    a("v_lshl_add_u32 v3, v1, 10, v3")
    a("v_bfe_u32 v1, v0, 4, 1")
    a("v_lshl_add_u32 v3, v1, 5, v3")
    a("v_and_b32 v1, 3, v0")
    a("v_lshl_add_u32 v3, v1, 3, v3")
    a("v_add_u32 v3, s63, v3")
    a("s_lshl_b32 s62, s61, 10")
    a(f"s_add_u32 s62, s62, {WF}")
    a("s_waitcnt vmcnt(0)")
    for nt in range(16):
        for v in range(2):
            a(f"ds_read_b64_tr_b16 {vr(16 + nt*4 + v*2, 2)}, v3 offset:{v*8192 + nt*64}")
    a("s_waitcnt lgkmcnt(0)")
    for nt in range(16):
        store4(a, 16 + nt*4, 2, WS, "s62", 0)
        a(f"s_add_u32 s62, s62, {88*1024}")

def gen_p2(a):
    prologue(a, "L2_end")
    a("s_cmp_ge_u32 s56, 4")
    a("s_cbranch_scc1 L2_sp")
    p2_att(a)
    a.label("L2_sp")
    p2_sp(a)
    a.label("L2_end")
    a("s_endpgm")

def p2_att(a):
    WS = 40
    Q, KS, VS, S, NM, O, T = 8, 16, 32, 64, 96, 128, 160
    a("s_lshl_b32 s54, s52, 2")
    a("s_lshr_b32 s59, s53, 3")
    a("s_add_u32 s54, s54, s59")
    a("s_and_b32 s55, s53, 7")
    a("s_lshl_b32 s55, s55, 3")
    a("s_lshl_b32 s59, s57, 1")
    a("s_add_u32 s55, s55, s59")
    a("s_lshl_b32 s60, s54, 6")
    a("s_add_u32 s60, s60, s55")
    a("s_lshl_b32 s60, s60, 10")
    if QF: a(f"s_add_u32 s60, s60, {QF}")
    a("s_lshl_b32 s61, s54, 17")
    a(f"s_add_u32 s61, s61, {KVF}")
    a("s_lshl_b32 s62, s57, 11")
    a("s_add_u32 s63, s61, s62")
    a("s_lshl_b32 s64, s55, 7")
    a(f"s_add_u32 s64, s64, {GG}")
    a("v_lshlrev_b32 v4, 4, v0")
    a("v_and_b32 v5, 31, v0")
    a("v_lshlrev_b32 v5, 2, v5")
    a("s_waitcnt lgkmcnt(0)")
    srd(a, WS, 26, WS_SIZE)
    a(f"buffer_load_dwordx4 {vr(Q,4)}, v4, s[{WS}:{WS+3}], s60 offen")
    a(f"buffer_load_dwordx4 {vr(Q+4,4)}, v4, s[{WS}:{WS+3}], s60 offen offset:1024")
    a(f"buffer_load_dwordx4 {vr(KS,4)}, v4, s[{WS}:{WS+3}], s61 offen")
    a(f"buffer_load_dword v6, v5, s[{WS}:{WS+3}], s64 offen")
    a(f"buffer_load_dword v7, v5, s[{WS}:{WS+3}], s64 offen offset:128")
    stamp(a, 1, 0)
    a("v_mov_b32 v1, 0")
    a("ds_write_b32 v5, v1")
    a("v_mov_b32 v3, 0xdddd")
    a("v_mov_b32 v1, v4")
    a("v_and_b32 v2, 15, v0")
    a(f"v_lshrrev_b32 v{T}, 5, v0")
    a(f"v_lshl_or_b32 v2, v{T}, 4, v2")
    a("v_lshlrev_b32 v2, 4, v2")
    a("v_add_u32 v2, 1024, v2")
    a("v_add_u32 v176, 0x10000, v1")
    a("v_add_u32 v177, 0x10000, v2")
    a("v_mov_b32 v178, 1")
    a("s_lshl_b32 s59, s57, 2")
    a("v_mov_b32 v179, s59")
    a(f"v_and_b32 v{T}, 27, v0")
    a(f"v_cmp_eq_u32 vcc, 16, v{T}")
    a(f"v_mov_b32 v{T}, 0x3f803f80")
    a("s_nop 0")
    a(f"v_cndmask_b32 v{VS}, 0, v{T}, vcc")
    for r in range(VS + 1, VS + 32): a(f"v_mov_b32 v{r}, v{VS}")
    for r in range(O, O + 32): a(f"v_mov_b32 v{r}, 0")
    a("s_mov_b32 s66, 0xffff")
    a("s_mov_b32 s67, 0xffff")
    a("s_mul_i32 s65, s55, 88")
    a("s_add_u32 s65, s65, s54")
    a("s_lshl_b32 s65, s65, 10")
    a(f"s_add_u32 s65, s65, {AF}")
    a(f"s_add_u32 s68, s65, {88*1024}")
    a("s_waitcnt vmcnt(0)")
    mfma(a, S, KS, Q, "0")
    mfma(a, S + 16, KS, Q + 4, "0")
    a("s_nop 7"); a("s_nop 2")
    def rowmax(s, d):
        a(f"v_max3_f32 v{d}, v{s}, v{s+1}, v{s+2}")
        for p in range(3, 15, 2): a(f"v_max3_f32 v{d}, v{d}, v{s+p}, v{s+p+1}")
        a(f"v_max_f32 v{d}, v{d}, v{s+15}")
    for q in range(2):
        rowmax(S + 16*q, T + q)
        halfsum(a, T + q, T + 2, "v_max_f32")
        for r in range(16): a(f"v_sub_f32 v{NM + 16*q + r}, 0, v{T+q}")
    a("s_waitcnt lgkmcnt(0)")
    a("s_barrier")
    def kreg(kt): return KS + 4*(kt & 3)
    def vreg(kt): return VS + 8*(kt & 3)
    def rd(kts, skipk=()):
        L = []
        for kt in kts:
            if kt < 64 and kt not in skipk:
                L.append(f"ds_read_b128 {vr(kreg(kt),4)}, v{1 if kt < 32 else 176} offset:{(kt % 32)*2048}")
        L.append("s_mov_b64 exec, s[66:67]")
        for kt in kts:
            if kt < 64:
                for s_ in range(2):
                    L.append(f"ds_read_b128 {vr(vreg(kt)+4*s_,4)}, v{2 if kt < 32 else 177} offset:{(kt % 32)*2048 + s_*512}")
        L.append("s_mov_b64 exec, -1")
        return L
    for l in rd([0, 1], skipk=(0,)): a(l)
    mfma(a, S, KS, Q, NM)
    a("s_waitcnt lgkmcnt(0)")
    a("s_nop 7"); a("s_nop 2")
    stamp(a, 1, 1)
    pa, pb, pc = OPT.get("pos", (2, 5, 12))
    for k in range(128):
        q, kt = k & 1, k >> 1
        sA, sB = S + 16*(k & 1), S + 16*((k + 1) & 1)
        ev = {pa: [], pb: [], pc: []}
        if k > 0:
            qp, ktp = (k - 1) & 1, (k - 1) >> 1
            ev[pa].append(f"v_smfmac_f32_32x32x32_bf16 {vr(O+16*qp,16)}, {vr(vreg(ktp)+4,4)}, {vr(sB+8,8)}, v3")
        if k % 4 == 0 and kt + 2 < 64:
            if kt + 2 == 8:
                ev[pa] += ["s_barrier"]
            ev[pa] += rd([kt + 2, kt + 3])
        if k % 4 == 3 and k < 127:
            ev[pa].append("s_waitcnt lgkmcnt(0)")
            if kt == 41: ev[pa].append("ds_write_b32 v179, v178")
        if k < 127:
            qn, ktn = (k + 1) & 1, (k + 1) >> 1
            ev[pb].append(f"v_mfma_f32_32x32x16_bf16 {vr(sB,16)}, {vr(kreg(ktn),4)}, {vr(Q+4*qn,4)}, {vr(NM+16*qn,16)}")
        ev[pc].append(f"v_smfmac_f32_32x32x32_bf16 {vr(O+16*q,16)}, {vr(vreg(kt),4)}, {vr(sA,8)}, v3")
        for i in range(16):
            for l in ev.get(i, []): a(l)
            a(f"v_exp_f32 v{sA+i}, v{sA+i}")
    a("s_nop 1")
    a(f"v_smfmac_f32_32x32x32_bf16 {vr(O+16,16)}, {vr(vreg(63)+4,4)}, {vr(S+16+8,8)}, v3")
    a(f"s_mov_b32 s70, {f32(2.0**64)}")
    a(f"s_mov_b32 s71, {f32(2.0**-64)}")
    a("s_nop 7"); a("s_nop 1")
    a(f"v_max_f32 v{T}, v{O+8}, v{O+24}")
    a(f"v_min_f32 v{T+1}, v{O+8}, v{O+24}")
    a(f"v_add_f32 v{T+2}, v{O+8}, v{O+24}")
    a(f"v_cmp_gt_f32 s[72:73], s70, v{T}")
    a(f"v_cmp_lt_f32 s[74:75], s71, v{T+1}")
    a(f"v_cmp_o_f32 vcc, v{T+2}, v{T+2}")
    a("s_nop 1")
    a("s_and_b64 s[72:73], s[72:73], s[74:75]")
    a("s_and_b64 s[72:73], s[72:73], vcc")
    a("s_cmp_eq_u64 s[72:73], -1")
    a("s_cbranch_scc0 L2_slow")
    a.label("L2_fin")
    stamp(a, 1, 2)
    for q in range(2):
        o = O + 16*q
        a(f"v_rcp_f32 v{T}, v{o+8}")
        a("s_nop 0")
        a(f"v_mul_f32 v{T}, v{T}, v{6+q}")
        for r in range(8): a(f"v_mul_f32 v{o+r}, v{o+r}, v{T}")
        for p in range(4): a(f"v_cvt_pk_bf16_f32 v{T+4+4*q+p}, v{o+2*p}, v{o+2*p+1}")
        store4(a, T + 4 + 4*q, 4, WS, "s65" if q == 0 else "s68")
    stamp(a, 1, 3)
    a("s_endpgm")
    a.label("L2_slow")
    a(f"v_mov_b32 v{T}, 0xff800000")
    a(f"v_mov_b32 v{T+1}, 0xff800000")
    a("s_mov_b32 s63, s61")
    a("s_mov_b32 s69, 64")
    a.label("L2_s1")
    a(f"buffer_load_dwordx4 {vr(KS,4)}, v4, s[{WS}:{WS+3}], s63 offen")
    a("s_waitcnt vmcnt(0)")
    mfma(a, S, KS, Q, "0")
    mfma(a, S + 16, KS, Q + 4, "0")
    a("s_nop 7"); a("s_nop 3")
    for q in range(2):
        for p in range(0, 16, 2): a(f"v_max3_f32 v{T+q}, v{T+q}, v{S+16*q+p}, v{S+16*q+p+1}")
    a("s_add_u32 s63, s63, 2048")
    a("s_sub_u32 s69, s69, 1")
    a("s_cmp_lg_u32 s69, 0")
    a("s_cbranch_scc1 L2_s1")
    for q in range(2): halfsum(a, T + q, T + 2, "v_max_f32")
    for r in range(O, O + 32): a(f"v_mov_b32 v{r}, 0")
    a("s_mov_b32 s63, s61")
    a("s_mov_b32 s69, 64")
    a.label("L2_s2")
    a(f"buffer_load_dwordx4 {vr(KS,4)}, v4, s[{WS}:{WS+3}], s63 offen")
    a("s_mov_b64 exec, s[66:67]")
    a(f"buffer_load_dwordx4 {vr(VS,4)}, v2, s[{WS}:{WS+3}], s63 offen")
    a(f"buffer_load_dwordx4 {vr(VS+4,4)}, v2, s[{WS}:{WS+3}], s63 offen offset:512")
    a("s_mov_b64 exec, -1")
    a("s_waitcnt vmcnt(0)")
    mfma(a, S, KS, Q, "0")
    mfma(a, S + 16, KS, Q + 4, "0")
    a("s_nop 7"); a("s_nop 3")
    for q in range(2):
        for p in range(16): a(f"v_sub_f32 v{S+16*q+p}, v{S+16*q+p}, v{T+q}")
        for p in range(16): a(f"v_exp_f32 v{S+16*q+p}, v{S+16*q+p}")
    a("s_nop 1")
    for q in range(2):
        for s_ in range(2):
            a(f"v_smfmac_f32_32x32x32_bf16 {vr(O+16*q,16)}, {vr(VS+4*s_,4)}, {vr(S+16*q+8*s_,8)}, v3")
    a("s_add_u32 s63, s63, 2048")
    a("s_sub_u32 s69, s69, 1")
    a("s_cmp_lg_u32 s69, 0")
    a("s_cbranch_scc1 L2_s2")
    a("s_nop 7"); a("s_nop 3")
    a("s_branch L2_fin")

def p2_sp(a):
    WS, WSP, BSP = 40, 28, 32
    WFR, ZS, ACC, T = 16, 48, 112, 224
    a("s_lshl_b32 s54, s52, 2")
    a("s_lshr_b32 s59, s53, 3")
    a("s_add_u32 s54, s54, s59")
    a("s_lshl_b32 s92, s54, 17")
    a("s_lshl_b32 s93, s57, 11")
    a("s_add_u32 s92, s92, s93")
    a(f"s_add_u32 s92, s92, {KVF}")
    a("v_lshlrev_b32 v11, 4, v0")
    a("s_mov_b32 m0, s93")
    a("s_waitcnt lgkmcnt(0)")
    srd(a, WS, 26, WS_SIZE)
    a("s_cmp_eq_u32 s57, 0")
    a("s_cbranch_scc1 L2_skipk0")
    a(f"buffer_load_dwordx4 v11, s[{WS}:{WS+3}], s92 offen lds")
    a.label("L2_skipk0")
    a(f"buffer_load_dwordx4 v11, s[{WS}:{WS+3}], s92 offen offset:1024 lds")
    def kvdma(n):
        a(f"s_add_u32 m0, s93, {n*8192}")
        a("s_add_u32 s92, s92, 8192")
        a(f"buffer_load_dwordx4 v11, s[{WS}:{WS+3}], s92 offen lds")
        a(f"buffer_load_dwordx4 v11, s[{WS}:{WS+3}], s92 offen offset:1024 lds")
    KV1 = OPT.get("kv1", 4)
    for n in range(1, KV1): kvdma(n)
    a("s_lshr_b32 s54, s52, 1")
    a("s_lshl_b32 s54, s54, 3")
    a("s_and_b32 s59, s53, 7")
    a("s_add_u32 s54, s54, s59")
    a("s_and_b32 s55, s52, 1")
    a("s_lshl_b32 s55, s55, 2")
    a("s_lshr_b32 s59, s53, 3")
    a("s_add_u32 s55, s55, s59")
    a("s_and_b32 s58, s55, 1")
    a("s_lshl_b32 s60, s54, 1")
    a("s_add_u32 s60, s60, s58")
    a("s_xor_b32 s61, s60, 1")
    a("s_lshr_b32 s59, s55, 1")
    a("s_mul_i32 s59, s59, 7")
    a("s_add_u32 s65, s59, 3")
    a("s_lshl_b32 s62, s58, 2")
    a("s_add_u32 s62, s62, s59")
    a("s_add_u32 s63, s62, 1")
    a("s_add_u32 s64, s62, 2")
    a("s_lshl_b32 s59, s57, 15")
    a(f"s_add_u32 s59, s59, {Z2F}")
    for i in range(4):
        a(f"s_lshl_b32 s{66+i}, s{62+i}, 17")
        a(f"s_add_u32 s{66+i}, s{66+i}, s59")
    a("s_lshl_b32 s59, s57, 10")
    for i in range(2):
        a(f"s_lshl_b32 s{70+i}, s{60+i}, 17")
        a(f"s_add_u32 s{70+i}, s{70+i}, s59")
    a("s_lshl_b32 s72, s57, 13")
    a("s_add_u32 s72, s72, 0x20000")
    a("s_add_u32 s73, s72, 4096")
    swz_row_voffs(a, 2, stride_shift=12)
    a("v_lshlrev_b32 v1, 4, v0")
    srd(a, WSP, 14, 2048*4096)
    def wdma():
        for t in range(2):
            a(f"s_mov_b32 m0, s{72+t}")
            a("s_nop 0")
            for q in range(4):
                a(f"buffer_load_dwordx4 v{2+q}, s[{WSP}:{WSP+3}], s{70+t} offen offset:{q*1024} lds")
            a(f"s_add_u32 s{70+t}, s{70+t}, 128")
    def zload(ks):
        for i in range(4):
            a(f"buffer_load_dwordx4 {vr(ZS + 16*ks + 4*i, 4)}, v1, s[{WS}:{WS+3}], s{66+i} offen offset:{ks*1024}")
        if ks == 3:
            for i in range(4): a(f"s_add_u32 s{66+i}, s{66+i}, 4096")
    swz_read_addrs(a, 6, 72, tmp=10)
    srd(a, BSP, 16, 4096)
    tiles = [(0, 0), (0, 1), (0, 2), (0, 3), (1, 0), (1, 1), (1, 2)]
    for n, (t, f) in enumerate(tiles):
        a(f"s_mul_i32 s59, s{60+t}, 28")
        a(f"s_add_u32 s59, s59, s{62+f}")
        a(f"s_lshl_b32 s59, s59, 11")
        a(f"s_add_u32 s{76+n}, s59, {Z1F}")
        a(f"s_mul_i32 s59, s{60+t}, 44")
        a(f"s_add_u32 s59, s59, s{62+f}")
        a(f"s_lshl_b32 s59, s59, 11")
        a(f"s_add_u32 s{84+n}, s59, {AF + 32*1024}")
    a(f"s_waitcnt vmcnt({2*(KV1-2)})")
    a("s_barrier")
    stamp(a, 1, 0)
    for n in range(KV1, 16): kvdma(n)
    wdma()
    zload(0)
    a("s_waitcnt vmcnt(12)")
    a("s_barrier")
    for ks in range(1, 4): zload(ks)
    for st in range(8):
        last = st == 7
        a("s_waitcnt vmcnt(16)")
        for t in range(2):
            for ks in range(4):
                a(f"ds_read_b128 {vr(WFR + 16*t + 4*ks, 4)}, v{6+ks} offset:{t*4096}")
        a("s_waitcnt lgkmcnt(0)")
        if not last: wdma()
        for ks in range(4):
            a(f"s_waitcnt vmcnt({(3-ks)*4 if last else 20})")
            for n, (t, f) in enumerate(tiles):
                mfma(a, ACC + 16*n, ZS + 16*ks + 4*f, WFR + 16*t + 4*ks, "0" if st + ks == 0 else None)
            if not last: zload(ks)
    stamp(a, 1, 1)
    a("s_setprio 3")
    a("v_and_b32 v14, 31, v0")
    a("v_lshlrev_b32 v15, 2, v14")
    a("v_lshlrev_b32 v14, 1, v14")
    for t in range(2):
        a(f"s_lshl_b32 s59, s{60+t}, 6")
        a(f"buffer_load_ushort v{10+t}, v14, s[{BSP}:{BSP+3}], s59 offen")
        a(f"s_lshl_b32 s59, s{60+t}, 7")
        a(f"s_add_u32 s59, s59, {GG}")
        a(f"buffer_load_dword v{12+t}, v15, s[{WS}:{WS+3}], s59 offen")
    a("v_mov_b32 v2, 0")
    a("v_add_u32 v3, 0x10000, v1")
    a("v_mov_b32 v4, 1")
    a("s_lshl_b32 s59, s57, 2")
    a("s_add_u32 s59, s59, 16")
    a("v_mov_b32 v5, s59")
    def poll(lbl, off):
        a(f"s_mov_b32 s74, {SPIN}")
        a.label(lbl)
        a(f"ds_read_b128 v[6:9], v2 offset:{off}")
        a("s_waitcnt lgkmcnt(0)")
        a("v_and_b32 v6, v6, v7")
        a("v_and_b32 v8, v8, v9")
        a("v_and_b32 v6, v6, v8")
        a("s_sub_u32 s74, s74, 1")
        a("v_readfirstlane_b32 s59, v6")
        a(f"s_cbranch_scc1 {lbl}d")
        a("s_cmp_lg_u32 s59, 0")
        a(f"s_cbranch_scc1 {lbl}d")
        a("s_sleep 2")
        a(f"s_branch {lbl}")
        a.label(lbl + "d")
    owner = [0,0,0,0,1,1,1,1,2,2,2,3,3,3]
    def slot(n, src):
        si = src if src < owner[n] else src - 1
        ad = 2048 + (n*3 + si)*2048
        return (1, ad) if ad + 1024 < 65536 else (3, ad - 65536)
    for w in range(4):
        if w < 3:
            a(f"s_cmp_lg_u32 s57, {w}")
            a(f"s_cbranch_scc1 L2_w{w+1}")
        mine = [n for n in range(14) if owner[n] == w]
        Z1R = 16
        for i, n in enumerate(mine):
            a(f"buffer_load_dwordx4 {vr(Z1R+4*i,4)}, v1, s[{WS}:{WS+3}], s{76 + (n>>1)} offen offset:{(n&1)*1024}")
        poll(f"L2_pa{w}", 0)
        for n in range(14):
            if owner[n] != w:
                r, ad = slot(n, w)
                a(f"ds_write_b128 v{r}, {vr(ACC+8*n,4)} offset:{ad}")
                a(f"ds_write_b128 v{r}, {vr(ACC+8*n+4,4)} offset:{ad+1024}")
        a("s_waitcnt lgkmcnt(0)")
        a("ds_write_b32 v5, v4")
        a("s_waitcnt vmcnt(0)")
        for t in range(2):
            a(f"v_sub_f32 v{32+4*t}, 1.0, v{12+t}")
            a(f"v_lshlrev_b32 v{10+t}, 16, v{10+t}")
            a(f"v_mul_f32 v{34+4*t}, v{10+t}, v{32+4*t}")
        poll(f"L2_pb{w}", 16)
        P = 48
        def rdp(i):
            n = mine[i]
            for si, src in enumerate([s_ for s_ in range(4) if s_ != w]):
                r, ad = slot(n, src)
                a(f"ds_read_b128 {vr(P + 24*(i&1) + 8*si, 4)}, v{r} offset:{ad}")
                a(f"ds_read_b128 {vr(P + 24*(i&1) + 8*si + 4, 4)}, v{r} offset:{ad+1024}")
        rdp(0)
        for i, n in enumerate(mine):
            if i + 1 < len(mine):
                rdp(i + 1); a("s_waitcnt lgkmcnt(6)")
            else:
                a("s_waitcnt lgkmcnt(0)")
            x = ACC + 8*n; p0 = P + 24*(i&1); t = tiles[n >> 1][0]
            for si in range(3):
                for p in range(8): a(f"v_add_f32 v{x+p}, v{x+p}, v{p0+8*si+p}")
            for p in range(8): a(f"v_fma_f32 v{x+p}, v{x+p}, v{32+4*t}, v{34+4*t}")
            for p in range(4):
                a(f"v_lshlrev_b32 v{T+2*p}, 16, v{Z1R+4*i+p}")
                a(f"v_and_b32 v{T+2*p+1}, 0xffff0000, v{Z1R+4*i+p}")
            for p in range(8): a(f"v_mul_f32 v{x+p}, v{x+p}, v{T+p}")
            o = T + 8 + 4*i
            for p in range(4): a(f"v_cvt_pk_bf16_f32 v{o+p}, v{x+2*p}, v{x+2*p+1}")
            store4(a, o, 1, WS, f"s{84 + (n>>1)}", (n&1)*1024)
        stamp(a, 1, 2)
        a("s_endpgm")
        if w < 3: a.label(f"L2_w{w+1}")

def gen_p3(a):
    WS, OUT = 40, 28
    R, ACC = 8, 184
    D = 11
    prologue(a, "L3_end")
    a("s_lshr_b32 s54, s52, 1")
    a("s_lshl_b32 s54, s54, 3")
    a("s_and_b32 s59, s53, 7")
    a("s_add_u32 s54, s54, s59")
    a("s_and_b32 s55, s52, 1")
    a("s_lshl_b32 s55, s55, 2")
    a("s_lshr_b32 s59, s53, 3")
    a("s_add_u32 s55, s55, s59")
    a("s_lshl_b32 s60, s54, 1")
    a("s_lshr_b32 s59, s57, 1")
    a("s_add_u32 s60, s60, s59")
    a("s_xor_b32 s61, s60, 1")
    a("s_lshl_b32 s62, s55, 1")
    a("s_and_b32 s59, s57, 1")
    a("s_add_u32 s62, s62, s59")
    a("s_xor_b32 s63, s62, 1")
    a("s_mul_i32 s59, s57, %d" % (22*1024))
    for i in range(4):
        a(f"s_mul_i32 s{64+i}, s{60+i}, {88*1024}")
        a(f"s_add_u32 s{64+i}, s{64+i}, s59")
        a(f"s_add_u32 s{64+i}, s{64+i}, {AF if i < 2 else WF}")
    a("v_lshlrev_b32 v1, 4, v0")
    a("s_waitcnt lgkmcnt(0)")
    srd(a, WS, 26, WS_SIZE)
    stamp(a, 2, 0)
    def load(ks):
        for i in range(4):
            a(f"buffer_load_dwordx4 {vr(R + 16*(ks % D) + 4*i, 4)}, v1, s[{WS}:{WS+3}], s{64+i} offen offset:{(ks%4)*1024}")
        if ks % 4 == 3:
            for i in range(4): a(f"s_add_u32 s{64+i}, s{64+i}, 4096")
    for ks in range(D): load(ks)
    srd(a, OUT, 22, 2048*1024)
    for lam in (1, 2, 3):
        a(f"s_xor_b32 s59, s57, {lam}")
        a(f"s_mul_i32 s59, s59, 12288")
        a(f"s_add_u32 s59, s59, {(lam-1)*4096}")
        a(f"v_add_u32 v{1+lam}, s59, v1")
    a("s_mul_i32 s59, s57, 12288")
    a("v_add_u32 v5, s59, v1")
    a("v_and_b32 v6, 31, v0")
    a("v_lshlrev_b32 v6, 10, v6")
    a("v_lshrrev_b32 v7, 5, v0")
    a("v_lshl_add_u32 v6, v7, 4, v6")
    a("s_lshl_b32 s68, s60, 15")
    a("s_lshl_b32 s59, s62, 6")
    a("s_add_u32 s68, s68, s59")
    for ks in range(22):
        rem = min(21 - ks, D - 1)
        a(f"s_waitcnt vmcnt({4*rem})")
        r = R + 16*(ks % D)
        for lam in (1, 2, 3, 0):
            mfma(a, ACC + 16*lam, r + 8 + 4*(lam & 1), r + 4*(lam >> 1), "0" if ks == 0 else None)
        if ks + D < 22: load(ks + D)
    stamp(a, 2, 1)
    a("s_nop 7"); a("s_nop 1")
    for lam in (1, 2, 3):
        for i in range(4):
            a(f"ds_write_b128 v{1+lam}, {vr(ACC + 16*lam + 4*i, 4)} offset:{i*1024}")
    a("s_waitcnt lgkmcnt(0)")
    a("s_barrier")
    for i in range(12):
        a(f"ds_read_b128 {vr(R + 4*i, 4)}, v5 offset:{i*1024}")
    for s_ in range(3):
        a(f"s_waitcnt lgkmcnt({8 - 4*s_})")
        for p in range(0, 16, 2): a(f"v_pk_add_f32 {vr(ACC+p,2)}, {vr(ACC+p,2)}, {vr(R+16*s_+p,2)}")
    for p in range(8): a(f"v_cvt_pk_bf16_f32 v{64+p}, v{ACC+2*p}, v{ACC+2*p+1}")
    a("s_nop 1")
    for b in (64, 68):
        a(f"v_permlane32_swap_b32 v{b}, v{b+2}")
        a(f"v_permlane32_swap_b32 v{b+1}, v{b+3}")
    a(f"buffer_store_dwordx4 v[64:67], v6, s[{OUT}:{OUT+3}], s68 offen")
    a(f"buffer_store_dwordx4 v[68:71], v6, s[{OUT}:{OUT+3}], s68 offen offset:32")
    stamp(a, 2, 2)
    a.label("L3_end")
    a("s_endpgm")

KERNELS = [("p1_kernel", gen_p1, 512, 163840, 256), ("p2_kernel", gen_p2, 512, 163840, 256), ("p3_kernel", gen_p3, 256, 49152, 256)]

def main():
    ref = open(f"cdna_kernels/{NAME}.s.ref").read().split("\n")
    hdr = [l for l in ref if l.startswith(";") and "@launch" not in l and "Override launch" not in l and "grid=ceil" not in l]
    out = list(hdr)
    vid = []
    if OPT.get("one"):
        def allg(a): gen_p1(a); a.raw(".p2align 6"); gen_p2(a); a.raw(".p2align 6"); gen_p3(a)
        out += ["; @launch kernel=p_kernel grid=(256,1,1) block=(512,1,1) lds=163840",
                "; @launch kernel=p_kernel grid=(256,1,1) block=(32,16,1) lds=163840",
                "; @launch kernel=p_kernel grid=(256,1,1) block=(16,16,1) lds=49152"]
        KERNELS[:] = [("p_kernel", allg, 512, 0, 256)]
        OPT["order"] = []
        vid = ["  .amdhsa_system_vgpr_workitem_id 1"]
    order = OPT.get("order", list(range(len(KERNELS))))
    if 3 in order:
        dup = OPT.get("dup")
        if dup is None: KERNELS.append(("nop_kernel", lambda a: a("s_endpgm"), 64, 0, 8))
        else:
            def dupg(a, g=KERNELS[dup][1]):
                g(a); a.lines[:] = [re.sub(r"\bL(\d)_", r"M\1_", l) for l in a.lines]
            KERNELS.append(("dup_kernel", dupg) + KERNELS[dup][2:])
    for k, _, blk, lds, _ in [KERNELS[i] for i in order]:
        out.append(f"; @launch kernel={k} grid=(256,1,1) block=({blk},1,1) lds={lds}")
    out.append('.amdgcn_target "amdgcn-amd-amdhsa--gfx950"')
    out.append(".text")
    bad = 0
    for k, g, _, _, _ in KERNELS:
        a = Asm(); g(a)
        bad += check(a.lines, k)
        out += [f".globl {k}", ".p2align 8", f".type {k},@function", f"{k}:"] + a.lines
    out.append('.section .rodata,"a"')
    for k, _, _, _, vg in KERNELS:
        out += [".p2align 6", f".amdhsa_kernel {k}", f"  .amdhsa_next_free_vgpr {vg}", "  .amdhsa_next_free_sgpr 102",
                f"  .amdhsa_accum_offset {(vg+3)//4*4}", "  .amdhsa_group_segment_fixed_size 0", "  .amdhsa_kernarg_size 96",
                "  .amdhsa_user_sgpr_count 2", "  .amdhsa_user_sgpr_kernarg_segment_ptr 1", "  .amdhsa_system_sgpr_workgroup_id_x 1",
                "  .amdhsa_float_denorm_mode_32 3"] + vid + [".end_amdhsa_kernel"]
    open(sys.argv[1], "w").write("\n".join(out) + "\n")
    print("hazards:", bad, "lines:", len(out))
main()
```

```python
import sys, struct, re
from asmlib import Asm, vr, sr, check

NAME = "gated_mix__softmax_full_mha__mixer_gmlp__prompt"
MB = 1 << 20
QF, KVF, Z1F, Z2F, AF, WF = 0, 2*MB, 6*MB, 10*MB, 14*MB, 20*MB
GG = 22*MB
STATS = 22*MB + 65536
STAMP = 23*MB
WS_SIZE = 28*MB
def f32(x): return "0x%08x" % struct.unpack("<I", struct.pack("<f", x))[0]
LOG2E = 1.4426950408889634
QSCALE = 0.25 * LOG2E
GC1 = -2.0 * LOG2E * 0.7978845608028654
GC2 = GC1 * 0.044715
SPIN = 1 << 16

OPT = dict(stamp=False, st="sc1")
for a_ in sys.argv[2:]:
    k_, v_ = a_.split("=")
    OPT[k_] = eval(v_)

def srd(a, d, p, size):
    if p == 26 and OPT.get("wsoff", 0):
        a(f"s_add_u32 s{d}, s{p}, {OPT['wsoff']*MB}")
        a(f"s_addc_u32 s{d+1}, s{p+1}, 0")
    else:
        a(f"s_mov_b32 s{d}, s{p}")
        a(f"s_mov_b32 s{d+1}, s{p+1}")
    a(f"s_mov_b32 s{d+2}, {size}")
    a(f"s_mov_b32 s{d+3}, 0x20000")

def prologue(a, endlabel):
    if OPT.get("one") and endlabel != "L1_end":
        a.label("L_p" + endlabel[1])
        return
    a(f"s_cmp_ge_u32 s2, 256")
    a(f"s_cbranch_scc1 {endlabel}")
    if OPT["stamp"]:
        a("s_memrealtime s[96:97]")
        a("s_memtime s[94:95]")
    a("s_load_dwordx16 s[4:19], s[0:1], 0")
    a("s_load_dwordx8 s[20:27], s[0:1], 64")
    if OPT.get("one"):
        a("v_readlane_b32 s3, v0, 63")
        a("s_and_b32 s52, s2, 7")
        a("s_lshr_b32 s53, s2, 3")
        a("v_mbcnt_lo_u32_b32 v0, -1, 0")
        a("v_mbcnt_hi_u32_b32 v0, -1, v0")
        a("s_lshr_b32 s56, s3, 11")
        a("s_and_b32 s57, s56, 3")
        a("s_and_b32 s59, s3, 63")
        a("s_cmp_eq_u32 s59, 31")
        a("s_cbranch_scc1 L_p2")
        a("s_lshr_b32 s56, s3, 12")
        a("s_and_b32 s57, s56, 3")
        a("s_cmp_eq_u32 s59, 15")
        a("s_cbranch_scc1 L_p3")
        a("s_lshr_b32 s56, s3, 6")
        a("s_and_b32 s57, s56, 3")
        return
    a("v_lshrrev_b32 v1, 6, v0")
    a("s_and_b32 s52, s2, 7")
    a("v_readfirstlane_b32 s56, v1")
    a("s_lshr_b32 s53, s2, 3")
    a("v_and_b32 v0, 63, v0")
    a("s_and_b32 s57, s56, 3")

def stamp(a, phase, slot, ws=40, v=254):
    if not OPT["stamp"]: return
    if slot:
        a("s_memrealtime s[96:97]")
        a("s_memtime s[94:95]")
    a("s_waitcnt lgkmcnt(0)")
    a("s_lshl_b32 s98, s2, 3")
    a("s_add_u32 s98, s98, s56")
    a("s_lshl_b32 s98, s98, 5")
    a(f"s_add_u32 s98, s98, {STAMP + phase*65536 + slot*4}")
    a(f"v_mov_b32 v{v}, s96")
    a(f"v_mov_b32 v{v+1}, 0")
    a(f"buffer_store_dword v{v}, v{v+1}, s[{ws}:{ws+3}], s98 offen")
    a(f"v_mov_b32 v{v}, s94")
    a(f"buffer_store_dword v{v}, v{v+1}, s[{ws}:{ws+3}], s98 offen offset:16")

FINE = dict(n=0)
def fine(a):
    if not OPT.get("fine"): return
    a("s_memtime s[100:101]")
    a("s_waitcnt lgkmcnt(0)")
    a(f"v_writelane_b32 v{FINE['v']}, s100, {FINE['n']}")
    FINE["n"] += 1
def fine_init(a, v):
    if not OPT.get("fine"): return
    FINE["v"] = v; FINE["n"] = 1
    a(f"v_mov_b32 v{v}, 0")
    a(f"v_writelane_b32 v{v}, s94, 0")
def fine_dump(a, phase, ws=40):
    if not OPT.get("fine"): return
    v = FINE["v"]
    a("s_lshl_b32 s98, s2, 3")
    a("s_add_u32 s98, s98, s56")
    a("s_lshl_b32 s98, s98, 8")
    a(f"s_add_u32 s98, s98, {24*MB + phase*MB}")
    a(f"v_lshlrev_b32 v{v+1}, 2, v0")
    a(f"buffer_store_dword v{v}, v{v+1}, s[{ws}:{ws+3}], s98 offen")

def mfma(a, d, A, B, c=None):
    cc = vr(d, 16) if c is None else (c if isinstance(c, str) else vr(c, 16))
    a(f"v_mfma_f32_32x32x16_bf16 {vr(d,16)}, {vr(A,4)}, {vr(B,4)}, {cc}")

def store4(a, v, voff, srd_, soff, off=0, flags=None):
    fl = OPT["st"] if flags is None else flags
    a(f"buffer_store_dwordx4 {vr(v,4)}, v{voff}, s[{srd_}:{srd_+3}], {soff} offen offset:{off} {fl}")

def swz_row_voffs(a, base, stride_shift=None, stride=None, tmp=1):
    t, u = tmp, base + 3
    a(f"v_lshrrev_b32 v{t}, 4, v0")
    a(f"v_and_b32 v{u}, 7, v0")
    a(f"v_xor_b32 v{u}, v{u}, v{t}")
    a(f"v_lshrrev_b32 v{t}, 3, v0")
    a(f"v_lshlrev_b32 v{t}, {stride_shift}, v{t}")
    a(f"v_lshl_add_u32 v{base}, v{u}, 4, v{t}")
    a(f"v_xor_b32 v{u}, 4, v{u}")
    a(f"v_lshl_add_u32 v{base+1}, v{u}, 4, v{t}")
    st = 1 << stride_shift
    a(f"v_add_u32 v{base+1}, {8*st - 1024}, v{base+1}")
    a(f"v_add_u32 v{base+2}, {16*st - 2048}, v{base}")
    a(f"v_add_u32 v{base+3}, {16*st - 2048}, v{base+1}")

def swz_read_addrs(a, base, sbase, tmp=1):
    t, u = tmp, base + 3
    a(f"v_bfe_u32 v{t}, v0, 1, 3")
    a(f"v_lshrrev_b32 v{u}, 5, v0")
    a(f"v_xor_b32 v{t}, v{t}, v{u}")
    a(f"v_lshlrev_b32 v{t}, 4, v{t}")
    a(f"v_and_b32 v{u}, 31, v0")
    a(f"v_lshl_add_u32 v{t}, v{u}, 7, v{t}")
    a(f"v_add_u32 v{base}, s{sbase}, v{t}")
    for ks in (1, 2, 3):
        a(f"v_xor_b32 v{base+ks}, {ks*32}, v{base}")

def gelu(a, x, t, C1, C2, ONE, n=16, pk=False):
    if not pk:
        for p in range(n): a(f"v_mul_f32 v{t+p}, v{x+p}, v{x+p}")
        for p in range(n): a(f"v_fma_f32 v{t+p}, v{t+p}, v{C2}, v{C1}")
        for p in range(n): a(f"v_mul_f32 v{t+p}, v{t+p}, v{x+p}")
        for p in range(n): a(f"v_exp_f32 v{t+p}, v{t+p}")
        for p in range(n): a(f"v_add_f32 v{t+p}, 1.0, v{t+p}")
        for p in range(n): a(f"v_rcp_f32 v{t+p}, v{t+p}")
        for p in range(n): a(f"v_mul_f32 v{x+p}, v{x+p}, v{t+p}")
        return
    for p in range(0, n, 2): a(f"v_pk_mul_f32 {vr(t+p,2)}, {vr(x+p,2)}, {vr(x+p,2)}")
    for p in range(0, n, 2): a(f"v_pk_fma_f32 {vr(t+p,2)}, {vr(t+p,2)}, {vr(C2,2)}, {vr(C1,2)}")
    for p in range(0, n, 2): a(f"v_pk_mul_f32 {vr(t+p,2)}, {vr(t+p,2)}, {vr(x+p,2)}")
    for p in range(n): a(f"v_exp_f32 v{t+p}, v{t+p}")
    for p in range(0, n, 2): a(f"v_pk_add_f32 {vr(t+p,2)}, {vr(t+p,2)}, {vr(ONE,2)}")
    for p in range(n): a(f"v_rcp_f32 v{t+p}, v{t+p}")
    for p in range(0, n, 2): a(f"v_pk_mul_f32 {vr(x+p,2)}, {vr(x+p,2)}, {vr(t+p,2)}")

def halfsum(a, v, t, op="v_add_f32"):
    a(f"v_mov_b32 v{t}, v{v}")
    a("s_nop 1")
    a(f"v_permlane32_swap_b32 v{v}, v{t}")
    a(f"{op} v{v}, v{v}, v{t}")

def gen_p1(a):
    X, WQ, WI, WS, DBG, MISC = 28, 32, 36, 40, 44, 48
    prologue(a, "L1_end")
    a("s_and_b32 s54, s52, 1")
    a("s_lshl_b32 s54, s54, 3")
    a("s_and_b32 s59, s53, 7")
    a("s_add_u32 s54, s54, s59")
    a("s_lshr_b32 s55, s52, 1")
    a("s_lshl_b32 s55, s55, 2")
    a("s_lshr_b32 s59, s53, 3")
    a("s_add_u32 s55, s55, s59")
    a("s_lshl_b32 s58, s54, 2")
    a("s_add_u32 s58, s58, s57")
    a("s_lshl_b32 s60, s57, 12")
    a("s_lshr_b32 s59, s53, 3")
    a("s_lshl_b32 s59, s59, 1")
    a("s_add_u32 s70, s59, s53")
    a("s_and_b32 s70, s70, %d" % (7 if OPT.get("rot", 1) else 0))
    a("s_cmp_ge_u32 s56, 4")
    a("s_cbranch_scc1 L1_z")
    swz_row_voffs(a, 2, stride_shift=10)
    a("v_lshrrev_b32 v1, 2, v0")
    a("v_and_b32 v1, 4, v1")
    a("v_and_b32 v6, 7, v0")
    a("v_xor_b32 v6, v6, v1")
    a("v_lshlrev_b32 v6, 4, v6")
    a("v_lshrrev_b32 v1, 3, v0")
    a("v_mul_u32_u24 v1, 3584, v1")
    a("v_add_u32 v6, v6, v1")
    a(f"v_add_u32 v7, {1792-1024}, v6")
    a(f"v_add_u32 v8, {8*3584-2048}, v6")
    a(f"v_add_u32 v9, {8*3584+1792-3072}, v6")
    a("s_lshl_b32 s61, s58, 15")
    a("s_mul_i32 s62, s57, %d" % (16*3584))
    a("s_lshl_b32 s59, s55, 7")
    a("s_add_u32 s62, s62, s59")
    a("s_waitcnt lgkmcnt(0)")
    srd(a, X, 4, 2048*1024)
    srd(a, WI, 12, 512*3584)
    a("s_cmp_ge_u32 s55, 14")
    a("s_cbranch_scc1 L1_ql")
    p1_qkv(a, False)
    a.label("L1_ql")
    p1_qkv(a, True)
    a.label("L1_z")
    a("s_cmp_ge_u32 s55, 14")
    a("s_cbranch_scc1 L1_aux")
    p1_z(a)
    a.label("L1_aux")
    p1_aux(a)
    a.label("L1_end")
    a("s_endpgm")

def p1_qkv(a, light):
    X, WQ, WI, WS, DBG, MISC = 28, 32, 36, 40, 44, 48
    XF, ACC, WFR, T = 128, 36, 20, 84
    def chunk_dma(c):
        slot = (c % 5) * 32768
        a(f"s_add_u32 s71, s70, {c}")
        a("s_and_b32 s71, s71, 7")
        a("s_lshl_b32 s59, s71, 7")
        a(f"s_add_u32 m0, s60, {slot}")
        a("s_add_u32 s59, s59, s61")
        for q in range(4):
            a(f"buffer_load_dwordx4 v{2+q}, s[{X}:{X+3}], s59 offen offset:{q*1024} lds")
        if not light:
            a(f"s_mul_i32 s59, s71, {64*3584}")
            a(f"s_add_u32 m0, s60, {slot + 16384}")
            a("s_add_u32 s59, s59, s62")
            for i in range(4):
                a(f"buffer_load_dwordx4 v{6+i}, s[{WI}:{WI+3}], s59 offen offset:{i*1024} lds")
    def wq_dma(x, slot):
        for g in range(2):
            a(f"s_add_u32 m0, s63, {slot*32768 + g*4096}")
            a(f"s_add_u32 s59, s{72+g}, {x*1024}")
            for i in range(4):
                a(f"buffer_load_dwordx4 v{10+i}, s[{WQ}:{WQ+3}], s59 offen offset:{i*1024} lds")
    G = 4 if light else 8
    gsize = [G]*8 + [8]*3
    DIST = OPT.get("dist", 2)
    def group(g):
        if g < 8: chunk_dma(g)
        elif g < 11: wq_dma(g - 8, g % 5)
    group(0)
    srd(a, WQ, 6, 512*3072)
    srd(a, WS, 26, WS_SIZE)
    stamp(a, 0, 0, v=106)
    fine_init(a, 108); fine(a)
    a("v_lshrrev_b32 v1, 2, v0")
    a("v_mul_u32_u24 v1, 3072, v1")
    a("v_and_b32 v10, 3, v0")
    a("v_lshl_add_u32 v10, v10, 4, v1")
    for i in (1, 2, 3): a(f"v_add_u32 v{10+i}, {i*(16*3072-1024)}, v10")
    a("s_lshl_b32 s63, s57, 13")
    a("s_lshl_b32 s64, s55, 6")
    for g in range(2):
        a("s_lshl_b32 s59, s57, 1")
        a(f"s_add_u32 s59, s59, {g}")
        a("s_add_u32 s59, s59, s70")
        a("s_and_b32 s59, s59, 7")
        a(f"s_mul_i32 s59, s59, {64*3072}")
        a(f"s_add_u32 s{72+g}, s59, s64")
    swz_read_addrs(a, 14, 60)
    a("v_lshrrev_b32 v1, 5, v0")
    a("v_lshlrev_b32 v19, 9, v1")
    a("v_bfe_u32 v1, v0, 2, 2")
    a("v_lshl_add_u32 v19, v1, 6, v19")
    a("v_bfe_u32 v1, v0, 4, 1")
    a("v_lshl_add_u32 v19, v1, 5, v19")
    a("v_and_b32 v1, 3, v0")
    a("v_lshl_add_u32 v19, v1, 3, v19")
    a("v_add_u32 v18, 98304, v19")
    a("v_lshlrev_b32 v100, 4, v0")
    a("v_and_b32 v101, 0x33, v0")
    a("v_bfe_u32 v1, v0, 2, 1")
    a("v_lshl_or_b32 v101, v1, 3, v101")
    a("v_bfe_u32 v1, v0, 3, 1")
    a("v_lshl_or_b32 v101, v1, 2, v101")
    a("v_lshlrev_b32 v101, 4, v101")
    a("v_and_b32 v102, 15, v0")
    a("v_lshrrev_b32 v1, 5, v0")
    a("v_lshl_or_b32 v102, v1, 4, v102")
    a("v_lshlrev_b32 v102, 4, v102")
    a("v_bfe_u32 v1, v0, 4, 1")
    a("v_lshl_or_b32 v102, v1, 17, v102")
    a("s_lshl_b32 s59, s55, 7")
    a("s_add_u32 s59, s59, s58")
    a("s_lshl_b32 s65, s59, 10")
    if QF: a(f"s_add_u32 s65, s65, {QF}")
    a("s_add_u32 s66, s65, 65536")
    a("s_lshl_b32 s67, s59, 11")
    a(f"s_add_u32 s67, s67, {KVF}")
    a("s_add_u32 s68, s67, 131072")
    a(f"v_mov_b32 v104, {f32(QSCALE)}")
    a(f"v_mov_b32 v105, {f32(QSCALE)}")
    for c in range(1, DIST): group(c)
    ext = 0
    win = 0
    allow = lambda c: sum(gsize[c+1:c+DIST])
    for c in range(8):
        a(f"s_waitcnt vmcnt({allow(c) + (ext if c == 0 else 0)}) lgkmcnt(0)")
        fine(a)
        a("s_barrier")
        fine(a)
        group(c + DIST)
        fine(a)
        slot = c % 5
        w = slot // 2
        if w != win:
            for ks in range(4): a(f"v_add_u32 v{14+ks}, {((w - win) * 65536) & 0xffffffff}, v{14+ks}")
            win = w
        for ks in range(4):
            a(f"ds_read_b128 {vr(XF + 16*c + 4*ks, 4)}, v{14+ks} offset:{(slot % 2) * 32768}")
    a(f"s_waitcnt vmcnt({allow(8)}) lgkmcnt(0)")
    fine(a)
    a("s_barrier")
    fine(a)
    for g in range(8 + DIST, 11): group(g)
    fine(a)
    stamp(a, 0, 1, v=106)
    def rd(n):
        x, ks = n // 32, n % 32
        reg, off = (18, x * 32768) if x < 2 else (19, 0)
        f = WFR + 4 * (n % 4)
        a(f"ds_read_b64_tr_b16 {vr(f,2)}, v{reg} offset:{off + ks*1024}")
        a(f"ds_read_b64_tr_b16 {vr(f+2,2)}, v{reg} offset:{off + ks*1024 + 256}")
    def epi(x):
        acc = ACC + 16*x
        L = []
        if x == 0:
            L += [f"v_mul_f32 v{acc+p}, v{acc+p}, v104" for p in range(16)]
        t = T + 8*(x % 2)
        L += [f"v_cvt_pk_bf16_f32 v{t+p}, v{acc+2*p}, v{acc+2*p+1}" for p in range(8)]
        fl = OPT["st"]
        if x == 0:
            L += [f"buffer_store_dwordx4 {vr(t,4)}, v100, s[{WS}:{WS+3}], s65 offen {fl}",
                  f"buffer_store_dwordx4 {vr(t+4,4)}, v100, s[{WS}:{WS+3}], s66 offen {fl}"]
        elif x == 1:
            L += [f"buffer_store_dwordx4 {vr(t,4)}, v101, s[{WS}:{WS+3}], s67 offen {fl}",
                  f"buffer_store_dwordx4 {vr(t+4,4)}, v101, s[{WS}:{WS+3}], s68 offen {fl}"]
        else:
            L += [f"buffer_store_dwordx4 {vr(t,4)}, v102, s[{WS}:{WS+3}], s67 offen offset:1024 {fl}",
                  f"buffer_store_dwordx4 {vr(t+4,4)}, v102, s[{WS}:{WS+3}], s67 offen offset:1536 {fl}"]
        return L
    for n in range(3): rd(n)
    pend = []
    for n in range(96):
        x, ks = n // 32, n % 32
        if n + 3 == 32:
            fine(a)
            a("s_waitcnt vmcnt(0)")
            fine(a)
            a("s_barrier")
            fine(a)
            if OPT.get("pfsp", 0):
                srd(a, MISC, 14, 2048*4096)
                a("s_lshl_b32 s59, s52, 5")
                a("s_add_u32 s59, s59, s53")
                a("s_lshl_b32 s59, s59, 2")
                a("s_add_u32 s59, s59, s57")
                a("s_lshl_b32 s59, s59, 13")
                a("s_add_u32 m0, s60, 65536")
                for g in range(2):
                    if g: a("s_add_u32 s59, s59, 4096")
                    else: a("s_nop 0")
                    for i in range(4):
                        a(f"buffer_load_dwordx4 v100, s[{MISC}:{MISC+3}], s59 offen offset:{i*1024} lds")
        if n + 3 < 96:
            rd(n + 3)
            a("s_waitcnt lgkmcnt(6)")
        else:
            a(f"s_waitcnt lgkmcnt({2*(95-n)})")
        f = WFR + 4*(n % 4); xf = XF + 4*ks; acc = ACC + 16*x
        c = "0" if ks == 0 else None
        if x < 2: mfma(a, acc, f, xf, c)
        else: mfma(a, acc, xf, f, c)
        if ks == 31 or (ks == 0 and x == 1): fine(a)
        if ks == 3 and x > 0: pend = epi(x - 1)
        for _ in range(2):
            if pend: a(pend.pop(0))
    a("s_nop 7"); a("s_nop 3")
    for l in epi(2): a(l)
    stamp(a, 0, 2, v=106)
    fine(a); fine_dump(a, 0)
    if light:
        a("s_cmp_lg_u32 s55, 14")
        a("s_cbranch_scc1 L1_end")
        srd(a, MISC, 20, 1024)
        a("v_lshrrev_b32 v1, 5, v0")
        a("v_lshlrev_b32 v1, 4, v1")
        GA = 36
        for b in range(4):
            for k in range(8):
                if k % 4 == 0:
                    a(f"s_add_u32 s59, s70, {b*2 + k//4}")
                    a("s_and_b32 s59, s59, 7")
                    a("s_lshl_b32 s59, s59, 7")
                a(f"buffer_load_dwordx4 {vr(GA+4*k,4)}, v1, s[{MISC}:{MISC+3}], s59 offen offset:{(k%4)*32}")
            for k in range(8):
                a(f"s_waitcnt vmcnt({7-k})")
                mfma(a, 68, GA+4*k, XF + 4*(b*8+k), "0" if b+k == 0 else None)
        a("s_nop 7"); a("s_nop 3")
        a(f"v_mul_f32 v1, {f32(-LOG2E)}, v68")
        a("v_exp_f32 v1, v1")
        a("v_and_b32 v2, 31, v0")
        a("v_add_f32 v1, 1.0, v1")
        a("v_rcp_f32 v1, v1")
        a("v_lshlrev_b32 v2, 2, v2")
        a("s_lshl_b32 s59, s58, 7")
        a(f"s_add_u32 s59, s59, {GG}")
        a(f"buffer_store_dword v1, v2, s[{WS}:{WS+3}], s59 offen")
    a("s_endpgm")

def p1_z(a):
    X, WQ, WI, WS, DBG, MISC = 28, 32, 36, 40, 44, 48
    XFR, WFR, ACC, T = 8, 16, 48, 112
    C1, C2, ONE, SUM, SQ = 160, 162, 164, 166, 168
    if OPT.get("pfq", 0):
        a("v_lshrrev_b32 v1, 2, v0")
        a("v_mul_u32_u24 v1, 3072, v1")
        a("v_and_b32 v2, 3, v0")
        a("v_lshl_add_u32 v1, v2, 4, v1")
        a("s_and_b32 s59, s53, 7")
        a("s_lshl_b32 s59, s59, 2")
        a("s_add_u32 s59, s59, s57")
        a(f"s_mul_i32 s59, s59, {16*3072}")
        a("s_lshl_b32 s61, s55, 6")
        a("s_add_u32 s59, s59, s61")
        a("s_waitcnt lgkmcnt(0)")
        srd(a, WQ, 6, 512*3072)
        a("v_mov_b32 v199, v1")
        a("s_mov_b32 s75, s59")
    swz_read_addrs(a, 2, 60)
    a("v_lshrrev_b32 v1, 5, v0")
    a("v_lshlrev_b32 v6, 11, v1")
    a("v_bfe_u32 v1, v0, 2, 2")
    a("v_lshl_add_u32 v6, v1, 7, v6")
    a("v_bfe_u32 v1, v0, 3, 1")
    a("v_lshl_add_u32 v6, v1, 6, v6")
    a("v_bfe_u32 v1, v0, 4, 1")
    a("v_lshl_add_u32 v6, v1, 5, v6")
    a("v_and_b32 v1, 3, v0")
    a("v_lshl_add_u32 v6, v1, 3, v6")
    a("v_add_u32 v6, 16384, v6")
    a("v_xor_b32 v7, 64, v6")
    for r, v in ((C1, GC1), (C2, GC2), (ONE, 1.0), (SUM, 0.0), (SQ, 0.0)):
        a(f"v_mov_b32 v{r}, {f32(v)}"); a(f"v_mov_b32 v{r+1}, {f32(v)}")
    a("v_lshlrev_b32 v170, 4, v0")
    a("v_and_b32 v1, 31, v0")
    a("v_lshlrev_b32 v171, 3, v1")
    a("v_lshrrev_b32 v172, 5, v0")
    a("v_mul_u32_u24 v172, 7168, v172")
    a("v_add_u32 v172, v172, v171")
    a("v_lshlrev_b32 v173, 6, v1")
    a("v_lshrrev_b32 v1, 5, v0")
    a("v_lshl_add_u32 v173, v1, 3, v173")
    a("s_add_u32 s59, s60, 32768")
    a("v_add_u32 v173, s59, v173")
    a("v_lshlrev_b32 v174, 9, v1")
    a("v_bfe_u32 v1, v0, 2, 2")
    a("v_lshl_add_u32 v174, v1, 6, v174")
    a("v_bfe_u32 v1, v0, 4, 1")
    a("v_lshl_add_u32 v174, v1, 5, v174")
    a("v_and_b32 v1, 3, v0")
    a("v_lshl_add_u32 v174, v1, 3, v174")
    a("v_add_u32 v174, s59, v174")
    a("v_mov_b32 v175, 0")
    a("s_mul_i32 s61, s54, 14336")
    a("s_lshl_b32 s59, s57, 8")
    a("s_add_u32 s61, s61, s59")
    a(f"s_add_u32 s61, s61, {STATS}")
    a("s_add_u32 s69, s61, 4096")
    a("s_lshl_b32 s59, s55, 10")
    a("s_add_u32 s62, s61, s59")
    a("s_mul_i32 s63, s58, 28")
    a("s_lshl_b32 s59, s55, 1")
    a("s_add_u32 s63, s63, s59")
    a("s_lshl_b32 s63, s63, 11")
    a(f"s_add_u32 s63, s63, {Z1F}")
    a("s_lshl_b32 s64, s55, 18")
    a("s_lshl_b32 s59, s58, 11")
    a("s_add_u32 s64, s64, s59")
    a(f"s_add_u32 s64, s64, {Z2F}")
    a("s_add_u32 s65, s64, 131072")
    a("s_lshl_b32 s66, s54, 2")
    a("s_waitcnt lgkmcnt(0)")
    srd(a, WS, 26, WS_SIZE)
    srd(a, DBG, 24, 256)
    stamp(a, 0, 0)
    fine_init(a, 250); fine(a)
    tiles = [(1, 0), (1, 1), (0, 0), (0, 1)]
    state = dict(win=0)
    def reads(n):
        c, ks = n >> 2, n & 3
        slot = c % 5
        L = []
        w = slot // 2
        if w != state["win"]:
            L += [f"v_add_u32 v{r}, {((w - state['win']) * 65536) & 0xffffffff}, v{r}" for r in range(2, 8)]
            state["win"] = w
        pre = L
        so = (slot % 2) * 32768
        R = [f"ds_read_b128 {vr(XFR + 4*(n&1), 4)}, v{2+ks} offset:{so}"]
        for ti, (slab, tile) in enumerate(tiles):
            f = WFR + 16*(n&1) + 4*ti
            for v in range(2):
                R.append(f"ds_read_b64_tr_b16 {vr(f+2*v,2)}, v{6+tile} offset:{so + ks*4096 + slab*1024 + v*512}")
        return pre, R
    a("s_barrier")
    pre, R = reads(0)
    for l in pre + R: a(l)
    if OPT.get("pfq", 0):
        for x in range(3):
            a(f"buffer_load_dwordx4 {vr(200+4*x,4)}, v199, s[{WQ}:{WQ+3}], s75 offen offset:{x*1024}")
    for n in range(32):
        ks = n & 3
        M = lambda ti: mfma(a, ACC + 16*ti, WFR + 16*(n&1) + 4*ti, XFR + 4*(n&1), "0" if n == 0 else None)
        pre, R = reads(n + 1) if n < 31 else ([], [])
        a("s_waitcnt lgkmcnt(6)")
        M(0)
        if ks == 3:
            fine(a)
            a("s_barrier")
            fine(a)
        if n == 31:
            for t_ in (1, 2, 3):
                a(f"s_waitcnt lgkmcnt({6 - 2*t_})"); M(t_)
        else:
            for l in pre + R[0:3]: a(l)
            a("s_waitcnt lgkmcnt(7)"); M(1)
            for l in R[3:6]: a(l)
            a("s_waitcnt lgkmcnt(8)"); M(2)
            for l in R[6:9]: a(l)
            a("s_waitcnt lgkmcnt(9)"); M(3)
    stamp(a, 0, 1)
    a(f"buffer_load_dword v176, v175, s[{DBG}:{DBG+3}], s66 offen sc1")
    a("s_nop 7")
    for ti in range(2):
        x = ACC + 16*ti
        gelu(a, x, T, C1, C2, ONE)
        for p in range(16):
            a(f"v_add_f32 v{SUM+(p&1)}, v{SUM+(p&1)}, v{x+p}")
            a(f"v_fmac_f32 v{SQ+(p&1)}, v{x+p}, v{x+p}")
        fine(a)
        if ti == OPT.get("zbar", 0): a("s_barrier"); fine(a)
    a(f"v_add_f32 v{SUM}, v{SUM}, v{SUM+1}")
    a(f"v_add_f32 v{SUM+1}, v{SQ}, v{SQ+1}")
    halfsum(a, SUM, T)
    halfsum(a, SUM+1, T+1)
    a(f"v_and_b32 v{SUM+1}, 0x7fffffff, v{SUM+1}")
    a(f"s_mov_b32 s67, {SPIN}")
    a.label("L1_clr")
    a("s_waitcnt vmcnt(0)")
    a("v_readfirstlane_b32 s59, v176")
    a("s_sub_u32 s67, s67, 1")
    a("s_cbranch_scc1 L1_clrd")
    a("s_cmp_lg_u32 s59, 0")
    a("s_cbranch_scc1 L1_clrd")
    a(f"buffer_load_dword v176, v175, s[{DBG}:{DBG+3}], s66 offen sc1")
    a("s_branch L1_clr")
    a.label("L1_clrd")
    fine(a)
    a(f"buffer_store_dwordx2 {vr(SUM,2)}, v171, s[{WS}:{WS+3}], s62 offen sc1")
    for ti in range(2, 4):
        x = ACC + 16*ti
        gelu(a, x, T, C1, C2, ONE)
        o = 128 + 8*(ti - 2)
        for p in range(8): a(f"v_cvt_pk_bf16_f32 v{o+p}, v{x+2*p}, v{x+2*p+1}")
        store4(a, o, 170, WS, "s63", (ti-2)*2048)
        store4(a, o+4, 170, WS, "s63", (ti-2)*2048 + 1024)
        fine(a)
    stamp(a, 0, 2)
    S = 144
    a(f"s_mov_b32 s67, {SPIN}")
    a.label("L1_poll")
    for i in range(7):
        a(f"buffer_load_dwordx2 {vr(S+2*i,2)}, v172, s[{WS}:{WS+3}], {'s61' if i < 4 else 's69'} offen offset:{(i%4)*1024} sc1")
    a("s_waitcnt vmcnt(0)")
    a(f"v_or3_b32 v1, v{S+1}, v{S+3}, v{S+5}")
    a(f"v_or3_b32 v1, v1, v{S+7}, v{S+9}")
    a(f"v_or3_b32 v1, v1, v{S+11}, v{S+13}")
    a("v_cmp_gt_i32 vcc, 0, v1")
    a("s_sub_u32 s67, s67, 1")
    a("s_cbranch_scc1 L1_polld")
    a("s_cmp_lg_u64 vcc, 0")
    a("s_cbranch_scc1 L1_poll")
    a.label("L1_polld")
    fine(a)
    for i in range(1, 7): a(f"v_pk_add_f32 {vr(S,2)}, {vr(S,2)}, {vr(S+2*i,2)}")
    halfsum(a, S, T)
    halfsum(a, S+1, T+1)
    a(f"v_mul_f32 v{S}, {f32(1.0/896)}, v{S}")
    a(f"v_mul_f32 v{S+1}, {f32(1.0/896)}, v{S+1}")
    a(f"v_fma_f32 v{S+1}, -v{S}, v{S}, v{S+1}")
    a(f"v_max_f32 v{S+1}, 0, v{S+1}")
    a(f"v_add_f32 v{S+1}, {f32(1e-5)}, v{S+1}")
    a(f"v_rsq_f32 v{S+2}, v{S+1}")
    a("s_nop 0")
    a(f"v_mov_b32 v{S+3}, v{S+2}")
    a(f"v_mul_f32 v{S+4}, -v{S}, v{S+2}")
    a(f"v_mov_b32 v{S+5}, v{S+4}")
    for ti in range(2):
        x = ACC + 16*ti
        for p in range(0, 16, 2): a(f"v_pk_fma_f32 {vr(x+p,2)}, {vr(x+p,2)}, {vr(S+2,2)}, {vr(S+4,2)}")
        o = T + 8*ti
        for p in range(8): a(f"v_cvt_pk_bf16_f32 v{o+p}, v{x+2*p}, v{x+2*p+1}")
        for i in range(4): a(f"ds_write_b64 v173, {vr(o+2*i,2)} offset:{ti*2048 + i*16}")
    a("s_waitcnt lgkmcnt(0)")
    for ti in range(2):
        for k in range(2):
            for v in range(2):
                a(f"ds_read_b64_tr_b16 {vr(16 + ti*8 + k*4 + v*2, 2)}, v174 offset:{ti*2048 + k*1024 + v*256}")
    for ti in range(2):
        for k in range(2):
            a(f"s_waitcnt lgkmcnt({6 - 2*(ti*2+k)})")
            store4(a, 16 + ti*8 + k*4, 170, WS, "s64" if ti == 0 else "s65", k*1024)
    stamp(a, 0, 3)
    fine(a); fine_dump(a, 0)
    a("s_endpgm")

def p1_aux(a):
    X, WQ, WI, WS, DBG, MISC = 28, 32, 36, 40, 44, 48
    a("v_lshlrev_b32 v2, 4, v0")
    a("s_waitcnt lgkmcnt(0)")
    srd(a, WS, 26, WS_SIZE)
    srd(a, DBG, 24, 256)
    a("s_cmp_lg_u32 s55, 15")
    a("s_cbranch_scc1 L1_noclr")
    a("s_cmp_lg_u32 s57, 0")
    a("s_cbranch_scc1 L1_noclr")
    for r in range(4, 8): a(f"v_mov_b32 v{r}, -1")
    a("s_mul_i32 s61, s54, 14336")
    a(f"s_add_u32 s61, s61, {STATS}")
    for i in range(14):
        a(f"buffer_store_dwordx4 v[4:7], v2, s[{WS}:{WS+3}], s61 offen offset:{(i%4)*1024} sc1")
        if i % 4 == 3: a("s_add_u32 s61, s61, 4096")
    a("v_mov_b32 v8, 0")
    a("v_mov_b32 v9, 1")
    a("s_lshl_b32 s66, s54, 2")
    a("s_waitcnt vmcnt(0)")
    a(f"buffer_store_dword v9, v8, s[{DBG}:{DBG+3}], s66 offen sc1")
    a.label("L1_noclr")
    a("s_sub_u32 s59, s55, 14")
    a("s_lshl_b32 s59, s59, 4")
    a("s_add_u32 s59, s59, s54")
    a("s_lshl_b32 s59, s59, 2")
    a("s_add_u32 s61, s59, s57")
    a("s_cmp_ge_u32 s61, 88")
    a("s_cbranch_scc1 L1_end")
    a("s_lshl_b32 s62, s61, 14")
    srd(a, MISC, 8, 512*1024)
    a("s_cmp_lt_u32 s61, 32")
    a("s_cbranch_scc1 L1_wo")
    srd(a, MISC, 18, 896*1024)
    a(f"s_sub_u32 s62, s62, {32*16384}")
    a.label("L1_wo")
    a("s_lshl_b32 s63, s57, 15")
    a("s_add_u32 s63, s63, 16384")
    for g in range(4):
        a(f"s_add_u32 m0, s63, {g*4096}")
        a("s_nop 0")
        for i in range(4):
            a(f"buffer_load_dwordx4 v2, s[{MISC}:{MISC+3}], s62 offen offset:{i*1024} lds")
        a("s_add_u32 s62, s62, 4096")
    a("v_lshrrev_b32 v1, 5, v0")
    a("v_lshlrev_b32 v3, 12, v1")
    a("v_bfe_u32 v1, v0, 2, 2")
    a("v_lshl_add_u32 v3, v1, 10, v3")
    a("v_bfe_u32 v1, v0, 4, 1")
    a("v_lshl_add_u32 v3, v1, 5, v3")
    a("v_and_b32 v1, 3, v0")
    a("v_lshl_add_u32 v3, v1, 3, v3")
    a("v_add_u32 v3, s63, v3")
    a("s_lshl_b32 s62, s61, 10")
    a(f"s_add_u32 s62, s62, {WF}")
    a("s_waitcnt vmcnt(0)")
    for nt in range(16):
        for v in range(2):
            a(f"ds_read_b64_tr_b16 {vr(16 + nt*4 + v*2, 2)}, v3 offset:{v*8192 + nt*64}")
    a("s_waitcnt lgkmcnt(0)")
    for nt in range(16):
        store4(a, 16 + nt*4, 2, WS, "s62", 0)
        a(f"s_add_u32 s62, s62, {88*1024}")

def gen_p2(a):
    prologue(a, "L2_end")
    a("s_cmp_ge_u32 s56, 4")
    a("s_cbranch_scc1 L2_sp")
    p2_att(a)
    a.label("L2_sp")
    p2_sp(a)
    a.label("L2_end")
    a("s_endpgm")

def p2_att(a):
    WS = 40
    Q, KS, VS, S, NM, O, T = 8, 16, 32, 64, 96, 128, 160
    a("s_lshl_b32 s54, s52, 2")
    a("s_lshr_b32 s59, s53, 3")
    a("s_add_u32 s54, s54, s59")
    a("s_and_b32 s55, s53, 7")
    a("s_lshl_b32 s55, s55, 3")
    a("s_lshl_b32 s59, s57, 1")
    a("s_add_u32 s55, s55, s59")
    a("s_lshl_b32 s60, s54, 6")
    a("s_add_u32 s60, s60, s55")
    a("s_lshl_b32 s60, s60, 10")
    if QF: a(f"s_add_u32 s60, s60, {QF}")
    a("s_lshl_b32 s61, s54, 17")
    a(f"s_add_u32 s61, s61, {KVF}")
    a("s_lshl_b32 s62, s57, 11")
    a("s_add_u32 s63, s61, s62")
    a("s_lshl_b32 s64, s55, 7")
    a(f"s_add_u32 s64, s64, {GG}")
    a("v_lshlrev_b32 v4, 4, v0")
    a("v_and_b32 v5, 31, v0")
    a("v_lshlrev_b32 v5, 2, v5")
    a("s_waitcnt lgkmcnt(0)")
    srd(a, WS, 26, WS_SIZE)
    a(f"buffer_load_dwordx4 {vr(Q,4)}, v4, s[{WS}:{WS+3}], s60 offen")
    a(f"buffer_load_dwordx4 {vr(Q+4,4)}, v4, s[{WS}:{WS+3}], s60 offen offset:1024")
    a(f"buffer_load_dwordx4 {vr(KS,4)}, v4, s[{WS}:{WS+3}], s61 offen")
    a(f"buffer_load_dword v6, v5, s[{WS}:{WS+3}], s64 offen")
    a(f"buffer_load_dword v7, v5, s[{WS}:{WS+3}], s64 offen offset:128")
    stamp(a, 1, 0)
    a("v_mov_b32 v1, 0")
    a("ds_write_b32 v5, v1")
    a("v_mov_b32 v3, 0xdddd")
    a("v_mov_b32 v1, v4")
    a("v_and_b32 v2, 15, v0")
    a(f"v_lshrrev_b32 v{T}, 5, v0")
    a(f"v_lshl_or_b32 v2, v{T}, 4, v2")
    a("v_lshlrev_b32 v2, 4, v2")
    a("v_add_u32 v2, 1024, v2")
    a("v_add_u32 v176, 0x10000, v1")
    a("v_add_u32 v177, 0x10000, v2")
    a("v_mov_b32 v178, 1")
    a("s_lshl_b32 s59, s57, 2")
    a("v_mov_b32 v179, s59")
    a(f"v_and_b32 v{T}, 27, v0")
    a(f"v_cmp_eq_u32 vcc, 16, v{T}")
    a(f"v_mov_b32 v{T}, 0x3f803f80")
    a("s_nop 0")
    a(f"v_cndmask_b32 v{VS}, 0, v{T}, vcc")
    for r in range(VS + 1, VS + 32): a(f"v_mov_b32 v{r}, v{VS}")
    for r in range(O, O + 32): a(f"v_mov_b32 v{r}, 0")
    a("s_mov_b32 s66, 0xffff")
    a("s_mov_b32 s67, 0xffff")
    a("s_mul_i32 s65, s55, 88")
    a("s_add_u32 s65, s65, s54")
    a("s_lshl_b32 s65, s65, 10")
    a(f"s_add_u32 s65, s65, {AF}")
    a(f"s_add_u32 s68, s65, {88*1024}")
    a("s_waitcnt vmcnt(0)")
    mfma(a, S, KS, Q, "0")
    mfma(a, S + 16, KS, Q + 4, "0")
    a("s_nop 7"); a("s_nop 2")
    def rowmax(s, d):
        a(f"v_max3_f32 v{d}, v{s}, v{s+1}, v{s+2}")
        for p in range(3, 15, 2): a(f"v_max3_f32 v{d}, v{d}, v{s+p}, v{s+p+1}")
        a(f"v_max_f32 v{d}, v{d}, v{s+15}")
    for q in range(2):
        rowmax(S + 16*q, T + q)
        halfsum(a, T + q, T + 2, "v_max_f32")
        for r in range(16): a(f"v_sub_f32 v{NM + 16*q + r}, 0, v{T+q}")
    a("s_waitcnt lgkmcnt(0)")
    a("s_barrier")
    def kreg(kt): return KS + 4*(kt & 3)
    def vreg(kt): return VS + 8*(kt & 3)
    def rd(kts, skipk=()):
        L = []
        for kt in kts:
            if kt < 64 and kt not in skipk:
                L.append(f"ds_read_b128 {vr(kreg(kt),4)}, v{1 if kt < 32 else 176} offset:{(kt % 32)*2048}")
        L.append("s_mov_b64 exec, s[66:67]")
        for kt in kts:
            if kt < 64:
                for s_ in range(2):
                    L.append(f"ds_read_b128 {vr(vreg(kt)+4*s_,4)}, v{2 if kt < 32 else 177} offset:{(kt % 32)*2048 + s_*512}")
        L.append("s_mov_b64 exec, -1")
        return L
    for l in rd([0, 1], skipk=(0,)): a(l)
    mfma(a, S, KS, Q, NM)
    a("s_waitcnt lgkmcnt(0)")
    a("s_nop 7"); a("s_nop 2")
    stamp(a, 1, 1)
    pa, pb, pc = OPT.get("pos", (2, 5, 12))
    for k in range(128):
        q, kt = k & 1, k >> 1
        sA, sB = S + 16*(k & 1), S + 16*((k + 1) & 1)
        ev = {pa: [], pb: [], pc: []}
        if k > 0:
            qp, ktp = (k - 1) & 1, (k - 1) >> 1
            ev[pa].append(f"v_smfmac_f32_32x32x32_bf16 {vr(O+16*qp,16)}, {vr(vreg(ktp)+4,4)}, {vr(sB+8,8)}, v3")
        if k % 4 == 0 and kt + 2 < 64:
            if kt + 2 == 8:
                ev[pa] += ["s_barrier"]
            ev[pa] += rd([kt + 2, kt + 3])
        if k % 4 == 3 and k < 127:
            ev[pa].append("s_waitcnt lgkmcnt(0)")
            if kt == 41: ev[pa].append("ds_write_b32 v179, v178")
        if k < 127:
            qn, ktn = (k + 1) & 1, (k + 1) >> 1
            ev[pb].append(f"v_mfma_f32_32x32x16_bf16 {vr(sB,16)}, {vr(kreg(ktn),4)}, {vr(Q+4*qn,4)}, {vr(NM+16*qn,16)}")
        ev[pc].append(f"v_smfmac_f32_32x32x32_bf16 {vr(O+16*q,16)}, {vr(vreg(kt),4)}, {vr(sA,8)}, v3")
        for i in range(16):
            for l in ev.get(i, []): a(l)
            a(f"v_exp_f32 v{sA+i}, v{sA+i}")
    a("s_nop 1")
    a(f"v_smfmac_f32_32x32x32_bf16 {vr(O+16,16)}, {vr(vreg(63)+4,4)}, {vr(S+16+8,8)}, v3")
    a(f"s_mov_b32 s70, {f32(2.0**64)}")
    a(f"s_mov_b32 s71, {f32(2.0**-64)}")
    a("s_nop 7"); a("s_nop 1")
    a(f"v_max_f32 v{T}, v{O+8}, v{O+24}")
    a(f"v_min_f32 v{T+1}, v{O+8}, v{O+24}")
    a(f"v_add_f32 v{T+2}, v{O+8}, v{O+24}")
    a(f"v_cmp_gt_f32 s[72:73], s70, v{T}")
    a(f"v_cmp_lt_f32 s[74:75], s71, v{T+1}")
    a(f"v_cmp_o_f32 vcc, v{T+2}, v{T+2}")
    a("s_nop 1")
    a("s_and_b64 s[72:73], s[72:73], s[74:75]")
    a("s_and_b64 s[72:73], s[72:73], vcc")
    a("s_cmp_eq_u64 s[72:73], -1")
    a("s_cbranch_scc0 L2_slow")
    a.label("L2_fin")
    stamp(a, 1, 2)
    for q in range(2):
        o = O + 16*q
        a(f"v_rcp_f32 v{T}, v{o+8}")
        a("s_nop 0")
        a(f"v_mul_f32 v{T}, v{T}, v{6+q}")
        for r in range(8): a(f"v_mul_f32 v{o+r}, v{o+r}, v{T}")
        for p in range(4): a(f"v_cvt_pk_bf16_f32 v{T+4+4*q+p}, v{o+2*p}, v{o+2*p+1}")
        store4(a, T + 4 + 4*q, 4, WS, "s65" if q == 0 else "s68")
    stamp(a, 1, 3)
    a("s_endpgm")
    a.label("L2_slow")
    a(f"v_mov_b32 v{T}, 0xff800000")
    a(f"v_mov_b32 v{T+1}, 0xff800000")
    a("s_mov_b32 s63, s61")
    a("s_mov_b32 s69, 64")
    a.label("L2_s1")
    a(f"buffer_load_dwordx4 {vr(KS,4)}, v4, s[{WS}:{WS+3}], s63 offen")
    a("s_waitcnt vmcnt(0)")
    mfma(a, S, KS, Q, "0")
    mfma(a, S + 16, KS, Q + 4, "0")
    a("s_nop 7"); a("s_nop 3")
    for q in range(2):
        for p in range(0, 16, 2): a(f"v_max3_f32 v{T+q}, v{T+q}, v{S+16*q+p}, v{S+16*q+p+1}")
    a("s_add_u32 s63, s63, 2048")
    a("s_sub_u32 s69, s69, 1")
    a("s_cmp_lg_u32 s69, 0")
    a("s_cbranch_scc1 L2_s1")
    for q in range(2): halfsum(a, T + q, T + 2, "v_max_f32")
    for r in range(O, O + 32): a(f"v_mov_b32 v{r}, 0")
    a("s_mov_b32 s63, s61")
    a("s_mov_b32 s69, 64")
    a.label("L2_s2")
    a(f"buffer_load_dwordx4 {vr(KS,4)}, v4, s[{WS}:{WS+3}], s63 offen")
    a("s_mov_b64 exec, s[66:67]")
    a(f"buffer_load_dwordx4 {vr(VS,4)}, v2, s[{WS}:{WS+3}], s63 offen")
    a(f"buffer_load_dwordx4 {vr(VS+4,4)}, v2, s[{WS}:{WS+3}], s63 offen offset:512")
    a("s_mov_b64 exec, -1")
    a("s_waitcnt vmcnt(0)")
    mfma(a, S, KS, Q, "0")
    mfma(a, S + 16, KS, Q + 4, "0")
    a("s_nop 7"); a("s_nop 3")
    for q in range(2):
        for p in range(16): a(f"v_sub_f32 v{S+16*q+p}, v{S+16*q+p}, v{T+q}")
        for p in range(16): a(f"v_exp_f32 v{S+16*q+p}, v{S+16*q+p}")
    a("s_nop 1")
    for q in range(2):
        for s_ in range(2):
            a(f"v_smfmac_f32_32x32x32_bf16 {vr(O+16*q,16)}, {vr(VS+4*s_,4)}, {vr(S+16*q+8*s_,8)}, v3")
    a("s_add_u32 s63, s63, 2048")
    a("s_sub_u32 s69, s69, 1")
    a("s_cmp_lg_u32 s69, 0")
    a("s_cbranch_scc1 L2_s2")
    a("s_nop 7"); a("s_nop 3")
    a("s_branch L2_fin")

def p2_sp(a):
    WS, WSP, BSP = 40, 28, 32
    WFR, ZS, ACC, T = 16, 48, 112, 224
    a("s_lshl_b32 s54, s52, 2")
    a("s_lshr_b32 s59, s53, 3")
    a("s_add_u32 s54, s54, s59")
    a("s_lshl_b32 s92, s54, 17")
    a("s_lshl_b32 s93, s57, 11")
    a("s_add_u32 s92, s92, s93")
    a(f"s_add_u32 s92, s92, {KVF}")
    a("v_lshlrev_b32 v11, 4, v0")
    a("s_mov_b32 m0, s93")
    a("s_waitcnt lgkmcnt(0)")
    srd(a, WS, 26, WS_SIZE)
    a("s_cmp_eq_u32 s57, 0")
    a("s_cbranch_scc1 L2_skipk0")
    a(f"buffer_load_dwordx4 v11, s[{WS}:{WS+3}], s92 offen lds")
    a.label("L2_skipk0")
    a(f"buffer_load_dwordx4 v11, s[{WS}:{WS+3}], s92 offen offset:1024 lds")
    def kvdma(n):
        a(f"s_add_u32 m0, s93, {n*8192}")
        a("s_add_u32 s92, s92, 8192")
        a(f"buffer_load_dwordx4 v11, s[{WS}:{WS+3}], s92 offen lds")
        a(f"buffer_load_dwordx4 v11, s[{WS}:{WS+3}], s92 offen offset:1024 lds")
    KV1 = OPT.get("kv1", 4)
    for n in range(1, KV1): kvdma(n)
    a("s_lshr_b32 s54, s52, 1")
    a("s_lshl_b32 s54, s54, 3")
    a("s_and_b32 s59, s53, 7")
    a("s_add_u32 s54, s54, s59")
    a("s_and_b32 s55, s52, 1")
    a("s_lshl_b32 s55, s55, 2")
    a("s_lshr_b32 s59, s53, 3")
    a("s_add_u32 s55, s55, s59")
    a("s_and_b32 s58, s55, 1")
    a("s_lshl_b32 s60, s54, 1")
    a("s_add_u32 s60, s60, s58")
    a("s_xor_b32 s61, s60, 1")
    a("s_lshr_b32 s59, s55, 1")
    a("s_mul_i32 s59, s59, 7")
    a("s_add_u32 s65, s59, 3")
    a("s_lshl_b32 s62, s58, 2")
    a("s_add_u32 s62, s62, s59")
    a("s_add_u32 s63, s62, 1")
    a("s_add_u32 s64, s62, 2")
    a("s_lshl_b32 s59, s57, 15")
    a(f"s_add_u32 s59, s59, {Z2F}")
    for i in range(4):
        a(f"s_lshl_b32 s{66+i}, s{62+i}, 17")
        a(f"s_add_u32 s{66+i}, s{66+i}, s59")
    a("s_lshl_b32 s59, s57, 10")
    for i in range(2):
        a(f"s_lshl_b32 s{70+i}, s{60+i}, 17")
        a(f"s_add_u32 s{70+i}, s{70+i}, s59")
    a("s_lshl_b32 s72, s57, 13")
    a("s_add_u32 s72, s72, 0x20000")
    a("s_add_u32 s73, s72, 4096")
    swz_row_voffs(a, 2, stride_shift=12)
    a("v_lshlrev_b32 v1, 4, v0")
    srd(a, WSP, 14, 2048*4096)
    def wdma():
        for t in range(2):
            a(f"s_mov_b32 m0, s{72+t}")
            a("s_nop 0")
            for q in range(4):
                a(f"buffer_load_dwordx4 v{2+q}, s[{WSP}:{WSP+3}], s{70+t} offen offset:{q*1024} lds")
            a(f"s_add_u32 s{70+t}, s{70+t}, 128")
    def zload(ks):
        for i in range(4):
            a(f"buffer_load_dwordx4 {vr(ZS + 16*ks + 4*i, 4)}, v1, s[{WS}:{WS+3}], s{66+i} offen offset:{ks*1024}")
        if ks == 3:
            for i in range(4): a(f"s_add_u32 s{66+i}, s{66+i}, 4096")
    swz_read_addrs(a, 6, 72, tmp=10)
    srd(a, BSP, 16, 4096)
    tiles = [(0, 0), (0, 1), (0, 2), (0, 3), (1, 0), (1, 1), (1, 2)]
    for n, (t, f) in enumerate(tiles):
        a(f"s_mul_i32 s59, s{60+t}, 28")
        a(f"s_add_u32 s59, s59, s{62+f}")
        a(f"s_lshl_b32 s59, s59, 11")
        a(f"s_add_u32 s{76+n}, s59, {Z1F}")
        a(f"s_mul_i32 s59, s{60+t}, 44")
        a(f"s_add_u32 s59, s59, s{62+f}")
        a(f"s_lshl_b32 s59, s59, 11")
        a(f"s_add_u32 s{84+n}, s59, {AF + 32*1024}")
    a(f"s_waitcnt vmcnt({2*(KV1-2)})")
    a("s_barrier")
    stamp(a, 1, 0)
    for n in range(KV1, 16): kvdma(n)
    wdma()
    zload(0)
    a("s_waitcnt vmcnt(12)")
    a("s_barrier")
    for ks in range(1, 4): zload(ks)
    for st in range(8):
        last = st == 7
        a("s_waitcnt vmcnt(16)")
        for t in range(2):
            for ks in range(4):
                a(f"ds_read_b128 {vr(WFR + 16*t + 4*ks, 4)}, v{6+ks} offset:{t*4096}")
        a("s_waitcnt lgkmcnt(0)")
        if not last: wdma()
        for ks in range(4):
            a(f"s_waitcnt vmcnt({(3-ks)*4 if last else 20})")
            for n, (t, f) in enumerate(tiles):
                mfma(a, ACC + 16*n, ZS + 16*ks + 4*f, WFR + 16*t + 4*ks, "0" if st + ks == 0 else None)
            if not last: zload(ks)
    stamp(a, 1, 1)
    a("s_setprio 3")
    a("v_and_b32 v14, 31, v0")
    a("v_lshlrev_b32 v15, 2, v14")
    a("v_lshlrev_b32 v14, 1, v14")
    for t in range(2):
        a(f"s_lshl_b32 s59, s{60+t}, 6")
        a(f"buffer_load_ushort v{10+t}, v14, s[{BSP}:{BSP+3}], s59 offen")
        a(f"s_lshl_b32 s59, s{60+t}, 7")
        a(f"s_add_u32 s59, s59, {GG}")
        a(f"buffer_load_dword v{12+t}, v15, s[{WS}:{WS+3}], s59 offen")
    a("v_mov_b32 v2, 0")
    a("v_add_u32 v3, 0x10000, v1")
    a("v_mov_b32 v4, 1")
    a("s_lshl_b32 s59, s57, 2")
    a("s_add_u32 s59, s59, 16")
    a("v_mov_b32 v5, s59")
    def poll(lbl, off):
        a(f"s_mov_b32 s74, {SPIN}")
        a.label(lbl)
        a(f"ds_read_b128 v[6:9], v2 offset:{off}")
        a("s_waitcnt lgkmcnt(0)")
        a("v_and_b32 v6, v6, v7")
        a("v_and_b32 v8, v8, v9")
        a("v_and_b32 v6, v6, v8")
        a("s_sub_u32 s74, s74, 1")
        a("v_readfirstlane_b32 s59, v6")
        a(f"s_cbranch_scc1 {lbl}d")
        a("s_cmp_lg_u32 s59, 0")
        a(f"s_cbranch_scc1 {lbl}d")
        a("s_sleep 2")
        a(f"s_branch {lbl}")
        a.label(lbl + "d")
    owner = [0,0,0,0,1,1,1,1,2,2,2,3,3,3]
    def slot(n, src):
        si = src if src < owner[n] else src - 1
        ad = 2048 + (n*3 + si)*2048
        return (1, ad) if ad + 1024 < 65536 else (3, ad - 65536)
    for w in range(4):
        if w < 3:
            a(f"s_cmp_lg_u32 s57, {w}")
            a(f"s_cbranch_scc1 L2_w{w+1}")
        mine = [n for n in range(14) if owner[n] == w]
        Z1R = 16
        for i, n in enumerate(mine):
            a(f"buffer_load_dwordx4 {vr(Z1R+4*i,4)}, v1, s[{WS}:{WS+3}], s{76 + (n>>1)} offen offset:{(n&1)*1024}")
        poll(f"L2_pa{w}", 0)
        for n in range(14):
            if owner[n] != w:
                r, ad = slot(n, w)
                a(f"ds_write_b128 v{r}, {vr(ACC+8*n,4)} offset:{ad}")
                a(f"ds_write_b128 v{r}, {vr(ACC+8*n+4,4)} offset:{ad+1024}")
        a("s_waitcnt lgkmcnt(0)")
        a("ds_write_b32 v5, v4")
        a("s_waitcnt vmcnt(0)")
        for t in range(2):
            a(f"v_sub_f32 v{32+4*t}, 1.0, v{12+t}")
            a(f"v_lshlrev_b32 v{10+t}, 16, v{10+t}")
            a(f"v_mul_f32 v{34+4*t}, v{10+t}, v{32+4*t}")
        poll(f"L2_pb{w}", 16)
        P = 48
        def rdp(i):
            n = mine[i]
            for si, src in enumerate([s_ for s_ in range(4) if s_ != w]):
                r, ad = slot(n, src)
                a(f"ds_read_b128 {vr(P + 24*(i&1) + 8*si, 4)}, v{r} offset:{ad}")
                a(f"ds_read_b128 {vr(P + 24*(i&1) + 8*si + 4, 4)}, v{r} offset:{ad+1024}")
        rdp(0)
        for i, n in enumerate(mine):
            if i + 1 < len(mine):
                rdp(i + 1); a("s_waitcnt lgkmcnt(6)")
            else:
                a("s_waitcnt lgkmcnt(0)")
            x = ACC + 8*n; p0 = P + 24*(i&1); t = tiles[n >> 1][0]
            for si in range(3):
                for p in range(8): a(f"v_add_f32 v{x+p}, v{x+p}, v{p0+8*si+p}")
            for p in range(8): a(f"v_fma_f32 v{x+p}, v{x+p}, v{32+4*t}, v{34+4*t}")
            for p in range(4):
                a(f"v_lshlrev_b32 v{T+2*p}, 16, v{Z1R+4*i+p}")
                a(f"v_and_b32 v{T+2*p+1}, 0xffff0000, v{Z1R+4*i+p}")
            for p in range(8): a(f"v_mul_f32 v{x+p}, v{x+p}, v{T+p}")
            o = T + 8 + 4*i
            for p in range(4): a(f"v_cvt_pk_bf16_f32 v{o+p}, v{x+2*p}, v{x+2*p+1}")
            store4(a, o, 1, WS, f"s{84 + (n>>1)}", (n&1)*1024)
        stamp(a, 1, 2)
        a("s_endpgm")
        if w < 3: a.label(f"L2_w{w+1}")

def gen_p3(a):
    WS, OUT = 40, 28
    R, ACC = 8, 184
    D = 11
    prologue(a, "L3_end")
    a("s_lshr_b32 s54, s52, 1")
    a("s_lshl_b32 s54, s54, 3")
    a("s_and_b32 s59, s53, 7")
    a("s_add_u32 s54, s54, s59")
    a("s_and_b32 s55, s52, 1")
    a("s_lshl_b32 s55, s55, 2")
    a("s_lshr_b32 s59, s53, 3")
    a("s_add_u32 s55, s55, s59")
    a("s_lshl_b32 s60, s54, 1")
    a("s_lshr_b32 s59, s57, 1")
    a("s_add_u32 s60, s60, s59")
    a("s_xor_b32 s61, s60, 1")
    a("s_lshl_b32 s62, s55, 1")
    a("s_and_b32 s59, s57, 1")
    a("s_add_u32 s62, s62, s59")
    a("s_xor_b32 s63, s62, 1")
    a("s_mul_i32 s59, s57, %d" % (22*1024))
    for i in range(4):
        a(f"s_mul_i32 s{64+i}, s{60+i}, {88*1024}")
        a(f"s_add_u32 s{64+i}, s{64+i}, s59")
        a(f"s_add_u32 s{64+i}, s{64+i}, {AF if i < 2 else WF}")
    a("v_lshlrev_b32 v1, 4, v0")
    a("s_waitcnt lgkmcnt(0)")
    srd(a, WS, 26, WS_SIZE)
    stamp(a, 2, 0)
    def load(ks):
        for i in range(4):
            a(f"buffer_load_dwordx4 {vr(R + 16*(ks % D) + 4*i, 4)}, v1, s[{WS}:{WS+3}], s{64+i} offen offset:{(ks%4)*1024}")
        if ks % 4 == 3:
            for i in range(4): a(f"s_add_u32 s{64+i}, s{64+i}, 4096")
    for ks in range(D): load(ks)
    srd(a, OUT, 22, 2048*1024)
    for lam in (1, 2, 3):
        a(f"s_xor_b32 s59, s57, {lam}")
        a(f"s_mul_i32 s59, s59, 12288")
        a(f"s_add_u32 s59, s59, {(lam-1)*4096}")
        a(f"v_add_u32 v{1+lam}, s59, v1")
    a("s_mul_i32 s59, s57, 12288")
    a("v_add_u32 v5, s59, v1")
    a("v_and_b32 v6, 31, v0")
    a("v_lshlrev_b32 v6, 10, v6")
    a("v_lshrrev_b32 v7, 5, v0")
    a("v_lshl_add_u32 v6, v7, 4, v6")
    a("s_lshl_b32 s68, s60, 15")
    a("s_lshl_b32 s59, s62, 6")
    a("s_add_u32 s68, s68, s59")
    for ks in range(22):
        rem = min(21 - ks, D - 1)
        a(f"s_waitcnt vmcnt({4*rem})")
        r = R + 16*(ks % D)
        for lam in (1, 2, 3, 0):
            mfma(a, ACC + 16*lam, r + 8 + 4*(lam & 1), r + 4*(lam >> 1), "0" if ks == 0 else None)
        if ks + D < 22: load(ks + D)
    stamp(a, 2, 1)
    a("s_nop 7"); a("s_nop 1")
    for lam in (1, 2, 3):
        for i in range(4):
            a(f"ds_write_b128 v{1+lam}, {vr(ACC + 16*lam + 4*i, 4)} offset:{i*1024}")
    a("s_waitcnt lgkmcnt(0)")
    a("s_barrier")
    for i in range(12):
        a(f"ds_read_b128 {vr(R + 4*i, 4)}, v5 offset:{i*1024}")
    for s_ in range(3):
        a(f"s_waitcnt lgkmcnt({8 - 4*s_})")
        for p in range(0, 16, 2): a(f"v_pk_add_f32 {vr(ACC+p,2)}, {vr(ACC+p,2)}, {vr(R+16*s_+p,2)}")
    for p in range(8): a(f"v_cvt_pk_bf16_f32 v{64+p}, v{ACC+2*p}, v{ACC+2*p+1}")
    a("s_nop 1")
    for b in (64, 68):
        a(f"v_permlane32_swap_b32 v{b}, v{b+2}")
        a(f"v_permlane32_swap_b32 v{b+1}, v{b+3}")
    a(f"buffer_store_dwordx4 v[64:67], v6, s[{OUT}:{OUT+3}], s68 offen")
    a(f"buffer_store_dwordx4 v[68:71], v6, s[{OUT}:{OUT+3}], s68 offen offset:32")
    stamp(a, 2, 2)
    if OPT.get("dbgdump"):
        a("s_cmp_lg_u32 s2, 8")
        a("s_cbranch_scc1 L3_end")
        a("s_cmp_lg_u32 s56, 0")
        a("s_cbranch_scc1 L3_end")
        srd(a, 44, 24, 256)
        a("s_waitcnt vmcnt(0)")
        a("v_lshrrev_b32 v1, 2, v0")
        a("v_and_b32 v2, 3, v0")
        a("v_lshlrev_b32 v2, 2, v2")
        a("v_cmp_eq_u32 vcc, 1, v1")
        a("s_nop 1")
        a("v_cndmask_b32 v3, 0, 1, vcc")
        a("v_lshl_add_u32 v2, v3, 7, v2")
        a("v_max_u32 v1, 1, v1")
        a("v_add_u32 v1, -1, v1")
        a("v_lshl_add_u32 v2, v1, 16, v2")
        a(f"s_mov_b32 s59, {STAMP + 8*8*32}")
        a(f"buffer_load_dword v4, v2, s[{WS}:{WS+3}], s59 offen sc1")
        a("v_lshlrev_b32 v5, 2, v0")
        a("s_waitcnt vmcnt(0)")
        a("buffer_store_dword v4, v5, s[44:47], 0 offen")
    a.label("L3_end")
    a("s_endpgm")

KERNELS = [("p1_kernel", gen_p1, 512, 163840, 256), ("p2_kernel", gen_p2, 512, 163840, 256), ("p3_kernel", gen_p3, 256, 49152, 256)]

def main():
    ref = open(f"cdna_kernels/{NAME}.s.ref").read().split("\n")
    hdr = [l for l in ref if l.startswith(";") and "@launch" not in l and "Override launch" not in l and "grid=ceil" not in l]
    out = list(hdr)
    vid = []
    if OPT.get("one"):
        def allg(a): gen_p1(a); a.raw(".p2align 6"); gen_p2(a); a.raw(".p2align 6"); gen_p3(a)
        out += ["; @launch kernel=p_kernel grid=(256,1,1) block=(512,1,1) lds=163840",
                "; @launch kernel=p_kernel grid=(256,1,1) block=(32,16,1) lds=163840",
                "; @launch kernel=p_kernel grid=(256,1,1) block=(16,16,1) lds=49152"]
        KERNELS[:] = [("p_kernel", allg, 512, 0, 256)]
        OPT["order"] = []
        vid = ["  .amdhsa_system_vgpr_workitem_id 1"]
    order = OPT.get("order", list(range(len(KERNELS))))
    if 3 in order:
        dup = OPT.get("dup")
        if dup is None: KERNELS.append(("nop_kernel", lambda a: a("s_endpgm"), 64, 0, 8))
        else:
            def dupg(a, g=KERNELS[dup][1]):
                g(a); a.lines[:] = [re.sub(r"\bL(\d)_", r"M\1_", l) for l in a.lines]
            KERNELS.append(("dup_kernel", dupg) + KERNELS[dup][2:])
    for k, _, blk, lds, _ in [KERNELS[i] for i in order]:
        out.append(f"; @launch kernel={k} grid=(256,1,1) block=({blk},1,1) lds={lds}")
    out.append('.amdgcn_target "amdgcn-amd-amdhsa--gfx950"')
    out.append(".text")
    bad = 0
    for k, g, _, _, _ in KERNELS:
        a = Asm(); g(a)
        bad += check(a.lines, k)
        out += [f".globl {k}", ".p2align 8", f".type {k},@function", f"{k}:"] + a.lines
    out.append('.section .rodata,"a"')
    for k, _, _, _, vg in KERNELS:
        out += [".p2align 6", f".amdhsa_kernel {k}", f"  .amdhsa_next_free_vgpr {vg}", "  .amdhsa_next_free_sgpr 102",
                f"  .amdhsa_accum_offset {(vg+3)//4*4}", "  .amdhsa_group_segment_fixed_size 0", "  .amdhsa_kernarg_size 96",
                "  .amdhsa_user_sgpr_count 2", "  .amdhsa_user_sgpr_kernarg_segment_ptr 1", "  .amdhsa_system_sgpr_workgroup_id_x 1",
                "  .amdhsa_float_denorm_mode_32 3"] + vid + [".end_amdhsa_kernel"]
    open(sys.argv[1], "w").write("\n".join(out) + "\n")
    print("hazards:", bad, "lines:", len(out))
main()
```

```python
import sys, struct, re, json
from asmlib import Asm, vr, sr, check

NAME = "gated_mix__softmax_full_mha__mixer_gmlp__prompt"
MB = 1 << 20
QF, KVF, Z1F, Z2F, AF, WF = 0, 2*MB, 6*MB, 10*MB, 14*MB, 20*MB
GG = 22*MB
STATS = 22*MB + 65536
FLG = 22*MB + 512*1024
FQ, FZ, FU, FO = 0, 1024, 2048, 3072
FW = FZ + 896
WS_SIZE = 28*MB
def f32(x): return "0x%08x" % struct.unpack("<I", struct.pack("<f", x))[0]
LOG2E = 1.4426950408889634
QSCALE = 0.25 * LOG2E
GC1 = -2.0 * LOG2E * 0.7978845608028654
GC2 = GC1 * 0.044715
SPIN = 1 << 16
SLOT = 36864
SCR = 147456

OPT = dict(stamp=False)
for a_ in sys.argv[2:]:
    k_, v_ = a_.split("=")
    OPT[k_] = eval(v_)

WS, DBG, SA, SB_, SC, SD = 28, 32, 36, 40, 44, 48
def srd(a, d, p, size):
    a(f"s_mov_b32 s{d}, s{p}")
    a(f"s_mov_b32 s{d+1}, s{p+1}")
    a(f"s_mov_b32 s{d+2}, {size}")
    a(f"s_mov_b32 s{d+3}, 0x20000")
def S4(d): return f"s[{d}:{d+3}]"

FINE = dict(n=0, pool=[], names=[])
NAMES = {}
def fine_init(a, v):
    FINE["n"] = 0; FINE["names"] = []; FINE["v"] = v; FINE["pend"] = []; FINE["pool"] = []
    if OPT["stamp"]: a(f"v_mov_b32 v{v}, 0")
def fine_pool(pool): FINE["pool"] = list(pool)
def fine(a, name=""):
    if not OPT["stamp"]: return
    p = FINE["pool"][len(FINE["pend"])]
    a(f"{'s_memtime' if OPT.get('cyc') else 's_memrealtime'} s[{p}:{p+1}]")
    FINE["pend"].append(p); FINE["names"].append(name)
def fine_flush(a):
    if not OPT["stamp"]: return
    a("s_waitcnt lgkmcnt(0)")
    for p in FINE["pend"]:
        a(f"v_writelane_b32 v{FINE['v']}, s{p}, {FINE['n'] + 2}"); FINE["n"] += 1
    FINE["pend"] = []
def fine_dump(a, grp, t):
    if not OPT["stamp"]: return
    v = FINE["v"]
    a("s_memrealtime s[98:99]")
    a("s_memtime s[100:101]")
    fine_flush(a)
    if OPT.get("cyc"):
        a("s_mov_b32 s96, s94"); a("s_mov_b32 s98, s100"); NAMES["cyc"] = 1
    a("s_sub_u32 s100, s100, s94")
    a(f"v_writelane_b32 v{v}, s100, 0")
    a(f"v_writelane_b32 v{v}, s96, 1")
    a(f"v_writelane_b32 v{v}, s98, {FINE['n'] + 2}")
    NAMES[f"0,{grp}"] = ["start"] + FINE["names"] + ["end"]
    a("s_lshl_b32 s98, s2, 4")
    a("s_add_u32 s98, s98, s56")
    a("s_lshl_b32 s98, s98, 8")
    a(f"s_add_u32 s98, s98, {24*MB}")
    a(f"v_lshlrev_b32 v{t}, 2, v0")
    a(f"buffer_store_dword v{v}, v{t}, {S4(WS)}, s98 offen")

def mfma_s(d, A, B, c=None):
    cc = vr(d, 16) if c is None else (c if isinstance(c, str) else vr(c, 16))
    return f"v_mfma_f32_32x32x16_bf16 {vr(d,16)}, {vr(A,4)}, {vr(B,4)}, {cc}"
def mfma(a, d, A, B, c=None): a(mfma_s(d, A, B, c))
def store4(a, v, voff, soff, off=0):
    a(f"buffer_store_dwordx4 {vr(v,4)}, v{voff}, {S4(WS)}, {soff} offen offset:{off} sc1")
def load4(a, v, voff, soff, off=0):
    a(f"buffer_load_dwordx4 {vr(v,4)}, v{voff}, {S4(WS)}, {soff} offen offset:{off} sc1")

def swz_row_voffs(a, base, stride_shift, tmp=1):
    t, u = tmp, base + 3
    a(f"v_lshrrev_b32 v{t}, 4, v0")
    a(f"v_and_b32 v{u}, 7, v0")
    a(f"v_xor_b32 v{u}, v{u}, v{t}")
    a(f"v_lshrrev_b32 v{t}, 3, v0")
    a(f"v_lshlrev_b32 v{t}, {stride_shift}, v{t}")
    a(f"v_lshl_add_u32 v{base}, v{u}, 4, v{t}")
    st = 1 << stride_shift
    a(f"v_xor_b32 v{base+1}, 64, v{base}")
    a(f"v_add_u32 v{base+1}, {8*st - 1024}, v{base+1}")
    a(f"v_add_u32 v{base+2}, {16*st - 2048}, v{base}")
    a(f"v_add_u32 v{base+3}, {16*st - 2048}, v{base+1}")

def swz_read_addrs(a, base, sbase, tmp=1):
    t, u = tmp, base + 3
    a(f"v_bfe_u32 v{t}, v0, 1, 3")
    a(f"v_lshrrev_b32 v{u}, 5, v0")
    a(f"v_xor_b32 v{t}, v{t}, v{u}")
    a(f"v_lshlrev_b32 v{t}, 4, v{t}")
    a(f"v_and_b32 v{u}, 31, v0")
    a(f"v_lshl_add_u32 v{t}, v{u}, 7, v{t}")
    a(f"v_add_u32 v{base}, s{sbase}, v{t}")
    for ks in (1, 2, 3):
        a(f"v_xor_b32 v{base+ks}, {ks*32}, v{base}")

def tr_addr(a, d, hh_shift, row_shift, swz, add, tmp=1):
    a(f"v_lshrrev_b32 v{tmp}, 5, v0")
    a(f"v_lshlrev_b32 v{d}, {hh_shift}, v{tmp}")
    a(f"v_bfe_u32 v{tmp}, v0, 2, 2")
    a(f"v_lshl_add_u32 v{d}, v{tmp}, {row_shift}, v{d}")
    if swz:
        a(f"v_bfe_u32 v{tmp}, v0, 3, 1")
        a(f"v_lshl_add_u32 v{d}, v{tmp}, 6, v{d}")
    a(f"v_bfe_u32 v{tmp}, v0, 4, 1")
    a(f"v_lshl_add_u32 v{d}, v{tmp}, 5, v{d}")
    a(f"v_and_b32 v{tmp}, 3, v0")
    a(f"v_lshl_add_u32 v{d}, v{tmp}, 3, v{d}")
    if add: a(f"v_add_u32 v{d}, {add}, v{d}")

def gelu_list(x, t, C1, C2, n=16):
    L = [f"v_mul_f32 v{t+p}, v{x+p}, v{x+p}" for p in range(n)]
    L += [f"v_fma_f32 v{t+p}, v{t+p}, v{C2}, v{C1}" for p in range(n)]
    L += [f"v_mul_f32 v{t+p}, v{t+p}, v{x+p}" for p in range(n)]
    L += [f"v_exp_f32 v{t+p}, v{t+p}" for p in range(n)]
    L += [f"v_add_f32 v{t+p}, 1.0, v{t+p}" for p in range(n)]
    L += [f"v_rcp_f32 v{t+p}, v{t+p}" for p in range(n)]
    L += [f"v_mul_f32 v{x+p}, v{x+p}, v{t+p}" for p in range(n)]
    return L

def halfsum(a, v, t, op="v_add_f32"):
    a(f"v_mov_b32 v{t}, v{v}")
    a("s_nop 1")
    a(f"v_permlane32_swap_b32 v{v}, v{t}")
    a(f"{op} v{v}, v{v}, v{t}")

def set_flag(a, sidx, vz, vone):
    a(f"s_lshl_b32 s{sidx}, s{sidx}, 7")
    a(f"s_add_u32 s{sidx}, s{sidx}, {FLG}")
    a("s_mov_b64 exec, 1")
    a(f"buffer_store_dword v{vone}, v{vz}, {S4(WS)}, s{sidx} offen sc1")
    a("s_mov_b64 exec, -1")

def poll_flags(a, lbl, voffs, tmp, srd_=None, soff=None, first_issued=False, sleep=0):
    srd_ = WS if srd_ is None else srd_
    soff = "s90" if soff is None else soff
    def issue():
        for i, vo in enumerate(voffs):
            a(f"buffer_load_dword v{tmp+i}, v{vo}, {S4(srd_)}, {soff} offen sc1")
    a(f"s_mov_b32 s91, {SPIN}")
    if not first_issued: issue()
    a.label(lbl)
    a("s_waitcnt vmcnt(0)")
    for i in range(1, len(voffs)): a(f"v_min_u32 v{tmp}, v{tmp}, v{tmp+i}")
    a(f"v_cmp_eq_u32 vcc, 0, v{tmp}")
    a("s_sub_u32 s91, s91, 1")
    a(f"s_cbranch_scc1 {lbl}d")
    a("s_cmp_eq_u64 vcc, 0")
    a(f"s_cbranch_scc1 {lbl}d")
    if sleep: a(f"s_sleep {sleep}")
    issue()
    a(f"s_branch {lbl}")
    a.label(lbl + "d")

def slot_of(g): return ((g + 2) % 4) * SLOT
class Win:
    def __init__(self, regs, span): self.regs = regs; self.base = 0; self.span = span
    def at(self, base):
        L = []
        if base < self.base or base + self.span - self.base > 65536:
            L = [f"v_add_u32 v{r}, {(base - self.base) & 0xffffffff}, v{r}" for r in self.regs]
            self.base = base
        return L, base - self.base

def gen(a):
    a("s_cmp_ge_u32 s2, 256")
    a("s_cbranch_scc1 L_end")
    if OPT["stamp"]:
        a("s_memrealtime s[96:97]"); a("s_memtime s[94:95]")
    a("s_load_dwordx16 s[4:19], s[0:1], 0")
    a("s_load_dwordx8 s[20:27], s[0:1], 64")
    a("v_lshrrev_b32 v1, 6, v0")
    a("s_and_b32 s52, s2, 7")
    a("v_readfirstlane_b32 s56, v1")
    a("s_lshr_b32 s53, s2, 3")
    a("v_and_b32 v0, 63, v0")
    a("s_and_b32 s57, s56, 3")
    a("s_and_b32 s63, s53, 3")
    a("s_lshr_b32 s54, s52, 1")
    a("s_lshl_b32 s54, s54, 2")
    a("s_add_u32 s54, s54, s63")
    a("s_lshr_b32 s61, s53, 2")
    a("s_and_b32 s59, s52, 1")
    a("s_lshl_b32 s55, s59, 3")
    a("s_add_u32 s55, s55, s61")
    a("s_sub_u32 s62, s55, s59")
    a("s_lshl_b32 s63, s63, 1")
    a("s_add_u32 s63, s63, s61")
    a("s_and_b32 s63, s63, 7")
    a("s_lshl_b32 s58, s54, 2")
    a("s_add_u32 s58, s58, s57")
    a("s_lshl_b32 s60, s57, 12")
    a(f"s_mov_b32 s90, {FLG}")
    a("s_cmp_lt_u32 s56, 4")
    a("s_cbranch_scc1 L_g1")
    g2_front(a)
    g2_spatial(a)
    g2_final(a)
    a.raw(".p2align 6")
    a.label("L_g1")
    g1_front(a)
    g1_att(a)
    a.label("L_end")
    a("s_endpgm")

XF = 128
def g2_front(a):
    X, WQ, WI, MISC = SA, SB_, SC, SD
    swz_row_voffs(a, 2, 10)
    a("v_lshrrev_b32 v1, 2, v0")
    a("v_mul_u32_u24 v10, 3072, v1")
    a("v_and_b32 v1, 4, v1")
    a("v_and_b32 v11, 7, v0")
    a("v_xor_b32 v11, v11, v1")
    a("v_lshlrev_b32 v11, 4, v11")
    a("v_lshrrev_b32 v1, 3, v0")
    a("v_mul_u32_u24 v6, 3072, v1")
    a("v_mul_u32_u24 v12, 3584, v1")
    a("v_add_u32 v6, v6, v11")
    a("v_add_u32 v12, v12, v11")
    a(f"v_add_u32 v7, {8*3072-2048}, v6")
    a(f"v_add_u32 v8, {1792-1024}, v12")
    a(f"v_add_u32 v9, {8*3584+1792-3072}, v12")
    a("v_and_b32 v1, 3, v0")
    a("v_lshl_add_u32 v10, v1, 4, v10")
    a("s_lshl_b32 s64, s58, 15")
    a(f"s_mul_i32 s65, s57, {16*3072}")
    a("s_lshl_b32 s59, s55, 6")
    a("s_add_u32 s66, s65, s59")
    a("s_add_u32 s66, s66, 2048")
    a("s_and_b32 s59, s55, 1")
    a("s_lshl_b32 s59, s59, 10")
    a("s_add_u32 s65, s65, s59")
    a("s_lshr_b32 s59, s55, 1")
    a("s_lshl_b32 s59, s59, 7")
    a("s_add_u32 s65, s65, s59")
    a(f"s_mul_i32 s67, s57, {16*3584}")
    a("s_lshl_b32 s68, s62, 7")
    a("s_add_u32 s67, s67, s68")
    a("s_lshl_b32 s69, s57, 10")
    a("s_waitcnt lgkmcnt(0)")
    srd(a, X, 4, 2048*1024)
    srd(a, WQ, 6, 512*3072)
    srd(a, WI, 12, 512*3584)
    a("s_cmp_eq_u32 s61, 7")
    a("s_cbranch_scc1 L_light")
    g2_pass1(a, False)
    g2_z(a)
    a("s_branch L_g2b")
    a.label("L_light")
    st = json.dumps(FINE); so = OPT["stamp"]; OPT["stamp"] = False
    g2_pass1(a, True)
    g2_light(a)
    OPT["stamp"] = so; FINE.update(json.loads(st))
    if so: a(f"v_mov_b32 v{FINE['v']}, 1")
    a.label("L_g2b")

def g2_pass1(a, light):
    X, WQ, WI, MISC = SA, SB_, SC, SD
    WFR, ACC = 32, 64
    def chunk_dma(c):
        slot = slot_of(c)
        a(f"s_add_u32 s70, s63, {c}")
        a("s_and_b32 s70, s70, 7")
        a("s_lshl_b32 s59, s70, 7")
        a(f"s_add_u32 m0, s60, {slot}")
        a("s_add_u32 s59, s59, s64")
        for q in range(4):
            a(f"buffer_load_dwordx4 v{2+q}, {S4(X)}, s59 offen offset:{q*1024} lds")
        a(f"s_mul_i32 s71, s70, {64*3072}")
        a(f"s_add_u32 m0, s60, {slot + 16384}")
        a("s_add_u32 s59, s71, s65")
        for q in range(2):
            a(f"buffer_load_dwordx4 v{6+q}, {S4(WQ)}, s59 offen offset:{q*2048} lds")
        if not light:
            a(f"s_mul_i32 s59, s70, {64*3584}")
            a("s_add_u32 s59, s59, s67")
            for q in range(2):
                a(f"buffer_load_dwordx4 v{8+q}, {S4(WI)}, s59 offen offset:{q*2048+1024} lds")
        a(f"s_add_u32 m0, s69, {slot + 32768}")
        a("s_add_u32 s59, s71, s66")
        a(f"buffer_load_dwordx4 v10, {S4(WQ)}, s59 offen lds")
    def z1_dma(g):
        a(f"s_add_u32 s70, s63, {4*(g-8)}")
        a("s_add_u32 s70, s70, s57")
        a("s_and_b32 s70, s70, 7")
        a(f"s_mul_i32 s70, s70, {64*3584}")
        a("s_add_u32 s70, s70, s68")
        a("s_lshl_b32 s71, s57, 13")
        for h in range(2):
            a(f"s_add_u32 m0, s71, {slot_of(g) + h*4096}")
            a(f"s_add_u32 s59, s70, {h*32*3584}")
            for q in range(4):
                a(f"buffer_load_dwordx4 v{12+q}, {S4(WI)}, s59 offen offset:{q*1024} lds")
    G = 7 if light else 9
    gsize = [G]*8 + ([0, 0] if light else [8, 8])
    def group(g):
        if g < 8: chunk_dma(g)
        elif not light: z1_dma(g)
    group(0)
    srd(a, WS, 26, WS_SIZE)
    srd(a, DBG, 24, 256)
    for q in (1, 2, 3): a(f"v_add_u32 v{12+q}, {q*(8*3584-1024)}, v12")
    swz_read_addrs(a, 16, 60)
    tr_addr(a, 20, 11, 7, True, 16384 + 1024)
    a("v_xor_b32 v21, 64, v20")
    a("v_and_b32 v22, 15, v0")
    a("v_lshlrev_b32 v22, 2, v22")
    fine_init(a, 31); fine_pool(list(range(72, 90, 2)) + [4, 6, 10, 12, 24, 26]); fine(a, "setup")
    group(1)
    win = Win(range(16, 22), 16384)
    def reads(n):
        c, ks = n >> 2, n & 3
        pre, so = win.at(slot_of(c))
        R = [f"ds_read_b128 {vr(XF + 4*n, 4)}, v{16+ks} offset:{so}"]
        if not light:
            for t in range(2):
                for v in range(2):
                    R.append(f"ds_read_b64_tr_b16 {vr(WFR + 8*(n&1) + 4*t + 2*v, 2)}, v{20+t} offset:{so + ks*4096 + v*512}")
        return pre, R
    def boundary(c):
        a(f"s_waitcnt vmcnt({gsize[c+1]})" + (" lgkmcnt(0)" if light else ""))
        a("s_barrier")
        fine(a, f"b{c}")
    boundary(0)
    pre, R = reads(0)
    for l in pre + R: a(l)
    group(2)
    for n in range(32):
        ks = n & 3
        M = lambda t: mfma(a, ACC + 16*t, WFR + 8*(n&1) + 4*t, XF + 4*n, "0" if n == 0 else None)
        if light:
            if n < 31:
                if ks == 3: boundary((n >> 2) + 1)
                pre, R = reads(n + 1)
                for l in pre + R: a(l)
                if ks == 3: group((n >> 2) + 3)
            continue
        pre, R = reads(n + 1) if n < 31 else ([], [])
        a("s_waitcnt lgkmcnt(2)")
        M(0)
        if n == 31:
            a("s_waitcnt lgkmcnt(0)"); M(1)
            break
        if ks == 3: boundary((n >> 2) + 1)
        for l in pre + R: a(l)
        a("s_waitcnt lgkmcnt(5)")
        M(1)
        if ks == 3: group((n >> 2) + 3)
    a(f"buffer_load_dword v23, v22, {S4(DBG)}, 0 offen sc1")
    fine(a, "p1")

def g2_z(a):
    WFR, ACC, T = 32, 64, 48
    C1, C2, SUM, SQ = 24, 25, 26, 28
    a(f"v_mov_b32 v{C1}, {f32(GC1)}")
    a(f"v_mov_b32 v{C2}, {f32(GC2)}")
    for r in range(SUM, SUM + 4): a(f"v_mov_b32 v{r}, 0")
    a("v_lshlrev_b32 v2, 4, v0")
    a("v_and_b32 v1, 31, v0")
    a("v_lshlrev_b32 v3, 3, v1")
    a("v_lshrrev_b32 v4, 5, v0")
    a("v_lshlrev_b32 v5, 6, v1")
    a("v_lshl_add_u32 v5, v4, 3, v5")
    a("v_mul_u32_u24 v4, 7168, v4")
    a("v_add_u32 v4, v4, v3")
    a(f"s_add_u32 s59, s60, {SCR}")
    a("v_add_u32 v5, s59, v5")
    for ti in range(2):
        x = ACC + 16*ti
        for l in gelu_list(x, T, C1, C2): a(l)
        for p in range(16):
            a(f"v_add_f32 v{SUM+(p&1)}, v{SUM+(p&1)}, v{x+p}")
            a(f"v_fmac_f32 v{SQ+(p&1)}, v{x+p}, v{x+p}")
    a(f"v_add_f32 v{SUM}, v{SUM}, v{SUM+1}")
    a(f"v_add_f32 v{SUM+1}, v{SQ}, v{SQ+1}")
    halfsum(a, SUM, T)
    halfsum(a, SUM+1, T+1)
    a(f"v_and_b32 v{SUM+1}, 0x7fffffff, v{SUM+1}")
    tr_addr(a, 7, 10, 7, True, slot_of(8))
    a("v_xor_b32 v8, 64, v7")
    a("s_mul_i32 s64, s54, 14336")
    a("s_lshl_b32 s59, s57, 8")
    a("s_add_u32 s64, s64, s59")
    a(f"s_add_u32 s64, s64, {STATS}")
    a("s_add_u32 s65, s64, 4096")
    a("s_lshl_b32 s59, s62, 10")
    a("s_add_u32 s66, s64, s59")
    fine(a, "g2")
    poll_flags(a, "L_clr", [22], 23, srd_=DBG, soff="0", first_issued=True)
    a("s_barrier")
    fine(a, "bZ")
    a(f"buffer_store_dwordx2 {vr(SUM,2)}, v3, {S4(WS)}, s66 offen sc1")
    A1 = 96
    S = 10
    def stat_loads():
        for i in range(7):
            a(f"buffer_load_dwordx2 {vr(S+2*i,2)}, v4, {S4(WS)}, {'s64' if i < 4 else 's65'} offen offset:{(i%4)*1024} sc1")
    def rd(n):
        if n == 16:
            for r in (7, 8): a(f"v_add_u32 v{r}, {SLOT}, v{r}")
        for t in range(2):
            for v in range(2):
                a(f"ds_read_b64_tr_b16 {vr(WFR + 8*(n%4) + 4*t + 2*v, 2)}, v{7+t} offset:{(n%16)*2048 + v*512}")
    rd(0); rd(1)
    for n in range(32):
        if n + 2 < 32: rd(n + 2)
        a(f"s_waitcnt lgkmcnt({4*min(2, 31-n)})")
        for t in range(2): mfma(a, A1 + 16*t, WFR + 8*(n%4) + 4*t, XF + 4*n, "0" if n == 0 else None)
        if n == OPT.get("stpos", 20): stat_loads()
    fine(a, "z1")
    fine_flush(a)
    tr_addr(a, 6, 9, 6, False, 0)
    a(f"s_add_u32 s59, s60, {SCR}")
    a("v_add_u32 v6, s59, v6")
    a("s_mul_i32 s67, s58, 28")
    a("s_lshl_b32 s59, s62, 1")
    a("s_add_u32 s67, s67, s59")
    a("s_lshl_b32 s67, s67, 11")
    a(f"s_add_u32 s67, s67, {Z1F}")
    a("s_lshl_b32 s68, s62, 18")
    a("s_lshl_b32 s59, s58, 11")
    a("s_add_u32 s68, s68, s59")
    a(f"s_add_u32 s68, s68, {Z2F}")
    a("s_add_u32 s69, s68, 131072")
    if OPT.get("lnpos", 0) == 1: a("s_barrier"); a("s_setprio 2")
    a(f"s_mov_b32 s91, {SPIN}")
    a.label("L_stp")
    a("s_waitcnt vmcnt(0)")
    a(f"v_or3_b32 v1, v{S+1}, v{S+3}, v{S+5}")
    a(f"v_or3_b32 v1, v1, v{S+7}, v{S+9}")
    a(f"v_or3_b32 v1, v1, v{S+11}, v{S+13}")
    a("v_cmp_gt_i32 vcc, 0, v1")
    a("s_sub_u32 s91, s91, 1")
    a("s_cbranch_scc1 L_stpd")
    a("s_cmp_eq_u64 vcc, 0")
    a("s_cbranch_scc1 L_stpd")
    stat_loads()
    a("s_branch L_stp")
    a.label("L_stpd")
    fine(a, "stat")
    for i in range(1, 7):
        a(f"v_add_f32 v{S}, v{S}, v{S+2*i}")
        a(f"v_add_f32 v{S+1}, v{S+1}, v{S+2*i+1}")
    halfsum(a, S, T)
    halfsum(a, S+1, T+1)
    a(f"v_mul_f32 v{S}, {f32(1.0/896)}, v{S}")
    a(f"v_mul_f32 v{S+1}, {f32(1.0/896)}, v{S+1}")
    a(f"v_fma_f32 v{S+1}, -v{S}, v{S}, v{S+1}")
    a(f"v_max_f32 v{S+1}, 0, v{S+1}")
    a(f"v_add_f32 v{S+1}, {f32(1e-5)}, v{S+1}")
    a(f"v_rsq_f32 v{S+2}, v{S+1}")
    a("s_nop 0")
    a(f"v_mul_f32 v{S+3}, -v{S}, v{S+2}")
    for ti in range(2):
        x = ACC + 16*ti
        for p in range(16): a(f"v_fma_f32 v{x+p}, v{x+p}, v{S+2}, v{S+3}")
        o = T + 8*ti
        for p in range(8): a(f"v_cvt_pk_bf16_f32 v{o+p}, v{x+2*p}, v{x+2*p+1}")
        for i in range(4): a(f"ds_write_b64 v5, {vr(o+2*i,2)} offset:{ti*2048 + i*16}")
    a("s_waitcnt lgkmcnt(0)")
    for ti in range(2):
        for k in range(2):
            for v in range(2):
                a(f"ds_read_b64_tr_b16 {vr(WFR + ti*8 + k*4 + v*2, 2)}, v6 offset:{ti*2048 + k*1024 + v*256}")
    for ti in range(2):
        for k in range(2):
            a(f"s_waitcnt lgkmcnt({6 - 2*(ti*2+k)})")
            store4(a, WFR + ti*8 + k*4, 2, "s68" if ti == 0 else "s69", k*1024)
    fine(a, "ln")
    if OPT.get("lnpos", 0) == 0: a("s_barrier"); a("s_setprio 2")
    fine(a, "B1")
    kv = kv_rest(a)
    L = []
    for ti in range(2):
        x = A1 + 16*ti; o = ACC + 8*ti
        L += gelu_list(x, T, C1, C2)
        L += [f"v_cvt_pk_bf16_f32 v{o+p}, v{x+2*p}, v{x+2*p+1}" for p in range(8)]
    step = len(L) // len(kv)
    for i, l in enumerate(L):
        if i % step == 0 and kv:
            for m in kv.pop(0): a(m)
        a(l)
    for i in range(4): store4(a, ACC + 4*i, 2, "s67", i*1024)
    a("s_lshl_b32 s70, s62, 6")
    a("s_add_u32 s70, s70, s58")
    a(f"s_add_u32 s70, s70, {FZ}")

KV0 = 16
def kv_rest(a):
    a("s_lshl_b32 s59, s52, 2")
    a("s_lshr_b32 s71, s53, 3")
    a("s_add_u32 s59, s59, s71")
    a("s_lshl_b32 s71, s59, 17")
    a("s_lshl_b32 s92, s57, 11")
    a("s_add_u32 s71, s71, s92")
    a(f"s_add_u32 s71, s71, {KVF}")
    return [[f"s_add_u32 m0, s92, {n*8192}", f"s_add_u32 s59, s71, {n*8192}",
             f"buffer_load_dwordx4 v2, {S4(WS)}, s59 offen sc1 lds",
             f"buffer_load_dwordx4 v2, {S4(WS)}, s59 offen offset:1024 sc1 lds"] for n in range(KV0 // 4, 16)]

def g2_light(a):
    MISC = SD
    a("v_lshlrev_b32 v2, 4, v0")
    poll_flags(a, "L_clrl", [22], 23, srd_=DBG, soff="0", first_issued=True)
    a("s_waitcnt lgkmcnt(0)")
    a("s_barrier")
    a("s_and_b32 s64, s52, 1")
    a("s_lshl_b32 s64, s64, 6")
    a("s_add_u32 s64, s64, s58")
    a("s_cmp_ge_u32 s64, 88")
    a("s_cbranch_scc1 L_now")
    a("s_lshl_b32 s65, s64, 14")
    srd(a, MISC, 8, 512*1024)
    a("s_cmp_lt_u32 s64, 32")
    a("s_cbranch_scc1 L_wo")
    srd(a, MISC, 18, 896*1024)
    a(f"s_sub_u32 s65, s65, {32*16384}")
    a.label("L_wo")
    a("s_lshl_b32 s66, s57, 14")
    a(f"s_add_u32 s66, s66, {slot_of(8)}")
    for g in range(4):
        a(f"s_add_u32 m0, s66, {g*4096}")
        a("s_nop 0")
        for i in range(4):
            a(f"buffer_load_dwordx4 v2, {S4(MISC)}, s65 offen offset:{i*1024} lds")
        a("s_add_u32 s65, s65, 4096")
    tr_addr(a, 3, 12, 10, False, 0)
    a("v_add_u32 v3, s66, v3")
    a("s_lshl_b32 s65, s64, 10")
    a(f"s_add_u32 s65, s65, {WF}")
    a("s_waitcnt vmcnt(0)")
    for nt in range(16):
        for v in range(2):
            a(f"ds_read_b64_tr_b16 {vr(32 + nt*4 + v*2, 2)}, v3 offset:{v*8192 + nt*64}")
    a("s_waitcnt lgkmcnt(0)")
    for nt in range(16):
        store4(a, 32 + nt*4, 2, "s65", 0)
        a(f"s_add_u32 s65, s65, {88*1024}")
    a.label("L_now")
    a("s_cmp_lt_u32 s64, 64")
    a("s_cbranch_scc1 L_nog")
    srd(a, MISC, 20, 1024)
    a("v_lshrrev_b32 v1, 5, v0")
    a("v_lshlrev_b32 v1, 4, v1")
    GA = 96
    for b in range(4):
        for k in range(8):
            if k % 4 == 0:
                a(f"s_add_u32 s59, s63, {b*2 + k//4}")
                a("s_and_b32 s59, s59, 7")
                a("s_lshl_b32 s59, s59, 7")
            a(f"buffer_load_dwordx4 {vr(GA+4*k,4)}, v1, {S4(MISC)}, s59 offen offset:{(k%4)*32}")
        for k in range(8):
            a(f"s_waitcnt vmcnt({7-k})")
            mfma(a, 8, GA+4*k, XF + 4*(b*8+k), "0" if b+k == 0 else None)
    a("s_nop 7"); a("s_nop 3")
    a(f"v_mul_f32 v1, {f32(-LOG2E)}, v8")
    a("v_exp_f32 v1, v1")
    a("v_and_b32 v3, 31, v0")
    a("v_add_f32 v1, 1.0, v1")
    a("v_rcp_f32 v1, v1")
    a("v_lshlrev_b32 v3, 2, v3")
    a("v_and_b32 v1, 0x7fffffff, v1")
    a("s_lshl_b32 s59, s58, 7")
    a(f"s_add_u32 s59, s59, {GG}")
    a(f"buffer_store_dword v1, v3, {S4(WS)}, s59 offen sc1")
    a.label("L_nog")
    a("s_barrier")
    for g in kv_rest(a):
        for m in g: a(m)
    a(f"s_add_u32 s70, s64, {FW}")

TILES = [(0, 0), (0, 1), (0, 2), (0, 3), (1, 0), (1, 1), (1, 2)]
def lds_poll(a, lbl, vz, off, t):
    a(f"s_mov_b32 s91, {SPIN}")
    a.label(lbl)
    a(f"ds_read_b128 {vr(t,4)}, v{vz} offset:{off}")
    a("s_waitcnt lgkmcnt(0)")
    a(f"v_and_b32 v{t}, v{t}, v{t+1}")
    a(f"v_and_b32 v{t+2}, v{t+2}, v{t+3}")
    a(f"v_and_b32 v{t}, v{t}, v{t+2}")
    a("s_sub_u32 s91, s91, 1")
    a(f"v_readfirstlane_b32 s59, v{t}")
    a(f"s_cbranch_scc1 {lbl}d")
    a("s_cmp_lg_u32 s59, 0")
    a(f"s_cbranch_scc1 {lbl}d")
    a("s_sleep 2")
    a(f"s_branch {lbl}")
    a.label(lbl + "d")

def g2_spatial(a):
    WSP, BSP = SA, SB_
    WFR, ZS, ACC, T = 16, 48, 112, 224
    if OPT["stamp"]:
        fine_flush(a); a(f"v_mov_b32 v250, v{FINE['v']}"); FINE["v"] = 250
        fine_pool([4, 6, 8, 10, 12, 18, 20, 24, 26, 46, 48, 50])
    a("s_lshr_b32 s54, s52, 1")
    a("s_lshl_b32 s54, s54, 3")
    a("s_and_b32 s59, s53, 7")
    a("s_add_u32 s54, s54, s59")
    a("s_and_b32 s55, s52, 1")
    a("s_lshl_b32 s55, s55, 2")
    a("s_lshr_b32 s59, s53, 3")
    a("s_add_u32 s55, s55, s59")
    a("s_and_b32 s58, s55, 1")
    a("s_lshl_b32 s60, s54, 1")
    a("s_add_u32 s60, s60, s58")
    a("s_xor_b32 s61, s60, 1")
    a("s_lshr_b32 s59, s55, 1")
    a("s_mul_i32 s59, s59, 7")
    a("s_add_u32 s65, s59, 3")
    a("s_lshl_b32 s62, s58, 2")
    a("s_add_u32 s62, s62, s59")
    a("s_add_u32 s63, s62, 1")
    a("s_add_u32 s64, s62, 2")
    a("s_lshl_b32 s59, s57, 15")
    a(f"s_add_u32 s59, s59, {Z2F}")
    for i in range(4):
        a(f"s_lshl_b32 s{66+i}, s{62+i}, 17")
        a(f"s_add_u32 s{66+i}, s{66+i}, s59")
    a("s_lshl_b32 s59, s57, 10")
    for i in range(2):
        a(f"s_lshl_b32 s{74+i}, s{60+i}, 17")
        a(f"s_add_u32 s{74+i}, s{74+i}, s59")
    a("s_lshl_b32 s72, s57, 13")
    a("s_add_u32 s72, s72, 0x20000")
    a("s_add_u32 s73, s72, 4096")
    for n, (t, f) in enumerate(TILES):
        a(f"s_mul_i32 s59, s{60+t}, 28")
        a(f"s_add_u32 s59, s59, s{62+f}")
        a(f"s_lshl_b32 s59, s59, 11")
        a(f"s_add_u32 s{76+n}, s59, {Z1F}")
        a(f"s_mul_i32 s59, s{60+t}, 44")
        a(f"s_add_u32 s59, s59, s{62+f}")
        a(f"s_lshl_b32 s59, s59, 11")
        a(f"s_add_u32 s{83+n}, s59, {AF + 32*1024}")
    srd(a, WSP, 14, 2048*4096)
    srd(a, BSP, 16, 4096)
    a("v_lshlrev_b32 v1, 4, v0")
    swz_row_voffs(a, 2, 12, tmp=10)
    swz_read_addrs(a, 6, 72, tmp=10)
    a("v_mov_b32 v14, 0")
    a("v_mov_b32 v15, 1")
    a("s_lshl_b32 s59, s57, 2")
    a("s_add_u32 s59, s59, 32")
    a("v_mov_b32 v13, s59")
    a("v_lshrrev_b32 v10, 4, v0")
    a("v_and_b32 v11, 3, v0")
    a("v_cmp_eq_u32 vcc, 3, v10")
    a("v_min_u32 v11, 2, v11")
    a("v_and_b32 v12, 15, v0")
    a("v_cndmask_b32 v10, v10, v11, vcc")
    a("s_lshl_b32 s59, s57, 4")
    a("v_add_u32 v12, s59, v12")
    a("v_bfe_u32 v11, v0, 2, 1")
    a("s_lshl_b32 s59, s54, 1")
    a("v_add_u32 v11, s59, v11")
    a("v_cndmask_b32 v12, v12, v11, vcc")
    a("s_lshr_b32 s59, s62, 1")
    a("v_mov_b32 v11, s59")
    a("s_lshr_b32 s59, s64, 1")
    a("v_mov_b32 v16, s59")
    a("v_cmp_eq_u32 vcc, 1, v10")
    a("s_lshr_b32 s59, s65, 1")
    a("v_mov_b32 v17, s59")
    a("v_cndmask_b32 v11, v11, v16, vcc")
    a("v_cmp_eq_u32 vcc, 2, v10")
    a("s_nop 1")
    a("v_cndmask_b32 v11, v11, v17, vcc")
    a("v_lshl_add_u32 v11, v11, 6, v12")
    a(f"v_add_u32 v11, {FZ}, v11")
    a("v_lshlrev_b32 v10, 7, v11")
    a("s_waitcnt vmcnt(0)")
    a("ds_write_b32 v13, v15")
    set_flag(a, 70, 14, 15)
    fine(a, "fz")
    def wdma():
        for t in range(2):
            a(f"s_mov_b32 m0, s{72+t}")
            a("s_nop 0")
            for q in range(4):
                a(f"buffer_load_dwordx4 v{2+q}, {S4(WSP)}, s{74+t} offen offset:{q*1024} lds")
            a(f"s_add_u32 s{74+t}, s{74+t}, 128")
    def zload(ks):
        for i in range(4): load4(a, ZS + 16*ks + 4*i, 1, f"s{66+i}", ks*1024)
        if ks == 3:
            for i in range(4): a(f"s_add_u32 s{66+i}, s{66+i}, 4096")
    if OPT.get("lnpos", 0) == 1:
        lds_poll(a, "L_scr", 14, 32, 16)
    wdma()
    poll_flags(a, "L_pz", [10], 11, sleep=4)
    fine(a, "pz")
    a("s_setprio 0")
    for ks in range(4): zload(ks)
    for st in range(8):
        last = st == 7
        a("s_waitcnt vmcnt(16)")
        if st % 2 == 0: fine(a, f"s{st}")
        for t in range(2):
            for ks in range(4):
                a(f"ds_read_b128 {vr(WFR + 16*t + 4*ks, 4)}, v{6+ks} offset:{t*4096}")
        a("s_waitcnt lgkmcnt(0)")
        if not last: wdma()
        for ks in range(4):
            a(f"s_waitcnt vmcnt({(3-ks)*4 if last else 20})")
            for n, (t, f) in enumerate(TILES):
                mfma(a, ACC + 16*n, ZS + 16*ks + 4*f, WFR + 16*t + 4*ks, "0" if st + ks == 0 else None)
            if not last: zload(ks)
    fine(a, "mm")
    a("s_setprio 2")
    a("v_and_b32 v2, 31, v0")
    a("v_lshlrev_b32 v4, 2, v2")
    a("v_lshlrev_b32 v2, 1, v2")
    for t in range(2):
        a(f"s_lshl_b32 s59, s{60+t}, 6")
        a(f"buffer_load_ushort v{10+t}, v2, {S4(BSP)}, s59 offen")
        a(f"s_lshl_b32 s{74+t}, s{60+t}, 7")
        a(f"s_add_u32 s{74+t}, s{74+t}, {GG}")
    def gl():
        for t in range(2): a(f"buffer_load_dword v{40+t}, v4, {S4(WS)}, s{74+t} offen sc1")
    gl()
    a("v_add_u32 v3, 0x10000, v1")
    a("v_add_u32 v5, -16, v13")
    owner = [0,0,0,0,1,1,1,1,2,2,2,3,3,3]
    def slot(n, src):
        si = src if src < owner[n] else src - 1
        ad = 2048 + (n*3 + si)*2048
        return (1, ad) if ad + 1024 < 65536 else (3, ad - 65536)
    st_ = json.dumps(FINE)
    for w in range(4):
        FINE.update(json.loads(st_))
        if w < 3:
            a(f"s_cmp_lg_u32 s57, {w}")
            a(f"s_cbranch_scc1 L_w{w+1}")
        mine = [n for n in range(14) if owner[n] == w]
        Z1R = 16
        for i, n in enumerate(mine): load4(a, Z1R + 4*i, 1, f"s{76 + (n>>1)}", (n&1)*1024)
        lds_poll(a, f"L_pa{w}", 14, 0, 6)
        fine(a, "pa")
        for n in range(14):
            if owner[n] != w:
                r, ad = slot(n, w)
                a(f"ds_write_b128 v{r}, {vr(ACC+8*n,4)} offset:{ad}")
                a(f"ds_write_b128 v{r}, {vr(ACC+8*n+4,4)} offset:{ad+1024}")
                if OPT.get("wpace", 1): a("s_waitcnt lgkmcnt(0)")
        a("s_waitcnt lgkmcnt(0)")
        a("ds_write_b32 v5, v15")
        a(f"s_mov_b32 s91, {SPIN}")
        a.label(f"L_gp{w}")
        a("s_waitcnt vmcnt(0)")
        a("v_or_b32 v6, v40, v41")
        a("v_cmp_gt_i32 vcc, 0, v6")
        a("s_sub_u32 s91, s91, 1")
        a(f"s_cbranch_scc1 L_gp{w}d")
        a("s_cmp_eq_u64 vcc, 0")
        a(f"s_cbranch_scc1 L_gp{w}d")
        gl()
        a(f"s_branch L_gp{w}")
        a.label(f"L_gp{w}d")
        for t in range(2):
            a(f"v_sub_f32 v{32+2*t}, 1.0, v{40+t}")
            a(f"v_lshlrev_b32 v{10+t}, 16, v{10+t}")
            a(f"v_mul_f32 v{33+2*t}, v{10+t}, v{32+2*t}")
        lds_poll(a, f"L_pb{w}", 14, 16, 6)
        fine(a, "pb")
        P = 48
        def rdp(i):
            n = mine[i]
            for si, src in enumerate([s_ for s_ in range(4) if s_ != w]):
                r, ad = slot(n, src)
                a(f"ds_read_b128 {vr(P + 24*(i&1) + 8*si, 4)}, v{r} offset:{ad}")
                a(f"ds_read_b128 {vr(P + 24*(i&1) + 8*si + 4, 4)}, v{r} offset:{ad+1024}")
        rdp(0)
        for i, n in enumerate(mine):
            if i + 1 < len(mine):
                rdp(i + 1); a("s_waitcnt lgkmcnt(6)")
            else:
                a("s_waitcnt lgkmcnt(0)")
            x = ACC + 8*n; p0 = P + 24*(i&1); t = TILES[n >> 1][0]
            for si in range(3):
                for p in range(8): a(f"v_add_f32 v{x+p}, v{x+p}, v{p0+8*si+p}")
            for p in range(8): a(f"v_fma_f32 v{x+p}, v{x+p}, v{32+2*t}, v{33+2*t}")
            for p in range(4):
                a(f"v_lshlrev_b32 v{T+2*p}, 16, v{Z1R+4*i+p}")
                a(f"v_and_b32 v{T+2*p+1}, 0xffff0000, v{Z1R+4*i+p}")
            for p in range(8): a(f"v_mul_f32 v{x+p}, v{x+p}, v{T+p}")
            o = T + 8 + 4*i
            for p in range(4): a(f"v_cvt_pk_bf16_f32 v{o+p}, v{x+2*p}, v{x+2*p+1}")
            store4(a, o, 1, f"s{83 + (n>>1)}", (n&1)*1024)
        if w < 3:
            a("s_branch L_fin")
            a.label(f"L_w{w+1}")
    a.label("L_fin")

def g2_final(a):
    OUT = SC
    R, WO, ACC = 16, 112, 176
    D = 6
    fine(a, "u")
    fine_flush(a)
    a("s_lshl_b32 s60, s54, 1")
    a("s_lshr_b32 s59, s57, 1")
    a("s_add_u32 s60, s60, s59")
    a("s_xor_b32 s61, s60, 1")
    a("s_lshl_b32 s62, s55, 1")
    a("s_and_b32 s59, s57, 1")
    a("s_add_u32 s62, s62, s59")
    a("s_xor_b32 s63, s62, 1")
    a(f"s_mul_i32 s72, s57, {14*1024}")
    a("s_lshl_b32 s73, s57, 13")
    for i in range(4):
        a(f"s_mul_i32 s59, s{60+i}, {88*1024}")
        a(f"s_add_u32 s59, s59, {AF if i < 2 else WF}")
        a(f"s_add_u32 s{68+i}, s59, s73")
        a(f"s_add_u32 s59, s59, s72")
        a(f"s_add_u32 s{64+i}, s59, {32*1024}")
    srd(a, OUT, 22, 2048*1024)
    a("s_lshl_b32 s74, s54, 5")
    a(f"s_add_u32 s59, s74, {FU}")
    a("v_add_u32 v2, s59, v0")
    a("s_mul_i32 s59, s57, 14")
    a(f"s_add_u32 s59, s59, {FW}")
    a("v_add_u32 v3, s59, v0")
    a("v_cmp_lt_u32 vcc, 31, v0")
    a("s_lshl_b32 s75, s57, 3")
    a(f"s_add_u32 s59, s75, {FW}")
    a("v_cndmask_b32 v2, v2, v3, vcc")
    a("v_and_b32 v4, 7, v0")
    a("v_add_u32 v3, s59, v4")
    a("v_cmp_lt_u32 vcc, 45, v0")
    a("s_add_u32 s59, s74, s75")
    a(f"s_add_u32 s59, s59, {FO}")
    a("v_cndmask_b32 v2, v2, v3, vcc")
    a("v_lshlrev_b32 v2, 7, v2")
    a("v_add_lshl_u32 v3, v4, s59, 7")
    for lam in (1, 2, 3):
        a(f"s_xor_b32 s59, s57, {lam}")
        a(f"s_mul_i32 s59, s59, 12288")
        a(f"s_add_u32 s59, s59, {2048 + (lam-1)*4096}")
        a(f"v_add_u32 v{5+lam}, s59, v1")
    a("s_mul_i32 s59, s57, 12288")
    a("s_add_u32 s59, s59, 2048")
    a("v_add_u32 v9, s59, v1")
    a("v_and_b32 v10, 31, v0")
    a("v_lshlrev_b32 v10, 10, v10")
    a("v_lshrrev_b32 v11, 5, v0")
    a("v_lshl_add_u32 v10, v11, 4, v10")
    a("s_lshl_b32 s76, s60, 15")
    a("s_lshl_b32 s59, s62, 6")
    a("s_add_u32 s76, s76, s59")
    a("s_lshl_b32 s77, s55, 2")
    a("s_add_u32 s77, s77, s57")
    a("s_add_u32 s77, s77, s74")
    a(f"s_add_u32 s77, s77, {FU}")
    a("s_waitcnt vmcnt(0)")
    set_flag(a, 77, 14, 15)
    poll_flags(a, "L_pu", [2], 4, sleep=4)
    fine(a, "pu")
    a("s_setprio 0")
    def load(ks):
        for i in range(4): load4(a, R + 16*(ks % D) + 4*i, 1, f"s{64+i}", (ks % 4)*1024)
        if ks % 4 == 3:
            for i in range(4): a(f"s_add_u32 s{64+i}, s{64+i}, 4096")
    def loadw(ks):
        for i in range(2): load4(a, WO + 8*ks + 4*i, 1, f"s{70+i}", (ks % 4)*1024)
        if ks == 3:
            for i in range(2): a(f"s_add_u32 s{70+i}, s{70+i}, 4096")
    for ks in range(D): load(ks)
    nw = 0
    for ks in range(14):
        rem = min(13 - ks, D - 1)
        a(f"s_waitcnt vmcnt({4*rem + 2*nw})")
        r = R + 16*(ks % D)
        for lam in (1, 2, 3, 0):
            mfma(a, ACC + 16*lam, r + 8 + 4*(lam & 1), r + 4*(lam >> 1), "0" if ks == 0 else None)
        if ks + D < 14: load(ks + D)
        elif nw < 8:
            loadw(nw); loadw(nw + 1); nw += 2
    fine(a, "um")
    a("s_setprio 2")
    poll_flags(a, "L_po", [3], 4, sleep=2)
    fine(a, "po")
    for ks in range(8):
        for i in range(2): load4(a, R + 8*ks + 4*i, 1, f"s{68+i}", (ks % 4)*1024)
        if ks == 3:
            for i in range(2): a(f"s_add_u32 s{68+i}, s{68+i}, 4096")
    for ks in range(8):
        a(f"s_waitcnt vmcnt({2*(7-ks)})")
        for lam in (1, 2, 3, 0):
            mfma(a, ACC + 16*lam, WO + 8*ks + 4*(lam & 1), R + 8*ks + 4*(lam >> 1))
    fine(a, "om")
    a("s_nop 7"); a("s_nop 1")
    for lam in (1, 2, 3):
        for i in range(4):
            a(f"ds_write_b128 v{5+lam}, {vr(ACC + 16*lam + 4*i, 4)} offset:{i*1024}")
    a("s_waitcnt lgkmcnt(0)")
    a("s_barrier")
    for i in range(12):
        a(f"ds_read_b128 {vr(R + 4*i, 4)}, v9 offset:{i*1024}")
    for s_ in range(3):
        a(f"s_waitcnt lgkmcnt({8 - 4*s_})")
        for p in range(0, 16, 2): a(f"v_pk_add_f32 {vr(ACC+p,2)}, {vr(ACC+p,2)}, {vr(R+16*s_+p,2)}")
    for p in range(8): a(f"v_cvt_pk_bf16_f32 v{80+p}, v{ACC+2*p}, v{ACC+2*p+1}")
    a("s_nop 1")
    for b in (80, 84):
        a(f"v_permlane32_swap_b32 v{b}, v{b+2}")
        a(f"v_permlane32_swap_b32 v{b+1}, v{b+3}")
    fl = OPT.get("ost", "")
    a(f"buffer_store_dwordx4 v[80:83], v10, {S4(OUT)}, s76 offen {fl}")
    a(f"buffer_store_dwordx4 v[84:87], v10, {S4(OUT)}, s76 offen offset:32 {fl}")
    fine_dump(a, 4, 2)
    a("s_endpgm")

def g1_front(a):
    XFR, WFR, ACC, T = 12, 20, 48, 96
    a("v_lshlrev_b32 v9, 4, v0")
    a("s_waitcnt lgkmcnt(0)")
    srd(a, WS, 26, WS_SIZE)
    a("s_cmp_lg_u32 s55, 15")
    a("s_cbranch_scc1 L_noclr")
    a("s_cmp_lg_u32 s57, 0")
    a("s_cbranch_scc1 L_noclr")
    srd(a, DBG, 24, 256)
    for r in range(12, 16): a(f"v_mov_b32 v{r}, -1")
    a("v_mov_b32 v16, 0")
    a("v_lshlrev_b32 v17, 7, v0")
    a("v_lshlrev_b32 v18, 3, v0")
    a("s_lshl_b32 s59, s54, 15")
    a(f"s_add_u32 s59, s59, {FLG}")
    for i in range(4):
        a(f"buffer_store_dword v16, v17, {S4(WS)}, s59 offen sc1")
        a("s_add_u32 s59, s59, 8192")
    a("s_lshl_b32 s59, s54, 9")
    a(f"s_add_u32 s59, s59, {GG}")
    a(f"buffer_store_dwordx2 v[12:13], v18, {S4(WS)}, s59 offen sc1")
    a("s_mul_i32 s59, s54, 14336")
    a(f"s_add_u32 s59, s59, {STATS}")
    for i in range(14):
        store4(a, 12, 9, "s59", (i % 4)*1024)
        if i % 4 == 3: a("s_add_u32 s59, s59, 4096")
    a("v_mov_b32 v17, 1")
    a("s_lshl_b32 s59, s54, 2")
    a("s_waitcnt vmcnt(0)")
    a("s_mov_b64 exec, 1")
    a(f"buffer_store_dword v17, v16, {S4(DBG)}, s59 offen sc1")
    a("s_mov_b64 exec, -1")
    a.label("L_noclr")
    fine_init(a, 250); fine_pool(list(range(4, 28, 2)) + list(range(32, 52, 2)))
    swz_read_addrs(a, 2, 60)
    tr_addr(a, 6, 11, 7, True, 16384)
    a("v_xor_b32 v7, 64, v6")
    tr_addr(a, 8, 9, 6, False, 32768)
    a("v_and_b32 v10, 0x33, v0")
    a("v_bfe_u32 v1, v0, 2, 1")
    a("v_lshl_or_b32 v10, v1, 3, v10")
    a("v_bfe_u32 v1, v0, 3, 1")
    a("v_lshl_or_b32 v10, v1, 2, v10")
    a("v_lshlrev_b32 v10, 4, v10")
    a("v_and_b32 v11, 15, v0")
    a("v_lshrrev_b32 v1, 5, v0")
    a("v_lshl_or_b32 v11, v1, 4, v11")
    a("v_lshlrev_b32 v11, 4, v11")
    a("v_bfe_u32 v1, v0, 4, 1")
    a("v_lshl_or_b32 v11, v1, 17, v11")
    a("s_lshl_b32 s59, s55, 7")
    a("s_add_u32 s59, s59, s58")
    a("s_lshl_b32 s70, s59, 11")
    a(f"s_add_u32 s70, s70, {KVF}")
    a("s_lshr_b32 s59, s55, 1")
    a("s_lshl_b32 s59, s59, 8")
    a("s_add_u32 s59, s59, s58")
    a("s_lshl_b32 s64, s59, 11")
    a(f"s_add_u32 s64, s64, {KVF}")
    a("s_mov_b32 s68, 131072")
    a("v_mov_b32 v44, 1.0")
    a("s_bitcmp1_b32 s55, 0")
    a("s_cbranch_scc1 L_isk")
    a("s_lshl_b32 s64, s59, 10")
    if QF: a(f"s_add_u32 s64, s64, {QF}")
    a("s_mov_b32 s68, 65536")
    a(f"v_mov_b32 v44, {f32(QSCALE)}")
    a("v_mov_b32 v10, v9")
    a.label("L_isk")
    for i in range(3): a(f"s_add_u32 s{65+i}, s{64+i}, s68")
    fine(a, "setup")
    win = Win(range(2, 9), 16384)
    def reads(n):
        c, ks = n >> 2, n & 3
        pre, so = win.at(slot_of(c))
        R = [f"ds_read_b128 {vr(XFR + 4*(n&1), 4)}, v{2+ks} offset:{so}"]
        for t in range(2):
            for v in range(2):
                R.append(f"ds_read_b64_tr_b16 {vr(WFR + 12*(n&1) + 4*t + 2*v, 2)}, v{6+t} offset:{so + ks*4096 + v*512}")
        for v in range(2):
            R.append(f"ds_read_b64_tr_b16 {vr(WFR + 12*(n&1) + 8 + 2*v, 2)}, v8 offset:{so + ks*1024 + v*256}")
        return pre, R
    a("s_barrier")
    pre, R = reads(0)
    for l in pre + R: a(l)
    for n in range(32):
        ks = n & 3
        xf = XFR + 4*(n&1); wf = WFR + 12*(n&1); c0 = "0" if n == 0 else None
        M = lambda t: mfma(a, ACC + 16*t, wf + 4*t, xf, c0) if t < 2 else mfma(a, ACC + 32, xf, wf + 8, c0)
        pre, R = reads(n + 1) if n < 31 else ([], [])
        a("s_waitcnt lgkmcnt(4)")
        M(0)
        if n == 31:
            a("s_waitcnt lgkmcnt(2)"); M(1)
            a("s_waitcnt lgkmcnt(0)"); M(2)
            break
        if ks == 3: a("s_barrier")
        for l in pre + R[0:3]: a(l)
        a("s_waitcnt lgkmcnt(5)"); M(1)
        for l in R[3:7]: a(l)
        a("s_waitcnt lgkmcnt(7)"); M(2)
    fine(a, "p1")
    a("s_nop 7")
    for t in range(3):
        acc = ACC + 16*t
        if t < 2:
            for p in range(16): a(f"v_mul_f32 v{acc+p}, v{acc+p}, v44")
        for p in range(8): a(f"v_cvt_pk_bf16_f32 v{T+8*t+p}, v{acc+2*p}, v{acc+2*p+1}")
        for h in range(2):
            if t < 2: store4(a, T + 8*t + 4*h, 10, f"s{64 + 2*t + h}")
            else: store4(a, T + 8*t + 4*h, 11, "s70", 1024 + 512*h)
    a("s_lshl_b32 s71, s55, 6")
    a("s_add_u32 s71, s71, s58")
    fine(a, "st")

def g1_att(a):
    Q, KS, VS, S, NM, O, T = 8, 16, 32, 64, 128, 96, 160
    O = 200
    a("s_lshl_b32 s54, s52, 2")
    a("s_lshr_b32 s59, s53, 3")
    a("s_add_u32 s54, s54, s59")
    a("s_and_b32 s55, s53, 7")
    a("s_lshl_b32 s55, s55, 3")
    a("s_lshl_b32 s59, s57, 1")
    a("s_add_u32 s55, s55, s59")
    a("s_lshl_b32 s60, s54, 6")
    a("s_add_u32 s60, s60, s55")
    a("s_lshl_b32 s60, s60, 10")
    if QF: a(f"s_add_u32 s60, s60, {QF}")
    a("s_lshl_b32 s61, s54, 17")
    a(f"s_add_u32 s61, s61, {KVF}")
    a("s_lshl_b32 s62, s57, 11")
    a("s_add_u32 s63, s61, s62")
    a("s_lshl_b32 s64, s55, 7")
    a(f"s_add_u32 s64, s64, {GG}")
    a("s_mov_b32 s66, 0xffff")
    a("s_mov_b32 s67, 0xffff")
    a("s_mul_i32 s65, s55, 88")
    a("s_add_u32 s65, s65, s54")
    a("s_lshl_b32 s65, s65, 10")
    a(f"s_add_u32 s65, s65, {AF}")
    a(f"s_add_u32 s68, s65, {88*1024}")
    a("s_lshl_b32 s76, s55, 4")
    a("s_add_u32 s76, s76, s54")
    a(f"s_add_u32 s76, s76, {FO}")
    a("v_lshlrev_b32 v4, 4, v0")
    a("v_and_b32 v5, 31, v0")
    a("v_lshlrev_b32 v5, 2, v5")
    a("v_mov_b32 v3, 0xdddd")
    a("v_mov_b32 v1, v4")
    a("v_and_b32 v2, 15, v0")
    a(f"v_lshrrev_b32 v{T}, 5, v0")
    a(f"v_lshl_or_b32 v2, v{T}, 4, v2")
    a("v_lshlrev_b32 v2, 4, v2")
    a("v_add_u32 v2, 1024, v2")
    a("v_add_u32 v176, 0x10000, v1")
    a("v_add_u32 v177, 0x10000, v2")
    a("v_mov_b32 v178, 1")
    a("s_lshl_b32 s59, s57, 2")
    a("v_mov_b32 v179, s59")
    a("v_mov_b32 v180, 0")
    a(f"v_and_b32 v{T}, 15, v0")
    a(f"v_lshlrev_b32 v{T}, 2, v{T}")
    a(f"v_bfe_u32 v{T+1}, v0, 4, 1")
    a(f"v_lshl_add_u32 v{T}, v{T+1}, 6, v{T}")
    a(f"v_add_u32 v{T}, s57, v{T}")
    a(f"v_and_b32 v{T+1}, 1, v0")
    a(f"v_add_u32 v{T+1}, s55, v{T+1}")
    a("v_cmp_lt_u32 vcc, 31, v0")
    a("s_lshr_b32 s59, s54, 2")
    a("s_lshl_b32 s59, s59, 7")
    a(f"v_cndmask_b32 v{T}, v{T}, v{T+1}, vcc")
    a("v_cmp_lt_u32 vcc, 33, v0")
    a(f"v_mov_b32 v{T+1}, 64")
    a("s_nop 0")
    a(f"v_cndmask_b32 v{T}, v{T}, v{T+1}, vcc")
    a(f"v_add_lshl_u32 v181, v{T}, s59, 7")
    a(f"v_and_b32 v{T}, 27, v0")
    a(f"v_cmp_eq_u32 vcc, 16, v{T}")
    a(f"v_mov_b32 v{T}, 0x3f803f80")
    a("s_nop 0")
    a(f"v_cndmask_b32 v{VS}, 0, v{T}, vcc")
    for r in range(VS + 1, VS + 32): a(f"v_mov_b32 v{r}, v{VS}")
    for r in range(O, O + 32): a(f"v_mov_b32 v{r}, 0")
    a("s_barrier")
    a("ds_write_b32 v5, v180")
    a("s_waitcnt vmcnt(0)")
    fine(a, "ack")
    set_flag(a, 71, 180, 178)
    poll_flags(a, "L_pq", [181], T)
    fine(a, "pq")
    load4(a, KS, 4, "s61")
    load4(a, Q, 4, "s60")
    load4(a, Q + 4, 4, "s60", 1024)
    a("s_mov_b32 m0, s62")
    a("s_cmp_eq_u32 s57, 0")
    a("s_cbranch_scc1 L_skipk0")
    a(f"buffer_load_dwordx4 v4, {S4(WS)}, s63 offen sc1 lds")
    a.label("L_skipk0")
    a(f"buffer_load_dwordx4 v4, {S4(WS)}, s63 offen offset:1024 sc1 lds")
    for n in range(1, KV0 // 4):
        a(f"s_add_u32 m0, s62, {n*8192}")
        a("s_add_u32 s63, s63, 8192")
        a(f"buffer_load_dwordx4 v4, {S4(WS)}, s63 offen sc1 lds")
        a(f"buffer_load_dwordx4 v4, {S4(WS)}, s63 offen offset:1024 sc1 lds")
    a(f"s_waitcnt vmcnt({KV0 // 2 - 1})")
    mfma(a, S, KS, Q, "0")
    mfma(a, S + 16, KS, Q + 4, "0")
    a("s_nop 7"); a("s_nop 2")
    for q in range(2):
        s_, d = S + 16*q, T + q
        a(f"v_max3_f32 v{d}, v{s_}, v{s_+1}, v{s_+2}")
        for p in range(3, 15, 2): a(f"v_max3_f32 v{d}, v{d}, v{s_+p}, v{s_+p+1}")
        a(f"v_max_f32 v{d}, v{d}, v{s_+15}")
        halfsum(a, d, T + 2, "v_max_f32")
        for r in range(16): a(f"v_sub_f32 v{NM + 16*q + r}, 0, v{d}")
    SB = [S, S + 16, S + 32]
    sb = lambda k: SB[k % 3]
    kreg = lambda kt: KS + 4*(kt & 3)
    vreg = lambda kt: VS + 8*(kt & 3)
    QK = lambda k: mfma_s(sb(k), kreg(k >> 1), Q + 4*(k & 1), NM + 16*(k & 1))
    PV = lambda k, h: f"v_smfmac_f32_32x32x32_bf16 {vr(O+16*(k&1),16)}, {vr(vreg(k>>1)+4*h,4)}, {vr(sb(k)+8*h,8)}, v3"
    a(QK(0)); a("s_nop 0"); a(QK(1))
    a("s_waitcnt vmcnt(0) lgkmcnt(0)")
    fine(a, "kv")
    a("s_barrier")
    def rd(kts, skipk=()):
        L = []
        for kt in kts:
            if kt not in skipk:
                L.append(f"ds_read_b128 {vr(kreg(kt),4)}, v{1 if kt < 32 else 176} offset:{(kt % 32)*2048}")
        L.append("s_mov_b64 exec, s[66:67]")
        for kt in kts:
            for s_ in range(2):
                L.append(f"ds_read_b128 {vr(vreg(kt)+4*s_,4)}, v{2 if kt < 32 else 177} offset:{(kt % 32)*2048 + s_*512}")
        L.append("s_mov_b64 exec, -1")
        return L
    for l in rd([0, 1, 2, 3], skipk=(0,)): a(l)
    def gl(): return [f"buffer_load_dword v6, v5, {S4(WS)}, s64 offen sc1", f"buffer_load_dword v7, v5, {S4(WS)}, s64 offen offset:128 sc1"]
    ev = []
    for k in range(0, 129):
        kt = k >> 1
        post = []
        if k % 4 == 0 and kt + 2 < 64:
            if kt + 2 == KV0: post.append("KVCHECK")
            post += rd([kt + 2, kt + 3])
        if k % 4 == 2 and kt + 1 < 64:
            post.append("s_waitcnt lgkmcnt(0)")
            if kt == 41: post.append("ds_write_b32 v179, v178")
            if kt == 51: post += gl()
        if k > 0: ev.append([PV(k - 1, 1), 16*k + 2, post, k])
        if k + 2 < 128: ev.append([QK(k + 2), 0, [], k])
        if k < 128: ev.append([PV(k, 0), 16*k + 10, [], k])
    gaps = OPT.get("gaps", (3, 6, 9))
    pos = 0; p = 7
    for i, (ins, lo, post, k) in enumerate(ev):
        if i > 0: p = next((p + g for g in gaps if p + g >= lo), max(lo, p + gaps[0]))
        p = min(p, 2048)
        while pos < p:
            if pos % 256 == 0: fine(a, f"k{pos//16}")
            a(f"v_exp_f32 v{sb(pos>>4) + (pos&15)}, v{sb(pos>>4) + (pos&15)}"); pos += 1
        if lo > 2048: a("s_nop 1")
        if i == 0: a("s_waitcnt lgkmcnt(0)")
        if ins.startswith("v_mfma"): assert p <= 16*(k + 2) - 12, (k, p)
        a(ins)
        for l in post:
            if l == "KVCHECK": lds_poll(a, "L_kvp", 180, 32, T)
            else: a(l)
    assert pos == 2048
    a(f"s_mov_b32 s70, {f32(2.0**64)}")
    a(f"s_mov_b32 s71, {f32(2.0**-64)}")
    a(f"s_mov_b32 s91, {SPIN}")
    a.label("L_ag")
    a("s_waitcnt vmcnt(0)")
    a(f"v_or_b32 v{T}, v6, v7")
    a(f"v_cmp_gt_i32 vcc, 0, v{T}")
    a("s_sub_u32 s91, s91, 1")
    a("s_cbranch_scc1 L_agd")
    a("s_cmp_eq_u64 vcc, 0")
    a("s_cbranch_scc1 L_agd")
    for l in gl(): a(l)
    a("s_branch L_ag")
    a.label("L_agd")
    a("s_nop 4")
    a(f"v_max_f32 v{T}, v{O+8}, v{O+24}")
    a(f"v_min_f32 v{T+1}, v{O+8}, v{O+24}")
    a(f"v_add_f32 v{T+2}, v{O+8}, v{O+24}")
    a(f"v_cmp_gt_f32 s[72:73], s70, v{T}")
    a(f"v_cmp_lt_f32 s[74:75], s71, v{T+1}")
    a(f"v_cmp_o_f32 vcc, v{T+2}, v{T+2}")
    a("s_nop 1")
    a("s_and_b64 s[72:73], s[72:73], s[74:75]")
    a("s_and_b64 s[72:73], s[72:73], vcc")
    a("s_cmp_eq_u64 s[72:73], -1")
    a("s_cbranch_scc0 L_slow")
    a.label("L_afin")
    fine(a, "fin")
    for q in range(2):
        o = O + 16*q
        a(f"v_rcp_f32 v{T}, v{o+8}")
        a("s_nop 0")
        a(f"v_mul_f32 v{T}, v{T}, v{6+q}")
        for r in range(8): a(f"v_mul_f32 v{o+r}, v{o+r}, v{T}")
        for p in range(4): a(f"v_cvt_pk_bf16_f32 v{T+4+4*q+p}, v{o+2*p}, v{o+2*p+1}")
        store4(a, T + 4 + 4*q, 4, "s65" if q == 0 else "s68")
    a("s_waitcnt vmcnt(0)")
    set_flag(a, 76, 180, 178)
    fine_dump(a, 0, 2)
    a("s_endpgm")
    a.label("L_slow")
    a(f"v_mov_b32 v{T}, 0xff800000")
    a(f"v_mov_b32 v{T+1}, 0xff800000")
    a("s_mov_b32 s63, s61")
    a("s_mov_b32 s69, 64")
    a.label("L_s1")
    load4(a, KS, 4, "s63")
    a("s_waitcnt vmcnt(0)")
    mfma(a, S, KS, Q, "0")
    mfma(a, S + 16, KS, Q + 4, "0")
    a("s_nop 7"); a("s_nop 3")
    for q in range(2):
        for p in range(0, 16, 2): a(f"v_max3_f32 v{T+q}, v{T+q}, v{S+16*q+p}, v{S+16*q+p+1}")
    a("s_add_u32 s63, s63, 2048")
    a("s_sub_u32 s69, s69, 1")
    a("s_cmp_lg_u32 s69, 0")
    a("s_cbranch_scc1 L_s1")
    for q in range(2): halfsum(a, T + q, T + 2, "v_max_f32")
    for r in range(O, O + 32): a(f"v_mov_b32 v{r}, 0")
    a("s_mov_b32 s63, s61")
    a("s_mov_b32 s69, 64")
    a.label("L_s2")
    load4(a, KS, 4, "s63")
    a("s_mov_b64 exec, s[66:67]")
    load4(a, VS, 2, "s63")
    load4(a, VS + 4, 2, "s63", 512)
    a("s_mov_b64 exec, -1")
    a("s_waitcnt vmcnt(0)")
    mfma(a, S, KS, Q, "0")
    mfma(a, S + 16, KS, Q + 4, "0")
    a("s_nop 7"); a("s_nop 3")
    for q in range(2):
        for p in range(16): a(f"v_sub_f32 v{S+16*q+p}, v{S+16*q+p}, v{T+q}")
        for p in range(16): a(f"v_exp_f32 v{S+16*q+p}, v{S+16*q+p}")
    a("s_nop 1")
    for q in range(2):
        for s_ in range(2):
            a(f"v_smfmac_f32_32x32x32_bf16 {vr(O+16*q,16)}, {vr(VS+4*s_,4)}, {vr(S+16*q+8*s_,8)}, v3")
    a("s_add_u32 s63, s63, 2048")
    a("s_sub_u32 s69, s69, 1")
    a("s_cmp_lg_u32 s69, 0")
    a("s_cbranch_scc1 L_s2")
    a("s_nop 7"); a("s_nop 3")
    a("s_branch L_afin")

def main():
    ref = open(f"cdna_kernels/{NAME}.s.ref").read().split("\n")
    out = [l for l in ref if l.startswith(";") and "@launch" not in l]
    k = NAME + "_kernel"
    out.append("; @launch grid=(256,1,1) block=(512,1,1) lds=163840")
    out += ['.amdgcn_target "amdgcn-amd-amdhsa--gfx950"', ".text"]
    a = Asm(); gen(a)
    bad = check(a.lines, k)
    out += [f".globl {k}", ".p2align 8", f".type {k},@function", f"{k}:"] + a.lines
    out += ['.section .rodata,"a"', ".p2align 6", f".amdhsa_kernel {k}", "  .amdhsa_next_free_vgpr 256", "  .amdhsa_next_free_sgpr 102",
            "  .amdhsa_accum_offset 256", "  .amdhsa_group_segment_fixed_size 0", "  .amdhsa_kernarg_size 96",
            "  .amdhsa_user_sgpr_count 2", "  .amdhsa_user_sgpr_kernarg_segment_ptr 1", "  .amdhsa_system_sgpr_workgroup_id_x 1",
            "  .amdhsa_float_denorm_mode_32 3", ".end_amdhsa_kernel"]
    open(sys.argv[1], "w").write("\n".join(out) + "\n")
    if OPT["stamp"]: json.dump(NAMES, open(sys.argv[1] + ".json", "w"))
    print("hazards:", bad, "lines:", len(out))
main()
```

```python
import sys, struct, re, json
from asmlib import Asm, vr, sr, check

NAME = "gated_mix__softmax_full_mha__mixer_gmlp__prompt"
MB = 1 << 20
QF, KVF, Z1F, Z2F, AF, WF = 0, 2*MB, 6*MB, 10*MB, 14*MB, 20*MB
GG = 22*MB
STATS = 22*MB + 65536
FLG = 22*MB + 512*1024
FY, FW = 0, 224
CNT = FLG + 32768
CQ, CU, CO, CZ = 0, 128, 256, 384
WS_SIZE = 28*MB
def f32(x): return "0x%08x" % struct.unpack("<I", struct.pack("<f", x))[0]
LOG2E = 1.4426950408889634
QSCALE = 0.25 * LOG2E
GC1 = -2.0 * LOG2E * 0.7978845608028654
GC2 = GC1 * 0.044715
SPIN = 1 << 16
SLOT = 36864
SCR = 147456

OPT = dict(stamp=False)
for a_ in sys.argv[2:]:
    k_, v_ = a_.split("=")
    OPT[k_] = eval(v_)

SLP = OPT.get("slp", 2)
WS, DBG, SA, SB_, SC, SD = 28, 32, 36, 40, 44, 48
def srd(a, d, p, size):
    a(f"s_mov_b32 s{d}, s{p}")
    a(f"s_mov_b32 s{d+1}, s{p+1}")
    a(f"s_mov_b32 s{d+2}, {size}")
    a(f"s_mov_b32 s{d+3}, 0x20000")
def S4(d): return f"s[{d}:{d+3}]"

FINE = dict(n=0, pool=[], names=[])
NAMES = {}
def fine_init(a, v):
    FINE["n"] = 0; FINE["names"] = []; FINE["v"] = v; FINE["pend"] = []; FINE["pool"] = []
    if OPT["stamp"]: a(f"v_mov_b32 v{v}, 0")
def fine_pool(pool): FINE["pool"] = list(pool)
def fine(a, name=""):
    if not OPT["stamp"]: return
    p = FINE["pool"][len(FINE["pend"])]
    a(f"{'s_memtime' if OPT.get('cyc') else 's_memrealtime'} s[{p}:{p+1}]")
    FINE["pend"].append(p); FINE["names"].append(name)
def fine_flush(a):
    if not OPT["stamp"]: return
    a("s_waitcnt lgkmcnt(0)")
    for p in FINE["pend"]:
        a(f"v_writelane_b32 v{FINE['v']}, s{p}, {FINE['n'] + 2}"); FINE["n"] += 1
    FINE["pend"] = []
def fine_dump(a, grp, t):
    if not OPT["stamp"]: return
    v = FINE["v"]
    a("s_memrealtime s[98:99]")
    a("s_memtime s[100:101]")
    fine_flush(a)
    if OPT.get("cyc"):
        a("s_mov_b32 s96, s94"); a("s_mov_b32 s98, s100"); NAMES["cyc"] = 1
    a("s_sub_u32 s100, s100, s94")
    a(f"v_writelane_b32 v{v}, s100, 0")
    a(f"v_writelane_b32 v{v}, s96, 1")
    a(f"v_writelane_b32 v{v}, s98, {FINE['n'] + 2}")
    NAMES[f"0,{grp}"] = ["start"] + FINE["names"] + ["end"]
    a("s_lshl_b32 s98, s2, 4")
    a("s_add_u32 s98, s98, s56")
    a("s_lshl_b32 s98, s98, 8")
    a(f"s_add_u32 s98, s98, {24*MB}")
    a(f"v_lshlrev_b32 v{t}, 2, v0")
    a(f"buffer_store_dword v{v}, v{t}, {S4(WS)}, s98 offen")

def mfma_s(d, A, B, c=None):
    cc = vr(d, 16) if c is None else (c if isinstance(c, str) else vr(c, 16))
    return f"v_mfma_f32_32x32x16_bf16 {vr(d,16)}, {vr(A,4)}, {vr(B,4)}, {cc}"
def mfma(a, d, A, B, c=None): a(mfma_s(d, A, B, c))
def store4(a, v, voff, soff, off=0):
    a(f"buffer_store_dwordx4 {vr(v,4)}, v{voff}, {S4(WS)}, {soff} offen offset:{off} sc1")
def load4(a, v, voff, soff, off=0):
    a(f"buffer_load_dwordx4 {vr(v,4)}, v{voff}, {S4(WS)}, {soff} offen offset:{off} sc1")

def swz_row_voffs(a, base, stride_shift, tmp=1):
    t, u = tmp, base + 3
    a(f"v_lshrrev_b32 v{t}, 4, v0")
    a(f"v_and_b32 v{u}, 7, v0")
    a(f"v_xor_b32 v{u}, v{u}, v{t}")
    a(f"v_lshrrev_b32 v{t}, 3, v0")
    a(f"v_lshlrev_b32 v{t}, {stride_shift}, v{t}")
    a(f"v_lshl_add_u32 v{base}, v{u}, 4, v{t}")
    st = 1 << stride_shift
    a(f"v_xor_b32 v{base+1}, 64, v{base}")
    a(f"v_add_u32 v{base+1}, {8*st - 1024}, v{base+1}")
    a(f"v_add_u32 v{base+2}, {16*st - 2048}, v{base}")
    a(f"v_add_u32 v{base+3}, {16*st - 2048}, v{base+1}")

def swz_read_addrs(a, base, sbase, tmp=1):
    t, u = tmp, base + 3
    a(f"v_bfe_u32 v{t}, v0, 1, 3")
    a(f"v_lshrrev_b32 v{u}, 5, v0")
    a(f"v_xor_b32 v{t}, v{t}, v{u}")
    a(f"v_lshlrev_b32 v{t}, 4, v{t}")
    a(f"v_and_b32 v{u}, 31, v0")
    a(f"v_lshl_add_u32 v{t}, v{u}, 7, v{t}")
    a(f"v_add_u32 v{base}, s{sbase}, v{t}")
    for ks in (1, 2, 3):
        a(f"v_xor_b32 v{base+ks}, {ks*32}, v{base}")

def tr_addr(a, d, hh_shift, row_shift, swz, add, tmp=1):
    a(f"v_lshrrev_b32 v{tmp}, 5, v0")
    a(f"v_lshlrev_b32 v{d}, {hh_shift}, v{tmp}")
    a(f"v_bfe_u32 v{tmp}, v0, 2, 2")
    a(f"v_lshl_add_u32 v{d}, v{tmp}, {row_shift}, v{d}")
    if swz:
        a(f"v_bfe_u32 v{tmp}, v0, 3, 1")
        a(f"v_lshl_add_u32 v{d}, v{tmp}, 6, v{d}")
    a(f"v_bfe_u32 v{tmp}, v0, 4, 1")
    a(f"v_lshl_add_u32 v{d}, v{tmp}, 5, v{d}")
    a(f"v_and_b32 v{tmp}, 3, v0")
    a(f"v_lshl_add_u32 v{d}, v{tmp}, 3, v{d}")
    if add: a(f"v_add_u32 v{d}, {add}, v{d}")

def gelu_list(x, t, C1, C2, n=16):
    L = [f"v_mul_f32 v{t+p}, v{x+p}, v{x+p}" for p in range(n)]
    L += [f"v_fma_f32 v{t+p}, v{t+p}, v{C2}, v{C1}" for p in range(n)]
    L += [f"v_mul_f32 v{t+p}, v{t+p}, v{x+p}" for p in range(n)]
    L += [f"v_exp_f32 v{t+p}, v{t+p}" for p in range(n)]
    L += [f"v_add_f32 v{t+p}, 1.0, v{t+p}" for p in range(n)]
    L += [f"v_rcp_f32 v{t+p}, v{t+p}" for p in range(n)]
    L += [f"v_mul_f32 v{x+p}, v{x+p}, v{t+p}" for p in range(n)]
    return L

def halfsum(a, v, t, op="v_add_f32"):
    a(f"v_mov_b32 v{t}, v{v}")
    a("s_nop 1")
    a(f"v_permlane32_swap_b32 v{v}, v{t}")
    a(f"{op} v{v}, v{v}, v{t}")

def set_flag(a, sidx, vz, vone, word=False):
    if not word:
        a(f"s_lshl_b32 s{sidx}, s{sidx}, 2")
        a(f"s_add_u32 s{sidx}, s{sidx}, s57")
    a(f"s_lshl_b32 s{sidx}, s{sidx}, 2")
    a(f"s_add_u32 s{sidx}, s{sidx}, {FLG}")
    a("s_mov_b64 exec, 1")
    a(f"buffer_store_dword v{vone}, v{vz}, {S4(WS)}, s{sidx} offen sc1")
    a("s_mov_b64 exec, -1")

def cnt_add(a, sline, vl7, vone, reps):
    a(f"s_lshl_b32 s{sline}, s{sline}, 7")
    a(f"s_add_u32 s{sline}, s{sline}, {CNT}")
    a(f"s_mov_b64 exec, {(1 << reps) - 1}")
    a(f"buffer_atomic_add v{vone}, v{vl7}, {S4(WS)}, s{sline} offen sc1")
    a("s_mov_b64 exec, -1")
def cnt_issue(a, voff, tmp, mask):
    a(f"s_mov_b64 exec, {mask}")
    a(f"v_mov_b32 v{tmp}, 0")
    a(f"buffer_atomic_add v{tmp}, v{voff}, {S4(WS)}, s90 offen sc0 sc1")
def cnt_poll(a, lbl, voff, tmp, mask, target, first_issued=False, sleep=0):
    a(f"s_mov_b32 s91, {SPIN}")
    if not first_issued: cnt_issue(a, voff, tmp, mask)
    a.label(lbl)
    a("s_waitcnt vmcnt(0)")
    a(f"v_cmp_gt_u32 vcc, {target}, v{tmp}")
    a("s_sub_u32 s91, s91, 1")
    a(f"s_cbranch_scc1 {lbl}d")
    a("s_cmp_eq_u64 vcc, 0")
    a(f"s_cbranch_scc1 {lbl}d")
    if sleep: a(f"s_sleep {sleep}")
    cnt_issue(a, voff, tmp, "vcc")
    a(f"s_branch {lbl}")
    a.label(lbl + "d")
    a("s_mov_b64 exec, -1")
def poll_issue(a, voff, tmp, n=1, srd_=None, soff="s90"):
    srd_ = WS if srd_ is None else srd_
    a(f"buffer_load_dword{'x%d' % n if n > 1 else ''} {vr(tmp, n)}, v{voff}, {S4(srd_)}, {soff} offen sc1")
def poll_flags(a, lbl, voff, tmp, n=1, srd_=None, soff="s90", first_issued=False, sleep=0, mask=None):
    issue = lambda: poll_issue(a, voff, tmp, n, srd_, soff)
    a(f"s_mov_b32 s91, {SPIN}")
    if not first_issued: issue()
    a.label(lbl)
    a("s_waitcnt vmcnt(0)")
    for i in range(1, n): a(f"v_min_u32 v{tmp}, v{tmp}, v{tmp+i}")
    a(f"v_cmp_eq_u32 vcc, 0, v{tmp}")
    a("s_sub_u32 s91, s91, 1")
    a(f"s_cbranch_scc1 {lbl}d")
    a("s_cmp_eq_u64 vcc, 0")
    a(f"s_cbranch_scc1 {lbl}d")
    if sleep: a(f"s_sleep {sleep}")
    if mask: a(f"s_and_b64 exec, vcc, {mask}")
    issue()
    a(f"s_branch {lbl}")
    a.label(lbl + "d")
    if mask: a("s_mov_b64 exec, -1")

def slot_of(g): return ((g + 2) % 4) * SLOT
class Win:
    def __init__(self, regs, span): self.regs = regs; self.base = 0; self.span = span
    def at(self, base):
        L = []
        if base < self.base or base + self.span - self.base > 65536:
            L = [f"v_add_u32 v{r}, {(base - self.base) & 0xffffffff}, v{r}" for r in self.regs]
            self.base = base
        return L, base - self.base

def gen(a):
    a("s_cmp_ge_u32 s2, 256")
    a("s_cbranch_scc1 L_end")
    if OPT["stamp"]:
        a("s_memrealtime s[96:97]"); a("s_memtime s[94:95]")
    a("s_load_dwordx16 s[4:19], s[0:1], 0")
    a("s_load_dwordx8 s[20:27], s[0:1], 64")
    a("v_lshrrev_b32 v1, 6, v0")
    a("s_and_b32 s52, s2, 7")
    a("v_readfirstlane_b32 s56, v1")
    a("s_lshr_b32 s53, s2, 3")
    a("v_and_b32 v0, 63, v0")
    a("s_and_b32 s57, s56, 3")
    a("s_and_b32 s63, s53, 3")
    a("s_lshr_b32 s54, s52, 1")
    a("s_lshl_b32 s54, s54, 2")
    a("s_add_u32 s54, s54, s63")
    a("s_lshr_b32 s61, s53, 2")
    a("s_and_b32 s59, s52, 1")
    a("s_lshl_b32 s55, s59, 3")
    a("s_add_u32 s55, s55, s61")
    a("s_sub_u32 s62, s55, s59")
    rotm = OPT.get("rotm", 2)
    if rotm == 0:
        a("s_lshl_b32 s63, s63, 1")
        a("s_add_u32 s63, s63, s61")
    else:
        a("s_lshr_b32 s3, s61, 1")
        a("s_xor_b32 s63, s63, s3")
        a(f"s_and_b32 s63, s63, {rotm - 1}")
        a("s_lshl_b32 s59, s59, 2")
        a("s_add_u32 s63, s63, s59")
        a("s_and_b32 s59, s52, 6")
        a("s_add_u32 s63, s63, s59")
        a("s_and_b32 s59, s61, 1")
        a("s_lshl_b32 s59, s59, 1")
        a("s_add_u32 s63, s63, s59")
    a("s_and_b32 s63, s63, 7")
    a("s_lshl_b32 s58, s54, 2")
    a("s_add_u32 s58, s58, s57")
    a("s_lshl_b32 s60, s57, 12")
    a(f"s_mov_b32 s90, {FLG}")
    a("s_cmp_lt_u32 s56, 4")
    a("s_cbranch_scc1 L_g1")
    g2_front(a)
    g2_spatial(a)
    g2_final(a)
    a.raw(".p2align 6")
    a.label("L_g1")
    g1_front(a)
    g1_att(a)
    a.label("L_end")
    a("s_endpgm")

XF = 128
def g2_front(a):
    X, WQ, WI, MISC = SA, SB_, SC, SD
    swz_row_voffs(a, 2, 10)
    a("v_lshrrev_b32 v1, 2, v0")
    a("v_mul_u32_u24 v10, 3072, v1")
    a("v_and_b32 v1, 4, v1")
    a("v_and_b32 v11, 7, v0")
    a("v_xor_b32 v11, v11, v1")
    a("v_lshlrev_b32 v11, 4, v11")
    a("v_lshrrev_b32 v1, 3, v0")
    a("v_mul_u32_u24 v6, 3072, v1")
    a("v_mul_u32_u24 v12, 3584, v1")
    a("v_add_u32 v6, v6, v11")
    a("v_add_u32 v12, v12, v11")
    a(f"v_add_u32 v7, {8*3072-2048}, v6")
    a(f"v_add_u32 v8, {1792-1024}, v12")
    a(f"v_add_u32 v9, {8*3584+1792-3072}, v12")
    a("v_and_b32 v1, 3, v0")
    a("v_lshl_add_u32 v10, v1, 4, v10")
    a("s_lshl_b32 s64, s58, 15")
    a(f"s_mul_i32 s65, s57, {16*3072}")
    a("s_lshl_b32 s59, s55, 6")
    a("s_add_u32 s66, s65, s59")
    a("s_add_u32 s66, s66, 2048")
    a("s_and_b32 s59, s55, 1")
    a("s_lshl_b32 s59, s59, 10")
    a("s_add_u32 s65, s65, s59")
    a("s_lshr_b32 s59, s55, 1")
    a("s_lshl_b32 s59, s59, 7")
    a("s_add_u32 s65, s65, s59")
    a(f"s_mul_i32 s67, s57, {16*3584}")
    a("s_lshl_b32 s68, s62, 7")
    a("s_add_u32 s67, s67, s68")
    a("s_lshl_b32 s69, s57, 10")
    a("s_waitcnt lgkmcnt(0)")
    srd(a, X, 4, 2048*1024)
    srd(a, WQ, 6, 512*3072)
    srd(a, WI, 12, 512*3584)
    a("s_cmp_eq_u32 s61, 7")
    a("s_cbranch_scc1 L_light")
    g2_z(a, g2_pass1(a, False))
    a("s_branch L_g2b")
    a.label("L_light")
    st = json.dumps(FINE); so = OPT["stamp"]; OPT["stamp"] = False
    g2_pass1(a, True)
    g2_light(a)
    OPT["stamp"] = so; FINE.update(json.loads(st))
    if so: a(f"v_mov_b32 v{FINE['v']}, 1")
    a.label("L_g2b")

def g2_pass1(a, light):
    X, WQ, WI, MISC = SA, SB_, SC, SD
    WFR, ACC = 32, 64
    def chunk_dma(c):
        slot = slot_of(c)
        P = [[f"s_add_u32 s70, s63, {c}", "s_and_b32 s70, s70, 7", "s_lshl_b32 s59, s70, 7", f"s_add_u32 m0, s60, {slot}", "s_add_u32 s59, s59, s64"] +
             [f"buffer_load_dwordx4 v{2+q}, {S4(X)}, s59 offen offset:{q*1024} lds" for q in range(2)],
             [f"buffer_load_dwordx4 v{2+q}, {S4(X)}, s59 offen offset:{q*1024} lds" for q in range(2, 4)] +
             [f"s_mul_i32 s71, s70, {64*3072}", f"s_add_u32 m0, s69, {slot + 32768}", "s_add_u32 s59, s71, s66",
              f"buffer_load_dwordx4 v10, {S4(WQ)}, s59 offen lds"],
             [f"s_add_u32 m0, s60, {slot + 16384}", "s_add_u32 s59, s71, s65"] +
             [f"buffer_load_dwordx4 v{6+q}, {S4(WQ)}, s59 offen offset:{q*2048} lds" for q in range(2)], []]
        if not light:
            P[3] = [f"s_mul_i32 s59, s70, {64*3584}", "s_add_u32 s59, s59, s67"] + \
                   [f"buffer_load_dwordx4 v{8+q}, {S4(WI)}, s59 offen offset:{q*2048+1024} lds" for q in range(2)]
        return P
    def z1_dma(g):
        P = [[f"s_add_u32 s70, s63, {4*(g-8)}", "s_add_u32 s70, s70, s57", "s_and_b32 s70, s70, 7", f"s_mul_i32 s70, s70, {64*3584}",
              "s_add_u32 s70, s70, s68", "s_lshl_b32 s71, s57, 13"], [], [], []]
        for h in range(2):
            P[2*h] += [f"s_add_u32 m0, s71, {slot_of(g) + h*4096}", f"s_add_u32 s59, s70, {h*32*3584}"]
            for q in range(4):
                P[2*h + q//2].append(f"buffer_load_dwordx4 v{12+q}, {S4(WI)}, s59 offen offset:{q*1024} lds")
        return P
    gsize = [7]*8 + [0, 0] if light else [9]*8 + [8, 8]
    def parts(g):
        if g < 8: return chunk_dma(g)
        return [[], [], [], []] if light else z1_dma(g)
    def group(g):
        if light and g == 1:
            a(f"s_add_u32 m0, s60, {SCR}")
            a("s_nop 0")
            a(f"buffer_load_dwordx4 v25, {S4(MISC)}, 0 offen lds")
        for p in parts(g):
            for l in p: a(l)
    group(0)
    srd(a, WS, 26, WS_SIZE)
    for q in (1, 2, 3): a(f"v_add_u32 v{12+q}, {q*(8*3584-1024)}, v12")
    swz_read_addrs(a, 16, 60)
    tr_addr(a, 20, 11, 7, True, 16384 + 1024)
    a("v_xor_b32 v21, 64, v20")
    if light:
        srd(a, MISC, 20, 1024)
        a("v_lshlrev_b32 v24, 4, v0")
        a("s_lshl_b32 s59, s63, 7")
        a("v_add_u32 v25, s59, v24")
        a("v_and_b32 v25, 1023, v25")
        a("s_and_b32 s72, s52, 1")
        a("s_lshl_b32 s72, s72, 6")
        a("s_add_u32 s72, s72, s58")
        a("s_lshl_b32 s74, s57, 14")
        a(f"s_add_u32 s74, s74, {slot_of(8)}")
        a("v_lshrrev_b32 v1, 5, v0")
        a(f"s_add_u32 s59, s60, {SCR}")
        a("v_lshl_add_u32 v28, v1, 4, s59")
    fine_init(a, 31); fine_pool([4, 6, 10, 12, 24, 26, 48, 50] + list(range(80, 90, 2))); fine(a, "setup")
    group(1)
    win = Win(range(16, 22), 16384)
    def reads(n):
        c, ks = n >> 2, n & 3
        pre, so = win.at(slot_of(c))
        R = [f"ds_read_b128 {vr(XF + 4*n, 4)}, v{16+ks} offset:{so}"]
        if light:
            R.append(f"ds_read_b128 {vr(WFR + 8*(n&1), 4)}, v28 offset:{n*32}")
        else:
            for t in range(2):
                for v in range(2):
                    R.append(f"ds_read_b64_tr_b16 {vr(WFR + 8*(n&1) + 4*t + 2*v, 2)}, v{20+t} offset:{so + ks*4096 + v*512}")
        return pre, R
    def boundary(c):
        a(f"s_waitcnt vmcnt({gsize[c+1]})")
        a("s_barrier")
        fine(a, f"b{c}")
    late = []
    boundary(0)
    pre, R = reads(0)
    for l in pre + R: a(l)
    P = parts(2)
    for l in P.pop(0): a(l)
    for n in range(32):
        ks = n & 3
        M = lambda t: mfma(a, ACC + 16*t, WFR + 8*(n&1) + 4*t, XF + 4*n, "0" if n == 0 else None)
        pre, R = reads(n + 1) if n < 31 else ([], [])
        a(f"s_waitcnt lgkmcnt({0 if light else 2})")
        M(0)
        if n == 31:
            if not light: a("s_waitcnt lgkmcnt(0)"); M(1)
            break
        if ks == 3:
            boundary((n >> 2) + 1)
            assert not P
            P = parts((n >> 2) + 3)
            if n == 27 and OPT.get("late9", 0): late, P = P, [[], [], [], []]
        for l in pre + R: a(l)
        if not light:
            a("s_waitcnt lgkmcnt(5)")
            M(1)
        for l in P.pop(0): a(l)
    fine(a, "p1")
    return late

def g2_z(a, late):
    WFR, ACC, T = 32, 64, 48
    C1, C2, SUM, SQ = 24, 25, 26, 28
    a(f"v_mov_b32 v{C1}, {f32(GC1)}")
    a(f"v_mov_b32 v{C2}, {f32(GC2)}")
    for r in range(SUM, SUM + 4): a(f"v_mov_b32 v{r}, 0")
    a("v_lshlrev_b32 v2, 4, v0")
    a("v_and_b32 v1, 31, v0")
    a("v_lshlrev_b32 v3, 3, v1")
    a("v_lshrrev_b32 v4, 5, v0")
    a("v_mul_u32_u24 v4, 7168, v4")
    a("v_add_u32 v4, v4, v3")
    for ti in range(2):
        x = ACC + 16*ti
        for i, l in enumerate(gelu_list(x, T, C1, C2)):
            if late and i >= 40 and i % 16 == 0:
                for m in late.pop(0): a(m)
            a(l)
        for p in range(16):
            a(f"v_add_f32 v{SUM+(p&1)}, v{SUM+(p&1)}, v{x+p}")
            a(f"v_fmac_f32 v{SQ+(p&1)}, v{x+p}, v{x+p}")
    a(f"v_add_f32 v{SUM}, v{SUM}, v{SUM+1}")
    a(f"v_add_f32 v{SUM+1}, v{SQ}, v{SQ+1}")
    halfsum(a, SUM, T)
    halfsum(a, SUM+1, T+1)
    a(f"v_and_b32 v{SUM+1}, 0x7fffffff, v{SUM+1}")
    tr_addr(a, 7, 10, 7, True, slot_of(8))
    a("v_xor_b32 v8, 64, v7")
    a("s_mul_i32 s64, s54, 14336")
    a("s_lshl_b32 s59, s57, 8")
    a("s_add_u32 s64, s64, s59")
    a(f"s_add_u32 s64, s64, {STATS}")
    a("s_add_u32 s65, s64, 4096")
    a("s_lshl_b32 s59, s62, 10")
    a("s_add_u32 s66, s64, s59")
    fine(a, "g2")
    a("s_waitcnt vmcnt(0)")
    a("s_barrier")
    fine(a, "bZ")
    a(f"buffer_store_dwordx2 {vr(SUM,2)}, v3, {S4(WS)}, s66 offen sc1")
    A1 = 96
    S = 10
    def stat_loads():
        for i in range(7):
            a(f"buffer_load_dwordx2 {vr(S+2*i,2)}, v4, {S4(WS)}, {'s64' if i < 4 else 's65'} offen offset:{(i%4)*1024} sc1")
    def rd(n):
        if n == 16:
            for r in (7, 8): a(f"v_add_u32 v{r}, {SLOT}, v{r}")
        for t in range(2):
            for v in range(2):
                a(f"ds_read_b64_tr_b16 {vr(WFR + 8*(n%4) + 4*t + 2*v, 2)}, v{7+t} offset:{(n%16)*2048 + v*512}")
    b = Asm()
    b("v_bfe_u32 v1, v0, 1, 3")
    b("v_lshrrev_b32 v5, 5, v0")
    b("v_xor_b32 v1, v1, v5")
    b("v_and_b32 v5, 31, v0")
    b("v_lshlrev_b32 v5, 6, v5")
    b("v_lshl_add_u32 v5, v1, 3, v5")
    b(f"s_add_u32 s59, s60, {SCR}")
    b("v_add_u32 v5, s59, v5")
    b("v_xor_b32 v28, 16, v5")
    b("v_xor_b32 v29, 32, v5")
    b("v_xor_b32 v30, 48, v5")
    tr_addr(b, 6, 9, 6, False, 0)
    b("v_bfe_u32 v1, v0, 3, 1")
    b("v_lshrrev_b32 v9, 5, v0")
    b("v_lshl_or_b32 v1, v9, 2, v1")
    b("v_lshlrev_b32 v1, 3, v1")
    b("v_xor_b32 v6, v6, v1")
    b("v_add_u32 v6, s59, v6")
    b("v_xor_b32 v9, 16, v6")
    b("s_mul_i32 s67, s58, 28")
    b("s_lshl_b32 s59, s62, 1")
    b("s_add_u32 s67, s67, s59")
    b("s_lshl_b32 s67, s67, 11")
    b(f"s_add_u32 s67, s67, {Z1F}")
    b("s_lshl_b32 s68, s62, 18")
    b("s_lshl_b32 s59, s58, 11")
    b("s_add_u32 s68, s68, s59")
    b(f"s_add_u32 s68, s68, {Z2F}")
    b("s_add_u32 s69, s68, 131072")
    b("s_lshl_b32 s70, s62, 4")
    b("s_add_u32 s70, s70, s54")
    b("s_lshr_b32 s78, s70, 2")
    b("s_lshl_b32 s78, s78, 3")
    b(f"s_add_u32 s78, s78, {CZ}")
    b(f"s_add_u32 s70, s70, {FY}")
    kv = kv_rest(b)
    sp_setup_w(b)
    kv = wdma(0, WV) + kv
    side = list(b.lines)
    rd(0); rd(1)
    for n in range(32):
        for _ in range(4):
            if side and n > 1: a(side.pop(0))
        if n + 2 < 32: rd(n + 2)
        a(f"s_waitcnt lgkmcnt({4*min(2, 31-n)})")
        for t in range(2): mfma(a, A1 + 16*t, WFR + 8*(n%4) + 4*t, XF + 4*n, "0" if n == 0 else None)
        if n == OPT.get("stpos", 20): stat_loads()
    fine(a, "z1")
    fine_flush(a)
    assert not side
    a(f"s_mov_b32 s91, {SPIN}")
    a.label("L_stp")
    a("s_waitcnt vmcnt(0)")
    a(f"v_or3_b32 v1, v{S+1}, v{S+3}, v{S+5}")
    a(f"v_or3_b32 v1, v1, v{S+7}, v{S+9}")
    a(f"v_or3_b32 v1, v1, v{S+11}, v{S+13}")
    a("v_cmp_gt_i32 vcc, 0, v1")
    a("s_sub_u32 s91, s91, 1")
    a("s_cbranch_scc1 L_stpd")
    a("s_cmp_eq_u64 vcc, 0")
    a("s_cbranch_scc1 L_stpd")
    a(f"s_sleep {SLP}")
    stat_loads()
    a("s_branch L_stp")
    a.label("L_stpd")
    fine(a, "stat")
    for i in range(1, 7):
        a(f"v_add_f32 v{S}, v{S}, v{S+2*i}")
        a(f"v_add_f32 v{S+1}, v{S+1}, v{S+2*i+1}")
    halfsum(a, S, T)
    halfsum(a, S+1, T+1)
    a(f"v_mul_f32 v{S}, {f32(1.0/896)}, v{S}")
    a(f"v_mul_f32 v{S+1}, {f32(1.0/896)}, v{S+1}")
    a(f"v_fma_f32 v{S+1}, -v{S}, v{S}, v{S+1}")
    a(f"v_max_f32 v{S+1}, 0, v{S+1}")
    a(f"v_add_f32 v{S+1}, {f32(1e-5)}, v{S+1}")
    a(f"v_rsq_f32 v{S+2}, v{S+1}")
    a("s_nop 0")
    a(f"v_mul_f32 v{S+3}, -v{S}, v{S+2}")
    for ti in range(2):
        x = ACC + 16*ti
        for p in range(16): a(f"v_fma_f32 v{x+p}, v{x+p}, v{S+2}, v{S+3}")
        o = T + 8*ti
        for p in range(8): a(f"v_cvt_pk_bf16_f32 v{o+p}, v{x+2*p}, v{x+2*p+1}")
        for i in range(4): a(f"ds_write_b64 v{[5, 28, 29, 30][i]}, {vr(o+2*i,2)} offset:{ti*2048}")
    a("s_waitcnt lgkmcnt(0)")
    for ti in range(2):
        for k in range(2):
            for v in range(2):
                a(f"ds_read_b64_tr_b16 {vr(WFR + ti*8 + k*4 + v*2, 2)}, v{9 if v else 6} offset:{ti*2048 + k*1024 + v*256}")
    for ti in range(2):
        for k in range(2):
            a(f"s_waitcnt lgkmcnt({6 - 2*(ti*2+k)})")
            store4(a, WFR + ti*8 + k*4, 2, "s68" if ti == 0 else "s69", k*1024)
    fine(a, "ln")
    a("s_barrier"); a("s_setprio 2")
    fine(a, "B1")
    a("v_lshlrev_b32 v10, 7, v0")
    a("v_mov_b32 v11, 1")
    for ti in range(2):
        x = A1 + 16*ti; o = ACC + 8*ti
        L = gelu_list(x, T, C1, C2) + [f"v_cvt_pk_bf16_f32 v{o+p}, v{x+2*p}, v{x+2*p+1}" for p in range(8)]
        if ti == 1:
            a("s_waitcnt vmcnt(0)")
            cnt_add(a, 78, 10, 11, 8)
            fine(a, "fz")
        for i, l in enumerate(L):
            if ti == 1 and i % 6 == 0 and kv:
                for m in kv.pop(0): a(m)
            a(l)
    assert not kv
    for i in range(4): store4(a, ACC + 4*i, 2, "s67", i*1024)

KV0 = 16
def kv_rest(a):
    a("s_lshl_b32 s59, s52, 2")
    a("s_lshr_b32 s71, s53, 3")
    a("s_add_u32 s59, s59, s71")
    a("s_lshl_b32 s71, s59, 17")
    a("s_lshl_b32 s92, s57, 11")
    a("s_add_u32 s71, s71, s92")
    a(f"s_add_u32 s71, s71, {KVF}")
    return kv_batch(1, 2)
def kv_batch(b, v):
    return [[f"s_add_u32 m0, s92, {n*8192}", f"s_add_u32 s59, s71, {n*8192}",
             f"buffer_load_dwordx4 v{v}, {S4(WS)}, s59 offen sc1 lds",
             f"buffer_load_dwordx4 v{v}, {S4(WS)}, s59 offen offset:1024 sc1 lds"] for n in range(4*b, 4*b + 4)]

def g2_light(a):
    a("v_lshlrev_b32 v2, 4, v0")
    tr_addr(a, 3, 12, 10, False, 0)
    a("v_add_u32 v3, s74, v3")
    a("s_nop 2")
    a(f"v_mul_f32 v4, {f32(-LOG2E)}, v64")
    a("v_exp_f32 v4, v4")
    a("v_and_b32 v5, 31, v0")
    a("v_add_f32 v4, 1.0, v4")
    a("v_rcp_f32 v4, v4")
    a("v_lshlrev_b32 v5, 2, v5")
    a("v_and_b32 v4, 0x7fffffff, v4")
    a("s_barrier")
    a("s_cmp_lt_u32 s72, 64")
    a("s_cbranch_scc1 L_nog")
    a("s_lshl_b32 s59, s58, 7")
    a(f"s_add_u32 s59, s59, {GG}")
    a(f"buffer_store_dword v4, v5, {S4(WS)}, s59 offen sc1")
    a.label("L_nog")
    a("s_cmp_ge_u32 s72, 88")
    a("s_cbranch_scc1 L_now")
    MISC = SD
    a("s_lshl_b32 s73, s72, 14")
    srd(a, MISC, 8, 512*1024)
    a("s_cmp_lt_u32 s72, 32")
    a("s_cbranch_scc1 L_wo")
    srd(a, MISC, 18, 896*1024)
    a(f"s_sub_u32 s73, s73, {32*16384}")
    a.label("L_wo")
    for g in range(4):
        a(f"s_add_u32 m0, s74, {g*4096}")
        a("s_nop 0")
        for i in range(4):
            a(f"buffer_load_dwordx4 v2, {S4(MISC)}, s73 offen offset:{i*1024} lds")
        a("s_add_u32 s73, s73, 4096")
    a("s_lshl_b32 s65, s72, 10")
    a(f"s_add_u32 s65, s65, {WF}")
    a("s_waitcnt vmcnt(0)")
    for nt in range(16):
        for v in range(2):
            a(f"ds_read_b64_tr_b16 {vr(32 + nt*4 + v*2, 2)}, v3 offset:{v*8192 + nt*64}")
    a("s_lshr_b32 s70, s72, 2")
    kv = kv_rest(a)
    sp_setup_w(a)
    a("s_waitcnt lgkmcnt(0)")
    a("s_barrier")
    for g in wdma(0, WV) + kv:
        for m in g: a(m)
    for nt in range(16):
        store4(a, 32 + nt*4, 2, "s65", 0)
        a(f"s_add_u32 s65, s65, {88*1024}")
    a("s_branch L_now2")
    a.label("L_now")
    a("s_lshr_b32 s70, s72, 2")
    kv = kv_rest(a)
    sp_setup_w(a)
    a("s_barrier")
    for g in wdma(0, WV) + kv:
        for m in g: a(m)
    a.label("L_now2")
    a(f"s_add_u32 s70, s70, {FW}")
    a("s_setprio 2")

TILES = [(0, 0), (0, 1), (0, 2), (0, 3), (1, 0), (1, 1), (1, 2)]
def lds_poll(a, lbl, vz, off, t):
    a(f"s_mov_b32 s91, {SPIN}")
    a.label(lbl)
    a(f"ds_read_b128 {vr(t,4)}, v{vz} offset:{off}")
    a("s_waitcnt lgkmcnt(0)")
    a(f"v_and_b32 v{t}, v{t}, v{t+1}")
    a(f"v_and_b32 v{t+2}, v{t+2}, v{t+3}")
    a(f"v_and_b32 v{t}, v{t}, v{t+2}")
    a("s_sub_u32 s91, s91, 1")
    a(f"v_readfirstlane_b32 s59, v{t}")
    a(f"s_cbranch_scc1 {lbl}d")
    a("s_cmp_lg_u32 s59, 0")
    a(f"s_cbranch_scc1 {lbl}d")
    a("s_sleep 2")
    a(f"s_branch {lbl}")
    a.label(lbl + "d")

WV = 128
def sp_setup_w(a):
    a("s_lshr_b32 s76, s52, 1")
    a("s_lshl_b32 s76, s76, 3")
    a("s_and_b32 s59, s53, 7")
    a("s_add_u32 s76, s76, s59")
    a("s_and_b32 s77, s52, 1")
    a("s_lshl_b32 s77, s77, 2")
    a("s_lshr_b32 s59, s53, 3")
    a("s_add_u32 s77, s77, s59")
    a("s_lshl_b32 s93, s59, 1")
    if OPT.get("srot", 0) == 1:
        a("s_and_b32 s59, s52, 1")
        a("s_add_u32 s93, s93, s59")
    if OPT.get("srot", 0) == 0: a("s_mov_b32 s93, 0")
    a("s_and_b32 s59, s77, 1")
    a("s_lshl_b32 s74, s76, 1")
    a("s_add_u32 s74, s74, s59")
    a("s_xor_b32 s75, s74, 1")
    a("s_lshl_b32 s59, s57, 10")
    for i in range(2):
        a(f"s_lshl_b32 s{74+i}, s{74+i}, 17")
        a(f"s_add_u32 s{74+i}, s{74+i}, s59")
    a("s_lshl_b32 s72, s57, 13")
    a("s_add_u32 s72, s72, 0x20000")
    a("s_add_u32 s73, s72, 4096")
    srd(a, SA, 14, 2048*4096)
    swz_row_voffs(a, WV, 12)
def wdma(st, v=2):
    P = []
    for t in range(2):
        pre = [f"s_add_u32 s3, s93, {st}", "s_and_b32 s3, s3, 7", "s_lshl_b32 s3, s3, 7"] if t == 0 else []
        pre += [f"s_mov_b32 m0, s{72+t}", f"s_add_u32 s59, s3, s{74+t}"]
        for q in range(4):
            P.append(pre + [f"buffer_load_dwordx4 v{v+q}, {S4(SA)}, s59 offen offset:{q*1024} lds"]); pre = []
    return P

def g2_spatial(a):
    WSP, BSP = SA, SB_
    WFR, ZS, ACC, T = 16, 48, 112, 224
    FV = 11
    if OPT["stamp"]:
        fine_flush(a); a(f"v_mov_b32 v{FV}, v{FINE['v']}"); FINE["v"] = FV
        fine_pool([4, 6, 8, 10, 12, 18, 20, 24, 26, 32, 34])
    a("s_mov_b32 s54, s76")
    a("s_mov_b32 s55, s77")
    a("s_and_b32 s58, s55, 1")
    a("s_lshl_b32 s60, s54, 1")
    a("s_add_u32 s60, s60, s58")
    a("s_xor_b32 s61, s60, 1")
    a("s_lshr_b32 s59, s55, 1")
    a("s_mul_i32 s59, s59, 7")
    a("s_add_u32 s65, s59, 3")
    a("s_lshl_b32 s62, s58, 2")
    a("s_add_u32 s62, s62, s59")
    a("s_add_u32 s63, s62, 1")
    a("s_add_u32 s64, s62, 2")
    a("s_lshl_b32 s59, s57, 15")
    a(f"s_add_u32 s59, s59, {Z2F}")
    for i in range(4):
        a(f"s_lshl_b32 s{66+i}, s{62+i}, 17")
        a(f"s_add_u32 s{66+i}, s{66+i}, s59")
    for n, (t, f) in enumerate(TILES):
        a(f"s_mul_i32 s59, s{60+t}, 28")
        a(f"s_add_u32 s59, s59, s{62+f}")
        a(f"s_lshl_b32 s59, s59, 11")
        a(f"s_add_u32 s{76+n}, s59, {Z1F}")
        a(f"s_mul_i32 s59, s{60+t}, 44")
        a(f"s_add_u32 s59, s59, s{62+f}")
        a(f"s_lshl_b32 s59, s59, 11")
        a(f"s_add_u32 s{83+n}, s59, {AF + 32*1024}")
    srd(a, BSP, 16, 4096)
    a("v_lshlrev_b32 v1, 4, v0")
    for q in range(4): a(f"v_mov_b32 v{2+q}, v{WV+q}")
    swz_read_addrs(a, 6, 72, tmp=10)
    a("v_mov_b32 v14, 0")
    a("v_mov_b32 v15, 1")
    a("s_lshl_b32 s59, s57, 2")
    a("s_add_u32 s59, s59, 32")
    a("v_mov_b32 v13, s59")
    a("v_lshrrev_b32 v10, 4, v0")
    a("s_lshr_b32 s59, s62, 1")
    a("v_mov_b32 v18, s59")
    a("s_lshr_b32 s59, s64, 1")
    a("v_mov_b32 v16, s59")
    a("v_cmp_eq_u32 vcc, 1, v10")
    a("s_lshr_b32 s59, s65, 1")
    a("v_mov_b32 v17, s59")
    a("v_cndmask_b32 v18, v18, v16, vcc")
    a("v_cmp_eq_u32 vcc, 2, v10")
    a("s_lshl_b32 s59, s57, 3")
    a("s_and_b32 s3, s53, 7")
    a("v_cndmask_b32 v18, v18, v17, vcc")
    a("s_add_u32 s59, s59, s3")
    a(f"s_add_u32 s59, s59, {(CNT - FLG)//128 + CZ}")
    a("v_lshl_add_u32 v10, v18, 5, s59")
    a("v_lshlrev_b32 v10, 7, v10")
    a("v_and_b32 v16, 3, v0")
    a("s_lshr_b32 s59, s54, 1")
    a(f"s_add_u32 s59, s59, {FY}")
    a("v_lshl_add_u32 v12, v18, 4, s59")
    a("v_lshl_add_u32 v12, v12, 2, v16")
    a("v_lshrrev_b32 v17, 4, v0")
    a("v_mul_u32_u24 v17, 12, v17")
    a("v_and_b32 v16, 15, v0")
    a("v_add3_u32 v17, v17, v16, -4")
    a("v_cmp_lt_u32 vcc, 13, v17")
    a("s_mul_i32 s59, s57, 14")
    a("s_add_u32 s59, s59, 32")
    a("v_add_u32 v18, s59, v17")
    a("v_add_u32 v17, -14, v17")
    a("v_min_u32 v17, 31, v17")
    a("v_cndmask_b32 v17, v18, v17, vcc")
    a("v_cmp_lt_u32 vcc, 3, v16")
    a(f"v_add_u32 v17, {4*FW}, v17")
    a("s_nop 0")
    a("v_cndmask_b32 v12, v12, v17, vcc")
    a("v_lshlrev_b32 v12, 2, v12")
    a("s_lshl_b32 s48, s55, 1")
    a("s_and_b32 s59, s57, 1")
    a("s_add_u32 s48, s48, s59")
    a("s_xor_b32 s49, s48, 1")
    a(f"s_mul_i32 s59, s57, {14*1024}")
    a(f"s_add_u32 s59, s59, {WF + 32*1024}")
    for i in range(2):
        a(f"s_mul_i32 s{48+i}, s{48+i}, {88*1024}")
        a(f"s_add_u32 s{48+i}, s{48+i}, s59")
    def zbase(st):
        return [f"s_add_u32 s59, s93, {st}", "s_and_b32 s59, s59, 7", "s_lshl_b32 s59, s59, 12"] + \
               [f"s_add_u32 s{44+i}, s59, s{66+i}" for i in range(4)]
    zl = lambda ks, f: f"buffer_load_dwordx4 {vr(ZS + 16*ks + 4*f, 4)}, v1, {S4(WS)}, s{44+f} offen offset:{ks*1024} sc1"
    wset = lambda st: WFR if st % 2 == 0 else T
    def wread(st): return [f"ds_read_b128 {vr(wset(st) + 16*t + 4*ks, 4)}, v{6+ks} offset:{t*4096}" for ks in range(4) for t in range(2)]
    emit = lambda P: [a(l) for p in P for l in p]
    a("s_mov_b32 s50, 0x10001"); a("s_mov_b32 s51, 1")
    cnt_issue(a, 10, 48, "s[50:51]")
    a("s_waitcnt vmcnt(0)")
    a("ds_write_b32 v13, v15")
    fine(a, "kvl")
    cnt_poll(a, "L_pz", 10, 48, None, 16, first_issued=True, sleep=SLP)
    fine(a, "pz")
    set_flag(a, 70, 14, 15)
    a("s_setprio 0")
    for l in zbase(0): a(l)
    log = []
    for ks in range(4):
        for f in range(4): a(zl(ks, f)); log.append(("z", 0, ks, f))
    for l in wread(0): a(l)
    a("s_waitcnt lgkmcnt(0)")
    emit(wdma(1)); log += [("w", 1)]*8
    def wait_for(tag):
        idx = max(i for i, t in enumerate(log) if t == tag)
        a(f"s_waitcnt vmcnt({len(log) - 1 - idx})")
    KVB = {OPT.get("kvb2", 0): 2, OPT.get("kvb3", 2): 3}
    wq = []; wn = [0]
    for st in range(8):
        if st % 2 == 0: fine(a, f"s{st}")
        if st < 7:
            for l in zbase(st + 1): a(l)
        extra = []
        for ks in range(4):
            if ks == 0 and st in KVB: extra = [(g, ("kv", st), 2) for g in kv_batch(KVB[st], 1)]
            if ks == 3 and st < 6: extra = [(g, ("w", st + 2), 1) for g in wdma(st + 2)]
            for f in range(4):
                wait_for(("z", st, ks, f))
                if ks == 3 and f == 0 and st < 7: a("s_waitcnt lgkmcnt(0)")
                for t in range(2 if f < 3 else 1):
                    mfma(a, ACC + 16*TILES.index((t, f)), ZS + 16*ks + 4*f, wset(st) + 16*t + 4*ks, "0" if st + ks == 0 else None)
                if st < 7: a(zl(ks, f)); log.append(("z", st + 1, ks, f))
                else:
                    for wk in ([f] if ks == 0 else []) + ([4 + 2*ks + f//2] if f % 2 else []): wq.append(wk)
                    while wq and min(wq) == wn[0]:
                        wq.remove(wn[0]); pair(a, 16 + 8*wn[0], 48, wn[0]); log += [("u", wn[0])]*2; wn[0] += 1
                if st == 5 and ks == 0 and f == 0:
                    poll_issue(a, 12, 10); log.append(("f",))
                if st == 6 and ks == 1 and f == 0:
                    a("s_setprio 2")
                    wait_for(("f",))
                    a("v_cmp_eq_u32 vcc, 0, v10")
                    a("s_nop 1")
                    a("s_cmp_eq_u64 vcc, 0")
                    a("s_cbranch_scc1 L_pyd")
                    poll_flags(a, "L_py", 12, 10, sleep=SLP)
                    a("s_setprio 0")
                for _ in range(2 if ks == 3 else 1):
                    if extra:
                        g, tag, cnt = extra.pop(0)
                        for l in g: a(l)
                        log += [tag]*cnt
                if ks == 2 and f == 0 and st < 7:
                    wait_for(("w", st + 1))
                    for l in wread(st + 1): a(l)
                    if st - 1 in KVB: a(f"ds_write_b32 v13, v15 offset:{16*(KVB[st-1] - 1)}")
    assert wn[0] == 12
    fine(a, "mm")
    a("s_setprio 2")
    Z1R, U, B_, G_ = 224, 240, 248, 250
    a("v_and_b32 v2, 31, v0")
    a("v_lshlrev_b32 v4, 2, v2")
    a("v_lshlrev_b32 v2, 1, v2")
    for t in range(2):
        a(f"s_lshl_b32 s59, s{60+t}, 6")
        a(f"buffer_load_ushort v{B_+t}, v2, {S4(BSP)}, s59 offen")
        a(f"s_lshl_b32 s{74+t}, s{60+t}, 7")
        a(f"s_add_u32 s{74+t}, s{74+t}, {GG}")
    def gl():
        for t in range(2): a(f"buffer_load_dword v{G_+t}, v4, {S4(WS)}, s{74+t} offen sc1")
    gl()
    a("v_add_u32 v3, 0x10000, v1")
    a("v_add_u32 v5, -16, v13")
    owner = [0,0,0,0,1,1,1,1,2,2,2,3,3,3]
    def slot(n, src):
        si = src if src < owner[n] else src - 1
        ad = 2048 + (n*3 + si)*2048
        return (1, ad) if ad + 1024 < 65536 else (3, ad - 65536)
    st_ = json.dumps(FINE)
    for w in range(4):
        FINE.update(json.loads(st_))
        if w < 3:
            a(f"s_cmp_lg_u32 s57, {w}")
            a(f"s_cbranch_scc1 L_w{w+1}")
        mine = [n for n in range(14) if owner[n] == w]
        free = [ACC + 8*n for n in range(14) if owner[n] != w]
        for i, m in enumerate(mine): load4(a, Z1R + 4*i, 1, f"s{76 + (m>>1)}", (m&1)*1024)
        lds_poll(a, f"L_pa{w}", 14, 0, 6)
        fine(a, "pa")
        for n in range(14):
            if owner[n] != w:
                r, ad = slot(n, w)
                a(f"ds_write_b128 v{r}, {vr(ACC+8*n,4)} offset:{ad}")
                a(f"ds_write_b128 v{r}, {vr(ACC+8*n+4,4)} offset:{ad+1024}")
                if OPT.get("wpace", 2) == 1: a("s_waitcnt lgkmcnt(0)")
                if OPT.get("wpace", 2) == 2: a("s_waitcnt lgkmcnt(2)")
        a("s_waitcnt lgkmcnt(0)")
        a("ds_write_b32 v5, v15")
        a(f"s_mov_b32 s91, {SPIN}")
        a.label(f"L_gp{w}")
        a("s_waitcnt vmcnt(0)")
        a(f"v_or_b32 v6, v{G_}, v{G_+1}")
        a("v_cmp_gt_i32 vcc, 0, v6")
        a("s_sub_u32 s91, s91, 1")
        a(f"s_cbranch_scc1 L_gp{w}d")
        a("s_cmp_eq_u64 vcc, 0")
        a(f"s_cbranch_scc1 L_gp{w}d")
        gl()
        a(f"s_branch L_gp{w}")
        a.label(f"L_gp{w}d")
        for t in range(2):
            a(f"v_sub_f32 v{252+2*t}, 1.0, v{G_+t}")
            a(f"v_lshlrev_b32 v{B_+t}, 16, v{B_+t}")
            a(f"v_mul_f32 v{253+2*t}, v{B_+t}, v{252+2*t}")
        lds_poll(a, f"L_pb{w}", 14, 16, 6)
        fine(a, "pb")
        def rdp(i):
            n = mine[i]
            for si, src in enumerate([s_ for s_ in range(4) if s_ != w]):
                r, ad = slot(n, src)
                a(f"ds_read_b128 {vr(free[3*(i&1) + si], 4)}, v{r} offset:{ad}")
                a(f"ds_read_b128 {vr(free[3*(i&1) + si] + 4, 4)}, v{r} offset:{ad+1024}")
        rdp(0)
        for i, n in enumerate(mine):
            if i + 1 < len(mine):
                rdp(i + 1); a("s_waitcnt lgkmcnt(6)")
            else:
                a("s_waitcnt lgkmcnt(0)")
                a("ds_write_b32 v13, v15 offset:80")
            x = ACC + 8*n; t = TILES[n >> 1][0]
            for si in range(3):
                for p in range(8): a(f"v_add_f32 v{x+p}, v{x+p}, v{free[3*(i&1) + si]+p}")
            for p in range(8): a(f"v_fma_f32 v{x+p}, v{x+p}, v{252+2*t}, v{253+2*t}")
            for p in range(4):
                a(f"v_lshlrev_b32 v{U+2*p}, 16, v{Z1R+4*i+p}")
                a(f"v_and_b32 v{U+2*p+1}, 0xffff0000, v{Z1R+4*i+p}")
            for p in range(8): a(f"v_mul_f32 v{x+p}, v{x+p}, v{U+p}")
            o = Z1R + 4*i
            for p in range(4): a(f"v_cvt_pk_bf16_f32 v{o+p}, v{x+2*p}, v{x+2*p+1}")
            store4(a, o, 1, f"s{83 + (n>>1)}", (n&1)*1024)
        if w < 3:
            a("s_branch L_fin")
            a.label(f"L_w{w+1}")
    a.label("L_fin")

def out_tiles(a, rp, cg):
    a(f"s_lshl_b32 s60, s{rp}, 1")
    a("s_lshr_b32 s59, s57, 1")
    a("s_add_u32 s60, s60, s59")
    a("s_xor_b32 s61, s60, 1")
    a(f"s_lshl_b32 s62, s{cg}, 1")
    a("s_and_b32 s59, s57, 1")
    a("s_add_u32 s62, s62, s59")
    a("s_xor_b32 s63, s62, 1")
def pair(a, reg, sb, ks, v=1, n=2):
    for i in range(n): load4(a, reg + 4*i, v, f"s{sb+i}", (ks % 4)*1024)
    if ks % 4 == 3:
        for i in range(n): a(f"s_add_u32 s{sb+i}, s{sb+i}, 4096")
WOL = 2048
RED2, RED1 = 67584, 106496
def red_setup(a, grp, vl, vw, vr_, vo):
    def base(g, lam, v):
        a(f"s_xor_b32 s59, s57, {lam}")
        if g:
            a("s_lshr_b32 s3, s59, 1")
            a(f"s_mul_i32 s3, s3, {131072 - RED2 - 2*14336}")
        a(f"s_mul_i32 s59, s59, {14336 if g else 6144}")
        if g: a("s_add_u32 s59, s59, s3")
        a(f"s_add_u32 s59, s59, {RED2 if g else RED1}")
        a(f"v_add_u32 v{v}, s59, v{vl}")
    for lam in range(4 if grp else 2): base(grp, lam, vw + lam)
    base(1 - grp, 0, vr_)
    a(f"v_and_b32 v{vo}, 31, v0")
    a(f"v_lshlrev_b32 v{vo}, 10, v{vo}")
    a(f"v_lshrrev_b32 v{vo+1}, 5, v0")
    a(f"v_lshl_add_u32 v{vo}, v{vo+1}, 4, v{vo}")
    a("s_lshl_b32 s76, s60, 15")
    a("s_lshl_b32 s59, s62, 6")
    a("s_add_u32 s76, s76, s59")
    srd(a, SC, 22, 2048*1024)
def red_final(a, grp, ACC, vw, vr_, vo, R):
    W = lambda lam, half, slot: [f"ds_write_b128 v{vw+lam}, {vr(ACC + 16*lam + 8*half + 4*i, 4)} offset:{slot*2048 + i*1024}" for i in range(2)]
    L = []
    if grp:
        for lam in (1, 2, 3): L += W(lam, 0, lam) + W(lam, 1, 3 + lam)
        L += W(0, 0, 0)
        src = [(vw, 4), (vw, 5), (vw, 6), (vr_, 1), (vr_, 2)]
    else:
        L += W(1, 0, 0) + W(1, 1, 2) + W(0, 1, 1)
        src = [(vw, 0), (vr_, 0), (vr_, 1), (vr_, 2), (vr_, 3)]
    for l in L: a(l)
    a("s_waitcnt lgkmcnt(0)")
    a("s_barrier")
    for j, (v, slot) in enumerate(src):
        for i in range(2): a(f"ds_read_b128 {vr(R + 8*j + 4*i, 4)}, v{v} offset:{slot*2048 + i*1024}")
    x = ACC + 8*grp
    for j in range(5):
        a(f"s_waitcnt lgkmcnt({8 - 2*j})")
        for p in range(0, 8, 2): a(f"v_pk_add_f32 {vr(x+p,2)}, {vr(x+p,2)}, {vr(R+8*j+p,2)}")
    for p in range(4): a(f"v_cvt_pk_bf16_f32 v{R+p}, v{x+2*p}, v{x+2*p+1}")
    a("s_nop 1")
    a(f"v_permlane32_swap_b32 v{R}, v{R+2}")
    a(f"v_permlane32_swap_b32 v{R+1}, v{R+3}")
    a(f"buffer_store_dwordx4 {vr(R,4)}, v{vo}, {S4(SC)}, s76 offen offset:{32*grp} {OPT.get('ost', '')}")

def g2_final(a):
    WU, R, ACC = 16, 128, 176
    D = 6
    fine(a, "u")
    fine_flush(a)
    out_tiles(a, 54, 55)
    a(f"s_mul_i32 s72, s57, {14*1024}")
    for i in range(2):
        a(f"s_mul_i32 s59, s{60+i}, {88*1024}")
        a(f"s_add_u32 s59, s59, s72")
        a(f"s_add_u32 s{64+i}, s59, {AF + 32*1024}")
    a("s_lshl_b32 s77, s54, 2")
    a(f"s_add_u32 s77, s77, {CU}")
    a("s_add_u32 s59, s77, s57")
    a("s_lshl_b32 s59, s59, 7")
    a(f"s_add_u32 s59, s59, {CNT - FLG}")
    a("v_mov_b32 v2, s59")
    a("v_lshlrev_b32 v4, 7, v0")
    a("v_mov_b32 v3, v13")
    a("s_lshl_b32 s66, s55, 1")
    a("s_lshr_b32 s59, s57, 1")
    a("s_add_u32 s66, s66, s59")
    a(f"s_mul_i32 s66, s66, {88*1024}")
    a("s_and_b32 s59, s57, 1")
    a("s_lshl_b32 s59, s59, 14")
    a("s_add_u32 s66, s66, s59")
    a(f"s_add_u32 s66, s66, {WF}")
    a("s_lshl_b32 s67, s57, 14")
    red_setup(a, 1, 1, 5, 9, 12)
    lds_poll(a, "L_prd", 14, 112, 240)
    a("s_waitcnt vmcnt(0)")
    cnt_add(a, 77, 4, 15, 4)
    fine(a, "fu")
    a("s_setprio 0")
    for ks in (12, 13): pair(a, WU + 8*ks, 48, ks)
    for g in range(4):
        a(f"s_add_u32 m0, s67, {WOL + g*4096}")
        a("s_nop 0")
        for i in range(4): a(f"buffer_load_dwordx4 v1, {S4(WS)}, s66 offen offset:{i*1024} sc1 lds")
        a("s_add_u32 s66, s66, 4096")
    a("s_setprio 2")
    cnt_issue(a, 2, 240, 1)
    a("s_waitcnt vmcnt(0)")
    a("ds_write_b32 v3, v15 offset:96")
    cnt_poll(a, "L_pu", 2, 240, 1, 32, first_issued=True, sleep=SLP)
    fine(a, "pu")
    a("s_setprio 0")
    for ks in range(D): pair(a, R + 8*ks, 64, ks)
    for ks in range(14):
        a(f"s_waitcnt vmcnt({2*min(13 - ks, D - 1)})")
        for lam in (1, 2, 3, 0):
            mfma(a, ACC + 16*lam, WU + 8*ks + 4*(lam & 1), R + 8*(ks % D) + 4*(lam >> 1), "0" if ks == 0 else None)
        if ks + D < 14: pair(a, R + 8*(ks % D), 64, ks + D)
    fine(a, "um")
    a("s_nop 7"); a("s_nop 1")
    red_final(a, 1, ACC, 5, 9, 12, 16)
    fine_dump(a, 4, 2)
    a("s_endpgm")

def g1_final(a):
    WO, AO, ACC = 16, 144, 208
    a("s_lshr_b32 s54, s52, 1")
    a("s_lshl_b32 s54, s54, 3")
    a("s_and_b32 s59, s53, 7")
    a("s_add_u32 s54, s54, s59")
    a("s_and_b32 s55, s52, 1")
    a("s_lshl_b32 s55, s55, 2")
    a("s_lshr_b32 s59, s53, 3")
    a("s_add_u32 s55, s55, s59")
    out_tiles(a, 54, 55)
    a("s_and_b32 s72, s57, 1")
    a("s_lshl_b32 s73, s72, 14")
    a(f"s_mul_i32 s59, s60, {88*1024}")
    a(f"s_add_u32 s59, s59, s73")
    a(f"s_add_u32 s64, s59, {AF}")
    a("s_mul_i32 s59, s73, 3")
    a(f"s_add_u32 s59, s59, {WOL}")
    a("v_add_u32 v6, s59, v4")
    a("s_sub_u32 s59, 0x8000, s73")
    a(f"s_add_u32 s59, s59, {WOL}")
    a("v_add_u32 v7, s59, v4")
    a("s_lshl_b32 s59, s54, 1")
    a("s_add_u32 s59, s59, s72")
    a("s_lshl_b32 s59, s59, 1")
    a("s_lshr_b32 s72, s57, 1")
    a("s_add_u32 s59, s59, s72")
    a("s_lshl_b32 s59, s59, 7")
    a(f"s_add_u32 s59, s59, {CNT - FLG + CO*128}")
    a("v_mov_b32 v8, s59")
    red_setup(a, 0, 4, 10, 12, 13)
    a("v_mov_b32 v9, 0")
    a("s_waitcnt vmcnt(0)")
    cnt_add(a, 85, 191, 186, 2)
    fine(a, "fo")
    cnt_poll(a, "L_po", 8, 240, 1, 16, sleep=SLP)
    fine(a, "po")
    for ks in range(16): pair(a, AO + 4*ks, 64, ks, v=4, n=1)
    lds_poll(a, "L_adn", 9, 96, 240)
    lds_poll(a, "L_wol", 9, 128, 240)
    def wr(ks):
        for lam in range(2): a(f"ds_read_b128 {vr(WO + 8*ks + 4*lam, 4)}, v{6+lam} offset:{ks*1024}")
    for ks in range(6): wr(ks)
    for ks in range(16):
        if ks + 6 < 16: wr(ks + 6)
        a(f"s_waitcnt vmcnt({15-ks}) lgkmcnt({2*min(6, 15-ks)})")
        for lam in (1, 0): mfma(a, ACC + 16*lam, WO + 8*ks + 4*lam, AO + 4*ks, "0" if ks == 0 else None)
    fine(a, "om")
    a("s_nop 7"); a("s_nop 2")
    red_final(a, 0, ACC, 10, 12, 13, 16)
    fine_dump(a, 0, 2)
    a("s_endpgm")

def g1_front(a):
    XFR, WFR, ACC, T = 128, 136, 64, 160
    a("v_lshlrev_b32 v9, 4, v0")
    a("s_waitcnt lgkmcnt(0)")
    srd(a, WS, 26, WS_SIZE)
    srd(a, DBG, 24, 256)
    if OPT.get("pfc", 1):
        a("s_cmp_lg_u32 s57, 1")
        a("s_cbranch_scc1 L_nopc")
        a(f"s_getpc_b64 s[{SA}:{SA+1}]")
        a.label("L_pc")
        a(f"s_sub_u32 s{SA}, s{SA}, L_pc-{NAME}_kernel")
        a(f"s_subb_u32 s{SA+1}, s{SA+1}, 0")
        a(f"s_mov_b32 s{SA+2}, L_end-{NAME}_kernel")
        a(f"s_mov_b32 s{SA+3}, 0x20000")
        a("v_lshlrev_b32 v17, 7, v0")
        a("s_and_b32 s59, s53, 7")
        a("s_lshl_b32 s59, s59, 13")
        a(f"buffer_load_dword v125, v17, {S4(SA)}, s59 offen")
        a.label("L_nopc")
    if OPT.get("pfz", 1):
        srd(a, SC, 12, 512*3584)
        a("v_and_b32 v126, 31, v0")
        a("v_mul_u32_u24 v126, 3584, v126")
        a("s_lshl_b32 s64, s62, 7")
        a("s_and_b32 s89, s58, 15")
        a(f"s_mul_i32 s89, s89, {32*3584}")
        a("s_add_u32 s89, s89, s64")
        a("s_cmp_lg_u32 s57, 2")
        a("s_cbranch_scc1 L_nopz")
        a(f"s_mul_i32 s59, s54, {32*3584}")
        a("s_add_u32 s59, s59, s64")
        a(f"buffer_load_dword v125, v126, {S4(SC)}, s59 offen")
        a.label("L_nopz")
    a("s_cmp_lg_u32 s55, 15")
    a("s_cbranch_scc1 L_noclr")
    a("s_cmp_lg_u32 s57, 0")
    a("s_cbranch_scc1 L_noclr")
    for r in range(12, 16): a(f"v_mov_b32 v{r}, -1")
    for r in range(20, 24): a(f"v_mov_b32 v{r}, 0")
    a("v_mov_b32 v16, 0")
    a("v_lshlrev_b32 v17, 7, v0")
    a("v_lshlrev_b32 v18, 3, v0")
    a("s_lshl_b32 s59, s54, 10")
    a(f"s_add_u32 s59, s59, {FLG}")
    store4(a, 20, 9, "s59")
    a("s_lshl_b32 s59, s54, 13")
    a(f"s_add_u32 s59, s59, {CNT}")
    a(f"buffer_store_dword v16, v17, {S4(WS)}, s59 offen sc1")
    a("s_lshl_b32 s59, s54, 9")
    a(f"s_add_u32 s59, s59, {GG}")
    a(f"buffer_store_dwordx2 v[12:13], v18, {S4(WS)}, s59 offen sc1")
    a("s_mul_i32 s59, s54, 14336")
    a(f"s_add_u32 s59, s59, {STATS}")
    for i in range(14):
        store4(a, 12, 9, "s59", (i % 4)*1024)
        if i % 4 == 3: a("s_add_u32 s59, s59, 4096")
    a("v_mov_b32 v17, 1")
    a("s_lshl_b32 s59, s54, 2")
    a("s_waitcnt vmcnt(0)")
    a("s_mov_b64 exec, 1")
    a(f"buffer_store_dword v17, v16, {S4(DBG)}, s59 offen sc1")
    a("s_mov_b64 exec, -1")
    a.label("L_noclr")
    fine_init(a, 250); fine_pool(list(range(4, 22, 2)) + [24, 26, 36, 38, 40, 42, 48, 50, 92])
    swz_read_addrs(a, 112, 60)
    tr_addr(a, 116, 11, 7, True, 16384)
    a("v_xor_b32 v117, 64, v116")
    tr_addr(a, 118, 9, 6, False, 32768)
    a("v_and_b32 v120, 0x33, v0")
    a("v_bfe_u32 v1, v0, 2, 1")
    a("v_lshl_or_b32 v120, v1, 3, v120")
    a("v_bfe_u32 v1, v0, 3, 1")
    a("v_lshl_or_b32 v120, v1, 2, v120")
    a("v_lshlrev_b32 v120, 4, v120")
    a("v_and_b32 v121, 15, v0")
    a("v_lshrrev_b32 v1, 5, v0")
    a("v_lshl_or_b32 v121, v1, 4, v121")
    a("v_lshlrev_b32 v121, 4, v121")
    a("v_bfe_u32 v1, v0, 4, 1")
    a("v_lshl_or_b32 v121, v1, 17, v121")
    a("s_lshl_b32 s59, s55, 7")
    a("s_add_u32 s59, s59, s58")
    a("s_lshl_b32 s70, s59, 11")
    a(f"s_add_u32 s70, s70, {KVF}")
    a("s_lshr_b32 s59, s55, 1")
    a("s_lshl_b32 s59, s59, 8")
    a("s_add_u32 s59, s59, s58")
    a("s_lshl_b32 s64, s59, 11")
    a(f"s_add_u32 s64, s64, {KVF}")
    a("s_mov_b32 s68, 131072")
    a("v_mov_b32 v122, 1.0")
    a("s_bitcmp1_b32 s55, 0")
    a("s_cbranch_scc1 L_isk")
    a("s_lshl_b32 s64, s59, 10")
    if QF: a(f"s_add_u32 s64, s64, {QF}")
    a("s_mov_b32 s68, 65536")
    a(f"v_mov_b32 v122, {f32(QSCALE)}")
    a("v_mov_b32 v120, v9")
    a.label("L_isk")
    for i in range(3): a(f"s_add_u32 s{65+i}, s{64+i}, s68")
    a("s_lshr_b32 s71, s55, 1")
    a("s_lshl_b32 s71, s71, 4")
    a("s_and_b32 s59, s54, 12")
    a("s_add_u32 s71, s71, s59")
    a("v_and_b32 v123, 15, v0")
    a("v_lshlrev_b32 v123, 2, v123")
    g1_att_setup(a)
    fine(a, "setup")
    win = Win(range(112, 119), 16384)
    def reads(n):
        c, ks = n >> 2, n & 3
        pre, so = win.at(slot_of(c))
        R = [f"ds_read_b128 {vr(XFR + 4*(n&1), 4)}, v{112+ks} offset:{so}"]
        for t in range(2):
            for v in range(2):
                R.append(f"ds_read_b64_tr_b16 {vr(WFR + 12*(n&1) + 4*t + 2*v, 2)}, v{116+t} offset:{so + ks*4096 + v*512}")
        for v in range(2):
            R.append(f"ds_read_b64_tr_b16 {vr(WFR + 12*(n&1) + 8 + 2*v, 2)}, v118 offset:{so + ks*1024 + v*256}")
        return pre, R
    a("s_barrier")
    pre, R = reads(0)
    for l in pre + R: a(l)
    for n in range(32):
        ks = n & 3
        xf = XFR + 4*(n&1); wf = WFR + 12*(n&1); c0 = "0" if n == 0 else None
        M = lambda t: mfma(a, ACC + 16*t, wf + 4*t, xf, c0) if t < 2 else mfma(a, ACC + 32, xf, wf + 8, c0)
        pre, R = reads(n + 1) if n < 31 else ([], [])
        a("s_waitcnt lgkmcnt(4)")
        M(0)
        if n == 31:
            a("s_waitcnt lgkmcnt(2)"); M(1)
            a("s_waitcnt lgkmcnt(0)"); M(2)
            break
        if ks == 3: a("s_barrier")
        if n == 22: poll_issue(a, 123, 124, srd_=DBG, soff="0")
        if n == OPT.get("pfz2", 10): a(f"buffer_load_dword v125, v126, {S4(SC)}, s89 offen")
        for l in pre + R[0:3]: a(l)
        a("s_waitcnt lgkmcnt(5)"); M(1)
        for l in R[3:7]: a(l)
        a("s_waitcnt lgkmcnt(7)"); M(2)
    fine(a, "p1")
    a("s_nop 7")
    for t in range(3):
        acc = ACC + 16*t
        if t < 2:
            for p in range(16): a(f"v_mul_f32 v{acc+p}, v{acc+p}, v122")
        for p in range(8): a(f"v_cvt_pk_bf16_f32 v{T+8*t+p}, v{acc+2*p}, v{acc+2*p+1}")
        for h in range(2):
            if t < 2: store4(a, T + 8*t + 4*h, 120, f"s{64 + 2*t + h}")
            else: store4(a, T + 8*t + 4*h, 121, "s70", 1024 + 512*h)
    fine(a, "st")

Q, KS, VS, S_, NM, O_, T_ = 8, 16, 32, 64, 128, 200, 160
def g1_att_setup(a):
    T = 190
    a("s_lshl_b32 s72, s52, 2")
    a("s_lshr_b32 s59, s53, 3")
    a("s_add_u32 s72, s72, s59")
    a("s_and_b32 s74, s53, 7")
    a("s_lshl_b32 s73, s74, 3")
    a("s_lshl_b32 s59, s57, 1")
    a("s_add_u32 s73, s73, s59")
    a("s_lshl_b32 s78, s72, 6")
    a("s_add_u32 s78, s78, s73")
    a("s_lshl_b32 s78, s78, 10")
    if QF: a(f"s_add_u32 s78, s78, {QF}")
    a("s_lshl_b32 s79, s72, 17")
    a(f"s_add_u32 s79, s79, {KVF}")
    a("s_lshl_b32 s80, s57, 11")
    a("s_add_u32 s81, s79, s80")
    a("s_lshl_b32 s82, s73, 7")
    a(f"s_add_u32 s82, s82, {GG}")
    a("s_mov_b32 s86, 0xffff")
    a("s_mov_b32 s87, 0xffff")
    a("s_mul_i32 s83, s73, 88")
    a("s_add_u32 s83, s83, s72")
    a("s_lshl_b32 s83, s83, 10")
    a(f"s_add_u32 s83, s83, {AF}")
    a(f"s_add_u32 s84, s83, {88*1024}")
    a("s_lshr_b32 s85, s72, 4")
    a("s_add_u32 s85, s85, s73")
    a("s_lshl_b32 s85, s85, 1")
    a(f"s_add_u32 s85, s85, {CO}")
    a("v_lshlrev_b32 v4, 4, v0")
    a("v_and_b32 v5, 31, v0")
    a("s_lshr_b32 s59, s72, 2")
    a("s_lshl_b32 s59, s59, 2")
    a("s_add_u32 s59, s59, s57")
    a("s_lshl_b32 s59, s59, 2")
    a("s_and_b32 s75, s53, 3")
    a("s_add_u32 s59, s59, s75")
    a("s_lshl_b32 s59, s59, 7")
    a(f"s_add_u32 s59, s59, {CNT - FLG + CQ*128}")
    a("v_mov_b32 v189, s59")
    a("v_lshlrev_b32 v191, 7, v0")
    a("v_lshlrev_b32 v5, 2, v5")
    a("v_mov_b32 v3, 0xdddd")
    a("v_mov_b32 v1, v4")
    a("v_and_b32 v2, 15, v0")
    a(f"v_lshrrev_b32 v{T}, 5, v0")
    a(f"v_lshl_or_b32 v2, v{T}, 4, v2")
    a("v_lshlrev_b32 v2, 4, v2")
    a("v_add_u32 v2, 1024, v2")
    a("v_add_u32 v184, 0x10000, v1")
    a("v_add_u32 v185, 0x10000, v2")
    a("v_mov_b32 v186, 1")
    a("s_lshl_b32 s59, s57, 2")
    a("v_mov_b32 v187, s59")
    a("v_mov_b32 v188, 0")
    a(f"v_and_b32 v{T}, 27, v0")
    a(f"v_cmp_eq_u32 vcc, 16, v{T}")
    a(f"v_mov_b32 v{T}, 0x3f803f80")
    a("s_nop 0")
    a(f"v_cndmask_b32 v{VS}, 0, v{T}, vcc")
    for r in range(VS + 1, VS + 32): a(f"v_mov_b32 v{r}, v{VS}")
    for r in range(O_, O_ + 32): a(f"v_mov_b32 v{r}, 0")

def g1_att(a):
    S, O, T = S_, O_, T_
    a("ds_write_b32 v5, v188")
    a("ds_write_b32 v5, v188 offset:128")
    poll_flags(a, "L_clr1", 123, 124, srd_=DBG, soff="0", first_issued=True)
    fine(a, "ack")
    cnt_add(a, 71, 191, 186, 4)
    a("s_waitcnt lgkmcnt(0)")
    a("s_barrier")
    cnt_poll(a, "L_pq", 189, T, 1, 32, sleep=SLP)
    a("ds_write_b32 v187, v186 offset:80")
    lds_poll(a, "L_pq2", 188, 80, T)
    fine(a, "pq")
    load4(a, KS, 4, "s79")
    load4(a, Q, 4, "s78")
    load4(a, Q + 4, 4, "s78", 1024)
    a("s_mov_b32 m0, s80")
    a("s_cmp_eq_u32 s57, 0")
    a("s_cbranch_scc1 L_skipk0")
    a(f"buffer_load_dwordx4 v4, {S4(WS)}, s81 offen sc1 lds")
    a.label("L_skipk0")
    a(f"buffer_load_dwordx4 v4, {S4(WS)}, s81 offen offset:1024 sc1 lds")
    for n in range(1, KV0 // 4):
        a(f"s_add_u32 m0, s80, {n*8192}")
        a("s_add_u32 s81, s81, 8192")
        a(f"buffer_load_dwordx4 v4, {S4(WS)}, s81 offen sc1 lds")
        a(f"buffer_load_dwordx4 v4, {S4(WS)}, s81 offen offset:1024 sc1 lds")
    a(f"s_waitcnt vmcnt({KV0 // 2 - 1})")
    mfma(a, S, KS, Q, "0")
    mfma(a, S + 16, KS, Q + 4, "0")
    a("s_nop 7"); a("s_nop 2")
    for q in range(2):
        s_, d = S + 16*q, T + q
        a(f"v_max3_f32 v{d}, v{s_}, v{s_+1}, v{s_+2}")
        for p in range(3, 15, 2): a(f"v_max3_f32 v{d}, v{d}, v{s_+p}, v{s_+p+1}")
        a(f"v_max_f32 v{d}, v{d}, v{s_+15}")
        halfsum(a, d, T + 2, "v_max_f32")
        for r in range(16): a(f"v_sub_f32 v{NM + 16*q + r}, 0, v{d}")
    SB = [S, S + 16, S + 32]
    sb = lambda k: SB[k % 3]
    kreg = lambda kt: KS + 4*(kt & 3)
    vreg = lambda kt: VS + 8*(kt & 3)
    QK = lambda k: mfma_s(sb(k), kreg(k >> 1), Q + 4*(k & 1), NM + 16*(k & 1))
    PV = lambda k, h: f"v_smfmac_f32_32x32x32_bf16 {vr(O+16*(k&1),16)}, {vr(vreg(k>>1)+4*h,4)}, {vr(sb(k)+8*h,8)}, v3"
    a(QK(0)); a("s_nop 0"); a(QK(1))
    a("s_waitcnt vmcnt(0) lgkmcnt(0)")
    fine(a, "kv")
    a("s_barrier")
    def rd(kts, skipk=()):
        L = []
        for kt in kts:
            if kt not in skipk:
                L.append(f"ds_read_b128 {vr(kreg(kt),4)}, v{1 if kt < 32 else 184} offset:{(kt % 32)*2048}")
        L.append("s_mov_b64 exec, s[86:87]")
        for kt in kts:
            for s_ in range(2):
                L.append(f"ds_read_b128 {vr(vreg(kt)+4*s_,4)}, v{2 if kt < 32 else 185} offset:{(kt % 32)*2048 + s_*512}")
        L.append("s_mov_b64 exec, -1")
        return L
    for l in rd([0, 1, 2, 3], skipk=(0,)): a(l)
    def gl(): return [f"buffer_load_dword v6, v5, {S4(WS)}, s82 offen sc1", f"buffer_load_dword v7, v5, {S4(WS)}, s82 offen offset:128 sc1"]
    ev = []
    for k in range(0, 129):
        kt = k >> 1
        post = []
        if k % 4 == 0 and kt + 2 < 64:
            if (kt + 2) % 16 == 0: post.append("KVCHECK")
            post += rd([kt + 2, kt + 3])
        if k % 4 == 2 and kt + 1 < 64:
            post.append("s_waitcnt lgkmcnt(0)")
            if kt == 45: post.append("ds_write_b32 v187, v186")
            if kt == 51: post += gl()
        if k > 0: ev.append([PV(k - 1, 1), 16*k + 2, post, k])
        if k + 2 < 128: ev.append([QK(k + 2), 0, [], k])
        if k < 128: ev.append([PV(k, 0), 16*k + 10, [], k])
    gaps = OPT.get("gaps", (3, 6, 9))
    pos = 0; p = 7
    for i, (ins, lo, post, k) in enumerate(ev):
        if i > 0: p = next((p + g for g in gaps if p + g >= lo), max(lo, p + gaps[0]))
        p = min(p, 2048)
        while pos < p:
            if pos % 256 == 0: fine(a, f"k{pos//16}")
            a(f"v_exp_f32 v{sb(pos>>4) + (pos&15)}, v{sb(pos>>4) + (pos&15)}"); pos += 1
        if lo > 2048: a("s_nop 1")
        if i == 0: a("s_waitcnt lgkmcnt(0)")
        if ins.startswith("v_mfma"): assert p <= 16*(k + 2) - 12, (k, p)
        a(ins)
        for l in post:
            if l == "KVCHECK": lds_poll(a, f"L_kvp{k}", 188, 16 + (k + 4) // 2, T)
            else: a(l)
    assert pos == 2048
    a("s_setprio 3")
    a("ds_write_b32 v187, v186 offset:96")
    a(f"s_mov_b32 s70, {f32(2.0**64)}")
    a(f"s_mov_b32 s71, {f32(2.0**-64)}")
    a(f"s_mov_b32 s91, {SPIN}")
    a.label("L_ag")
    a("s_waitcnt vmcnt(0)")
    a(f"v_or_b32 v{T}, v6, v7")
    a(f"v_cmp_gt_i32 vcc, 0, v{T}")
    a("s_sub_u32 s91, s91, 1")
    a("s_cbranch_scc1 L_agd")
    a("s_cmp_eq_u64 vcc, 0")
    a("s_cbranch_scc1 L_agd")
    for l in gl(): a(l)
    a("s_branch L_ag")
    a.label("L_agd")
    a("s_nop 4")
    a(f"v_max_f32 v{T}, v{O+8}, v{O+24}")
    a(f"v_min_f32 v{T+1}, v{O+8}, v{O+24}")
    a(f"v_add_f32 v{T+2}, v{O+8}, v{O+24}")
    a(f"v_cmp_gt_f32 s[72:73], s70, v{T}")
    a(f"v_cmp_lt_f32 s[74:75], s71, v{T+1}")
    a(f"v_cmp_o_f32 vcc, v{T+2}, v{T+2}")
    a("s_nop 1")
    a("s_and_b64 s[72:73], s[72:73], s[74:75]")
    a("s_and_b64 s[72:73], s[72:73], vcc")
    a("s_cmp_eq_u64 s[72:73], -1")
    a("s_cbranch_scc0 L_slow")
    a.label("L_afin")
    fine(a, "fin")
    for q in range(2):
        o = O + 16*q
        a(f"v_rcp_f32 v{T}, v{o+8}")
        a("s_nop 0")
        a(f"v_mul_f32 v{T}, v{T}, v{6+q}")
        for r in range(8): a(f"v_mul_f32 v{o+r}, v{o+r}, v{T}")
        for p in range(4): a(f"v_cvt_pk_bf16_f32 v{T+4+4*q+p}, v{o+2*p}, v{o+2*p+1}")
        store4(a, T + 4 + 4*q, 4, "s83" if q == 0 else "s84")
    g1_final(a)
    a.label("L_slow")
    a(f"v_mov_b32 v{T}, 0xff800000")
    a(f"v_mov_b32 v{T+1}, 0xff800000")
    a("s_mov_b32 s81, s79")
    a("s_mov_b32 s69, 64")
    a.label("L_s1")
    load4(a, KS, 4, "s81")
    a("s_waitcnt vmcnt(0)")
    mfma(a, S, KS, Q, "0")
    mfma(a, S + 16, KS, Q + 4, "0")
    a("s_nop 7"); a("s_nop 3")
    for q in range(2):
        for p in range(0, 16, 2): a(f"v_max3_f32 v{T+q}, v{T+q}, v{S+16*q+p}, v{S+16*q+p+1}")
    a("s_add_u32 s81, s81, 2048")
    a("s_sub_u32 s69, s69, 1")
    a("s_cmp_lg_u32 s69, 0")
    a("s_cbranch_scc1 L_s1")
    for q in range(2): halfsum(a, T + q, T + 2, "v_max_f32")
    for r in range(O, O + 32): a(f"v_mov_b32 v{r}, 0")
    a("s_mov_b32 s81, s79")
    a("s_mov_b32 s69, 64")
    a.label("L_s2")
    load4(a, KS, 4, "s81")
    a("s_mov_b64 exec, s[86:87]")
    load4(a, VS, 2, "s81")
    load4(a, VS + 4, 2, "s81", 512)
    a("s_mov_b64 exec, -1")
    a("s_waitcnt vmcnt(0)")
    mfma(a, S, KS, Q, "0")
    mfma(a, S + 16, KS, Q + 4, "0")
    a("s_nop 7"); a("s_nop 3")
    for q in range(2):
        for p in range(16): a(f"v_sub_f32 v{S+16*q+p}, v{S+16*q+p}, v{T+q}")
        for p in range(16): a(f"v_exp_f32 v{S+16*q+p}, v{S+16*q+p}")
    a("s_nop 1")
    for q in range(2):
        for s_ in range(2):
            a(f"v_smfmac_f32_32x32x32_bf16 {vr(O+16*q,16)}, {vr(VS+4*s_,4)}, {vr(S+16*q+8*s_,8)}, v3")
    a("s_add_u32 s81, s81, 2048")
    a("s_sub_u32 s69, s69, 1")
    a("s_cmp_lg_u32 s69, 0")
    a("s_cbranch_scc1 L_s2")
    a("s_nop 7"); a("s_nop 3")
    a("s_branch L_afin")

def main():
    ref = open(f"cdna_kernels/{NAME}.s.ref").read().split("\n")
    out = [l for l in ref if l.startswith(";") and "@launch" not in l]
    k = NAME + "_kernel"
    out.append("; @launch grid=(256,1,1) block=(512,1,1) lds=163840")
    out += ['.amdgcn_target "amdgcn-amd-amdhsa--gfx950"', ".text"]
    a = Asm(); gen(a)
    bad = check(a.lines, k)
    out += [f".globl {k}", ".p2align 8", f".type {k},@function", f"{k}:"] + a.lines
    out += ['.section .rodata,"a"', ".p2align 6", f".amdhsa_kernel {k}", "  .amdhsa_next_free_vgpr 256", "  .amdhsa_next_free_sgpr 102",
            "  .amdhsa_accum_offset 256", "  .amdhsa_group_segment_fixed_size 0", "  .amdhsa_kernarg_size 96",
            "  .amdhsa_user_sgpr_count 2", "  .amdhsa_user_sgpr_kernarg_segment_ptr 1", "  .amdhsa_system_sgpr_workgroup_id_x 1",
            "  .amdhsa_float_denorm_mode_32 3", ".end_amdhsa_kernel"]
    open(sys.argv[1], "w").write("\n".join(out) + "\n")
    if OPT["stamp"]: json.dump(NAMES, open(sys.argv[1] + ".json", "w"))
    print("hazards:", bad, "lines:", len(out))
main()
```

```python
import sys, struct, re, json
from asmlib import Asm, vr, sr, check

NAME = "gated_mix__softmax_full_mha__mixer_gmlp__prompt"
MB = 1 << 20
QF, KVF, Z1F, Z2F, AF, WF = 0, 2*MB, 6*MB, 10*MB, 14*MB, 20*MB
GG = 22*MB
STATS = 22*MB + 65536
FLG = 22*MB + 512*1024
CNT = FLG
CQ, CU, CO, CZ, CS, CW, CY = 0, 128, 256, 384, 832, 896, 1024
WS_SIZE = 28*MB
def f32(x): return "0x%08x" % struct.unpack("<I", struct.pack("<f", x))[0]
LOG2E = 1.4426950408889634
QSCALE = 0.25 * LOG2E
GC1 = -2.0 * LOG2E * 0.7978845608028654
GC2 = GC1 * 0.044715
SPIN = 1 << 16
SLOT = 36864
GSCR = 148480
SCR = 114688

OPT = dict(stamp=False)
for a_ in sys.argv[2:]:
    k_, v_ = a_.split("=")
    OPT[k_] = eval(v_)

SLP = OPT.get("slp", 2)
CST = OPT.get("cst", 256)
WS, DBG, SA, SB_, SC, SD = 28, 32, 36, 40, 44, 48
def srd(a, d, p, size):
    a(f"s_mov_b32 s{d}, s{p}")
    a(f"s_mov_b32 s{d+1}, s{p+1}")
    a(f"s_mov_b32 s{d+2}, {size}")
    a(f"s_mov_b32 s{d+3}, 0x20000")
def S4(d): return f"s[{d}:{d+3}]"

FINE = dict(n=0, pool=[], names=[])
NAMES = {}
def fine_init(a, v):
    FINE["n"] = 0; FINE["names"] = []; FINE["v"] = v; FINE["pend"] = []; FINE["pool"] = []
    if OPT["stamp"]: a(f"v_mov_b32 v{v}, 0")
def fine_pool(pool): FINE["pool"] = list(pool)
def fine(a, name=""):
    if not OPT["stamp"]: return
    p = FINE["pool"][len(FINE["pend"])]
    a(f"{'s_memtime' if OPT.get('cyc') else 's_memrealtime'} s[{p}:{p+1}]")
    FINE["pend"].append(p); FINE["names"].append(name)
def fine_flush(a):
    if not OPT["stamp"]: return
    a("s_waitcnt lgkmcnt(0)")
    for p in FINE["pend"]:
        a(f"v_writelane_b32 v{FINE['v']}, s{p}, {FINE['n'] + 2}"); FINE["n"] += 1
    FINE["pend"] = []
def fine_dump(a, grp, t):
    if not OPT["stamp"]: return
    v = FINE["v"]
    a("s_memrealtime s[98:99]")
    a("s_memtime s[100:101]")
    fine_flush(a)
    if OPT.get("cyc"):
        a("s_mov_b32 s96, s94"); a("s_mov_b32 s98, s100"); NAMES["cyc"] = 1
    a("s_sub_u32 s100, s100, s94")
    a(f"v_writelane_b32 v{v}, s100, 0")
    a(f"v_writelane_b32 v{v}, s96, 1")
    a(f"v_writelane_b32 v{v}, s98, {FINE['n'] + 2}")
    NAMES[f"0,{grp}"] = ["start"] + FINE["names"] + ["end"]
    a("s_lshl_b32 s98, s2, 4")
    a("s_add_u32 s98, s98, s56")
    a("s_lshl_b32 s98, s98, 8")
    a(f"s_add_u32 s98, s98, {24*MB}")
    a(f"v_lshlrev_b32 v{t}, 2, v0")
    a(f"buffer_store_dword v{v}, v{t}, {S4(WS)}, s98 offen")

def mfma_s(d, A, B, c=None):
    cc = vr(d, 16) if c is None else (c if isinstance(c, str) else vr(c, 16))
    return f"v_mfma_f32_32x32x16_bf16 {vr(d,16)}, {vr(A,4)}, {vr(B,4)}, {cc}"
def mfma(a, d, A, B, c=None): a(mfma_s(d, A, B, c))
def store4(a, v, voff, soff, off=0):
    a(f"buffer_store_dwordx4 {vr(v,4)}, v{voff}, {S4(WS)}, {soff} offen offset:{off} sc1")
def load4(a, v, voff, soff, off=0):
    a(f"buffer_load_dwordx4 {vr(v,4)}, v{voff}, {S4(WS)}, {soff} offen offset:{off} sc1")

def swz_row_voffs(a, base, stride_shift, tmp=1):
    t, u = tmp, base + 3
    a(f"v_lshrrev_b32 v{t}, 4, v0")
    a(f"v_and_b32 v{u}, 7, v0")
    a(f"v_xor_b32 v{u}, v{u}, v{t}")
    a(f"v_lshrrev_b32 v{t}, 3, v0")
    a(f"v_lshlrev_b32 v{t}, {stride_shift}, v{t}")
    a(f"v_lshl_add_u32 v{base}, v{u}, 4, v{t}")
    st = 1 << stride_shift
    a(f"v_xor_b32 v{base+1}, 64, v{base}")
    a(f"v_add_u32 v{base+1}, {8*st - 1024}, v{base+1}")
    a(f"v_add_u32 v{base+2}, {16*st - 2048}, v{base}")
    a(f"v_add_u32 v{base+3}, {16*st - 2048}, v{base+1}")

def swz_read_addrs(a, base, sbase, tmp=1):
    t, u = tmp, base + 3
    a(f"v_bfe_u32 v{t}, v0, 1, 3")
    a(f"v_lshrrev_b32 v{u}, 5, v0")
    a(f"v_xor_b32 v{t}, v{t}, v{u}")
    a(f"v_lshlrev_b32 v{t}, 4, v{t}")
    a(f"v_and_b32 v{u}, 31, v0")
    a(f"v_lshl_add_u32 v{t}, v{u}, 7, v{t}")
    a(f"v_add_u32 v{base}, s{sbase}, v{t}")
    for ks in (1, 2, 3):
        a(f"v_xor_b32 v{base+ks}, {ks*32}, v{base}")

def tr_addr(a, d, hh_shift, row_shift, swz, add, tmp=1):
    a(f"v_lshrrev_b32 v{tmp}, 5, v0")
    a(f"v_lshlrev_b32 v{d}, {hh_shift}, v{tmp}")
    a(f"v_bfe_u32 v{tmp}, v0, 2, 2")
    a(f"v_lshl_add_u32 v{d}, v{tmp}, {row_shift}, v{d}")
    if swz:
        a(f"v_bfe_u32 v{tmp}, v0, 3, 1")
        a(f"v_lshl_add_u32 v{d}, v{tmp}, 6, v{d}")
    a(f"v_bfe_u32 v{tmp}, v0, 4, 1")
    a(f"v_lshl_add_u32 v{d}, v{tmp}, 5, v{d}")
    a(f"v_and_b32 v{tmp}, 3, v0")
    a(f"v_lshl_add_u32 v{d}, v{tmp}, 3, v{d}")
    if add: a(f"v_add_u32 v{d}, {add}, v{d}")

def gelu_list(x, t, C1, C2, n=16):
    L = [f"v_mul_f32 v{t+p}, v{x+p}, v{x+p}" for p in range(n)]
    L += [f"v_fma_f32 v{t+p}, v{t+p}, v{C2}, v{C1}" for p in range(n)]
    L += [f"v_mul_f32 v{t+p}, v{t+p}, v{x+p}" for p in range(n)]
    L += [f"v_exp_f32 v{t+p}, v{t+p}" for p in range(n)]
    L += [f"v_add_f32 v{t+p}, 1.0, v{t+p}" for p in range(n)]
    L += [f"v_rcp_f32 v{t+p}, v{t+p}" for p in range(n)]
    L += [f"v_mul_f32 v{x+p}, v{x+p}, v{t+p}" for p in range(n)]
    return L

def halfsum(a, v, t, op="v_add_f32"):
    a(f"v_mov_b32 v{t}, v{v}")
    a("s_nop 1")
    a(f"v_permlane32_swap_b32 v{v}, v{t}")
    a(f"{op} v{v}, v{v}, v{t}")

def set_flag(a, sidx, vz, vone, word=False):
    if not word:
        a(f"s_lshl_b32 s{sidx}, s{sidx}, 2")
        a(f"s_add_u32 s{sidx}, s{sidx}, s57")
    a(f"s_lshl_b32 s{sidx}, s{sidx}, 2")
    a(f"s_add_u32 s{sidx}, s{sidx}, {FLG}")
    a("s_mov_b64 exec, 1")
    a(f"buffer_store_dword v{vone}, v{vz}, {S4(WS)}, s{sidx} offen sc1")
    a("s_mov_b64 exec, -1")

def cnt_add(a, sline, vl7, vone, reps):
    a(f"s_mul_i32 s{sline}, s{sline}, {CST}")
    a(f"s_add_u32 s{sline}, s{sline}, {CNT}")
    a(f"s_mov_b64 exec, {(1 << reps) - 1}")
    a(f"buffer_atomic_add v{vone}, v{vl7}, {S4(WS)}, s{sline} offen sc1")
    a("s_mov_b64 exec, -1")
def cnt_issue(a, voff, tmp, mask):
    a(f"s_mov_b64 exec, {mask}")
    a(f"v_mov_b32 v{tmp}, 0")
    a(f"buffer_atomic_add v{tmp}, v{voff}, {S4(WS)}, s90 offen sc0 sc1")
def cnt_poll(a, lbl, voff, tmp, mask, target, first_issued=False, sleep=0):
    a(f"s_mov_b32 s91, {SPIN}")
    if not first_issued: cnt_issue(a, voff, tmp, mask)
    a.label(lbl)
    a("s_waitcnt vmcnt(0)")
    a(f"v_cmp_gt_u32 vcc, {target}, v{tmp}")
    a("s_sub_u32 s91, s91, 1")
    a(f"s_cbranch_scc1 {lbl}d")
    a("s_cmp_eq_u64 vcc, 0")
    a(f"s_cbranch_scc1 {lbl}d")
    if sleep: a(f"s_sleep {sleep}")
    cnt_issue(a, voff, tmp, "vcc")
    a(f"s_branch {lbl}")
    a.label(lbl + "d")
    a("s_mov_b64 exec, -1")
def poll_issue(a, voff, tmp, n=1, srd_=None, soff="s90"):
    srd_ = WS if srd_ is None else srd_
    a(f"buffer_load_dword{'x%d' % n if n > 1 else ''} {vr(tmp, n)}, v{voff}, {S4(srd_)}, {soff} offen sc1")
def poll_flags(a, lbl, voff, tmp, n=1, srd_=None, soff="s90", first_issued=False, sleep=0, mask=None):
    issue = lambda: poll_issue(a, voff, tmp, n, srd_, soff)
    a(f"s_mov_b32 s91, {SPIN}")
    if not first_issued: issue()
    a.label(lbl)
    a("s_waitcnt vmcnt(0)")
    for i in range(1, n): a(f"v_min_u32 v{tmp}, v{tmp}, v{tmp+i}")
    a(f"v_cmp_eq_u32 vcc, 0, v{tmp}")
    a("s_sub_u32 s91, s91, 1")
    a(f"s_cbranch_scc1 {lbl}d")
    a("s_cmp_eq_u64 vcc, 0")
    a(f"s_cbranch_scc1 {lbl}d")
    if sleep: a(f"s_sleep {sleep}")
    if mask: a(f"s_and_b64 exec, vcc, {mask}")
    issue()
    a(f"s_branch {lbl}")
    a.label(lbl + "d")
    if mask: a("s_mov_b64 exec, -1")

def slot_of(g): return 1024 + ((g + 1) % 4) * SLOT
class Win:
    def __init__(self, regs, span): self.regs = regs; self.base = 0; self.span = span
    def at(self, base):
        L = []
        if base < self.base or base + self.span - self.base > 65536:
            L = [f"v_add_u32 v{r}, {(base - self.base) & 0xffffffff}, v{r}" for r in self.regs]
            self.base = base
        return L, base - self.base

def gen(a):
    a("s_cmp_ge_u32 s2, 256")
    a("s_cbranch_scc1 L_end")
    if OPT["stamp"]:
        a("s_memrealtime s[96:97]"); a("s_memtime s[94:95]")
    a("s_load_dwordx16 s[4:19], s[0:1], 0")
    a("s_load_dwordx8 s[20:27], s[0:1], 64")
    a("v_lshrrev_b32 v1, 6, v0")
    a("s_and_b32 s52, s2, 7")
    a("v_readfirstlane_b32 s56, v1")
    a("s_lshr_b32 s53, s2, 3")
    a("v_and_b32 v0, 63, v0")
    a("s_and_b32 s57, s56, 3")
    a("s_and_b32 s63, s53, 3")
    a("s_lshr_b32 s54, s52, 1")
    a("s_lshl_b32 s54, s54, 2")
    a("s_add_u32 s54, s54, s63")
    a("s_lshr_b32 s61, s53, 2")
    a("s_and_b32 s59, s52, 1")
    a("s_lshl_b32 s55, s59, 3")
    a("s_add_u32 s55, s55, s61")
    a("s_sub_u32 s62, s55, s59")
    rotm = OPT.get("rotm", 2)
    if rotm == 0:
        a("s_lshl_b32 s63, s63, 1")
        a("s_add_u32 s63, s63, s61")
    else:
        a("s_lshr_b32 s3, s61, 1")
        a("s_xor_b32 s63, s63, s3")
        a(f"s_and_b32 s63, s63, {rotm - 1}")
        a("s_lshl_b32 s59, s59, 2")
        a("s_add_u32 s63, s63, s59")
        a("s_and_b32 s59, s52, 6")
        a("s_add_u32 s63, s63, s59")
        a("s_and_b32 s59, s61, 1")
        a("s_lshl_b32 s59, s59, 1")
        a("s_add_u32 s63, s63, s59")
    a("s_and_b32 s63, s63, 7")
    a("s_lshl_b32 s58, s54, 2")
    a("s_add_u32 s58, s58, s57")
    a("s_lshl_b32 s60, s57, 12")
    a(f"s_mov_b32 s90, {FLG}")
    a("s_cmp_lt_u32 s56, 4")
    a("s_cbranch_scc1 L_g1")
    g2_front(a)
    g2_spatial(a)
    g2_final(a)
    a.raw(".p2align 6")
    a.label("L_g1")
    g1_front(a)
    g1_att(a)
    a.label("L_end")
    a("s_endpgm")

XF = 128
def g2_front(a):
    X, WQ, WI, MISC = SA, SB_, SC, SD
    swz_row_voffs(a, 2, 10)
    a("v_lshrrev_b32 v1, 2, v0")
    a("v_mul_u32_u24 v10, 3072, v1")
    a("v_and_b32 v1, 4, v1")
    a("v_and_b32 v11, 7, v0")
    a("v_xor_b32 v11, v11, v1")
    a("v_lshlrev_b32 v11, 4, v11")
    a("v_lshrrev_b32 v1, 3, v0")
    a("v_mul_u32_u24 v6, 3072, v1")
    a("v_mul_u32_u24 v12, 3584, v1")
    a("v_add_u32 v6, v6, v11")
    a("v_add_u32 v12, v12, v11")
    a(f"v_add_u32 v7, {8*3072-2048}, v6")
    a(f"v_add_u32 v8, {1792-1024}, v12")
    a(f"v_add_u32 v9, {8*3584+1792-3072}, v12")
    a("v_and_b32 v1, 3, v0")
    a("v_lshl_add_u32 v10, v1, 4, v10")
    a("s_lshl_b32 s64, s58, 15")
    a(f"s_mul_i32 s65, s57, {16*3072}")
    a("s_lshl_b32 s59, s55, 6")
    a("s_add_u32 s66, s65, s59")
    a("s_add_u32 s66, s66, 2048")
    a("s_and_b32 s59, s55, 1")
    a("s_lshl_b32 s59, s59, 10")
    a("s_add_u32 s65, s65, s59")
    a("s_lshr_b32 s59, s55, 1")
    a("s_lshl_b32 s59, s59, 7")
    a("s_add_u32 s65, s65, s59")
    a(f"s_mul_i32 s67, s57, {16*3584}")
    a("s_lshl_b32 s68, s62, 7")
    a("s_add_u32 s67, s67, s68")
    a("s_lshl_b32 s69, s57, 10")
    a("s_waitcnt lgkmcnt(0)")
    srd(a, X, 4, 2048*1024)
    srd(a, WQ, 6, 512*3072)
    srd(a, WI, 12, 512*3584)
    a("s_cmp_eq_u32 s61, 7")
    a("s_cbranch_scc1 L_light")
    g2_pass1(a, False)
    g2_z(a)
    a("s_branch L_g2b")
    a.label("L_light")
    st = json.dumps(FINE); so = OPT["stamp"]; OPT["stamp"] = False
    g2_pass1(a, True)
    g2_light(a)
    OPT["stamp"] = so; FINE.update(json.loads(st))
    if so: a(f"v_mov_b32 v{FINE['v']}, 1")
    a.label("L_g2b")

def g2_pass1(a, light):
    X, WQ, WI, MISC = SA, SB_, SC, SD
    WFR, XG, ACC = 32, 48, 64
    def chunk_dma(c):
        slot = slot_of(c)
        P = [[f"s_add_u32 s70, s63, {c}", "s_and_b32 s70, s70, 7", "s_lshl_b32 s59, s70, 7", f"s_add_u32 m0, s60, {slot}", "s_add_u32 s59, s59, s64"] +
             [f"buffer_load_dwordx4 v{2+q}, {S4(X)}, s59 offen offset:{q*1024} lds" for q in range(2)],
             [f"buffer_load_dwordx4 v{2+q}, {S4(X)}, s59 offen offset:{q*1024} lds" for q in range(2, 4)] +
             [f"s_mul_i32 s71, s70, {64*3072}", f"s_add_u32 m0, s69, {slot + 32768}", "s_add_u32 s59, s71, s66",
              f"buffer_load_dwordx4 v10, {S4(WQ)}, s59 offen lds"],
             [f"s_add_u32 m0, s60, {slot + 16384}", "s_add_u32 s59, s71, s65"] +
             [f"buffer_load_dwordx4 v{6+q}, {S4(WQ)}, s59 offen offset:{q*2048} lds" for q in range(2)], []]
        if not light:
            P[3] = [f"s_mul_i32 s59, s70, {64*3584}", "s_add_u32 s59, s59, s67"] + \
                   [f"buffer_load_dwordx4 v{8+q}, {S4(WI)}, s59 offen offset:{q*2048+1024} lds" for q in range(2)]
        return P
    def z1_dma(g):
        P = [[f"s_add_u32 s70, s63, {4*(g-8)}", "s_add_u32 s70, s70, s57", "s_and_b32 s70, s70, 7", f"s_mul_i32 s70, s70, {64*3584}",
              "s_add_u32 s70, s70, s68", "s_lshl_b32 s71, s57, 13"], [], [], []]
        for h in range(2):
            P[2*h] += [f"s_add_u32 m0, s71, {slot_of(g) + h*4096}", f"s_add_u32 s59, s70, {h*32*3584}"]
            for q in range(4):
                P[2*h + q//2].append(f"buffer_load_dwordx4 v{12+q}, {S4(WI)}, s59 offen offset:{q*1024} lds")
        return P
    gsize = [7]*8 + [0, 0] if light else [9]*8 + [8, 8]
    def parts(g):
        if g < 8: return chunk_dma(g)
        return [[], [], [], []] if light else z1_dma(g)
    def group(g):
        if light and g == 1:
            a(f"s_add_u32 m0, s69, {GSCR}")
            a("s_nop 0")
            a(f"buffer_load_dwordx4 v25, {S4(MISC)}, 0 offen lds")
        for p in parts(g):
            for l in p: a(l)
    group(0)
    srd(a, WS, 26, WS_SIZE)
    for q in (1, 2, 3): a(f"v_add_u32 v{12+q}, {q*(8*3584-1024)}, v12")
    swz_read_addrs(a, 16, 60)
    tr_addr(a, 20, 11, 7, True, 16384 + 1024)
    a("v_xor_b32 v21, 64, v20")
    if light:
        srd(a, MISC, 20, 1024)
        a("v_lshlrev_b32 v24, 4, v0")
        a("s_lshl_b32 s59, s63, 7")
        a("v_add_u32 v25, s59, v24")
        a("v_and_b32 v25, 1023, v25")
        a("v_lshrrev_b32 v1, 5, v0")
        a(f"s_add_u32 s59, s69, {GSCR}")
        a("v_lshl_add_u32 v28, v1, 4, s59")
    fine_init(a, 31); fine_pool([4, 6, 10, 12, 8, 26, 48, 50, 84, 86, 20]);
    sp_setup_w(a)
    if not light: g2_z_setup(a)
    fine(a, "setup")
    group(1)
    win = Win(range(16, 22), 16384)
    def reads(n):
        c, ks = n >> 2, n & 3
        pre, so = win.at(slot_of(c))
        R = [f"ds_read_b128 {vr(XG + 4*(n&1), 4)}, v{16+ks} offset:{so}"]
        if light:
            R.append(f"ds_read_b128 {vr(WFR + 8*(n&1), 4)}, v28 offset:{n*32}")
        else:
            for t in range(2):
                for v in range(2):
                    R.append(f"ds_read_b64_tr_b16 {vr(WFR + 8*(n&1) + 4*t + 2*v, 2)}, v{20+t} offset:{so + ks*4096 + v*512}")
        return pre, R
    def boundary(c):
        if OPT.get("diagsl") and c > 0: a(f"s_sleep {OPT['diagsl']}")
        a(f"s_waitcnt vmcnt({gsize[c+1]})")
        a("s_barrier")
        fine(a, f"b{c}")
    if OPT.get("p1p"): a(f"s_setprio {OPT['p1p']}")
    boundary(0)
    pre, R = reads(0)
    for l in pre + R: a(l)
    P = parts(2)
    for l in P.pop(0): a(l)
    for n in range(32):
        ks = n & 3
        M = lambda t: mfma(a, ACC + 16*t, WFR + 8*(n&1) + 4*t, XG + 4*(n&1), "0" if n == 0 else None)
        pre, R = reads(n + 1) if n < 31 else ([], [])
        a(f"s_waitcnt lgkmcnt({0 if light else 2})")
        M(0)
        if n == 31:
            if not light: a("s_waitcnt lgkmcnt(0)"); M(1)
            break
        if ks == 3:
            boundary((n >> 2) + 1)
            assert not P
            P = parts((n >> 2) + 3)
            if n >= 23 and OPT.get("zfast", 2) == 1: P = [P[0] + P[1], P[2] + P[3], [], []]
            if n >= OPT.get("zf0", 27) and OPT.get("zfast", 2) == 2:
                for p_ in P:
                    for l in p_: a(l)
                P = [[], [], [], []]
        nr = 3 if OPT.get("rd2", 1) else 5
        for l in pre + R[:nr]: a(l)
        if not light:
            a(f"s_waitcnt lgkmcnt({nr})")
            M(1)
        for l in R[nr:] + P.pop(0): a(l)
    if OPT.get("p1p"): a("s_setprio 0")
    fine(a, "p1")

RSCR = 152576
def relayout_load(a):
    a("s_lshl_b32 s93, s2, 2")
    a("s_add_u32 s93, s93, s57")
    a("s_cmp_ge_u32 s93, 704")
    a("s_cbranch_scc1 L_norl")
    a("s_lshr_b32 s59, s93, 3")
    a("s_lshl_b32 s59, s59, 14")
    srd(a, SA, 8, 512*1024)
    a("s_cmp_lt_u32 s93, 256")
    a("s_cbranch_scc1 L_rwo")
    srd(a, SA, 18, 896*1024)
    a(f"s_sub_u32 s59, s59, {32*16384}")
    a.label("L_rwo")
    a("s_and_b32 s3, s93, 7")
    a("s_lshl_b32 s3, s3, 7")
    a("s_add_u32 s59, s59, s3")
    a("v_lshrrev_b32 v8, 3, v0")
    a("v_lshlrev_b32 v8, 6, v8")
    a("v_and_or_b32 v8, v0, 7, v8")
    a("v_lshlrev_b32 v8, 4, v8")
    a(f"s_add_u32 m0, s80, {RSCR}")
    a("s_nop 0")
    a(f"buffer_load_dwordx4 v8, {S4(SA)}, s59 offen lds")
    a(f"s_add_u32 s59, s59, {8192 - 1024}")
    a(f"buffer_load_dwordx4 v8, {S4(SA)}, s59 offen offset:1024 lds")
    a.label("L_norl")
    tr_addr(a, 119, 9, 7, False, RSCR, tmp=8)
    a("v_add_u32 v119, s80, v119")
def relayout_read(a, d):
    for nt in range(2):
        for v in range(2):
            a(f"ds_read_b64_tr_b16 {vr(d + nt*4 + v*2, 2)}, v119 offset:{v*1024 + nt*64}")
def relayout_store(a, d, L):
    a("s_cmp_ge_u32 s93, 704")
    a(f"s_cbranch_scc1 L_nors{L}")
    a("s_and_b32 s3, s93, 7")
    a(f"s_mul_i32 s3, s3, {2*88*1024}")
    a("s_lshr_b32 s59, s93, 3")
    a("s_lshl_b32 s59, s59, 10")
    a("s_add_u32 s59, s59, s3")
    a(f"s_add_u32 s59, s59, {WF}")
    store4(a, d, 4, "s59")
    a(f"s_add_u32 s59, s59, {88*1024}")
    store4(a, d + 4, 4, "s59")
    a.label(f"L_nors{L}")
    a("s_and_b32 s3, s93, 7")
    a("s_lshl_b32 s3, s3, 4")
    a("s_lshr_b32 s93, s93, 6")
    a("s_add_u32 s93, s93, s3")
    a(f"s_add_u32 s93, s93, {CW}")

C1, C2, SUM, SQ = 24, 25, 26, 28
def g2_z_setup(a):
    a(f"v_mov_b32 v{C1}, {f32(GC1)}")
    a(f"v_mov_b32 v{C2}, {f32(GC2)}")
    for r in range(SUM, SUM + 4): a(f"v_mov_b32 v{r}, 0")
    a("v_lshlrev_b32 v96, 4, v0")
    a("v_and_b32 v1, 31, v0")
    a("v_lshlrev_b32 v97, 3, v1")
    a("v_lshrrev_b32 v98, 5, v0")
    a("v_mul_u32_u24 v98, 7168, v98")
    a("v_add_u32 v98, v98, v97")
    a("v_bfe_u32 v1, v0, 1, 3")
    a("v_lshrrev_b32 v99, 5, v0")
    a("v_xor_b32 v1, v1, v99")
    a("v_and_b32 v99, 31, v0")
    a("v_lshlrev_b32 v99, 6, v99")
    a("v_lshl_add_u32 v99, v1, 3, v99")
    a(f"s_add_u32 s59, s60, {SCR}")
    a("v_add_u32 v99, s59, v99")
    for i in (1, 2, 3): a(f"v_xor_b32 v{99+i}, {16*i}, v99")
    tr_addr(a, 103, 9, 6, False, 0)
    a("v_bfe_u32 v1, v0, 3, 1")
    a("v_lshrrev_b32 v104, 5, v0")
    a("v_lshl_or_b32 v1, v104, 2, v1")
    a("v_lshlrev_b32 v1, 3, v1")
    a("v_xor_b32 v103, v103, v1")
    a("v_add_u32 v103, s59, v103")
    a("v_xor_b32 v104, 16, v103")
    a(f"v_mul_u32_u24 v105, {CST}, v0")
    a("v_mov_b32 v106, 1")
    a(f"s_mul_i32 s59, s58, {CST}")
    a(f"s_add_u32 s59, s59, {CNT - FLG + CS*CST}")
    a("v_mov_b32 v107, s59")
    a("s_mul_i32 s79, s54, 14336")
    a("s_lshl_b32 s59, s57, 8")
    a("s_add_u32 s79, s79, s59")
    a(f"s_add_u32 s79, s79, {STATS}")
    a("s_add_u32 s80, s79, 4096")
    a("s_lshl_b32 s59, s62, 10")
    a("s_add_u32 s81, s79, s59")
    a("s_lshl_b32 s82, s62, 18")
    a("s_lshl_b32 s59, s58, 11")
    a("s_add_u32 s82, s82, s59")
    a(f"s_add_u32 s82, s82, {Z2F}")
    a("s_add_u32 s83, s82, 131072")
    a("s_lshl_b32 s78, s62, 2")
    a("s_lshr_b32 s59, s54, 2")
    a("s_add_u32 s78, s78, s59")
    a("s_lshl_b32 s78, s78, 3")
    a(f"s_add_u32 s78, s78, {CZ}")

def touch(a, when):
    if OPT.get("tch", 0) == when: a(f"buffer_load_dword v127, v{WV+4}, {S4(WSP)}, s92 offen")

def g2_z(a):
    WFR, ACC, T = 32, 64, 48
    fine_flush(a)
    a("s_load_dwordx16 s[36:51], s[24:25], 0")
    a("s_lshl_b32 s59, s57, 2")
    a("v_mov_b32 v22, s59")
    a("v_mov_b32 v23, 0")
    a("s_nop 7")
    for ti in range(2):
        x = ACC + 16*ti
        for i, l in enumerate(gelu_list(x, T, C1, C2)):
            if 112*ti + i == OPT.get("zb", 48):
                a("s_waitcnt vmcnt(0)")
                a("ds_write_b32 v22, v106 offset:176")
            a(l)
        for p in range(16):
            a(f"v_add_f32 v{SUM+(p&1)}, v{SUM+(p&1)}, v{x+p}")
            a(f"v_fmac_f32 v{SQ+(p&1)}, v{x+p}, v{x+p}")
    a(f"v_add_f32 v{SUM}, v{SUM}, v{SUM+1}")
    a(f"v_add_f32 v{SUM+1}, v{SQ}, v{SQ+1}")
    halfsum(a, SUM, T)
    halfsum(a, SUM+1, T+1)
    a(f"v_and_b32 v{SUM+1}, 0x7fffffff, v{SUM+1}")
    a("s_waitcnt lgkmcnt(0)")
    for r in range(38, 52, 2): a(f"s_and_b64 s[36:37], s[36:37], s[{r}:{r+1}]")
    a("s_and_b32 s36, s36, s37")
    a("s_cbranch_scc1 L_clr2d")
    srd(a, SA, 24, 256)
    a(f"v_and_b32 v{T}, 15, v0")
    a(f"v_lshlrev_b32 v{T}, 2, v{T}")
    poll_flags(a, "L_clr2", T, T + 1, srd_=SA, soff="0")
    a(f"buffer_store_dwordx2 {vr(SUM,2)}, v97, {S4(WS)}, s81 offen sc1")
    a("s_mov_b64 exec, 1")
    a(f"buffer_atomic_add v106, v107, {S4(WS)}, s90 offen sc1")
    a("s_mov_b64 exec, -1")
    fine(a, "g2")
    a("s_setprio 2")
    lds_poll(a, "L_bz1", 23, 176, T)
    lds_poll(a, "L_bz2", 23, 192, T)
    if OPT.get("w0", 0) == 0:
        for g in wdma(0, WV):
            for m in g: a(m)
    sp_setup_a(a)
    S = 112
    def st_try():
        for i in range(7):
            a(f"buffer_load_dwordx2 {vr(S+2*i,2)}, v98, {S4(WS)}, {'s79' if i < 4 else 's80'} offen offset:{(i%4)*1024} sc1")
        a("s_waitcnt vmcnt(0)")
        a(f"v_or3_b32 v{T}, v{S+1}, v{S+3}, v{S+5}")
        a(f"v_or3_b32 v{T}, v{T}, v{S+7}, v{S+9}")
        a(f"v_or3_b32 v{T}, v{T}, v{S+11}, v{S+13}")
        a(f"v_cmp_gt_i32 vcc, 0, v{T}")
    if OPT.get("hint", 1) == 0:
        st_try()
        a("s_nop 0")
        a("s_cmp_eq_u64 vcc, 0")
        a("s_cbranch_scc1 L_stpd")
    cnt_poll(a, "L_spr", 107, S, 1, 14, sleep=SLP)
    a(f"s_mov_b32 s91, {SPIN}")
    a.label("L_stp")
    st_try()
    a("s_sub_u32 s91, s91, 1")
    a("s_cbranch_scc1 L_stpd")
    a("s_cmp_lg_u64 vcc, 0")
    a("s_cbranch_scc1 L_stp")
    a.label("L_stpd")
    fine(a, "stat")
    if OPT.get("w0", 0) == 3:
        for g in wdma(0):
            for m in g: a(m)
    for i in range(1, 7):
        a(f"v_add_f32 v{S}, v{S}, v{S+2*i}")
        a(f"v_add_f32 v{S+1}, v{S+1}, v{S+2*i+1}")
    halfsum(a, S, T)
    halfsum(a, S+1, T+1)
    a(f"v_mul_f32 v{S}, {f32(1.0/896)}, v{S}")
    a(f"v_mul_f32 v{S+1}, {f32(1.0/896)}, v{S+1}")
    a(f"v_fma_f32 v{S+1}, -v{S}, v{S}, v{S+1}")
    a(f"v_max_f32 v{S+1}, 0, v{S+1}")
    a(f"v_add_f32 v{S+1}, {f32(1e-5)}, v{S+1}")
    a(f"v_rsq_f32 v{S+2}, v{S+1}")
    a("s_nop 0")
    a(f"v_mul_f32 v{S+3}, -v{S}, v{S+2}")
    for ti in range(2):
        x = ACC + 16*ti
        for p in range(16): a(f"v_fma_f32 v{x+p}, v{x+p}, v{S+2}, v{S+3}")
        o = T + 8*ti
        for p in range(8): a(f"v_cvt_pk_bf16_f32 v{o+p}, v{x+2*p}, v{x+2*p+1}")
        for i in range(4): a(f"ds_write_b64 v{99+i}, {vr(o+2*i,2)} offset:{ti*2048}")
    a("s_waitcnt lgkmcnt(0)")
    for ti in range(2):
        for k in range(2):
            for v in range(2):
                a(f"ds_read_b64_tr_b16 {vr(WFR + ti*8 + k*4 + v*2, 2)}, v{103+v} offset:{ti*2048 + k*1024 + v*256}")
    for ti in range(2):
        for k in range(2):
            a(f"s_waitcnt lgkmcnt({6 - 2*(ti*2+k)})")
            store4(a, WFR + ti*8 + k*4, 96, "s82" if ti == 0 else "s83", k*1024)
    fine(a, "ln")
    a("s_mov_b32 s70, s78")
    fine_flush(a)
    sp_setup_b(a)
    a("s_waitcnt vmcnt(0)")
    cnt_add(a, 70, 105, 106, 8)
    fine(a, "fz")

KV0 = 16
def kv_batch(b, v, sm=92, sg=71, sr_=58):
    return [[f"s_add_u32 m0, s{sm}, {n*8192}", f"s_add_u32 s59, s{sr_}, {n*8192}", "s_and_b32 s59, s59, 0x1ffff", f"s_add_u32 s59, s59, s{sg}",
             f"buffer_load_dwordx4 v{v}, {S4(WS)}, s59 offen sc1 lds",
             f"buffer_load_dwordx4 v{v}, {S4(WS)}, s59 offen offset:1024 sc1 lds"] for n in range(4*b, 4*b + 4)]

def g2_light(a):
    a("v_lshlrev_b32 v96, 4, v0")
    a("s_nop 7"); a("s_nop 2")
    a(f"v_mul_f32 v4, {f32(-LOG2E)}, v64")
    a("v_exp_f32 v4, v4")
    a("v_and_b32 v5, 31, v0")
    a("v_add_f32 v4, 1.0, v4")
    a("v_rcp_f32 v4, v4")
    a("v_lshlrev_b32 v5, 2, v5")
    a("v_and_b32 v4, 0x7fffffff, v4")
    a("s_lshl_b32 s59, s57, 2")
    a("v_mov_b32 v22, s59")
    a("v_mov_b32 v23, 0")
    a("v_mov_b32 v24, 1")
    a("ds_write_b32 v22, v24 offset:176")
    a("s_setprio 2")
    lds_poll(a, "L_bz3", 23, 176, 48)
    lds_poll(a, "L_bz4", 23, 192, 48)
    a("s_bitcmp1_b32 s52, 0")
    a("s_cbranch_scc1 L_nog")
    a("s_lshl_b32 s59, s58, 7")
    a(f"s_add_u32 s59, s59, {GG}")
    a(f"buffer_store_dword v4, v5, {S4(WS)}, s59 offen sc1")
    a.label("L_nog")
    if OPT.get("w0", 0) != 1:
        for g in wdma(0, WV):
            for m in g: a(m)
    sp_setup_a(a)
    sp_setup_b(a)
    a("s_waitcnt vmcnt(0)")

TILES = [(0, 0), (0, 1), (0, 2), (0, 3), (1, 0), (1, 1), (1, 2)]
def lds_poll(a, lbl, vz, off, t):
    a(f"s_mov_b32 s91, {SPIN}")
    a.label(lbl)
    a(f"ds_read_b128 {vr(t,4)}, v{vz} offset:{off}")
    a("s_waitcnt lgkmcnt(0)")
    a(f"v_and_b32 v{t}, v{t}, v{t+1}")
    a(f"v_and_b32 v{t+2}, v{t+2}, v{t+3}")
    a(f"v_and_b32 v{t}, v{t}, v{t+2}")
    a("s_sub_u32 s91, s91, 1")
    a(f"v_readfirstlane_b32 s3, v{t}")
    a(f"s_cbranch_scc1 {lbl}d")
    a("s_cmp_lg_u32 s3, 0")
    a(f"s_cbranch_scc1 {lbl}d")
    a("s_sleep 2")
    a(f"s_branch {lbl}")
    a.label(lbl + "d")

WV = 107 + 1
WSP = DBG
def sp_setup_w(a):
    a("s_lshr_b32 s76, s52, 1")
    a("s_lshl_b32 s76, s76, 3")
    a("s_and_b32 s59, s53, 7")
    a("s_add_u32 s76, s76, s59")
    a("s_and_b32 s77, s52, 1")
    a("s_lshl_b32 s77, s77, 2")
    a("s_lshr_b32 s59, s53, 3")
    a("s_add_u32 s77, s77, s59")
    a("s_lshl_b32 s93, s59, 1")
    if OPT.get("srot", 0) == 1:
        a("s_and_b32 s59, s52, 1")
        a("s_add_u32 s93, s93, s59")
    if OPT.get("srot", 0) == 0: a("s_mov_b32 s93, 0")
    if OPT.get("srot", 0) == 3: a("s_add_u32 s93, s93, s53")
    if OPT.get("srot", 0) >= 4: a(f"s_and_b32 s93, s53, {[7, 6, 4][OPT['srot'] - 4]}")
    a("s_and_b32 s59, s77, 1")
    a("s_lshl_b32 s74, s76, 1")
    a("s_add_u32 s74, s74, s59")
    a("s_xor_b32 s75, s74, 1")
    a("s_lshl_b32 s59, s57, 10")
    for i in range(2):
        a(f"s_lshl_b32 s{74+i}, s{74+i}, 17")
        a(f"s_add_u32 s{74+i}, s{74+i}, s59")
    a("s_lshl_b32 s72, s57, 13")
    a("s_add_u32 s72, s72, 0x20000")
    a("s_add_u32 s73, s72, 4096")
    srd(a, WSP, 14, 2048*4096)
    swz_row_voffs(a, WV, 12)
    a(f"v_lshlrev_b32 v{WV+4}, 12, v0")
    a("s_lshl_b32 s92, s76, 18")
    a("s_add_u32 s92, s92, s59")
    a("s_lshl_b32 s59, s77, 7")
    a("s_add_u32 s92, s92, s59")
def wdma(st, v=2, ts=(0, 1)):
    P = []
    for t in ts:
        pre = [f"s_add_u32 s3, s93, {st}", "s_and_b32 s3, s3, 7", "s_lshl_b32 s3, s3, 7"]
        pre += [f"s_mov_b32 m0, s{72+t}", f"s_add_u32 s59, s3, s{74+t}"]
        for q in range(4):
            P.append(pre + [f"buffer_load_dwordx4 v{v+q}, {S4(WSP)}, s59 offen offset:{q*1024} lds"]); pre = []
    return P

def sp_setup_a(a):
    a("s_mov_b32 s54, s76")
    a("s_mov_b32 s55, s77")
    a("s_and_b32 s58, s55, 1")
    a("s_lshl_b32 s60, s54, 1")
    a("s_add_u32 s60, s60, s58")
    a("s_xor_b32 s61, s60, 1")
    a("s_lshr_b32 s59, s55, 1")
    a("s_mul_i32 s59, s59, 7")
    a("s_add_u32 s65, s59, 3")
    a("s_lshl_b32 s62, s58, 2")
    a("s_add_u32 s62, s62, s59")
    a("s_add_u32 s63, s62, 1")
    a("s_add_u32 s64, s62, 2")
    a("s_lshl_b32 s59, s57, 15")
    a(f"s_add_u32 s59, s59, {Z2F}")
    for i in range(4):
        a(f"s_lshl_b32 s{66+i}, s{62+i}, 17")
        a(f"s_add_u32 s{66+i}, s{66+i}, s59")
    srd(a, SB_, 16, 4096)
    a("v_lshlrev_b32 v1, 4, v0")
    for q in range(4): a(f"v_mov_b32 v{2+q}, v{WV+q}")
    swz_read_addrs(a, 6, 72, tmp=10)
    a("v_mov_b32 v14, 0")
    a("v_mov_b32 v15, 1")
    a("s_lshl_b32 s59, s57, 2")
    a("s_add_u32 s59, s59, 32")
    a("v_mov_b32 v13, s59")
    a("v_lshrrev_b32 v10, 4, v0")
    a("s_lshr_b32 s59, s62, 1")
    a("v_mov_b32 v18, s59")
    a("s_lshr_b32 s59, s64, 1")
    a("v_mov_b32 v16, s59")
    a("v_cmp_eq_u32 vcc, 1, v10")
    a("s_lshr_b32 s59, s65, 1")
    a("v_mov_b32 v17, s59")
    a("v_cndmask_b32 v18, v18, v16, vcc")
    a("v_cmp_eq_u32 vcc, 2, v10")
    a("s_lshl_b32 s59, s57, 3")
    a("s_and_b32 s3, s53, 7")
    a("v_cndmask_b32 v18, v18, v17, vcc")
    a("s_add_u32 s59, s59, s3")
    a("v_lshl_add_u32 v10, v18, 5, s59")
    a(f"v_mul_u32_u24 v10, {CST}, v10")
    a(f"v_add_u32 v10, {CNT - FLG + CZ*CST}, v10")
    a("v_and_b32 v16, 3, v0")
    a("s_lshr_b32 s59, s54, 1")
    a(f"s_add_u32 s59, s59, {CY}")
    a("v_lshl_add_u32 v12, v18, 4, s59")
    a("s_lshl_b32 s59, s55, 4")
    a(f"s_add_u32 s59, s59, {CW - 48}")
    a("v_cmp_lt_u32 vcc, 47, v0")
    a("v_add_u32 v17, s59, v0")
    a("s_nop 0")
    a("v_cndmask_b32 v12, v12, v17, vcc")
    a(f"v_mul_u32_u24 v12, {CST}, v12")
    a("s_lshl_b32 s48, s55, 1")
    a("s_and_b32 s59, s57, 1")
    a("s_add_u32 s48, s48, s59")
    a("s_xor_b32 s49, s48, 1")
    a(f"s_mul_i32 s59, s57, {14*1024}")
    a(f"s_add_u32 s59, s59, {WF + 32*1024}")
    for i in range(2):
        a(f"s_mul_i32 s{48+i}, s{48+i}, {88*1024}")
        a(f"s_add_u32 s{48+i}, s{48+i}, s59")
def sp_setup_b(a):
    for n, (t, f) in enumerate(TILES):
        a(f"s_mul_i32 s59, s{60+t}, 28")
        a(f"s_add_u32 s59, s59, s{62+f}")
        a(f"s_lshl_b32 s59, s59, 11")
        a(f"s_add_u32 s{76+n}, s59, {Z1F}")
        a(f"s_mul_i32 s59, s{60+t}, 44")
        a(f"s_add_u32 s59, s59, s{62+f}")
        a(f"s_lshl_b32 s59, s59, 11")
        a(f"s_add_u32 s{83+n}, s59, {AF + 32*1024}")
    a("s_lshl_b32 s59, s52, 2")
    a("s_lshr_b32 s71, s53, 3")
    a("s_add_u32 s59, s59, s71")
    a("s_lshl_b32 s71, s59, 17")
    a("s_lshl_b32 s92, s57, 11")
    a("s_add_u32 s71, s71, s92")
    a(f"s_add_u32 s71, s71, {KVF}")
    a(f"s_and_b32 s58, s53, {7 if OPT.get('krot', 0) else 0}")
    a("s_lshl_b32 s58, s58, 14")

WUREG = [16, 20, 24, 28] + [48 + 16*ks + 4*f for f in range(4) for ks in range(4)] + list(range(224, 256, 4))
def g2_spatial(a):
    BSP = SB_
    WFR, ZS, ACC, T = 16, 48, 112, 224
    FV = 11
    if OPT["stamp"]:
        fine_flush(a); a(f"v_mov_b32 v{FV}, v{FINE['v']}"); FINE["v"] = FV
        fine_pool([4, 6, 8, 10, 12, 14, 16, 18, 20, 24, 26])
    def zbase(st):
        return [f"s_add_u32 s59, s93, {st}", "s_and_b32 s59, s59, 7", "s_lshl_b32 s59, s59, 12"] + \
               [f"s_add_u32 s{44+i}, s59, s{66+i}" for i in range(4)]
    zl = lambda ks, f: f"buffer_load_dwordx4 {vr(ZS + 16*ks + 4*f, 4)}, v1, {S4(WS)}, s{44+f} offen offset:{ks*1024} sc1"
    wset = lambda st: WFR if st % 2 == 0 else T
    def wread(st, ts=(0, 1)): return [f"ds_read_b128 {vr(wset(st) + 16*t + 4*ks, 4)}, v{6+ks} offset:{t*4096}" for ks in range(4) for t in ts]
    emit = lambda P: [a(l) for p in P for l in p]
    a("ds_write_b32 v13, v15 offset:128")
    for l in wread(0): a(l)
    lds_poll(a, "L_sc1", 14, OPT.get("sc1", 144), 224)
    emit(wdma(1))
    emit(kv_batch(1, 1))
    a("s_mov_b32 s50, 0x10001"); a("s_mov_b32 s51, 1")
    cnt_issue(a, 10, 48, "s[50:51]")
    a("s_waitcnt vmcnt(0)")
    a("ds_write_b32 v13, v15")
    fine(a, "kvl")
    cnt_poll(a, "L_pz", 10, 48, None, 16, first_issued=True, sleep=SLP)
    fine(a, "pz")
    for l in zbase(0): a(l)
    log = []
    for f in range(2):
        for ks in range(4): a(zl(ks, f)); log.append(("z", 0, ks, f))
    lds_poll(a, "L_sc2", 14, 160, 224)
    a("s_setprio 0")
    for f in range(2, 4):
        for ks in range(4): a(zl(ks, f)); log.append(("z", 0, ks, f))
    def wait_for(tag):
        idx = max(i for i, t in enumerate(log) if t == tag)
        a(f"s_waitcnt vmcnt({len(log) - 1 - idx})")
    def mm(st, f, ks):
        wait_for(("z", st, ks, f))
        for t in range(2 if f < 3 else 1):
            mfma(a, ACC + 16*TILES.index((t, f)), ZS + 16*ks + 4*f, wset(st) + 16*t + 4*ks, "0" if st + ks == 0 else None)
    kvq = kv_batch(2, 1) + kv_batch(3, 1)
    log[:0] = [("w", 1, 0), ("w", 1, 1)]
    for st in range(7):
        if st % 2 == 0: fine(a, f"s{st}")
        for l in zbase(st + 1): a(l)
        extra = []
        for f in range(4):
            for ks in range(4):
                j = 4*f + ks
                if j in (2, 8):
                    a("s_waitcnt lgkmcnt(0)")
                    if st < 6: extra = [(g, ("w", st + 2, j // 8), 1) for g in wdma(st + 2, ts=(j // 8,))]
                if j in (0, 6) and kvq: extra = [(kvq.pop(0), ("kv",), 2) for _ in range(2 if st == 0 else 1)]
                mm(st, f, ks)
                a(zl(ks, f)); log.append(("z", st + 1, ks, f))
                if st == 5 and j == 0:
                    a("s_mov_b32 s51, 0x07ff0001")
                    a("s_mov_b64 exec, s[50:51]")
                    poll_issue(a, 12, 10); log.append(("f",))
                    a("s_mov_b64 exec, -1")
                if extra:
                    g, tag, cnt = extra.pop(0)
                    for l in g: a(l)
                    log += [tag]*cnt
                if j in (0, 6):
                    wait_for(("w", st + 1, j // 6))
                    for l in wread(st + 1, (j // 6,)): a(l)
                    if j == 6 and st in (1, 3): a(f"ds_write_b32 v13, v15 offset:{8*(st+1)}")
                if st == 6 and j == 9:
                    a("s_setprio 2")
                    a("s_mov_b64 exec, s[50:51]")
                    a("v_cmp_gt_u32 vcc, 8, v10")
                    a("s_nop 1")
                    a("s_cmp_eq_u64 vcc, 0")
                    a("s_cbranch_scc1 L_pyd")
                    cnt_poll(a, "L_py", 12, 10, "vcc", 8, sleep=8)
                    a("v_and_b32 v2, 31, v0")
                    a("v_lshlrev_b32 v4, 2, v2")
                    a("v_lshlrev_b32 v2, 1, v2")
                    a("v_add_u32 v3, 0x10000, v1")
                    a("v_add_u32 v5, -16, v13")
                    lds_poll(a, "L_pa", 14, 0, 6)
                    a("s_setprio 0")
                    for t in range(2):
                        a(f"s_lshl_b32 s59, s{60+t}, 6")
                        a(f"buffer_load_ushort v{6+t}, v2, {S4(BSP)}, s59 offen")
                        a(f"s_lshl_b32 s{74+t}, s{60+t}, 7")
                        a(f"s_add_u32 s{74+t}, s{74+t}, {GG}")
                        a(f"buffer_load_dword v{8+t}, v4, {S4(WS)}, s{74+t} offen sc1")
                    log += [("b",)]*4
    a("s_lshl_b32 s66, s55, 1")
    a("s_lshr_b32 s59, s57, 1")
    a("s_add_u32 s66, s66, s59")
    a(f"s_mul_i32 s66, s66, {88*1024}")
    a("s_and_b32 s59, s57, 1")
    a("s_lshl_b32 s59, s59, 14")
    a("s_add_u32 s66, s66, s59")
    a(f"s_add_u32 s66, s66, {WF}")
    Z1R, B_, G_ = 32, 6, 8
    def gl():
        for t in range(2): a(f"buffer_load_dword v{G_+t}, v4, {S4(WS)}, s{74+t} offen sc1")
    owner = [0,0,0,0,1,1,1,1,2,2,2,3,3,3]
    def slot(n, src):
        si = src if src < owner[n] else src - 1
        ad = 2048 + (n*3 + si)*2048
        return (1, ad) if ad + 1024 < 65536 else (3, ad - 65536)
    st_ = json.dumps(FINE); log0 = list(log)
    for w in range(4):
        FINE.update(json.loads(st_)); log[:] = log0
        if w < 3:
            a(f"s_cmp_lg_u32 s57, {w}")
            a(f"s_cbranch_scc1 L_w{w+1}")
        mine = [n for n in range(14) if owner[n] == w]
        free = [ACC + 8*n for n in range(14) if owner[n] != w]
        U, CC = free[6], free[7]
        def writes(f):
            L = []
            for t in range(2 if f < 3 else 1):
                for n in (2*TILES.index((t, f)), 2*TILES.index((t, f)) + 1):
                    if owner[n] != w:
                        r, ad = slot(n, w)
                        L += [f"ds_write_b128 v{r}, {vr(ACC+8*n+4*i,4)} offset:{ad + 1024*i}" for i in range(2)]
            return L
        wn = [0]
        def wu():
            k = wn[0]; wn[0] += 1
            load4(a, WUREG[k], 1, f"s{48 + (k & 1)}", ((k >> 1) % 4)*1024); log.append(("u",))
            if k % 8 == 7:
                for i in range(2): a(f"s_add_u32 s{48+i}, s{48+i}, 4096")
        pend = []
        for f in range(4):
            for ks in range(4):
                mm(7, f, ks)
                if f == 0 and ks < len(mine):
                    load4(a, Z1R + 4*ks, 1, f"s{76 + (mine[ks]>>1)}", (mine[ks]&1)*1024); log.append(("y",))
                wu()
                if f == 1: wu()
                if ks == 1 and f > 0:
                    pend = writes(f - 1)
                    if f > 1: a("s_nop 3" if f == 2 else "s_nop 5")
                for _ in range(3):
                    if pend: a(pend.pop(0))
        fine(a, "mm")
        a("s_setprio 2")
        while wn[0] < 28: wu()
        a("s_nop 1")
        for l in writes(3): a(l)
        a("s_waitcnt lgkmcnt(0)")
        a("ds_write_b32 v5, v15")
        for g in range(2):
            a(f"s_add_u32 m0, s72, {g*4096}")
            a("s_nop 0")
            for i in range(4): a(f"buffer_load_dwordx4 v1, {S4(WS)}, s66 offen offset:{i*1024} sc1 lds")
            a("s_add_u32 s66, s66, 4096")
        log += [("o",)]*8
        wait_for(("y",))
        a(f"s_mov_b32 s91, {SPIN}")
        a.label(f"L_gp{w}")
        a(f"v_or_b32 v{U}, v{G_}, v{G_+1}")
        a(f"v_cmp_gt_i32 vcc, 0, v{U}")
        a("s_sub_u32 s91, s91, 1")
        a(f"s_cbranch_scc1 L_gp{w}d")
        a("s_cmp_eq_u64 vcc, 0")
        a(f"s_cbranch_scc1 L_gp{w}d")
        gl()
        a("s_waitcnt vmcnt(0)")
        a(f"s_branch L_gp{w}")
        a.label(f"L_gp{w}d")
        for t in range(2):
            a(f"v_sub_f32 v{CC+2*t}, 1.0, v{G_+t}")
            a(f"v_lshlrev_b32 v{B_+t}, 16, v{B_+t}")
            a(f"v_mul_f32 v{CC+1+2*t}, v{B_+t}, v{CC+2*t}")
        lds_poll(a, f"L_pb{w}", 14, 16, 6)
        fine(a, "pb")
        def rdp(i):
            n = mine[i]
            for si, src in enumerate([s_ for s_ in range(4) if s_ != w]):
                r, ad = slot(n, src)
                a(f"ds_read_b128 {vr(free[3*(i&1) + si], 4)}, v{r} offset:{ad}")
                a(f"ds_read_b128 {vr(free[3*(i&1) + si] + 4, 4)}, v{r} offset:{ad+1024}")
        rdp(0)
        for i, n in enumerate(mine):
            if i + 1 < len(mine):
                rdp(i + 1); a("s_waitcnt lgkmcnt(6)")
            else:
                a("s_waitcnt lgkmcnt(0)")
                a("ds_write_b32 v13, v15 offset:80")
            x = ACC + 8*n; t = TILES[n >> 1][0]
            for si in range(3):
                for p in range(8): a(f"v_add_f32 v{x+p}, v{x+p}, v{free[3*(i&1) + si]+p}")
            for p in range(8): a(f"v_fma_f32 v{x+p}, v{x+p}, v{CC+2*t}, v{CC+1+2*t}")
            for p in range(4):
                a(f"v_lshlrev_b32 v{U+2*p}, 16, v{Z1R+4*i+p}")
                a(f"v_and_b32 v{U+2*p+1}, 0xffff0000, v{Z1R+4*i+p}")
            for p in range(8): a(f"v_mul_f32 v{x+p}, v{x+p}, v{U+p}")
            o = Z1R + 4*i
            for p in range(4): a(f"v_cvt_pk_bf16_f32 v{o+p}, v{x+2*p}, v{x+2*p+1}")
            store4(a, o, 1, f"s{83 + (n>>1)}", (n&1)*1024)
        if w < 3:
            a("s_branch L_fin")
            a.label(f"L_w{w+1}")
    a.label("L_fin")

def out_tiles(a, rp, cg):
    a(f"s_lshl_b32 s60, s{rp}, 1")
    a("s_lshr_b32 s59, s57, 1")
    a("s_add_u32 s60, s60, s59")
    a("s_xor_b32 s61, s60, 1")
    a(f"s_lshl_b32 s62, s{cg}, 1")
    a("s_and_b32 s59, s57, 1")
    a("s_add_u32 s62, s62, s59")
    a("s_xor_b32 s63, s62, 1")
def pair(a, reg, sb, ks, v=1, n=2):
    for i in range(n): load4(a, reg + 4*i, v, f"s{sb+i}", (ks % 4)*1024)
    if ks % 4 == 3:
        for i in range(n): a(f"s_add_u32 s{sb+i}, s{sb+i}, 4096")
WOL = (131072, 59392)
RED2, RED1 = 2048, 106496
def red_setup(a, grp, vl, vw, vr_, vo):
    def base(g, lam, v):
        a(f"s_xor_b32 s59, s57, {lam}")
        a(f"s_mul_i32 s59, s59, {14336 if g else 6144}")
        a(f"s_add_u32 s59, s59, {RED2 if g else RED1}")
        a(f"v_add_u32 v{v}, s59, v{vl}")
    for lam in range(4 if grp else 2): base(grp, lam, vw + lam)
    base(1 - grp, 0, vr_)
    a(f"v_and_b32 v{vo}, 31, v0")
    a(f"v_lshlrev_b32 v{vo}, 10, v{vo}")
    a(f"v_lshrrev_b32 v{vo+1}, 5, v0")
    a(f"v_lshl_add_u32 v{vo}, v{vo+1}, 4, v{vo}")
    a("s_lshl_b32 s76, s60, 15")
    a("s_lshl_b32 s59, s62, 6")
    a("s_add_u32 s76, s76, s59")
    srd(a, SC, 22, 2048*1024)
def red_final(a, grp, ACC, vw, vr_, vo, R):
    W = lambda lam, half, slot: [f"ds_write_b128 v{vw+lam}, {vr(ACC + 16*lam + 8*half + 4*i, 4)} offset:{slot*2048 + i*1024}" for i in range(2)]
    L = []
    if grp:
        for lam in (1, 2, 3): L += W(lam, 0, lam) + W(lam, 1, 3 + lam)
        L += W(0, 0, 0)
        src = [(vw, 4), (vw, 5), (vw, 6), (vr_, 1), (vr_, 2)]
    else:
        L += W(1, 0, 0) + W(1, 1, 2) + W(0, 1, 1)
        src = [(vw, 0), (vr_, 0), (vr_, 1), (vr_, 2), (vr_, 3)]
    for l in L: a(l)
    a("s_waitcnt lgkmcnt(0)")
    a("s_barrier")
    for j, (v, slot) in enumerate(src):
        for i in range(2): a(f"ds_read_b128 {vr(R + 8*j + 4*i, 4)}, v{v} offset:{slot*2048 + i*1024}")
    x = ACC + 8*grp
    for j in range(5):
        a(f"s_waitcnt lgkmcnt({8 - 2*j})")
        for p in range(0, 8, 2): a(f"v_pk_add_f32 {vr(x+p,2)}, {vr(x+p,2)}, {vr(R+8*j+p,2)}")
    for p in range(4): a(f"v_cvt_pk_bf16_f32 v{R+p}, v{x+2*p}, v{x+2*p+1}")
    a("s_nop 1")
    a(f"v_permlane32_swap_b32 v{R}, v{R+2}")
    a(f"v_permlane32_swap_b32 v{R+1}, v{R+3}")
    a(f"buffer_store_dwordx4 {vr(R,4)}, v{vo}, {S4(SC)}, s76 offen offset:{32*grp} {OPT.get('ost', '')}")

def g2_final(a):
    R, ACC = 176, 112
    D = 6
    fine(a, "u")
    fine_flush(a)
    out_tiles(a, 54, 55)
    a(f"s_mul_i32 s72, s57, {14*1024}")
    for i in range(2):
        a(f"s_mul_i32 s59, s{60+i}, {88*1024}")
        a(f"s_add_u32 s59, s59, s72")
        a(f"s_add_u32 s{64+i}, s59, {AF + 32*1024}")
    a("s_lshl_b32 s77, s54, 2")
    a(f"s_add_u32 s77, s77, {CU}")
    a("s_add_u32 s59, s77, s57")
    a(f"s_mul_i32 s59, s59, {CST}")
    a("v_mov_b32 v2, s59")
    a("s_lshr_b32 s59, s55, 1")
    a("s_add_u32 s77, s77, s59")
    a("v_mov_b32 v3, v13")
    a("s_lshl_b32 s67, s57, 13")
    red_setup(a, 1, 1, 5, 9, 12)
    lds_poll(a, "L_prd", 14, 112, R)
    a("s_waitcnt vmcnt(0)")
    cnt_add(a, 77, 14, 15, 1)
    fine(a, "fu")
    a("s_setprio 0")
    for g in range(2):
        a(f"s_add_u32 m0, s67, {WOL[1] + g*4096}")
        a("s_nop 0")
        for i in range(4): a(f"buffer_load_dwordx4 v1, {S4(WS)}, s66 offen offset:{i*1024} sc1 lds")
        a("s_add_u32 s66, s66, 4096")
    a("s_setprio 2")
    cnt_issue(a, 2, 4, 1)
    a("s_waitcnt vmcnt(0)")
    a("ds_write_b32 v3, v15 offset:96")
    cnt_poll(a, "L_pu", 2, 4, 1, 8, first_issued=True, sleep=SLP)
    fine(a, "pu")
    a("s_setprio 0")
    for ks in range(D): pair(a, R + 8*ks, 64, ks)
    for ks in range(14):
        a(f"s_waitcnt vmcnt({2*min(13 - ks, D - 1)})")
        for lam in (1, 2, 3, 0):
            mfma(a, ACC + 16*lam, WUREG[2*ks + (lam & 1)], R + 8*(ks % D) + 4*(lam >> 1), "0" if ks == 0 else None)
        if ks + D < 14: pair(a, R + 8*(ks % D), 64, ks + D)
    fine(a, "um")
    a("s_nop 7"); a("s_nop 1")
    red_final(a, 1, ACC, 5, 9, 12, 16)
    fine_dump(a, 4, 2)
    a("s_endpgm")

def g1_final(a):
    WO, AO, ACC = 16, 144, 208
    a("s_lshr_b32 s54, s52, 1")
    a("s_lshl_b32 s54, s54, 3")
    a("s_and_b32 s59, s53, 7")
    a("s_add_u32 s54, s54, s59")
    a("s_and_b32 s55, s52, 1")
    a("s_lshl_b32 s55, s55, 2")
    a("s_lshr_b32 s59, s53, 3")
    a("s_add_u32 s55, s55, s59")
    out_tiles(a, 54, 55)
    a("s_and_b32 s72, s57, 1")
    a("s_lshl_b32 s73, s72, 14")
    a(f"s_mul_i32 s59, s60, {88*1024}")
    a(f"s_add_u32 s59, s59, s73")
    a(f"s_add_u32 s64, s59, {AF}")
    a("s_mul_i32 s59, s72, 24576")
    a(f"s_add_u32 s59, s59, {WOL[0]}")
    a("v_add_u32 v6, s59, v4")
    a("s_lshl_b32 s59, s72, 13")
    a(f"s_sub_u32 s59, {WOL[0] + 16384}, s59")
    a("v_add_u32 v7, s59, v4")
    for i in range(2): a(f"v_add_u32 v{2+i}, {(WOL[1] - WOL[0]) & 0xffffffff}, v{6+i}")
    a("s_lshl_b32 s59, s54, 1")
    a("s_add_u32 s59, s59, s72")
    a("s_lshl_b32 s59, s59, 1")
    a("s_lshr_b32 s72, s57, 1")
    a("s_add_u32 s59, s59, s72")
    a(f"s_mul_i32 s59, s59, {CST}")
    a(f"s_add_u32 s59, s59, {CNT - FLG + CO*CST}")
    a("v_mov_b32 v8, s59")
    red_setup(a, 0, 4, 10, 12, 13)
    a("v_mov_b32 v9, 0")
    a("s_waitcnt vmcnt(0)")
    cnt_add(a, 85, 63, 58, 2)
    fine(a, "fo")
    cnt_poll(a, "L_po", 8, 240, 1, 16, sleep=SLP)
    fine(a, "po")
    for ks in range(16): pair(a, AO + 4*ks, 64, ks, v=4, n=1)
    lds_poll(a, "L_adn", 9, 96, 240)
    lds_poll(a, "L_wol", 9, 128, 240)
    def wr(ks):
        for lam in range(2): a(f"ds_read_b128 {vr(WO + 8*ks + 4*lam, 4)}, v{(6 if ks < 8 else 2)+lam} offset:{(ks % 8)*1024}")
    for ks in range(6): wr(ks)
    for ks in range(16):
        if ks + 6 < 16: wr(ks + 6)
        a(f"s_waitcnt vmcnt({15-ks}) lgkmcnt({2*min(6, 15-ks)})")
        for lam in (1, 0): mfma(a, ACC + 16*lam, WO + 8*ks + 4*lam, AO + 4*ks, "0" if ks == 0 else None)
    fine(a, "om")
    a("s_nop 7"); a("s_nop 2")
    red_final(a, 0, ACC, 10, 12, 13, 16)
    fine_dump(a, 0, 2)
    a("s_endpgm")

def g1_front(a):
    WFR, ACC, T = 32, 64, 8
    a("v_lshlrev_b32 v9, 4, v0")
    a("s_waitcnt lgkmcnt(0)")
    srd(a, WS, 26, WS_SIZE)
    srd(a, DBG, 24, 256)
    if OPT.get("pfc", 1):
        a("s_cmp_lg_u32 s57, 1")
        a("s_cbranch_scc1 L_nopc")
        a(f"s_getpc_b64 s[{SA}:{SA+1}]")
        a.label("L_pc")
        a(f"s_sub_u32 s{SA}, s{SA}, L_pc-{NAME}_kernel")
        a(f"s_subb_u32 s{SA+1}, s{SA+1}, 0")
        a(f"s_mov_b32 s{SA+2}, L_end-{NAME}_kernel")
        a(f"s_mov_b32 s{SA+3}, 0x20000")
        a("v_lshlrev_b32 v17, 7, v0")
        a("s_and_b32 s59, s53, 7")
        a("s_lshl_b32 s59, s59, 13")
        a(f"buffer_load_dword v125, v17, {S4(SA)}, s59 offen")
        a.label("L_nopc")
    def touches():
        if OPT.get("pfz", 1):
            srd(a, SC, 12, 512*3584)
            a("v_and_b32 v126, 31, v0")
            a("v_mul_u32_u24 v126, 3584, v126")
            a("s_lshl_b32 s88, s62, 7")
            a("s_and_b32 s89, s58, 15")
            a(f"s_mul_i32 s89, s89, {32*3584}")
            a("s_add_u32 s89, s89, s88")
            a("s_cmp_lg_u32 s57, 2")
            a("s_cbranch_scc1 L_nopz")
            a(f"s_mul_i32 s59, s54, {32*3584}")
            a("s_add_u32 s59, s59, s88")
            a(f"buffer_load_dword v125, v126, {S4(SC)}, s59 offen")
            a.label("L_nopz")
        if OPT.get("pfw", 0):
            a("s_cmp_lg_u32 s57, 3")
            a("s_cbranch_scc1 L_notlb")
        if OPT.get("tlb", 0):
            a("v_lshlrev_b32 v17, 20, v0")
            a("s_mov_b64 exec, 0x7fffff")
            a(f"buffer_load_dword v125, v17, {S4(WS)}, 0 offen")
            a("s_mov_b64 exec, 1")
            a(f"buffer_load_dword v125, v17, {S4(DBG)}, 0 offen offset:128")
            srd(a, SA, 22, 2048*1024)
            a("s_mov_b64 exec, 3")
            a(f"buffer_load_dword v125, v17, {S4(SA)}, 0 offen")
            srd(a, SA, 16, 4096)
            a(f"buffer_load_dword v125, v17, {S4(SA)}, 0 offen")
            a("s_mov_b64 exec, -1")
        if OPT.get("pfw", 0):
            srd(a, SA, 14, 2048*4096)
            a("v_and_b32 v17, 7, v0")
            a("v_lshlrev_b32 v17, 12, v17")
            a("v_bfe_u32 v18, v0, 3, 2")
            a("v_lshl_add_u32 v17, v18, 10, v17")
            a("v_lshrrev_b32 v18, 5, v0")
            a("v_lshl_add_u32 v17, v18, 7, v17")
            a("s_lshr_b32 s59, s52, 1")
            a("s_lshl_b32 s59, s59, 3")
            a("s_and_b32 s3, s53, 7")
            a("s_add_u32 s59, s59, s3")
            a("s_lshl_b32 s59, s59, 1")
            a("s_and_b32 s3, s52, 1")
            a("s_add_u32 s59, s59, s3")
            a("s_lshl_b32 s59, s59, 2")
            a("s_lshr_b32 s3, s53, 3")
            a("s_add_u32 s59, s59, s3")
            a("s_lshl_b32 s59, s59, 15")
            if OPT.get("srot", 0) >= 4:
                a(f"s_and_b32 s3, s53, {[7, 6, 4][OPT['srot'] - 4]}")
                a("s_lshl_b32 s3, s3, 7")
                a("s_add_u32 s59, s59, s3")
            if OPT.get("pfw", 0) == 1: a("s_mov_b32 exec_hi, 0")
            a(f"buffer_load_dword v125, v17, {S4(SA)}, s59 offen")
            a("s_mov_b64 exec, -1")
            a.label("L_notlb")
    if OPT.get("tpos", 0) == 0: touches()
    a("s_cmp_lg_u32 s55, 15")
    a("s_cbranch_scc1 L_noclr")
    a("s_cmp_lg_u32 s57, 0")
    a("s_cbranch_scc1 L_noclr")
    for r in range(12, 16): a(f"v_mov_b32 v{r}, -1")
    a("v_mov_b32 v16, 0")
    a(f"v_mul_u32_u24 v17, {CST}, v0")
    a("v_lshlrev_b32 v18, 3, v0")
    a(f"s_mul_i32 s59, s54, {64*CST}")
    a(f"s_add_u32 s59, s59, {CNT}")
    a(f"buffer_store_dword v16, v17, {S4(WS)}, s59 offen sc1")
    a(f"s_add_u32 s59, s59, {1024*CST}")
    a(f"buffer_store_dword v16, v17, {S4(WS)}, s59 offen sc1")
    a("s_lshl_b32 s59, s54, 9")
    a(f"s_add_u32 s59, s59, {GG}")
    a(f"buffer_store_dwordx2 v[12:13], v18, {S4(WS)}, s59 offen sc1")
    a("s_mul_i32 s59, s54, 14336")
    a(f"s_add_u32 s59, s59, {STATS}")
    for i in range(14):
        store4(a, 12, 9, "s59", (i % 4)*1024)
        if i % 4 == 3: a("s_add_u32 s59, s59, 4096")
    a("v_mov_b32 v17, 1")
    a("s_lshl_b32 s59, s54, 2")
    a("s_waitcnt vmcnt(0)")
    a("s_mov_b64 exec, 1")
    a(f"buffer_store_dword v17, v16, {S4(DBG)}, s59 offen sc1")
    a("s_mov_b64 exec, -1")
    a.label("L_noclr")
    fine_init(a, 127); fine_pool(list(range(4, 22, 2)) + [24, 26, 36, 38, 40, 42, 48, 50])
    swz_read_addrs(a, 112, 60)
    tr_addr(a, 116, 11, 7, True, 16384)
    a("v_xor_b32 v117, 64, v116")
    tr_addr(a, 118, 9, 6, False, 32768)
    a("v_and_b32 v120, 0x33, v0")
    a("v_bfe_u32 v1, v0, 2, 1")
    a("v_lshl_or_b32 v120, v1, 3, v120")
    a("v_bfe_u32 v1, v0, 3, 1")
    a("v_lshl_or_b32 v120, v1, 2, v120")
    a("v_lshlrev_b32 v120, 4, v120")
    a("v_and_b32 v121, 15, v0")
    a("v_lshrrev_b32 v1, 5, v0")
    a("v_lshl_or_b32 v121, v1, 4, v121")
    a("v_lshlrev_b32 v121, 4, v121")
    a("v_bfe_u32 v1, v0, 4, 1")
    a("v_lshl_or_b32 v121, v1, 17, v121")
    a("s_lshl_b32 s59, s55, 7")
    a("s_add_u32 s59, s59, s58")
    a("s_lshl_b32 s70, s59, 11")
    a(f"s_add_u32 s70, s70, {KVF}")
    a("s_lshr_b32 s59, s55, 1")
    a("s_lshl_b32 s59, s59, 8")
    a("s_add_u32 s59, s59, s58")
    a("s_lshl_b32 s64, s59, 11")
    a(f"s_add_u32 s64, s64, {KVF}")
    a("s_mov_b32 s68, 131072")
    a("v_mov_b32 v122, 1.0")
    a("s_bitcmp1_b32 s55, 0")
    a("s_cbranch_scc1 L_isk")
    a("s_lshl_b32 s64, s59, 10")
    if QF: a(f"s_add_u32 s64, s64, {QF}")
    a("s_mov_b32 s68, 65536")
    a(f"v_mov_b32 v122, {f32(QSCALE)}")
    a("v_mov_b32 v120, v9")
    a.label("L_isk")
    for i in range(3): a(f"s_add_u32 s{65+i}, s{64+i}, s68")
    a("s_lshr_b32 s71, s55, 1")
    a("s_lshl_b32 s71, s71, 4")
    a("s_and_b32 s59, s54, 12")
    a("s_add_u32 s71, s71, s59")
    a("v_and_b32 v123, 15, v0")
    a("v_lshlrev_b32 v123, 2, v123")
    g1_att_setup(a)
    a("ds_write_b32 v5, v60")
    a("ds_write_b32 v5, v60 offset:128")
    a("s_mul_i32 s69, s58, 28")
    a("s_lshl_b32 s59, s62, 1")
    a("s_add_u32 s69, s69, s59")
    a("s_lshl_b32 s69, s69, 11")
    a(f"s_add_u32 s69, s69, {Z1F}")
    a("s_lshl_b32 s77, s62, 4")
    a("s_add_u32 s77, s77, s54")
    a(f"s_add_u32 s77, s77, {CY}")
    a(f"s_add_u32 s59, s2, {CY + 256}")
    a("s_cmp_eq_u32 s61, 7")
    a("s_cselect_b32 s77, s59, s77")
    if OPT.get("tpos", 0) == 1: touches()
    relayout_load(a)
    a("s_waitcnt lgkmcnt(0)")
    fine(a, "setup")
    win = Win(range(112, 119), 16384)
    def reads(n):
        c, ks = n >> 2, n & 3
        pre, so = win.at(slot_of(c))
        R = [f"ds_read_b128 {vr(XF + 4*n, 4)}, v{112+ks} offset:{so}"]
        for t in range(2):
            for v in range(2):
                R.append(f"ds_read_b64_tr_b16 {vr(WFR + 12*(n&1) + 4*t + 2*v, 2)}, v{116+t} offset:{so + ks*4096 + v*512}")
        for v in range(2):
            R.append(f"ds_read_b64_tr_b16 {vr(WFR + 12*(n&1) + 8 + 2*v, 2)}, v118 offset:{so + ks*1024 + v*256}")
        return pre, R
    a("s_barrier")
    pre, R = reads(0)
    for l in pre + R: a(l)
    for n in range(32):
        ks = n & 3
        xf = XF + 4*n; wf = WFR + 12*(n&1); c0 = "0" if n == 0 else None
        M = lambda t: mfma(a, ACC + 16*t, wf + 4*t, xf, c0) if t < 2 else mfma(a, ACC + 32, xf, wf + 8, c0)
        pre, R = reads(n + 1) if n < 31 else ([], [])
        a("s_waitcnt lgkmcnt(4)")
        M(0)
        if n == 31:
            a("s_waitcnt lgkmcnt(2)"); M(1)
            a("s_waitcnt lgkmcnt(0)"); M(2)
            break
        if ks == 3: a("s_barrier")
        if n == OPT.get("pfz2", 10): a(f"buffer_load_dword v125, v126, {S4(SC)}, s89 offen")
        for l in pre + R[0:3]: a(l)
        a("s_waitcnt lgkmcnt(5)"); M(1)
        if OPT.get("rd1", 1):
            for l in R[3:5]: a(l)
            a("s_waitcnt lgkmcnt(5)"); M(2)
            for l in R[5:7]: a(l)
        else:
            for l in R[3:7]: a(l)
            a("s_waitcnt lgkmcnt(7)"); M(2)
    fine(a, "p1")
    a(f"s_load_dwordx16 s[36:51], s[{DBG}:{DBG+1}], 0")
    a("s_nop 6")
    for t in range(3):
        acc = ACC + 16*t
        if t < 2:
            for p in range(16): a(f"v_mul_f32 v{acc+p}, v{acc+p}, v122")
        for p in range(8): a(f"v_cvt_pk_bf16_f32 v{T+8*t+p}, v{acc+2*p}, v{acc+2*p+1}")
        for h in range(2):
            if t < 2: store4(a, T + 8*t + 4*h, 120, f"s{64 + 2*t + h}")
            else: store4(a, T + 8*t + 4*h, 121, "s70", 1024 + 512*h)
    fine(a, "st")
    tr_addr(a, 116, 10, 7, True, slot_of(8), tmp=118)
    a("v_xor_b32 v117, 64, v116")
    a(f"v_mov_b32 v112, {f32(GC1)}")
    a(f"v_mov_b32 v113, {f32(GC2)}")
    a("s_waitcnt vmcnt(6)")
    relayout_read(a, 96)
    a("s_waitcnt lgkmcnt(0)")
    for r in range(38, 52, 2): a(f"s_and_b64 s[36:37], s[36:37], s[{r}:{r+1}]")
    a("s_and_b32 s36, s36, s37")
    a("s_cbranch_scc1 L_clr1d")
    poll_flags(a, "L_clr1", 123, 124, srd_=DBG, soff="0")
    AP = OPT.get("ackpos", -1)
    def arrive(L=""):
        a("s_waitcnt vmcnt(0)")
        cnt_add(a, 71, 63, 58, 4)
        relayout_store(a, 96, L)
    a("ds_write_b32 v59, v58 offset:192")
    if AP < 0: arrive(); fine(a, "ack")
    lds_poll(a, "L_bz0", 60, 176, 104)
    fine(a, "bZ")
    a("s_cmp_eq_u32 s61, 7")
    a("s_cbranch_scc1 L_noz1")
    def rd(n, t):
        if n == 16: a(f"v_add_u32 v{116+t}, {SLOT}, v{116+t}")
        for v in range(2):
            a(f"ds_read_b64_tr_b16 {vr(WFR + 8*(n%3) + 4*t + 2*v, 2)}, v{116+t} offset:{(n%16)*2048 + v*512}")
    b = Asm(); att_init(b); ini = list(b.lines)
    for n in range(2):
        for t in range(2): rd(n, t)
    for n in range(32):
        for t in range(2):
            a(f"s_waitcnt lgkmcnt({min(6, 2*(63 - 2*n - t))})")
            mfma(a, ACC + 16*t, WFR + 8*(n%3) + 4*t, XF + 4*n, "0" if n == 0 else None)
            if n + 2 < 32: rd(n + 2, t)
            if n >= 17:
                for _ in range(2 if n < 27 else 4):
                    if ini: a(ini.pop(0))
        if n == AP:
            if OPT.get("fz1"): fine(a, "pre")
            arrive(); fine(a, "ack")
        if OPT.get("fz1") and n in (20, 29, 31): fine(a, f"n{n}")
        if n == OPT.get("qpos", 22): cnt_issue(a, 61, 114, 1); a("s_mov_b64 exec, -1")
    assert not ini
    a(f"s_setprio {OPT.get('g1p', 3)}")
    a("s_nop 9")
    for ti in range(OPT.get("gpre", 0)): z1_gelu(a, ti)
    a("s_mov_b64 exec, 1")
    a("s_branch L_z1d")
    a.label("L_noz1")
    att_init(a)
    if AP >= 0: arrive("l")
    cnt_issue(a, 61, 114, 1)
    a.label("L_z1d")
    fine(a, "z1")

Q, KS, VS, S_, NM, O_, T_ = 8, 16, 160, 64, 128, 200, 232
def att_init(a):
    T = 115
    a(f"v_and_b32 v{T}, 27, v0")
    a(f"v_cmp_eq_u32 vcc, 16, v{T}")
    a(f"v_mov_b32 v{T}, 0x3f803f80")
    a("s_nop 0")
    a(f"v_cndmask_b32 v{VS}, 0, v{T}, vcc")
    for r in range(VS + 1, VS + 32): a(f"v_mov_b32 v{r}, v{VS}")
    for r in range(O_, O_ + 32): a(f"v_mov_b32 v{r}, 0")
def z1_gelu(a, ti):
    x = 64 + 16*ti
    for l in gelu_list(x, 96, 112, 113): a(l)
    for p in range(8): a(f"v_cvt_pk_bf16_f32 v{32+8*ti+p}, v{x+2*p}, v{x+2*p+1}")
def g1_att_setup(a):
    T = 62
    a("s_lshl_b32 s72, s52, 2")
    a("s_lshr_b32 s59, s53, 3")
    a("s_add_u32 s72, s72, s59")
    a("s_and_b32 s74, s53, 7")
    a("s_lshl_b32 s73, s74, 3")
    a("s_lshl_b32 s59, s57, 1")
    a("s_add_u32 s73, s73, s59")
    a("s_lshl_b32 s78, s72, 6")
    a("s_add_u32 s78, s78, s73")
    a("s_lshl_b32 s78, s78, 10")
    if QF: a(f"s_add_u32 s78, s78, {QF}")
    a("s_lshl_b32 s79, s72, 17")
    a(f"s_add_u32 s79, s79, {KVF}")
    a("s_lshl_b32 s80, s57, 11")
    a("s_add_u32 s81, s79, s80")
    a(f"s_and_b32 s76, s53, {7 if OPT.get('krot', 0) else 0}")
    a("s_lshl_b32 s76, s76, 14")
    a("s_lshl_b32 s82, s73, 7")
    a(f"s_add_u32 s82, s82, {GG}")
    a("s_mov_b32 s86, 0xffff")
    a("s_mov_b32 s87, 0xffff")
    a("s_mul_i32 s83, s73, 88")
    a("s_add_u32 s83, s83, s72")
    a("s_lshl_b32 s83, s83, 10")
    a(f"s_add_u32 s83, s83, {AF}")
    a(f"s_add_u32 s84, s83, {88*1024}")
    a("s_lshr_b32 s85, s72, 4")
    a("s_add_u32 s85, s85, s73")
    a("s_lshl_b32 s85, s85, 1")
    a(f"s_add_u32 s85, s85, {CO}")
    a("v_lshlrev_b32 v4, 4, v0")
    a("v_and_b32 v5, 31, v0")
    a("s_lshr_b32 s59, s72, 2")
    a("s_lshl_b32 s59, s59, 2")
    a("s_add_u32 s59, s59, s57")
    a("s_lshl_b32 s59, s59, 2")
    a("s_and_b32 s75, s53, 3")
    a("s_add_u32 s59, s59, s75")
    a(f"s_mul_i32 s59, s59, {CST}")
    a(f"s_add_u32 s59, s59, {CNT - FLG + CQ*CST}")
    a("v_mov_b32 v61, s59")
    a(f"v_mul_u32_u24 v63, {CST}, v0")
    a("v_lshlrev_b32 v5, 2, v5")
    a("v_mov_b32 v3, 0xdddd")
    a("v_mov_b32 v1, v4")
    a("v_and_b32 v2, 15, v0")
    a(f"v_lshrrev_b32 v{T}, 5, v0")
    a(f"v_lshl_or_b32 v2, v{T}, 4, v2")
    a("v_lshlrev_b32 v2, 4, v2")
    a("v_add_u32 v2, 1024, v2")
    a("v_add_u32 v56, 0x10000, v1")
    a("v_add_u32 v57, 0x10000, v2")
    a("v_mov_b32 v58, 1")
    a("s_lshl_b32 s59, s57, 2")
    a("v_mov_b32 v59, s59")
    a("v_mov_b32 v60, 0")

def g1_att(a):
    S, O, T = S_, O_, T_
    cnt_poll(a, "L_pq", 61, 114, 1, 32, first_issued=True, sleep=SLP)
    if OPT["stamp"]:
        a("v_mov_b32 v250, v127"); FINE["v"] = 250; fine_flush(a)
    a("ds_write_b32 v59, v58 offset:80")
    lds_poll(a, "L_pq2", 60, 80, T)
    fine(a, "pq")
    a("s_add_u32 s59, s79, s76")
    load4(a, KS, 4, "s59")
    load4(a, Q, 4, "s78")
    load4(a, Q + 4, 4, "s78", 1024)
    for n, g in enumerate(kv_batch(0, 4, 80, 81, 76)):
        for l in g[:-2]: a(l)
        if n == 0:
            a("s_cmp_eq_u32 s57, 0")
            a("s_cbranch_scc1 L_skipk0")
        a(g[-2])
        if n == 0: a.label("L_skipk0")
        a(g[-1])
    a("s_cmp_eq_u32 s61, 7")
    a("s_cbranch_scc1 L_nog1")
    for ti in range(OPT.get("gpre", 0), 2): z1_gelu(a, ti)
    a.label("L_nog1")
    fine(a, "g1")
    kreg = lambda kt: KS + 4*(kt & 3)
    vreg = lambda kt: VS + 8*(kt & 3)
    def rd(kts, skipk=()):
        L = []
        for kt in kts:
            if kt not in skipk:
                L.append(f"ds_read_b128 {vr(kreg(kt),4)}, v{1 if kt < 32 else 56} offset:{(kt % 32)*2048}")
        L.append("s_mov_b64 exec, s[86:87]")
        for kt in kts:
            for s_ in range(2):
                L.append(f"ds_read_b128 {vr(vreg(kt)+4*s_,4)}, v{2 if kt < 32 else 57} offset:{(kt % 32)*2048 + s_*512}")
        L.append("s_mov_b64 exec, -1")
        return L
    a("s_waitcnt vmcnt(0)")
    a("ds_write_b32 v59, v58 offset:144")
    mfma(a, S, KS, Q, "0")
    mfma(a, S + 16, KS, Q + 4, "0")
    lds_poll(a, "L_kv0", 60, 144, T)
    fine(a, "kv")
    for l in rd([0, 1, 2, 3], skipk=(0,)): a(l)
    for q in (0, 1):
        s_, d = S + 16*q, T + q
        a(f"v_max3_f32 v{d}, v{s_}, v{s_+1}, v{s_+2}")
        for p in range(3, 15, 2): a(f"v_max3_f32 v{d}, v{d}, v{s_+p}, v{s_+p+1}")
        a(f"v_max_f32 v{d}, v{d}, v{s_+15}")
        halfsum(a, d, T + 2, "v_max_f32")
        for r in range(16): a(f"v_sub_f32 v{NM + 16*q + r}, 0, v{d}")
        a("s_nop 1")
        mfma(a, s_, KS, Q + 4*q, NM + 16*q)
    a("s_setprio 0")
    SB = [S, S + 16, S + 32]
    sb = lambda k: SB[k % 3]
    QK = lambda k: mfma_s(sb(k), kreg(k >> 1), Q + 4*(k & 1), NM + 16*(k & 1))
    PV = lambda k, h: f"v_smfmac_f32_32x32x32_bf16 {vr(O+16*(k&1),16)}, {vr(vreg(k>>1)+4*h,4)}, {vr(sb(k)+8*h,8)}, v3"
    def gl(): return [f"buffer_load_dword v6, v5, {S4(WS)}, s82 offen sc1", f"buffer_load_dword v7, v5, {S4(WS)}, s82 offen offset:128 sc1"]
    ev = []
    for k in range(0, 129):
        kt = k >> 1
        post = []
        if k % 4 == 0 and kt + 2 < 64:
            if (kt + 2) % 16 == 0: post.append("KVCHECK")
            post += rd([kt + 2, kt + 3])
        if k % 4 == 2 and kt + 1 < 64:
            post.append("s_waitcnt lgkmcnt(0)")
            if kt == 45: post.append("ds_write_b32 v59, v58")
            if kt == 51: post += gl()
            if kt == 25: post.append("KV1")
        if k > 0: ev.append([PV(k - 1, 1), 16*k + 2, post, k])
        if k + 2 < 128: ev.append([QK(k + 2), 0, ["Z1S"] if k == OPT.get("z1s", 33) else [], k])
        if k < 128: ev.append([PV(k, 0), 16*k + 10, [], k])
    gaps = OPT.get("gaps", (3, 6, 9))
    pos = 0; p = 7
    for i, (ins, lo, post, k) in enumerate(ev):
        if i > 0: p = next((p + g for g in gaps if p + g >= lo), max(lo, p + gaps[0]))
        p = min(p, 2048)
        while pos < p:
            if pos % 256 == 0: fine(a, f"k{pos//16}")
            a(f"v_exp_f32 v{sb(pos>>4) + (pos&15)}, v{sb(pos>>4) + (pos&15)}"); pos += 1
        if lo > 2048: a("s_nop 1")
        if i == 0: a("s_waitcnt lgkmcnt(0)")
        if ins.startswith("v_mfma"): assert p <= 16*(k + 2) - 12, (k, p)
        a(ins)
        for l in post:
            if l == "KVCHECK": lds_poll(a, f"L_kvp{k}", 60, 16 + (k + 4) // 2, T)
            elif l == "Z1S":
                a("s_cmp_eq_u32 s61, 7")
                a("s_cbranch_scc1 L_noz1s")
                for i_ in range(4): store4(a, 32 + 4*i_, 4, "s69", i_*1024)
                a.label("L_noz1s")
            elif l == "KV1":
                a("s_waitcnt vmcnt(0)")
                cnt_add(a, 77, 60, 58, 2)
                cnt_add(a, 93, 60, 58, 1)
            else: a(l)
    assert pos == 2048
    a("s_setprio 3")
    a("ds_write_b32 v59, v58 offset:96")
    a(f"s_mov_b32 s70, {f32(2.0**64)}")
    a(f"s_mov_b32 s71, {f32(2.0**-64)}")
    a(f"s_mov_b32 s91, {SPIN}")
    a.label("L_ag")
    a("s_waitcnt vmcnt(0)")
    a(f"v_or_b32 v{T}, v6, v7")
    a(f"v_cmp_gt_i32 vcc, 0, v{T}")
    a("s_sub_u32 s91, s91, 1")
    a("s_cbranch_scc1 L_agd")
    a("s_cmp_eq_u64 vcc, 0")
    a("s_cbranch_scc1 L_agd")
    for l in gl(): a(l)
    a("s_branch L_ag")
    a.label("L_agd")
    a("s_nop 4")
    a(f"v_max_f32 v{T}, v{O+8}, v{O+24}")
    a(f"v_min_f32 v{T+1}, v{O+8}, v{O+24}")
    a(f"v_add_f32 v{T+2}, v{O+8}, v{O+24}")
    a(f"v_cmp_gt_f32 s[72:73], s70, v{T}")
    a(f"v_cmp_lt_f32 s[74:75], s71, v{T+1}")
    a(f"v_cmp_o_f32 vcc, v{T+2}, v{T+2}")
    a("s_nop 1")
    a("s_and_b64 s[72:73], s[72:73], s[74:75]")
    a("s_and_b64 s[72:73], s[72:73], vcc")
    a("s_cmp_eq_u64 s[72:73], -1")
    a("s_cbranch_scc0 L_slow")
    a.label("L_afin")
    fine(a, "fin")
    for q in range(2):
        o = O + 16*q
        a(f"v_rcp_f32 v{T}, v{o+8}")
        a("s_nop 0")
        a(f"v_mul_f32 v{T}, v{T}, v{6+q}")
        for r in range(8): a(f"v_mul_f32 v{o+r}, v{o+r}, v{T}")
        for p in range(4): a(f"v_cvt_pk_bf16_f32 v{T+4+4*q+p}, v{o+2*p}, v{o+2*p+1}")
        store4(a, T + 4 + 4*q, 4, "s83" if q == 0 else "s84")
    g1_final(a)
    a.label("L_slow")
    a(f"v_mov_b32 v{T}, 0xff800000")
    a(f"v_mov_b32 v{T+1}, 0xff800000")
    a("s_mov_b32 s81, s79")
    a("s_mov_b32 s69, 64")
    a.label("L_s1")
    load4(a, KS, 4, "s81")
    a("s_waitcnt vmcnt(0)")
    mfma(a, S, KS, Q, "0")
    mfma(a, S + 16, KS, Q + 4, "0")
    a("s_nop 7"); a("s_nop 3")
    for q in range(2):
        for p in range(0, 16, 2): a(f"v_max3_f32 v{T+q}, v{T+q}, v{S+16*q+p}, v{S+16*q+p+1}")
    a("s_add_u32 s81, s81, 2048")
    a("s_sub_u32 s69, s69, 1")
    a("s_cmp_lg_u32 s69, 0")
    a("s_cbranch_scc1 L_s1")
    for q in range(2): halfsum(a, T + q, T + 2, "v_max_f32")
    for r in range(O, O + 32): a(f"v_mov_b32 v{r}, 0")
    a("s_mov_b32 s81, s79")
    a("s_mov_b32 s69, 64")
    a.label("L_s2")
    load4(a, KS, 4, "s81")
    a("s_mov_b64 exec, s[86:87]")
    load4(a, VS, 2, "s81")
    load4(a, VS + 4, 2, "s81", 512)
    a("s_mov_b64 exec, -1")
    a("s_waitcnt vmcnt(0)")
    mfma(a, S, KS, Q, "0")
    mfma(a, S + 16, KS, Q + 4, "0")
    a("s_nop 7"); a("s_nop 3")
    for q in range(2):
        for p in range(16): a(f"v_sub_f32 v{S+16*q+p}, v{S+16*q+p}, v{T+q}")
        for p in range(16): a(f"v_exp_f32 v{S+16*q+p}, v{S+16*q+p}")
    a("s_nop 1")
    for q in range(2):
        for s_ in range(2):
            a(f"v_smfmac_f32_32x32x32_bf16 {vr(O+16*q,16)}, {vr(VS+4*s_,4)}, {vr(S+16*q+8*s_,8)}, v3")
    a("s_add_u32 s81, s81, 2048")
    a("s_sub_u32 s69, s69, 1")
    a("s_cmp_lg_u32 s69, 0")
    a("s_cbranch_scc1 L_s2")
    a("s_nop 7"); a("s_nop 3")
    a("s_branch L_afin")

def main():
    ref = open(f"cdna_kernels/{NAME}.s.ref").read().split("\n")
    out = [l for l in ref if l.startswith(";") and "@launch" not in l]
    k = NAME + "_kernel"
    out.append("; @launch grid=(256,1,1) block=(512,1,1) lds=163840")
    out += ['.amdgcn_target "amdgcn-amd-amdhsa--gfx950"', ".text"]
    a = Asm(); gen(a)
    bad = check(a.lines, k)
    out += [f".globl {k}", ".p2align 8", f".type {k},@function", f"{k}:"] + a.lines
    out += ['.section .rodata,"a"', ".p2align 6", f".amdhsa_kernel {k}", "  .amdhsa_next_free_vgpr 256", "  .amdhsa_next_free_sgpr 102",
            "  .amdhsa_accum_offset 256", "  .amdhsa_group_segment_fixed_size 0", "  .amdhsa_kernarg_size 96",
            "  .amdhsa_user_sgpr_count 2", "  .amdhsa_user_sgpr_kernarg_segment_ptr 1", "  .amdhsa_system_sgpr_workgroup_id_x 1",
            "  .amdhsa_float_denorm_mode_32 3", ".end_amdhsa_kernel"]
    open(sys.argv[1], "w").write("\n".join(out) + "\n")
    if OPT["stamp"]: json.dump(NAMES, open(sys.argv[1] + ".json", "w"))
    print("hazards:", bad, "lines:", len(out))
main()
```

```python
import sys, struct, re, json
from asmlib import Asm, vr, sr, check

NAME = "gated_mix__softmax_full_mha__mixer_gmlp__prompt"
MB = 1 << 20
QF, KVF, Z1F, Z2F, AF, WF = 0, 2*MB, 6*MB, 10*MB, 14*MB, 20*MB
GG = 22*MB
STATS = 22*MB + 65536
FLG = 22*MB + 512*1024
CNT = FLG
CQ, CU, CO, CZ, CS, CW, CY = 0, 128, 256, 384, 832, 896, 1024
WS_SIZE = 28*MB
def f32(x): return "0x%08x" % struct.unpack("<I", struct.pack("<f", x))[0]
LOG2E = 1.4426950408889634
QSCALE = 0.25 * LOG2E
GC1 = -2.0 * LOG2E * 0.7978845608028654
GC2 = GC1 * 0.044715
SPIN = 1 << 16
SLOT = 36864
GSCR = 148480
SCR = 114688

OPT = dict(stamp=False)
for a_ in sys.argv[2:]:
    k_, v_ = a_.split("=")
    OPT[k_] = eval(v_)

SLP = OPT.get("slp", 2)
CST = OPT.get("cst", 256)
WS, DBG, SA, SB_, SC, SD = 28, 32, 36, 40, 44, 48
def srd(a, d, p, size):
    a(f"s_mov_b32 s{d}, s{p}")
    a(f"s_mov_b32 s{d+1}, s{p+1}")
    a(f"s_mov_b32 s{d+2}, {size}")
    a(f"s_mov_b32 s{d+3}, 0x20000")
def S4(d): return f"s[{d}:{d+3}]"

FINE = dict(n=0, pool=[], names=[])
NAMES = {}
def fine_init(a, v):
    FINE["n"] = 0; FINE["names"] = []; FINE["v"] = v; FINE["pend"] = []; FINE["pool"] = []
    if OPT["stamp"]: a(f"v_mov_b32 v{v}, 0")
def fine_pool(pool): FINE["pool"] = list(pool)
def fine(a, name=""):
    if not OPT["stamp"]: return
    p = FINE["pool"][len(FINE["pend"])]
    a(f"{'s_memtime' if OPT.get('cyc') else 's_memrealtime'} s[{p}:{p+1}]")
    FINE["pend"].append(p); FINE["names"].append(name)
def fine_flush(a):
    if not OPT["stamp"]: return
    a("s_waitcnt lgkmcnt(0)")
    for p in FINE["pend"]:
        a(f"v_writelane_b32 v{FINE['v']}, s{p}, {FINE['n'] + 2}"); FINE["n"] += 1
    FINE["pend"] = []
def fine_dump(a, grp, t):
    if not OPT["stamp"]: return
    v = FINE["v"]
    a("s_memrealtime s[98:99]")
    a("s_memtime s[100:101]")
    fine_flush(a)
    if OPT.get("cyc"):
        a("s_mov_b32 s96, s94"); a("s_mov_b32 s98, s100"); NAMES["cyc"] = 1
    a("s_sub_u32 s100, s100, s94")
    a(f"v_writelane_b32 v{v}, s100, 0")
    a(f"v_writelane_b32 v{v}, s96, 1")
    a(f"v_writelane_b32 v{v}, s98, {FINE['n'] + 2}")
    NAMES[f"0,{grp}"] = ["start"] + FINE["names"] + ["end"]
    a("s_lshl_b32 s98, s2, 4")
    a("s_add_u32 s98, s98, s56")
    a("s_lshl_b32 s98, s98, 8")
    a(f"s_add_u32 s98, s98, {24*MB}")
    a(f"v_lshlrev_b32 v{t}, 2, v0")
    a(f"buffer_store_dword v{v}, v{t}, {S4(WS)}, s98 offen")
    if OPT.get("spin") and OPT["spin"][0] == grp:
        a(f"s_cmp_lg_u32 s2, {OPT.get('spinwg', 40)}")
        a("s_cbranch_scc1 L_end")
        a(f"v_readlane_b32 s60, v{v}, {1 + NAMES[f'0,{grp}'].index(OPT['spin'][1])}")
        a("s_mov_b32 s62, 200000")
        a.label("L_spin")
        a("s_memrealtime s[96:97]")
        a("s_waitcnt lgkmcnt(0)")
        a("s_sub_u32 s61, s96, s60")
        a("s_sub_u32 s62, s62, 1")
        a("s_cbranch_scc1 L_end")
        a("s_cmp_lt_u32 s61, 10000")
        a("s_cbranch_scc1 L_spin")

def mfma_s(d, A, B, c=None):
    cc = vr(d, 16) if c is None else (c if isinstance(c, str) else vr(c, 16))
    return f"v_mfma_f32_32x32x16_bf16 {vr(d,16)}, {vr(A,4)}, {vr(B,4)}, {cc}"
def mfma(a, d, A, B, c=None): a(mfma_s(d, A, B, c))
def store4(a, v, voff, soff, off=0):
    a(f"buffer_store_dwordx4 {vr(v,4)}, v{voff}, {S4(WS)}, {soff} offen offset:{off} sc1")
def load4(a, v, voff, soff, off=0):
    a(f"buffer_load_dwordx4 {vr(v,4)}, v{voff}, {S4(WS)}, {soff} offen offset:{off} sc1")

def swz_row_voffs(a, base, stride_shift, tmp=1):
    t, u = tmp, base + 3
    a(f"v_lshrrev_b32 v{t}, 4, v0")
    a(f"v_and_b32 v{u}, 7, v0")
    a(f"v_xor_b32 v{u}, v{u}, v{t}")
    a(f"v_lshrrev_b32 v{t}, 3, v0")
    a(f"v_lshlrev_b32 v{t}, {stride_shift}, v{t}")
    a(f"v_lshl_add_u32 v{base}, v{u}, 4, v{t}")
    st = 1 << stride_shift
    a(f"v_xor_b32 v{base+1}, 64, v{base}")
    a(f"v_add_u32 v{base+1}, {8*st - 1024}, v{base+1}")
    a(f"v_add_u32 v{base+2}, {16*st - 2048}, v{base}")
    a(f"v_add_u32 v{base+3}, {16*st - 2048}, v{base+1}")

def swz_read_addrs(a, base, sbase, tmp=1):
    t, u = tmp, base + 3
    a(f"v_bfe_u32 v{t}, v0, 1, 3")
    a(f"v_lshrrev_b32 v{u}, 5, v0")
    a(f"v_xor_b32 v{t}, v{t}, v{u}")
    a(f"v_lshlrev_b32 v{t}, 4, v{t}")
    a(f"v_and_b32 v{u}, 31, v0")
    a(f"v_lshl_add_u32 v{t}, v{u}, 7, v{t}")
    a(f"v_add_u32 v{base}, s{sbase}, v{t}")
    for ks in (1, 2, 3):
        a(f"v_xor_b32 v{base+ks}, {ks*32}, v{base}")

def tr_addr(a, d, hh_shift, row_shift, swz, add, tmp=1):
    a(f"v_lshrrev_b32 v{tmp}, 5, v0")
    a(f"v_lshlrev_b32 v{d}, {hh_shift}, v{tmp}")
    a(f"v_bfe_u32 v{tmp}, v0, 2, 2")
    a(f"v_lshl_add_u32 v{d}, v{tmp}, {row_shift}, v{d}")
    if swz:
        a(f"v_bfe_u32 v{tmp}, v0, 3, 1")
        a(f"v_lshl_add_u32 v{d}, v{tmp}, 6, v{d}")
    a(f"v_bfe_u32 v{tmp}, v0, 4, 1")
    a(f"v_lshl_add_u32 v{d}, v{tmp}, 5, v{d}")
    a(f"v_and_b32 v{tmp}, 3, v0")
    a(f"v_lshl_add_u32 v{d}, v{tmp}, 3, v{d}")
    if add: a(f"v_add_u32 v{d}, {add}, v{d}")

def gelu_list(x, t, C1, C2, n=16):
    L = [f"v_mul_f32 v{t+p}, v{x+p}, v{x+p}" for p in range(n)]
    L += [f"v_fma_f32 v{t+p}, v{t+p}, v{C2}, v{C1}" for p in range(n)]
    L += [f"v_mul_f32 v{t+p}, v{t+p}, v{x+p}" for p in range(n)]
    L += [f"v_exp_f32 v{t+p}, v{t+p}" for p in range(n)]
    L += [f"v_add_f32 v{t+p}, 1.0, v{t+p}" for p in range(n)]
    L += [f"v_rcp_f32 v{t+p}, v{t+p}" for p in range(n)]
    L += [f"v_mul_f32 v{x+p}, v{x+p}, v{t+p}" for p in range(n)]
    return L

def halfsum(a, v, t, op="v_add_f32"):
    a(f"v_mov_b32 v{t}, v{v}")
    a("s_nop 1")
    a(f"v_permlane32_swap_b32 v{v}, v{t}")
    a(f"{op} v{v}, v{v}, v{t}")

def set_flag(a, sidx, vz, vone, word=False):
    if not word:
        a(f"s_lshl_b32 s{sidx}, s{sidx}, 2")
        a(f"s_add_u32 s{sidx}, s{sidx}, s57")
    a(f"s_lshl_b32 s{sidx}, s{sidx}, 2")
    a(f"s_add_u32 s{sidx}, s{sidx}, {FLG}")
    a("s_mov_b64 exec, 1")
    a(f"buffer_store_dword v{vone}, v{vz}, {S4(WS)}, s{sidx} offen sc1")
    a("s_mov_b64 exec, -1")

def cnt_add(a, sline, vl7, vone, reps):
    a(f"s_mul_i32 s{sline}, s{sline}, {CST}")
    a(f"s_add_u32 s{sline}, s{sline}, {CNT}")
    a(f"s_mov_b64 exec, {(1 << reps) - 1}")
    a(f"buffer_atomic_add v{vone}, v{vl7}, {S4(WS)}, s{sline} offen sc1")
    a("s_mov_b64 exec, -1")
def cnt_issue(a, voff, tmp, mask):
    a(f"s_mov_b64 exec, {mask}")
    a(f"v_mov_b32 v{tmp}, 0")
    a(f"buffer_atomic_add v{tmp}, v{voff}, {S4(WS)}, s90 offen sc0 sc1")
def cnt_poll(a, lbl, voff, tmp, mask, target, first_issued=False, sleep=0):
    a(f"s_mov_b32 s91, {SPIN}")
    if not first_issued: cnt_issue(a, voff, tmp, mask)
    a.label(lbl)
    a("s_waitcnt vmcnt(0)")
    a(f"v_cmp_gt_u32 vcc, {target}, v{tmp}")
    a("s_sub_u32 s91, s91, 1")
    a(f"s_cbranch_scc1 {lbl}d")
    a("s_cmp_eq_u64 vcc, 0")
    a(f"s_cbranch_scc1 {lbl}d")
    if sleep: a(f"s_sleep {sleep}")
    cnt_issue(a, voff, tmp, "vcc")
    a(f"s_branch {lbl}")
    a.label(lbl + "d")
    a("s_mov_b64 exec, -1")
def poll_issue(a, voff, tmp, n=1, srd_=None, soff="s90"):
    srd_ = WS if srd_ is None else srd_
    a(f"buffer_load_dword{'x%d' % n if n > 1 else ''} {vr(tmp, n)}, v{voff}, {S4(srd_)}, {soff} offen sc1")
def poll_flags(a, lbl, voff, tmp, n=1, srd_=None, soff="s90", first_issued=False, sleep=0, mask=None):
    issue = lambda: poll_issue(a, voff, tmp, n, srd_, soff)
    a(f"s_mov_b32 s91, {SPIN}")
    if not first_issued: issue()
    a.label(lbl)
    a("s_waitcnt vmcnt(0)")
    for i in range(1, n): a(f"v_min_u32 v{tmp}, v{tmp}, v{tmp+i}")
    a(f"v_cmp_eq_u32 vcc, 0, v{tmp}")
    a("s_sub_u32 s91, s91, 1")
    a(f"s_cbranch_scc1 {lbl}d")
    a("s_cmp_eq_u64 vcc, 0")
    a(f"s_cbranch_scc1 {lbl}d")
    if sleep: a(f"s_sleep {sleep}")
    if mask: a(f"s_and_b64 exec, vcc, {mask}")
    issue()
    a(f"s_branch {lbl}")
    a.label(lbl + "d")
    if mask: a("s_mov_b64 exec, -1")

def slot_of(g): return 1024 + ((g + 1) % 4) * SLOT
class Win:
    def __init__(self, regs, span): self.regs = regs; self.base = 0; self.span = span
    def at(self, base):
        L = []
        if base < self.base or base + self.span - self.base > 65536:
            L = [f"v_add_u32 v{r}, {(base - self.base) & 0xffffffff}, v{r}" for r in self.regs]
            self.base = base
        return L, base - self.base

def gen(a):
    a("s_cmp_ge_u32 s2, 256")
    a("s_cbranch_scc1 L_end")
    if OPT["stamp"]:
        a("s_memrealtime s[96:97]"); a("s_memtime s[94:95]")
    a("s_load_dwordx16 s[4:19], s[0:1], 0")
    a("s_load_dwordx8 s[20:27], s[0:1], 64")
    a("v_lshrrev_b32 v1, 6, v0")
    a("s_and_b32 s52, s2, 7")
    a("v_readfirstlane_b32 s56, v1")
    a("s_lshr_b32 s53, s2, 3")
    a("v_and_b32 v0, 63, v0")
    a("s_and_b32 s57, s56, 3")
    a("s_and_b32 s63, s53, 3")
    a("s_lshr_b32 s54, s52, 1")
    a("s_lshl_b32 s54, s54, 2")
    a("s_add_u32 s54, s54, s63")
    a("s_lshr_b32 s61, s53, 2")
    a("s_and_b32 s59, s52, 1")
    a("s_lshl_b32 s55, s59, 3")
    a("s_add_u32 s55, s55, s61")
    a("s_sub_u32 s62, s55, s59")
    rotm = OPT.get("rotm", 2)
    if rotm == 0:
        a("s_lshl_b32 s63, s63, 1")
        a("s_add_u32 s63, s63, s61")
    else:
        a("s_lshr_b32 s3, s61, 1")
        a("s_xor_b32 s63, s63, s3")
        a(f"s_and_b32 s63, s63, {rotm - 1}")
        a("s_lshl_b32 s59, s59, 2")
        a("s_add_u32 s63, s63, s59")
        a("s_and_b32 s59, s52, 6")
        a("s_add_u32 s63, s63, s59")
        a("s_and_b32 s59, s61, 1")
        a("s_lshl_b32 s59, s59, 1")
        a("s_add_u32 s63, s63, s59")
    a("s_and_b32 s63, s63, 7")
    a("s_lshl_b32 s58, s54, 2")
    a("s_add_u32 s58, s58, s57")
    a("s_lshl_b32 s60, s57, 12")
    a(f"s_mov_b32 s90, {FLG}")
    a("s_cmp_lt_u32 s56, 4")
    a("s_cbranch_scc1 L_g1")
    g2_front(a)
    g2_spatial(a)
    g2_final(a)
    a.raw(".p2align 6")
    a.label("L_g1")
    g1_front(a)
    g1_att(a)
    a.label("L_end")
    a("s_endpgm")

XF = 128
def g2_front(a):
    X, WQ, WI, MISC = SA, SB_, SC, SD
    swz_row_voffs(a, 2, 10)
    a("v_lshrrev_b32 v1, 2, v0")
    a("v_mul_u32_u24 v10, 3072, v1")
    a("v_and_b32 v1, 4, v1")
    a("v_and_b32 v11, 7, v0")
    a("v_xor_b32 v11, v11, v1")
    a("v_lshlrev_b32 v11, 4, v11")
    a("v_lshrrev_b32 v1, 3, v0")
    a("v_mul_u32_u24 v6, 3072, v1")
    a("v_mul_u32_u24 v12, 3584, v1")
    a("v_add_u32 v6, v6, v11")
    a("v_add_u32 v12, v12, v11")
    a(f"v_add_u32 v7, {8*3072-2048}, v6")
    a(f"v_add_u32 v8, {1792-1024}, v12")
    a(f"v_add_u32 v9, {8*3584+1792-3072}, v12")
    a("v_and_b32 v1, 3, v0")
    a("v_lshl_add_u32 v10, v1, 4, v10")
    a("s_lshl_b32 s64, s58, 15")
    a(f"s_mul_i32 s65, s57, {16*3072}")
    a("s_lshl_b32 s59, s55, 6")
    a("s_add_u32 s66, s65, s59")
    a("s_add_u32 s66, s66, 2048")
    a("s_and_b32 s59, s55, 1")
    a("s_lshl_b32 s59, s59, 10")
    a("s_add_u32 s65, s65, s59")
    a("s_lshr_b32 s59, s55, 1")
    a("s_lshl_b32 s59, s59, 7")
    a("s_add_u32 s65, s65, s59")
    a(f"s_mul_i32 s67, s57, {16*3584}")
    a("s_lshl_b32 s68, s62, 7")
    a("s_add_u32 s67, s67, s68")
    a("s_lshl_b32 s69, s57, 10")
    a("s_waitcnt lgkmcnt(0)")
    srd(a, X, 4, 2048*1024)
    srd(a, WQ, 6, 512*3072)
    srd(a, WI, 12, 512*3584)
    a("s_cmp_eq_u32 s61, 7")
    a("s_cbranch_scc1 L_light")
    g2_pass1(a, False)
    g2_z(a)
    a("s_branch L_g2b")
    a.label("L_light")
    st = json.dumps(FINE); so = OPT["stamp"]; OPT["stamp"] = False
    g2_pass1(a, True)
    g2_light(a)
    OPT["stamp"] = so; FINE.update(json.loads(st))
    if so: a(f"v_mov_b32 v{FINE['v']}, 1")
    a.label("L_g2b")

def g2_pass1(a, light):
    X, WQ, WI, MISC = SA, SB_, SC, SD
    WFR, XG, ACC = 32, 48, 64
    def chunk_dma(c):
        slot = slot_of(c)
        P = [[f"s_add_u32 s70, s63, {c}", "s_and_b32 s70, s70, 7", "s_lshl_b32 s59, s70, 7", f"s_add_u32 m0, s60, {slot}", "s_add_u32 s59, s59, s64"] +
             [f"buffer_load_dwordx4 v{2+q}, {S4(X)}, s59 offen offset:{q*1024} lds" for q in range(2)],
             [f"buffer_load_dwordx4 v{2+q}, {S4(X)}, s59 offen offset:{q*1024} lds" for q in range(2, 4)] +
             [f"s_mul_i32 s71, s70, {64*3072}", f"s_add_u32 m0, s69, {slot + 32768}", "s_add_u32 s59, s71, s66",
              f"buffer_load_dwordx4 v10, {S4(WQ)}, s59 offen lds"],
             [f"s_add_u32 m0, s60, {slot + 16384}", "s_add_u32 s59, s71, s65"] +
             [f"buffer_load_dwordx4 v{6+q}, {S4(WQ)}, s59 offen offset:{q*2048} lds" for q in range(2)], []]
        if not light:
            P[3] = [f"s_mul_i32 s59, s70, {64*3584}", "s_add_u32 s59, s59, s67"] + \
                   [f"buffer_load_dwordx4 v{8+q}, {S4(WI)}, s59 offen offset:{q*2048+1024} lds" for q in range(2)]
        return P
    def z1_dma(g):
        P = [[f"s_add_u32 s70, s63, {4*(g-8)}", "s_add_u32 s70, s70, s57", "s_and_b32 s70, s70, 7", f"s_mul_i32 s70, s70, {64*3584}",
              "s_add_u32 s70, s70, s68", "s_lshl_b32 s71, s57, 13"], [], [], []]
        for h in range(2):
            P[2*h] += [f"s_add_u32 m0, s71, {slot_of(g) + h*4096}", f"s_add_u32 s59, s70, {h*32*3584}"]
            for q in range(4):
                P[2*h + q//2].append(f"buffer_load_dwordx4 v{12+q}, {S4(WI)}, s59 offen offset:{q*1024} lds")
        return P
    gsize = [7]*8 + [0, 0] if light else [9]*8 + [8, 8]
    def parts(g):
        if g < 8: return chunk_dma(g)
        return [[], [], [], []] if light else z1_dma(g)
    def group(g):
        if light and g == 1:
            a(f"s_add_u32 m0, s69, {GSCR}")
            a("s_nop 0")
            a(f"buffer_load_dwordx4 v25, {S4(MISC)}, 0 offen lds")
        for p in parts(g):
            for l in p: a(l)
    group(0)
    srd(a, WS, 26, WS_SIZE)
    for q in (1, 2, 3): a(f"v_add_u32 v{12+q}, {q*(8*3584-1024)}, v12")
    swz_read_addrs(a, 16, 60)
    tr_addr(a, 20, 11, 7, True, 16384 + 1024)
    a("v_xor_b32 v21, 64, v20")
    if light:
        srd(a, MISC, 20, 1024)
        a("v_lshlrev_b32 v24, 4, v0")
        a("s_lshl_b32 s59, s63, 7")
        a("v_add_u32 v25, s59, v24")
        a("v_and_b32 v25, 1023, v25")
        a("v_lshrrev_b32 v1, 5, v0")
        a(f"s_add_u32 s59, s69, {GSCR}")
        a("v_lshl_add_u32 v28, v1, 4, s59")
    fine_init(a, 31); fine_pool([4, 6, 10, 12, 8, 26, 48, 50, 84, 86, 20]);
    sp_setup_w(a)
    if not light: g2_z_setup(a)
    fine(a, "setup")
    group(1)
    win = Win(range(16, 22), 16384)
    def reads(n):
        c, ks = n >> 2, n & 3
        pre, so = win.at(slot_of(c))
        R = [f"ds_read_b128 {vr(XG + 4*(n&1), 4)}, v{16+ks} offset:{so}"]
        if light:
            R.append(f"ds_read_b128 {vr(WFR + 8*(n&1), 4)}, v28 offset:{n*32}")
        else:
            for t in range(2):
                for v in range(2):
                    R.append(f"ds_read_b64_tr_b16 {vr(WFR + 8*(n&1) + 4*t + 2*v, 2)}, v{20+t} offset:{so + ks*4096 + v*512}")
        return pre, R
    def boundary(c):
        if OPT.get("diagsl") and c > 0: a(f"s_sleep {OPT['diagsl']}")
        a(f"s_waitcnt vmcnt({gsize[c+1]})")
        a("s_barrier")
        fine(a, f"b{c}")
    if OPT.get("p1p"): a(f"s_setprio {OPT['p1p']}")
    boundary(0)
    pre, R = reads(0)
    for l in pre + R: a(l)
    P = parts(2)
    for l in P.pop(0): a(l)
    for n in range(32):
        ks = n & 3
        M = lambda t: mfma(a, ACC + 16*t, WFR + 8*(n&1) + 4*t, XG + 4*(n&1), "0" if n == 0 else None)
        pre, R = reads(n + 1) if n < 31 else ([], [])
        a(f"s_waitcnt lgkmcnt({0 if light else 2})")
        M(0)
        if n == 31:
            if not light: a("s_waitcnt lgkmcnt(0)"); M(1)
            break
        if ks == 3:
            boundary((n >> 2) + 1)
            assert not P
            P = parts((n >> 2) + 3)
            if n >= 23 and OPT.get("zfast", 2) == 1: P = [P[0] + P[1], P[2] + P[3], [], []]
            if n >= OPT.get("zf0", 27) and OPT.get("zfast", 2) == 2:
                for p_ in P:
                    for l in p_: a(l)
                P = [[], [], [], []]
        nr = 3 if OPT.get("rd2", 1) else 5
        for l in pre + R[:nr]: a(l)
        if not light:
            a(f"s_waitcnt lgkmcnt({nr})")
            M(1)
        for l in R[nr:] + P.pop(0): a(l)
    if OPT.get("p1p"): a("s_setprio 0")
    fine(a, "p1")

RSCR = 152576
def relayout_load(a):
    a("s_lshl_b32 s93, s2, 2")
    a("s_add_u32 s93, s93, s57")
    a("s_cmp_ge_u32 s93, 704")
    a("s_cbranch_scc1 L_norl")
    a("s_lshr_b32 s59, s93, 3")
    a("s_lshl_b32 s59, s59, 14")
    srd(a, SA, 8, 512*1024)
    a("s_cmp_lt_u32 s93, 256")
    a("s_cbranch_scc1 L_rwo")
    srd(a, SA, 18, 896*1024)
    a(f"s_sub_u32 s59, s59, {32*16384}")
    a.label("L_rwo")
    a("s_and_b32 s3, s93, 7")
    a("s_lshl_b32 s3, s3, 7")
    a("s_add_u32 s59, s59, s3")
    a("v_lshrrev_b32 v8, 3, v0")
    a("v_lshlrev_b32 v8, 6, v8")
    a("v_and_or_b32 v8, v0, 7, v8")
    a("v_lshlrev_b32 v8, 4, v8")
    a(f"s_add_u32 m0, s80, {RSCR}")
    a("s_nop 0")
    a(f"buffer_load_dwordx4 v8, {S4(SA)}, s59 offen lds")
    a(f"s_add_u32 s59, s59, {8192 - 1024}")
    a(f"buffer_load_dwordx4 v8, {S4(SA)}, s59 offen offset:1024 lds")
    a.label("L_norl")
    tr_addr(a, 119, 9, 7, False, RSCR, tmp=8)
    a("v_add_u32 v119, s80, v119")
def relayout_read(a, d):
    for nt in range(2):
        for v in range(2):
            a(f"ds_read_b64_tr_b16 {vr(d + nt*4 + v*2, 2)}, v119 offset:{v*1024 + nt*64}")
def relayout_store(a, d, L):
    a("s_cmp_ge_u32 s93, 704")
    a(f"s_cbranch_scc1 L_nors{L}")
    a("s_and_b32 s3, s93, 7")
    a(f"s_mul_i32 s3, s3, {2*88*1024}")
    a("s_lshr_b32 s59, s93, 3")
    a("s_lshl_b32 s59, s59, 10")
    a("s_add_u32 s59, s59, s3")
    a(f"s_add_u32 s59, s59, {WF}")
    store4(a, d, 4, "s59")
    a(f"s_add_u32 s59, s59, {88*1024}")
    store4(a, d + 4, 4, "s59")
    a.label(f"L_nors{L}")
    a("s_and_b32 s3, s93, 7")
    a("s_lshl_b32 s3, s3, 4")
    a("s_lshr_b32 s93, s93, 6")
    a("s_add_u32 s93, s93, s3")
    a(f"s_add_u32 s93, s93, {CW}")

C1, C2, SUM, SQ = 24, 25, 26, 28
def g2_z_setup(a):
    a(f"v_mov_b32 v{C1}, {f32(GC1)}")
    a(f"v_mov_b32 v{C2}, {f32(GC2)}")
    for r in range(SUM, SUM + 4): a(f"v_mov_b32 v{r}, 0")
    a("v_lshlrev_b32 v96, 4, v0")
    a("v_and_b32 v1, 31, v0")
    a("v_lshlrev_b32 v97, 3, v1")
    a("v_lshrrev_b32 v98, 5, v0")
    a("v_mul_u32_u24 v98, 7168, v98")
    a("v_add_u32 v98, v98, v97")
    a("v_bfe_u32 v1, v0, 1, 3")
    a("v_lshrrev_b32 v99, 5, v0")
    a("v_xor_b32 v1, v1, v99")
    a("v_and_b32 v99, 31, v0")
    a("v_lshlrev_b32 v99, 6, v99")
    a("v_lshl_add_u32 v99, v1, 3, v99")
    a(f"s_add_u32 s59, s60, {SCR}")
    a("v_add_u32 v99, s59, v99")
    for i in (1, 2, 3): a(f"v_xor_b32 v{99+i}, {16*i}, v99")
    tr_addr(a, 103, 9, 6, False, 0)
    a("v_bfe_u32 v1, v0, 3, 1")
    a("v_lshrrev_b32 v104, 5, v0")
    a("v_lshl_or_b32 v1, v104, 2, v1")
    a("v_lshlrev_b32 v1, 3, v1")
    a("v_xor_b32 v103, v103, v1")
    a("v_add_u32 v103, s59, v103")
    a("v_xor_b32 v104, 16, v103")
    a(f"v_mul_u32_u24 v105, {CST}, v0")
    a("v_mov_b32 v106, 1")
    a(f"s_mul_i32 s59, s58, {CST}")
    a(f"s_add_u32 s59, s59, {CNT - FLG + CS*CST}")
    a("v_mov_b32 v107, s59")
    a("s_mul_i32 s79, s54, 14336")
    a("s_lshl_b32 s59, s57, 8")
    a("s_add_u32 s79, s79, s59")
    a(f"s_add_u32 s79, s79, {STATS}")
    a("s_add_u32 s80, s79, 4096")
    a("s_lshl_b32 s59, s62, 10")
    a("s_add_u32 s81, s79, s59")
    a("s_lshl_b32 s82, s62, 18")
    a("s_lshl_b32 s59, s58, 11")
    a("s_add_u32 s82, s82, s59")
    a(f"s_add_u32 s82, s82, {Z2F}")
    a("s_add_u32 s83, s82, 131072")
    a("s_lshl_b32 s78, s62, 2")
    a("s_lshr_b32 s59, s54, 2")
    a("s_add_u32 s78, s78, s59")
    a("s_lshl_b32 s78, s78, 3")
    a(f"s_add_u32 s78, s78, {CZ}")

def touch(a, when):
    if OPT.get("tch", 0) == when: a(f"buffer_load_dword v127, v{WV+4}, {S4(WSP)}, s92 offen")

def g2_z(a):
    WFR, ACC, T = 32, 64, 48
    fine_flush(a)
    a("s_load_dwordx16 s[36:51], s[24:25], 0")
    a("s_lshl_b32 s59, s57, 2")
    a("v_mov_b32 v22, s59")
    a("v_mov_b32 v23, 0")
    a("s_nop 7")
    for ti in range(2):
        x = ACC + 16*ti
        for i, l in enumerate(gelu_list(x, T, C1, C2)):
            if 112*ti + i == OPT.get("zb", 48):
                a("s_waitcnt vmcnt(0)")
                a("ds_write_b32 v22, v106 offset:176")
            a(l)
        for p in range(16):
            a(f"v_add_f32 v{SUM+(p&1)}, v{SUM+(p&1)}, v{x+p}")
            a(f"v_fmac_f32 v{SQ+(p&1)}, v{x+p}, v{x+p}")
    a(f"v_add_f32 v{SUM}, v{SUM}, v{SUM+1}")
    a(f"v_add_f32 v{SUM+1}, v{SQ}, v{SQ+1}")
    halfsum(a, SUM, T)
    halfsum(a, SUM+1, T+1)
    a(f"v_and_b32 v{SUM+1}, 0x7fffffff, v{SUM+1}")
    a("s_waitcnt lgkmcnt(0)")
    for r in range(38, 52, 2): a(f"s_and_b64 s[36:37], s[36:37], s[{r}:{r+1}]")
    a("s_and_b32 s36, s36, s37")
    a("s_cbranch_scc1 L_clr2d")
    srd(a, SA, 24, 256)
    a(f"v_and_b32 v{T}, 15, v0")
    a(f"v_lshlrev_b32 v{T}, 2, v{T}")
    poll_flags(a, "L_clr2", T, T + 1, srd_=SA, soff="0")
    a(f"buffer_store_dwordx2 {vr(SUM,2)}, v97, {S4(WS)}, s81 offen sc1")
    a("s_mov_b64 exec, 1")
    a(f"buffer_atomic_add v106, v107, {S4(WS)}, s90 offen sc1")
    a("s_mov_b64 exec, -1")
    fine(a, "g2")
    a("s_setprio 2")
    lds_poll(a, "L_bz1", 23, 176, T)
    lds_poll(a, "L_bz2", 23, 192, T)
    if OPT.get("w0", 0) == 0:
        for g in wdma(0, WV):
            for m in g: a(m)
    sp_setup_a(a)
    S = 112
    def st_try():
        for i in range(7):
            a(f"buffer_load_dwordx2 {vr(S+2*i,2)}, v98, {S4(WS)}, {'s79' if i < 4 else 's80'} offen offset:{(i%4)*1024} sc1")
        a("s_waitcnt vmcnt(0)")
        a(f"v_or3_b32 v{T}, v{S+1}, v{S+3}, v{S+5}")
        a(f"v_or3_b32 v{T}, v{T}, v{S+7}, v{S+9}")
        a(f"v_or3_b32 v{T}, v{T}, v{S+11}, v{S+13}")
        a(f"v_cmp_gt_i32 vcc, 0, v{T}")
    if OPT.get("hint", 1) == 0:
        st_try()
        a("s_nop 0")
        a("s_cmp_eq_u64 vcc, 0")
        a("s_cbranch_scc1 L_stpd")
    cnt_poll(a, "L_spr", 107, S, 1, 14, sleep=SLP)
    a(f"s_mov_b32 s91, {SPIN}")
    a.label("L_stp")
    st_try()
    a("s_sub_u32 s91, s91, 1")
    a("s_cbranch_scc1 L_stpd")
    a("s_cmp_lg_u64 vcc, 0")
    a("s_cbranch_scc1 L_stp")
    a.label("L_stpd")
    fine(a, "stat")
    if OPT.get("w0", 0) == 3:
        for g in wdma(0):
            for m in g: a(m)
    for i in range(1, 7):
        a(f"v_add_f32 v{S}, v{S}, v{S+2*i}")
        a(f"v_add_f32 v{S+1}, v{S+1}, v{S+2*i+1}")
    halfsum(a, S, T)
    halfsum(a, S+1, T+1)
    a(f"v_mul_f32 v{S}, {f32(1.0/896)}, v{S}")
    a(f"v_mul_f32 v{S+1}, {f32(1.0/896)}, v{S+1}")
    a(f"v_fma_f32 v{S+1}, -v{S}, v{S}, v{S+1}")
    a(f"v_max_f32 v{S+1}, 0, v{S+1}")
    a(f"v_add_f32 v{S+1}, {f32(1e-5)}, v{S+1}")
    a(f"v_rsq_f32 v{S+2}, v{S+1}")
    a("s_nop 0")
    a(f"v_mul_f32 v{S+3}, -v{S}, v{S+2}")
    for ti in range(2):
        x = ACC + 16*ti
        for p in range(16): a(f"v_fma_f32 v{x+p}, v{x+p}, v{S+2}, v{S+3}")
        o = T + 8*ti
        for p in range(8): a(f"v_cvt_pk_bf16_f32 v{o+p}, v{x+2*p}, v{x+2*p+1}")
        for i in range(4): a(f"ds_write_b64 v{99+i}, {vr(o+2*i,2)} offset:{ti*2048}")
    a("s_waitcnt lgkmcnt(0)")
    for ti in range(2):
        for k in range(2):
            for v in range(2):
                a(f"ds_read_b64_tr_b16 {vr(WFR + ti*8 + k*4 + v*2, 2)}, v{103+v} offset:{ti*2048 + k*1024 + v*256}")
    for ti in range(2):
        for k in range(2):
            a(f"s_waitcnt lgkmcnt({6 - 2*(ti*2+k)})")
            store4(a, WFR + ti*8 + k*4, 96, "s82" if ti == 0 else "s83", k*1024)
    fine(a, "ln")
    a("s_mov_b32 s70, s78")
    fine_flush(a)
    sp_setup_b(a)
    a("s_waitcnt vmcnt(0)")
    cnt_add(a, 70, 105, 106, 8)
    fine(a, "fz")

KV0 = 16
def kv_batch(b, v, sm=92, sg=71, sr_=58):
    return [[f"s_add_u32 m0, s{sm}, {n*8192}", f"s_add_u32 s59, s{sr_}, {n*8192}", "s_and_b32 s59, s59, 0x1ffff", f"s_add_u32 s59, s59, s{sg}",
             f"buffer_load_dwordx4 v{v}, {S4(WS)}, s59 offen sc1 lds",
             f"buffer_load_dwordx4 v{v}, {S4(WS)}, s59 offen offset:1024 sc1 lds"] for n in range(4*b, 4*b + 4)]

def g2_light(a):
    a("v_lshlrev_b32 v96, 4, v0")
    a("s_nop 7"); a("s_nop 2")
    a(f"v_mul_f32 v4, {f32(-LOG2E)}, v64")
    a("v_exp_f32 v4, v4")
    a("v_and_b32 v5, 31, v0")
    a("v_add_f32 v4, 1.0, v4")
    a("v_rcp_f32 v4, v4")
    a("v_lshlrev_b32 v5, 2, v5")
    a("v_and_b32 v4, 0x7fffffff, v4")
    a("s_lshl_b32 s59, s57, 2")
    a("v_mov_b32 v22, s59")
    a("v_mov_b32 v23, 0")
    a("v_mov_b32 v24, 1")
    a("ds_write_b32 v22, v24 offset:176")
    a("s_setprio 2")
    lds_poll(a, "L_bz3", 23, 176, 48)
    lds_poll(a, "L_bz4", 23, 192, 48)
    a("s_bitcmp1_b32 s52, 0")
    a("s_cbranch_scc1 L_nog")
    a("s_lshl_b32 s59, s58, 7")
    a(f"s_add_u32 s59, s59, {GG}")
    a(f"buffer_store_dword v4, v5, {S4(WS)}, s59 offen sc1")
    a.label("L_nog")
    if OPT.get("w0", 0) != 1:
        for g in wdma(0, WV):
            for m in g: a(m)
    sp_setup_a(a)
    sp_setup_b(a)
    a("s_waitcnt vmcnt(0)")

TILES = [(0, 0), (0, 1), (0, 2), (0, 3), (1, 0), (1, 1), (1, 2)]
def lds_poll(a, lbl, vz, off, t):
    a(f"s_mov_b32 s91, {SPIN}")
    a.label(lbl)
    a(f"ds_read_b128 {vr(t,4)}, v{vz} offset:{off}")
    a("s_waitcnt lgkmcnt(0)")
    a(f"v_and_b32 v{t}, v{t}, v{t+1}")
    a(f"v_and_b32 v{t+2}, v{t+2}, v{t+3}")
    a(f"v_and_b32 v{t}, v{t}, v{t+2}")
    a("s_sub_u32 s91, s91, 1")
    a(f"v_readfirstlane_b32 s3, v{t}")
    a(f"s_cbranch_scc1 {lbl}d")
    a("s_cmp_lg_u32 s3, 0")
    a(f"s_cbranch_scc1 {lbl}d")
    a("s_sleep 2")
    a(f"s_branch {lbl}")
    a.label(lbl + "d")

WV = 107 + 1
WSP = DBG
def sp_setup_w(a):
    a("s_lshr_b32 s76, s52, 1")
    a("s_lshl_b32 s76, s76, 3")
    a("s_and_b32 s59, s53, 7")
    a("s_add_u32 s76, s76, s59")
    a("s_and_b32 s77, s52, 1")
    a("s_lshl_b32 s77, s77, 2")
    a("s_lshr_b32 s59, s53, 3")
    a("s_add_u32 s77, s77, s59")
    a("s_lshl_b32 s93, s59, 1")
    if OPT.get("srot", 0) == 1:
        a("s_and_b32 s59, s52, 1")
        a("s_add_u32 s93, s93, s59")
    if OPT.get("srot", 0) == 0: a("s_mov_b32 s93, 0")
    if OPT.get("srot", 0) == 3: a("s_add_u32 s93, s93, s53")
    if OPT.get("srot", 0) >= 4: a(f"s_and_b32 s93, s53, {[7, 6, 4][OPT['srot'] - 4]}")
    a("s_and_b32 s59, s77, 1")
    a("s_lshl_b32 s74, s76, 1")
    a("s_add_u32 s74, s74, s59")
    a("s_xor_b32 s75, s74, 1")
    a("s_lshl_b32 s59, s57, 10")
    for i in range(2):
        a(f"s_lshl_b32 s{74+i}, s{74+i}, 17")
        a(f"s_add_u32 s{74+i}, s{74+i}, s59")
    a("s_lshl_b32 s72, s57, 13")
    a("s_add_u32 s72, s72, 0x20000")
    a("s_add_u32 s73, s72, 4096")
    srd(a, WSP, 14, 2048*4096)
    swz_row_voffs(a, WV, 12)
    a(f"v_lshlrev_b32 v{WV+4}, 12, v0")
    a("s_lshl_b32 s92, s76, 18")
    a("s_add_u32 s92, s92, s59")
    a("s_lshl_b32 s59, s77, 7")
    a("s_add_u32 s92, s92, s59")
def wdma(st, v=2, ts=(0, 1)):
    P = []
    for t in ts:
        pre = [f"s_add_u32 s3, s93, {st}", "s_and_b32 s3, s3, 7", "s_lshl_b32 s3, s3, 7"]
        pre += [f"s_mov_b32 m0, s{72+t}", f"s_add_u32 s59, s3, s{74+t}"]
        for q in range(4):
            P.append(pre + [f"buffer_load_dwordx4 v{v+q}, {S4(WSP)}, s59 offen offset:{q*1024} lds"]); pre = []
    return P

def sp_setup_a(a):
    a("s_mov_b32 s54, s76")
    a("s_mov_b32 s55, s77")
    a("s_and_b32 s58, s55, 1")
    a("s_lshl_b32 s60, s54, 1")
    a("s_add_u32 s60, s60, s58")
    a("s_xor_b32 s61, s60, 1")
    a("s_lshr_b32 s59, s55, 1")
    a("s_mul_i32 s59, s59, 7")
    a("s_add_u32 s65, s59, 3")
    a("s_lshl_b32 s62, s58, 2")
    a("s_add_u32 s62, s62, s59")
    a("s_add_u32 s63, s62, 1")
    a("s_add_u32 s64, s62, 2")
    a("s_lshl_b32 s59, s57, 15")
    a(f"s_add_u32 s59, s59, {Z2F}")
    for i in range(4):
        a(f"s_lshl_b32 s{66+i}, s{62+i}, 17")
        a(f"s_add_u32 s{66+i}, s{66+i}, s59")
    srd(a, SB_, 16, 4096)
    a("v_lshlrev_b32 v1, 4, v0")
    for q in range(4): a(f"v_mov_b32 v{2+q}, v{WV+q}")
    swz_read_addrs(a, 6, 72, tmp=10)
    a("v_mov_b32 v14, 0")
    a("v_mov_b32 v15, 1")
    a("s_lshl_b32 s59, s57, 2")
    a("s_add_u32 s59, s59, 32")
    a("v_mov_b32 v13, s59")
    a("v_lshrrev_b32 v10, 4, v0")
    a("s_lshr_b32 s59, s62, 1")
    a("v_mov_b32 v18, s59")
    a("s_lshr_b32 s59, s64, 1")
    a("v_mov_b32 v16, s59")
    a("v_cmp_eq_u32 vcc, 1, v10")
    a("s_lshr_b32 s59, s65, 1")
    a("v_mov_b32 v17, s59")
    a("v_cndmask_b32 v18, v18, v16, vcc")
    a("v_cmp_eq_u32 vcc, 2, v10")
    a("s_lshl_b32 s59, s57, 3")
    a("s_and_b32 s3, s53, 7")
    a("v_cndmask_b32 v18, v18, v17, vcc")
    a("s_add_u32 s59, s59, s3")
    a("v_lshl_add_u32 v10, v18, 5, s59")
    a(f"v_mul_u32_u24 v10, {CST}, v10")
    a(f"v_add_u32 v10, {CNT - FLG + CZ*CST}, v10")
    a("v_and_b32 v16, 3, v0")
    a("s_lshr_b32 s59, s54, 1")
    a(f"s_add_u32 s59, s59, {CY}")
    a("v_lshl_add_u32 v12, v18, 4, s59")
    a("s_lshl_b32 s59, s55, 4")
    a(f"s_add_u32 s59, s59, {CW - 48}")
    a("v_cmp_lt_u32 vcc, 47, v0")
    a("v_add_u32 v17, s59, v0")
    a("s_nop 0")
    a("v_cndmask_b32 v12, v12, v17, vcc")
    a(f"v_mul_u32_u24 v12, {CST}, v12")
    a("s_lshl_b32 s48, s55, 1")
    a("s_and_b32 s59, s57, 1")
    a("s_add_u32 s48, s48, s59")
    a("s_xor_b32 s49, s48, 1")
    a(f"s_mul_i32 s59, s57, {14*1024}")
    a(f"s_add_u32 s59, s59, {WF + 32*1024}")
    for i in range(2):
        a(f"s_mul_i32 s{48+i}, s{48+i}, {88*1024}")
        a(f"s_add_u32 s{48+i}, s{48+i}, s59")
def sp_setup_b(a):
    for n, (t, f) in enumerate(TILES):
        a(f"s_mul_i32 s59, s{60+t}, 28")
        a(f"s_add_u32 s59, s59, s{62+f}")
        a(f"s_lshl_b32 s59, s59, 11")
        a(f"s_add_u32 s{76+n}, s59, {Z1F}")
        a(f"s_mul_i32 s59, s{60+t}, 44")
        a(f"s_add_u32 s59, s59, s{62+f}")
        a(f"s_lshl_b32 s59, s59, 11")
        a(f"s_add_u32 s{83+n}, s59, {AF + 32*1024}")
    a("s_lshl_b32 s59, s52, 2")
    a("s_lshr_b32 s71, s53, 3")
    a("s_add_u32 s59, s59, s71")
    a("s_lshl_b32 s71, s59, 17")
    a("s_lshl_b32 s92, s57, 11")
    a("s_add_u32 s71, s71, s92")
    a(f"s_add_u32 s71, s71, {KVF}")
    a(f"s_and_b32 s58, s53, {7 if OPT.get('krot', 0) else 0}")
    a("s_lshl_b32 s58, s58, 14")

WUREG = [16, 20, 24, 28] + [48 + 16*ks + 4*f for f in range(4) for ks in range(4)] + list(range(224, 256, 4))
def g2_spatial(a):
    BSP = SB_
    WFR, ZS, ACC, T = 16, 48, 112, 224
    FV = 11
    if OPT["stamp"]:
        fine_flush(a); a(f"v_mov_b32 v{FV}, v{FINE['v']}"); FINE["v"] = FV
        fine_pool([4, 6, 8, 10, 12, 14, 16, 18, 20, 24, 26])
    def zbase(st):
        return [f"s_add_u32 s59, s93, {st}", "s_and_b32 s59, s59, 7", "s_lshl_b32 s59, s59, 12"] + \
               [f"s_add_u32 s{44+i}, s59, s{66+i}" for i in range(4)]
    zl = lambda ks, f: f"buffer_load_dwordx4 {vr(ZS + 16*ks + 4*f, 4)}, v1, {S4(WS)}, s{44+f} offen offset:{ks*1024} sc1"
    wset = lambda st: WFR if st % 2 == 0 else T
    def wread(st, ts=(0, 1)): return [f"ds_read_b128 {vr(wset(st) + 16*t + 4*ks, 4)}, v{6+ks} offset:{t*4096}" for ks in range(4) for t in ts]
    emit = lambda P: [a(l) for p in P for l in p]
    a("ds_write_b32 v13, v15 offset:128")
    for l in wread(0): a(l)
    lds_poll(a, "L_sc1", 14, OPT.get("sc1", 144), 224)
    emit(wdma(1))
    emit(kv_batch(1, 1))
    a("s_mov_b32 s50, 0x10001"); a("s_mov_b32 s51, 1")
    cnt_issue(a, 10, 48, "s[50:51]")
    a("s_waitcnt vmcnt(0)")
    a("ds_write_b32 v13, v15")
    fine(a, "kvl")
    cnt_poll(a, "L_pz", 10, 48, None, 16, first_issued=True, sleep=SLP)
    fine(a, "pz")
    for l in zbase(0): a(l)
    log = []
    for f in range(2):
        for ks in range(4): a(zl(ks, f)); log.append(("z", 0, ks, f))
    lds_poll(a, "L_sc2", 14, 160, 224)
    a("s_setprio 0")
    for f in range(2, 4):
        for ks in range(4): a(zl(ks, f)); log.append(("z", 0, ks, f))
    def wait_for(tag):
        idx = max(i for i, t in enumerate(log) if t == tag)
        a(f"s_waitcnt vmcnt({len(log) - 1 - idx})")
    def mm(st, f, ks):
        wait_for(("z", st, ks, f))
        for t in range(2 if f < 3 else 1):
            mfma(a, ACC + 16*TILES.index((t, f)), ZS + 16*ks + 4*f, wset(st) + 16*t + 4*ks, "0" if st + ks == 0 else None)
    kvq = kv_batch(2, 1) + kv_batch(3, 1)
    log[:0] = [("w", 1, 0), ("w", 1, 1)]
    for st in range(7):
        if st % 2 == 0: fine(a, f"s{st}")
        for l in zbase(st + 1): a(l)
        extra = []
        for f in range(4):
            for ks in range(4):
                j = 4*f + ks
                if j in (2, 8):
                    a("s_waitcnt lgkmcnt(0)")
                    if st < 6: extra = [(g, ("w", st + 2, j // 8), 1) for g in wdma(st + 2, ts=(j // 8,))]
                if j in (0, 6) and kvq: extra = [(kvq.pop(0), ("kv",), 2) for _ in range(2 if st == 0 else 1)]
                mm(st, f, ks)
                a(zl(ks, f)); log.append(("z", st + 1, ks, f))
                if st == 5 and j == 0:
                    a("s_mov_b32 s51, 0x07ff0001")
                    a("s_mov_b64 exec, s[50:51]")
                    poll_issue(a, 12, 10); log.append(("f",))
                    a("s_mov_b64 exec, -1")
                if extra:
                    g, tag, cnt = extra.pop(0)
                    for l in g: a(l)
                    log += [tag]*cnt
                if j in (0, 6):
                    wait_for(("w", st + 1, j // 6))
                    for l in wread(st + 1, (j // 6,)): a(l)
                    if j == 6 and st in (1, 3): a(f"ds_write_b32 v13, v15 offset:{8*(st+1)}")
                if st == 6 and j == 9:
                    a("s_setprio 2")
                    a("s_mov_b64 exec, s[50:51]")
                    a("v_cmp_gt_u32 vcc, 8, v10")
                    a("s_nop 1")
                    a("s_cmp_eq_u64 vcc, 0")
                    a("s_cbranch_scc1 L_pyd")
                    cnt_poll(a, "L_py", 12, 10, "vcc", 8, sleep=8)
                    a("v_and_b32 v2, 31, v0")
                    a("v_lshlrev_b32 v4, 2, v2")
                    a("v_lshlrev_b32 v2, 1, v2")
                    a("v_add_u32 v3, 0x10000, v1")
                    a("v_add_u32 v5, -16, v13")
                    lds_poll(a, "L_pa", 14, 0, 6)
                    a("s_setprio 0")
                    for t in range(2):
                        a(f"s_lshl_b32 s59, s{60+t}, 6")
                        a(f"buffer_load_ushort v{6+t}, v2, {S4(BSP)}, s59 offen")
                        a(f"s_lshl_b32 s{74+t}, s{60+t}, 7")
                        a(f"s_add_u32 s{74+t}, s{74+t}, {GG}")
                        a(f"buffer_load_dword v{8+t}, v4, {S4(WS)}, s{74+t} offen sc1")
                    log += [("b",)]*4
    a("s_lshl_b32 s66, s55, 1")
    a("s_lshr_b32 s59, s57, 1")
    a("s_add_u32 s66, s66, s59")
    a(f"s_mul_i32 s66, s66, {88*1024}")
    a("s_and_b32 s59, s57, 1")
    a("s_lshl_b32 s59, s59, 14")
    a("s_add_u32 s66, s66, s59")
    a(f"s_add_u32 s66, s66, {WF}")
    Z1R, B_, G_ = 32, 6, 8
    def gl():
        for t in range(2): a(f"buffer_load_dword v{G_+t}, v4, {S4(WS)}, s{74+t} offen sc1")
    owner = [0,0,0,0,1,1,1,1,2,2,2,3,3,3]
    def slot(n, src):
        si = src if src < owner[n] else src - 1
        ad = 2048 + (n*3 + si)*2048
        return (1, ad) if ad + 1024 < 65536 else (3, ad - 65536)
    st_ = json.dumps(FINE); log0 = list(log)
    for w in range(4):
        FINE.update(json.loads(st_)); log[:] = log0
        if w < 3:
            a(f"s_cmp_lg_u32 s57, {w}")
            a(f"s_cbranch_scc1 L_w{w+1}")
        mine = [n for n in range(14) if owner[n] == w]
        free = [ACC + 8*n for n in range(14) if owner[n] != w]
        U, CC = free[6], free[7]
        def writes(f):
            L = []
            for t in range(2 if f < 3 else 1):
                for n in (2*TILES.index((t, f)), 2*TILES.index((t, f)) + 1):
                    if owner[n] != w:
                        r, ad = slot(n, w)
                        L += [f"ds_write_b128 v{r}, {vr(ACC+8*n+4*i,4)} offset:{ad + 1024*i}" for i in range(2)]
            return L
        wn = [0]
        def wu():
            k = wn[0]; wn[0] += 1
            load4(a, WUREG[k], 1, f"s{48 + (k & 1)}", ((k >> 1) % 4)*1024); log.append(("u",))
            if k % 8 == 7:
                for i in range(2): a(f"s_add_u32 s{48+i}, s{48+i}, 4096")
        pend = []
        for f in range(4):
            for ks in range(4):
                mm(7, f, ks)
                if f == 0 and ks < len(mine):
                    load4(a, Z1R + 4*ks, 1, f"s{76 + (mine[ks]>>1)}", (mine[ks]&1)*1024); log.append(("y",))
                wu()
                if f == 1: wu()
                if ks == 1 and f > 0:
                    pend = writes(f - 1)
                    if f > 1: a("s_nop 3" if f == 2 else "s_nop 5")
                for _ in range(3):
                    if pend: a(pend.pop(0))
        fine(a, "mm")
        a("s_setprio 2")
        while wn[0] < 28: wu()
        a("s_nop 1")
        for l in writes(3): a(l)
        a("s_waitcnt lgkmcnt(0)")
        a("ds_write_b32 v5, v15")
        for g in range(2):
            a(f"s_add_u32 m0, s72, {g*4096}")
            a("s_nop 0")
            for i in range(4): a(f"buffer_load_dwordx4 v1, {S4(WS)}, s66 offen offset:{i*1024} sc1 lds")
            a("s_add_u32 s66, s66, 4096")
        log += [("o",)]*8
        wait_for(("y",))
        a(f"s_mov_b32 s91, {SPIN}")
        a.label(f"L_gp{w}")
        a(f"v_or_b32 v{U}, v{G_}, v{G_+1}")
        a(f"v_cmp_gt_i32 vcc, 0, v{U}")
        a("s_sub_u32 s91, s91, 1")
        a(f"s_cbranch_scc1 L_gp{w}d")
        a("s_cmp_eq_u64 vcc, 0")
        a(f"s_cbranch_scc1 L_gp{w}d")
        gl()
        a("s_waitcnt vmcnt(0)")
        a(f"s_branch L_gp{w}")
        a.label(f"L_gp{w}d")
        for t in range(2):
            a(f"v_sub_f32 v{CC+2*t}, 1.0, v{G_+t}")
            a(f"v_lshlrev_b32 v{B_+t}, 16, v{B_+t}")
            a(f"v_mul_f32 v{CC+1+2*t}, v{B_+t}, v{CC+2*t}")
        lds_poll(a, f"L_pb{w}", 14, 16, 6)
        fine(a, "pb")
        def rdp(i):
            n = mine[i]
            for si, src in enumerate([s_ for s_ in range(4) if s_ != w]):
                r, ad = slot(n, src)
                a(f"ds_read_b128 {vr(free[3*(i&1) + si], 4)}, v{r} offset:{ad}")
                a(f"ds_read_b128 {vr(free[3*(i&1) + si] + 4, 4)}, v{r} offset:{ad+1024}")
        rdp(0)
        for i, n in enumerate(mine):
            if i + 1 < len(mine):
                rdp(i + 1); a("s_waitcnt lgkmcnt(6)")
            else:
                a("s_waitcnt lgkmcnt(0)")
                a("ds_write_b32 v13, v15 offset:80")
            x = ACC + 8*n; t = TILES[n >> 1][0]
            for si in range(3):
                for p in range(8): a(f"v_add_f32 v{x+p}, v{x+p}, v{free[3*(i&1) + si]+p}")
            for p in range(8): a(f"v_fma_f32 v{x+p}, v{x+p}, v{CC+2*t}, v{CC+1+2*t}")
            for p in range(4):
                a(f"v_lshlrev_b32 v{U+2*p}, 16, v{Z1R+4*i+p}")
                a(f"v_and_b32 v{U+2*p+1}, 0xffff0000, v{Z1R+4*i+p}")
            for p in range(8): a(f"v_mul_f32 v{x+p}, v{x+p}, v{U+p}")
            o = Z1R + 4*i
            for p in range(4): a(f"v_cvt_pk_bf16_f32 v{o+p}, v{x+2*p}, v{x+2*p+1}")
            store4(a, o, 1, f"s{83 + (n>>1)}", (n&1)*1024)
        if w < 3:
            a("s_branch L_fin")
            a.label(f"L_w{w+1}")
    a.label("L_fin")

def out_tiles(a, rp, cg):
    a(f"s_lshl_b32 s60, s{rp}, 1")
    a("s_lshr_b32 s59, s57, 1")
    a("s_add_u32 s60, s60, s59")
    a("s_xor_b32 s61, s60, 1")
    a(f"s_lshl_b32 s62, s{cg}, 1")
    a("s_and_b32 s59, s57, 1")
    a("s_add_u32 s62, s62, s59")
    a("s_xor_b32 s63, s62, 1")
def pair(a, reg, sb, ks, v=1, n=2):
    for i in range(n): load4(a, reg + 4*i, v, f"s{sb+i}", (ks % 4)*1024)
    if ks % 4 == 3:
        for i in range(n): a(f"s_add_u32 s{sb+i}, s{sb+i}, 4096")
WOL = (131072, 59392)
RED2, RED1 = 2048, 106496
def red_setup(a, grp, vl, vw, vr_, vo):
    def base(g, lam, v):
        a(f"s_xor_b32 s59, s57, {lam}")
        a(f"s_mul_i32 s59, s59, {14336 if g else 6144}")
        a(f"s_add_u32 s59, s59, {RED2 if g else RED1}")
        a(f"v_add_u32 v{v}, s59, v{vl}")
    for lam in range(4 if grp else 2): base(grp, lam, vw + lam)
    base(1 - grp, 0, vr_)
    a(f"v_and_b32 v{vo}, 31, v0")
    a(f"v_lshlrev_b32 v{vo}, 10, v{vo}")
    a(f"v_lshrrev_b32 v{vo+1}, 5, v0")
    a(f"v_lshl_add_u32 v{vo}, v{vo+1}, 4, v{vo}")
    a("s_lshl_b32 s76, s60, 15")
    a("s_lshl_b32 s59, s62, 6")
    a("s_add_u32 s76, s76, s59")
    srd(a, SC, 22, 2048*1024)
def red_final(a, grp, ACC, vw, vr_, vo, R):
    W = lambda lam, half, slot: [f"ds_write_b128 v{vw+lam}, {vr(ACC + 16*lam + 8*half + 4*i, 4)} offset:{slot*2048 + i*1024}" for i in range(2)]
    L = []
    if grp:
        for lam in (1, 2, 3): L += W(lam, 0, lam) + W(lam, 1, 3 + lam)
        L += W(0, 0, 0)
        src = [(vw, 4), (vw, 5), (vw, 6), (vr_, 1), (vr_, 2)]
    else:
        L += W(1, 0, 0) + W(1, 1, 2) + W(0, 1, 1)
        src = [(vw, 0), (vr_, 0), (vr_, 1), (vr_, 2), (vr_, 3)]
    for l in L: a(l)
    a("s_waitcnt lgkmcnt(0)")
    a("s_barrier")
    for j, (v, slot) in enumerate(src):
        for i in range(2): a(f"ds_read_b128 {vr(R + 8*j + 4*i, 4)}, v{v} offset:{slot*2048 + i*1024}")
    x = ACC + 8*grp
    for j in range(5):
        a(f"s_waitcnt lgkmcnt({8 - 2*j})")
        for p in range(0, 8, 2): a(f"v_pk_add_f32 {vr(x+p,2)}, {vr(x+p,2)}, {vr(R+8*j+p,2)}")
    for p in range(4): a(f"v_cvt_pk_bf16_f32 v{R+p}, v{x+2*p}, v{x+2*p+1}")
    a("s_nop 1")
    a(f"v_permlane32_swap_b32 v{R}, v{R+2}")
    a(f"v_permlane32_swap_b32 v{R+1}, v{R+3}")
    a(f"buffer_store_dwordx4 {vr(R,4)}, v{vo}, {S4(SC)}, s76 offen offset:{32*grp} {OPT.get('ost', '')}")

def g2_final(a):
    R, ACC = 176, 112
    D = 6
    fine(a, "u")
    fine_flush(a)
    out_tiles(a, 54, 55)
    a(f"s_mul_i32 s72, s57, {14*1024}")
    for i in range(2):
        a(f"s_mul_i32 s59, s{60+i}, {88*1024}")
        a(f"s_add_u32 s59, s59, s72")
        a(f"s_add_u32 s{64+i}, s59, {AF + 32*1024}")
    a("s_lshl_b32 s77, s54, 2")
    a(f"s_add_u32 s77, s77, {CU}")
    a("s_add_u32 s59, s77, s57")
    a(f"s_mul_i32 s59, s59, {CST}")
    a("v_mov_b32 v2, s59")
    a("s_lshr_b32 s59, s55, 1")
    a("s_add_u32 s77, s77, s59")
    a("v_mov_b32 v3, v13")
    a("s_lshl_b32 s67, s57, 13")
    red_setup(a, 1, 1, 5, 9, 12)
    lds_poll(a, "L_prd", 14, 112, R)
    a("s_waitcnt vmcnt(0)")
    cnt_add(a, 77, 14, 15, 1)
    fine(a, "fu")
    a("s_setprio 0")
    for g in range(2):
        a(f"s_add_u32 m0, s67, {WOL[1] + g*4096}")
        a("s_nop 0")
        for i in range(4): a(f"buffer_load_dwordx4 v1, {S4(WS)}, s66 offen offset:{i*1024} sc1 lds")
        a("s_add_u32 s66, s66, 4096")
    a("s_setprio 2")
    cnt_issue(a, 2, 4, 1)
    a("s_waitcnt vmcnt(0)")
    a("ds_write_b32 v3, v15 offset:96")
    cnt_poll(a, "L_pu", 2, 4, 1, 8, first_issued=True, sleep=SLP)
    fine(a, "pu")
    a("s_setprio 0")
    for ks in range(D): pair(a, R + 8*ks, 64, ks)
    for ks in range(14):
        a(f"s_waitcnt vmcnt({2*min(13 - ks, D - 1)})")
        for lam in (1, 2, 3, 0):
            mfma(a, ACC + 16*lam, WUREG[2*ks + (lam & 1)], R + 8*(ks % D) + 4*(lam >> 1), "0" if ks == 0 else None)
        if ks + D < 14: pair(a, R + 8*(ks % D), 64, ks + D)
    fine(a, "um")
    a("s_nop 7"); a("s_nop 1")
    red_final(a, 1, ACC, 5, 9, 12, 16)
    fine_dump(a, 4, 2)
    a("s_endpgm")

def g1_final(a):
    WO, AO, ACC = 16, 144, 208
    a("s_lshr_b32 s54, s52, 1")
    a("s_lshl_b32 s54, s54, 3")
    a("s_and_b32 s59, s53, 7")
    a("s_add_u32 s54, s54, s59")
    a("s_and_b32 s55, s52, 1")
    a("s_lshl_b32 s55, s55, 2")
    a("s_lshr_b32 s59, s53, 3")
    a("s_add_u32 s55, s55, s59")
    out_tiles(a, 54, 55)
    a("s_and_b32 s72, s57, 1")
    a("s_lshl_b32 s73, s72, 14")
    a(f"s_mul_i32 s59, s60, {88*1024}")
    a(f"s_add_u32 s59, s59, s73")
    a(f"s_add_u32 s64, s59, {AF}")
    a("s_mul_i32 s59, s72, 24576")
    a(f"s_add_u32 s59, s59, {WOL[0]}")
    a("v_add_u32 v6, s59, v4")
    a("s_lshl_b32 s59, s72, 13")
    a(f"s_sub_u32 s59, {WOL[0] + 16384}, s59")
    a("v_add_u32 v7, s59, v4")
    for i in range(2): a(f"v_add_u32 v{2+i}, {(WOL[1] - WOL[0]) & 0xffffffff}, v{6+i}")
    a("s_lshl_b32 s59, s54, 1")
    a("s_add_u32 s59, s59, s72")
    a("s_lshl_b32 s59, s59, 1")
    a("s_lshr_b32 s72, s57, 1")
    a("s_add_u32 s59, s59, s72")
    a(f"s_mul_i32 s59, s59, {CST}")
    a(f"s_add_u32 s59, s59, {CNT - FLG + CO*CST}")
    a("v_mov_b32 v8, s59")
    red_setup(a, 0, 4, 10, 12, 13)
    a("v_mov_b32 v9, 0")
    a("s_waitcnt vmcnt(0)")
    cnt_add(a, 85, 63, 58, 2)
    fine(a, "fo")
    cnt_poll(a, "L_po", 8, 240, 1, 16, sleep=SLP)
    fine(a, "po")
    for ks in range(16): pair(a, AO + 4*ks, 64, ks, v=4, n=1)
    lds_poll(a, "L_adn", 9, 96, 240)
    lds_poll(a, "L_wol", 9, 128, 240)
    def wr(ks):
        for lam in range(2): a(f"ds_read_b128 {vr(WO + 8*ks + 4*lam, 4)}, v{(6 if ks < 8 else 2)+lam} offset:{(ks % 8)*1024}")
    for ks in range(6): wr(ks)
    for ks in range(16):
        if ks + 6 < 16: wr(ks + 6)
        a(f"s_waitcnt vmcnt({15-ks}) lgkmcnt({2*min(6, 15-ks)})")
        for lam in (1, 0): mfma(a, ACC + 16*lam, WO + 8*ks + 4*lam, AO + 4*ks, "0" if ks == 0 else None)
    fine(a, "om")
    a("s_nop 7"); a("s_nop 2")
    red_final(a, 0, ACC, 10, 12, 13, 16)
    fine_dump(a, 0, 2)
    a("s_endpgm")

def g1_front(a):
    WFR, ACC, T = 32, 64, 8
    a("v_lshlrev_b32 v9, 4, v0")
    a("s_waitcnt lgkmcnt(0)")
    srd(a, WS, 26, WS_SIZE)
    srd(a, DBG, 24, 256)
    if OPT.get("pfc", 1):
        a("s_cmp_lg_u32 s57, 1")
        a("s_cbranch_scc1 L_nopc")
        a(f"s_getpc_b64 s[{SA}:{SA+1}]")
        a.label("L_pc")
        a(f"s_sub_u32 s{SA}, s{SA}, L_pc-{NAME}_kernel")
        a(f"s_subb_u32 s{SA+1}, s{SA+1}, 0")
        a(f"s_mov_b32 s{SA+2}, L_end-{NAME}_kernel")
        a(f"s_mov_b32 s{SA+3}, 0x20000")
        a("v_lshlrev_b32 v17, 7, v0")
        a("s_and_b32 s59, s53, 7")
        a("s_lshl_b32 s59, s59, 13")
        a(f"buffer_load_dword v125, v17, {S4(SA)}, s59 offen")
        a.label("L_nopc")
    def touches():
        if OPT.get("pfz", 1):
            srd(a, SC, 12, 512*3584)
            a("v_and_b32 v126, 31, v0")
            a("v_mul_u32_u24 v126, 3584, v126")
            a("s_lshl_b32 s88, s62, 7")
            a("s_and_b32 s89, s58, 15")
            a(f"s_mul_i32 s89, s89, {32*3584}")
            a("s_add_u32 s89, s89, s88")
            a("s_cmp_lg_u32 s57, 2")
            a("s_cbranch_scc1 L_nopz")
            a(f"s_mul_i32 s59, s54, {32*3584}")
            a("s_add_u32 s59, s59, s88")
            a(f"buffer_load_dword v125, v126, {S4(SC)}, s59 offen")
            a.label("L_nopz")
        if OPT.get("pfw", 0):
            a("s_cmp_lg_u32 s57, 3")
            a("s_cbranch_scc1 L_notlb")
        if OPT.get("tlb", 0):
            a("v_lshlrev_b32 v17, 20, v0")
            a("s_mov_b64 exec, 0x7fffff")
            a(f"buffer_load_dword v125, v17, {S4(WS)}, 0 offen")
            a("s_mov_b64 exec, 1")
            a(f"buffer_load_dword v125, v17, {S4(DBG)}, 0 offen offset:128")
            srd(a, SA, 22, 2048*1024)
            a("s_mov_b64 exec, 3")
            a(f"buffer_load_dword v125, v17, {S4(SA)}, 0 offen")
            srd(a, SA, 16, 4096)
            a(f"buffer_load_dword v125, v17, {S4(SA)}, 0 offen")
            a("s_mov_b64 exec, -1")
        if OPT.get("pfw", 0):
            srd(a, SA, 14, 2048*4096)
            a("v_and_b32 v17, 7, v0")
            a("v_lshlrev_b32 v17, 12, v17")
            a("v_bfe_u32 v18, v0, 3, 2")
            a("v_lshl_add_u32 v17, v18, 10, v17")
            a("v_lshrrev_b32 v18, 5, v0")
            a("v_lshl_add_u32 v17, v18, 7, v17")
            a("s_lshr_b32 s59, s52, 1")
            a("s_lshl_b32 s59, s59, 3")
            a("s_and_b32 s3, s53, 7")
            a("s_add_u32 s59, s59, s3")
            a("s_lshl_b32 s59, s59, 1")
            a("s_and_b32 s3, s52, 1")
            a("s_add_u32 s59, s59, s3")
            a("s_lshl_b32 s59, s59, 2")
            a("s_lshr_b32 s3, s53, 3")
            a("s_add_u32 s59, s59, s3")
            a("s_lshl_b32 s59, s59, 15")
            if OPT.get("srot", 0) >= 4:
                a(f"s_and_b32 s3, s53, {[7, 6, 4][OPT['srot'] - 4]}")
                a("s_lshl_b32 s3, s3, 7")
                a("s_add_u32 s59, s59, s3")
            if OPT.get("pfw", 0) == 1: a("s_mov_b32 exec_hi, 0")
            a(f"buffer_load_dword v125, v17, {S4(SA)}, s59 offen")
            a("s_mov_b64 exec, -1")
            a.label("L_notlb")
    if OPT.get("tpos", 0) == 0: touches()
    a("s_cmp_lg_u32 s55, 15")
    a("s_cbranch_scc1 L_noclr")
    a("s_cmp_lg_u32 s57, 0")
    a("s_cbranch_scc1 L_noclr")
    for r in range(12, 16): a(f"v_mov_b32 v{r}, -1")
    a("v_mov_b32 v16, 0")
    a(f"v_mul_u32_u24 v17, {CST}, v0")
    a("v_lshlrev_b32 v18, 3, v0")
    a(f"s_mul_i32 s59, s54, {64*CST}")
    a(f"s_add_u32 s59, s59, {CNT}")
    a(f"buffer_store_dword v16, v17, {S4(WS)}, s59 offen sc1")
    a(f"s_add_u32 s59, s59, {1024*CST}")
    a(f"buffer_store_dword v16, v17, {S4(WS)}, s59 offen sc1")
    a("s_lshl_b32 s59, s54, 9")
    a(f"s_add_u32 s59, s59, {GG}")
    a(f"buffer_store_dwordx2 v[12:13], v18, {S4(WS)}, s59 offen sc1")
    a("s_mul_i32 s59, s54, 14336")
    a(f"s_add_u32 s59, s59, {STATS}")
    for i in range(14):
        store4(a, 12, 9, "s59", (i % 4)*1024)
        if i % 4 == 3: a("s_add_u32 s59, s59, 4096")
    a("v_mov_b32 v17, 1")
    a("s_lshl_b32 s59, s54, 2")
    a("s_waitcnt vmcnt(0)")
    a("s_mov_b64 exec, 1")
    a(f"buffer_store_dword v17, v16, {S4(DBG)}, s59 offen sc1")
    a("s_mov_b64 exec, -1")
    a.label("L_noclr")
    fine_init(a, 127); fine_pool(list(range(4, 22, 2)) + [24, 26, 36, 38, 40, 42, 48, 50])
    swz_read_addrs(a, 112, 60)
    tr_addr(a, 116, 11, 7, True, 16384)
    a("v_xor_b32 v117, 64, v116")
    tr_addr(a, 118, 9, 6, False, 32768)
    a("v_and_b32 v120, 0x33, v0")
    a("v_bfe_u32 v1, v0, 2, 1")
    a("v_lshl_or_b32 v120, v1, 3, v120")
    a("v_bfe_u32 v1, v0, 3, 1")
    a("v_lshl_or_b32 v120, v1, 2, v120")
    a("v_lshlrev_b32 v120, 4, v120")
    a("v_and_b32 v121, 15, v0")
    a("v_lshrrev_b32 v1, 5, v0")
    a("v_lshl_or_b32 v121, v1, 4, v121")
    a("v_lshlrev_b32 v121, 4, v121")
    a("v_bfe_u32 v1, v0, 4, 1")
    a("v_lshl_or_b32 v121, v1, 17, v121")
    a("s_lshl_b32 s59, s55, 7")
    a("s_add_u32 s59, s59, s58")
    a("s_lshl_b32 s70, s59, 11")
    a(f"s_add_u32 s70, s70, {KVF}")
    a("s_lshr_b32 s59, s55, 1")
    a("s_lshl_b32 s59, s59, 8")
    a("s_add_u32 s59, s59, s58")
    a("s_lshl_b32 s64, s59, 11")
    a(f"s_add_u32 s64, s64, {KVF}")
    a("s_mov_b32 s68, 131072")
    a("v_mov_b32 v122, 1.0")
    a("s_bitcmp1_b32 s55, 0")
    a("s_cbranch_scc1 L_isk")
    a("s_lshl_b32 s64, s59, 10")
    if QF: a(f"s_add_u32 s64, s64, {QF}")
    a("s_mov_b32 s68, 65536")
    a(f"v_mov_b32 v122, {f32(QSCALE)}")
    a("v_mov_b32 v120, v9")
    a.label("L_isk")
    for i in range(3): a(f"s_add_u32 s{65+i}, s{64+i}, s68")
    a("s_lshr_b32 s71, s55, 1")
    a("s_lshl_b32 s71, s71, 4")
    a("s_and_b32 s59, s54, 12")
    a("s_add_u32 s71, s71, s59")
    a("v_and_b32 v123, 15, v0")
    a("v_lshlrev_b32 v123, 2, v123")
    g1_att_setup(a)
    a("ds_write_b32 v5, v60")
    a("ds_write_b32 v5, v60 offset:128")
    a("s_mul_i32 s69, s58, 28")
    a("s_lshl_b32 s59, s62, 1")
    a("s_add_u32 s69, s69, s59")
    a("s_lshl_b32 s69, s69, 11")
    a(f"s_add_u32 s69, s69, {Z1F}")
    a("s_lshl_b32 s77, s62, 4")
    a("s_add_u32 s77, s77, s54")
    a(f"s_add_u32 s77, s77, {CY}")
    a(f"s_add_u32 s59, s2, {CY + 256}")
    a("s_cmp_eq_u32 s61, 7")
    a("s_cselect_b32 s77, s59, s77")
    if OPT.get("tpos", 0) == 1: touches()
    relayout_load(a)
    a("s_waitcnt lgkmcnt(0)")
    fine(a, "setup")
    win = Win(range(112, 119), 16384)
    def reads(n):
        c, ks = n >> 2, n & 3
        pre, so = win.at(slot_of(c))
        R = [f"ds_read_b128 {vr(XF + 4*n, 4)}, v{112+ks} offset:{so}"]
        for t in range(2):
            for v in range(2):
                R.append(f"ds_read_b64_tr_b16 {vr(WFR + 12*(n&1) + 4*t + 2*v, 2)}, v{116+t} offset:{so + ks*4096 + v*512}")
        for v in range(2):
            R.append(f"ds_read_b64_tr_b16 {vr(WFR + 12*(n&1) + 8 + 2*v, 2)}, v118 offset:{so + ks*1024 + v*256}")
        return pre, R
    a("s_barrier")
    pre, R = reads(0)
    for l in pre + R: a(l)
    for n in range(32):
        ks = n & 3
        xf = XF + 4*n; wf = WFR + 12*(n&1); c0 = "0" if n == 0 else None
        M = lambda t: mfma(a, ACC + 16*t, wf + 4*t, xf, c0) if t < 2 else mfma(a, ACC + 32, xf, wf + 8, c0)
        pre, R = reads(n + 1) if n < 31 else ([], [])
        a("s_waitcnt lgkmcnt(4)")
        M(0)
        if n == 31:
            a("s_waitcnt lgkmcnt(2)"); M(1)
            a("s_waitcnt lgkmcnt(0)"); M(2)
            break
        if ks == 3: a("s_barrier")
        if n == OPT.get("pfz2", 10): a(f"buffer_load_dword v125, v126, {S4(SC)}, s89 offen")
        for l in pre + R[0:3]: a(l)
        a("s_waitcnt lgkmcnt(5)"); M(1)
        if OPT.get("rd1", 1):
            for l in R[3:5]: a(l)
            a("s_waitcnt lgkmcnt(5)"); M(2)
            for l in R[5:7]: a(l)
        else:
            for l in R[3:7]: a(l)
            a("s_waitcnt lgkmcnt(7)"); M(2)
    fine(a, "p1")
    a(f"s_load_dwordx16 s[36:51], s[{DBG}:{DBG+1}], 0")
    a("s_nop 6")
    for t in range(3):
        acc = ACC + 16*t
        if t < 2:
            for p in range(16): a(f"v_mul_f32 v{acc+p}, v{acc+p}, v122")
        for p in range(8): a(f"v_cvt_pk_bf16_f32 v{T+8*t+p}, v{acc+2*p}, v{acc+2*p+1}")
        for h in range(2):
            if t < 2: store4(a, T + 8*t + 4*h, 120, f"s{64 + 2*t + h}")
            else: store4(a, T + 8*t + 4*h, 121, "s70", 1024 + 512*h)
    fine(a, "st")
    tr_addr(a, 116, 10, 7, True, slot_of(8), tmp=118)
    a("v_xor_b32 v117, 64, v116")
    a(f"v_mov_b32 v112, {f32(GC1)}")
    a(f"v_mov_b32 v113, {f32(GC2)}")
    a("s_waitcnt vmcnt(6)")
    relayout_read(a, 96)
    a("s_waitcnt lgkmcnt(0)")
    for r in range(38, 52, 2): a(f"s_and_b64 s[36:37], s[36:37], s[{r}:{r+1}]")
    a("s_and_b32 s36, s36, s37")
    a("s_cbranch_scc1 L_clr1d")
    poll_flags(a, "L_clr1", 123, 124, srd_=DBG, soff="0")
    AP = OPT.get("ackpos", -1)
    def arrive(L=""):
        a("s_waitcnt vmcnt(0)")
        cnt_add(a, 71, 63, 58, 4)
        relayout_store(a, 96, L)
    a("ds_write_b32 v59, v58 offset:192")
    if AP < 0: arrive(); fine(a, "ack")
    lds_poll(a, "L_bz0", 60, 176, 104)
    fine(a, "bZ")
    a("s_cmp_eq_u32 s61, 7")
    a("s_cbranch_scc1 L_noz1")
    def rd(n, t):
        if n == 16: a(f"v_add_u32 v{116+t}, {SLOT}, v{116+t}")
        for v in range(2):
            a(f"ds_read_b64_tr_b16 {vr(WFR + 8*(n%3) + 4*t + 2*v, 2)}, v{116+t} offset:{(n%16)*2048 + v*512}")
    b = Asm(); att_init(b); ini = list(b.lines)
    for n in range(2):
        for t in range(2): rd(n, t)
    for n in range(32):
        for t in range(2):
            a(f"s_waitcnt lgkmcnt({min(6, 2*(63 - 2*n - t))})")
            mfma(a, ACC + 16*t, WFR + 8*(n%3) + 4*t, XF + 4*n, "0" if n == 0 else None)
            if n + 2 < 32: rd(n + 2, t)
            if n >= 17:
                for _ in range(2 if n < 27 else 4):
                    if ini: a(ini.pop(0))
        if n == AP:
            if OPT.get("fz1"): fine(a, "pre")
            arrive(); fine(a, "ack")
        if OPT.get("fz1") and n in (20, 29, 31): fine(a, f"n{n}")
        if n == OPT.get("qpos", 22): cnt_issue(a, 61, 114, 1); a("s_mov_b64 exec, -1")
    assert not ini
    a(f"s_setprio {OPT.get('g1p', 3)}")
    a("s_nop 9")
    for ti in range(OPT.get("gpre", 0)): z1_gelu(a, ti)
    a("s_mov_b64 exec, 1")
    a("s_branch L_z1d")
    a.label("L_noz1")
    att_init(a)
    if AP >= 0: arrive("l")
    cnt_issue(a, 61, 114, 1)
    a.label("L_z1d")
    fine(a, "z1")

Q, KS, VS, S_, NM, O_, T_ = 8, 16, 160, 64, 128, 200, 232
def att_init(a):
    T = 115
    a(f"v_and_b32 v{T}, 27, v0")
    a(f"v_cmp_eq_u32 vcc, 16, v{T}")
    a(f"v_mov_b32 v{T}, 0x3f803f80")
    a("s_nop 0")
    a(f"v_cndmask_b32 v{VS}, 0, v{T}, vcc")
    for r in range(VS + 1, VS + 32): a(f"v_mov_b32 v{r}, v{VS}")
    for r in range(O_, O_ + 32): a(f"v_mov_b32 v{r}, 0")
def z1_gelu(a, ti):
    x = 64 + 16*ti
    for l in gelu_list(x, 96, 112, 113): a(l)
    for p in range(8): a(f"v_cvt_pk_bf16_f32 v{32+8*ti+p}, v{x+2*p}, v{x+2*p+1}")
def g1_att_setup(a):
    T = 62
    a("s_lshl_b32 s72, s52, 2")
    a("s_lshr_b32 s59, s53, 3")
    a("s_add_u32 s72, s72, s59")
    a("s_and_b32 s74, s53, 7")
    a("s_lshl_b32 s73, s74, 3")
    a("s_lshl_b32 s59, s57, 1")
    a("s_add_u32 s73, s73, s59")
    a("s_lshl_b32 s78, s72, 6")
    a("s_add_u32 s78, s78, s73")
    a("s_lshl_b32 s78, s78, 10")
    if QF: a(f"s_add_u32 s78, s78, {QF}")
    a("s_lshl_b32 s79, s72, 17")
    a(f"s_add_u32 s79, s79, {KVF}")
    a("s_lshl_b32 s80, s57, 11")
    a("s_add_u32 s81, s79, s80")
    a(f"s_and_b32 s76, s53, {7 if OPT.get('krot', 0) else 0}")
    a("s_lshl_b32 s76, s76, 14")
    a("s_lshl_b32 s82, s73, 7")
    a(f"s_add_u32 s82, s82, {GG}")
    a("s_mov_b32 s86, 0xffff")
    a("s_mov_b32 s87, 0xffff")
    a("s_mul_i32 s83, s73, 88")
    a("s_add_u32 s83, s83, s72")
    a("s_lshl_b32 s83, s83, 10")
    a(f"s_add_u32 s83, s83, {AF}")
    a(f"s_add_u32 s84, s83, {88*1024}")
    a("s_lshr_b32 s85, s72, 4")
    a("s_add_u32 s85, s85, s73")
    a("s_lshl_b32 s85, s85, 1")
    a(f"s_add_u32 s85, s85, {CO}")
    a("v_lshlrev_b32 v4, 4, v0")
    a("v_and_b32 v5, 31, v0")
    a("s_lshr_b32 s59, s72, 2")
    a("s_lshl_b32 s59, s59, 2")
    a("s_add_u32 s59, s59, s57")
    a("s_lshl_b32 s59, s59, 2")
    a("s_and_b32 s75, s53, 3")
    a("s_add_u32 s59, s59, s75")
    a(f"s_mul_i32 s59, s59, {CST}")
    a(f"s_add_u32 s59, s59, {CNT - FLG + CQ*CST}")
    a("v_mov_b32 v61, s59")
    a(f"v_mul_u32_u24 v63, {CST}, v0")
    a("v_lshlrev_b32 v5, 2, v5")
    a("v_mov_b32 v3, 0xdddd")
    a("v_mov_b32 v1, v4")
    a("v_and_b32 v2, 15, v0")
    a(f"v_lshrrev_b32 v{T}, 5, v0")
    a(f"v_lshl_or_b32 v2, v{T}, 4, v2")
    a("v_lshlrev_b32 v2, 4, v2")
    a("v_add_u32 v2, 1024, v2")
    a("v_add_u32 v56, 0x10000, v1")
    a("v_add_u32 v57, 0x10000, v2")
    a("v_mov_b32 v58, 1")
    a("s_lshl_b32 s59, s57, 2")
    a("v_mov_b32 v59, s59")
    a("v_mov_b32 v60, 0")

def g1_att(a):
    S, O, T = S_, O_, T_
    cnt_poll(a, "L_pq", 61, 114, 1, 32, first_issued=True, sleep=SLP)
    if OPT["stamp"]:
        a("v_mov_b32 v250, v127"); FINE["v"] = 250; fine_flush(a)
    a("ds_write_b32 v59, v58 offset:80")
    lds_poll(a, "L_pq2", 60, 80, T)
    fine(a, "pq")
    a("s_add_u32 s59, s79, s76")
    load4(a, KS, 4, "s59")
    load4(a, Q, 4, "s78")
    load4(a, Q + 4, 4, "s78", 1024)
    for n, g in enumerate(kv_batch(0, 4, 80, 81, 76)):
        for l in g[:-2]: a(l)
        if n == 0:
            a("s_cmp_eq_u32 s57, 0")
            a("s_cbranch_scc1 L_skipk0")
        a(g[-2])
        if n == 0: a.label("L_skipk0")
        a(g[-1])
    a("s_cmp_eq_u32 s61, 7")
    a("s_cbranch_scc1 L_nog1")
    for ti in range(OPT.get("gpre", 0), 2): z1_gelu(a, ti)
    a.label("L_nog1")
    fine(a, "g1")
    kreg = lambda kt: KS + 4*(kt & 3)
    vreg = lambda kt: VS + 8*(kt & 3)
    def rd(kts, skipk=()):
        L = []
        for kt in kts:
            if kt not in skipk:
                L.append(f"ds_read_b128 {vr(kreg(kt),4)}, v{1 if kt < 32 else 56} offset:{(kt % 32)*2048}")
        L.append("s_mov_b64 exec, s[86:87]")
        for kt in kts:
            for s_ in range(2):
                L.append(f"ds_read_b128 {vr(vreg(kt)+4*s_,4)}, v{2 if kt < 32 else 57} offset:{(kt % 32)*2048 + s_*512}")
        L.append("s_mov_b64 exec, -1")
        return L
    a("s_waitcnt vmcnt(0)")
    a("ds_write_b32 v59, v58 offset:144")
    mfma(a, S, KS, Q, "0")
    mfma(a, S + 16, KS, Q + 4, "0")
    lds_poll(a, "L_kv0", 60, 144, T)
    fine(a, "kv")
    for l in rd([0, 1, 2, 3], skipk=(0,)): a(l)
    for q in (0, 1):
        s_, d = S + 16*q, T + q
        a(f"v_max3_f32 v{d}, v{s_}, v{s_+1}, v{s_+2}")
        for p in range(3, 15, 2): a(f"v_max3_f32 v{d}, v{d}, v{s_+p}, v{s_+p+1}")
        a(f"v_max_f32 v{d}, v{d}, v{s_+15}")
        halfsum(a, d, T + 2, "v_max_f32")
        for r in range(16): a(f"v_sub_f32 v{NM + 16*q + r}, 0, v{d}")
        a("s_nop 1")
        mfma(a, s_, KS, Q + 4*q, NM + 16*q)
    a("s_setprio 0")
    SB = [S, S + 16, S + 32]
    sb = lambda k: SB[k % 3]
    QK = lambda k: mfma_s(sb(k), kreg(k >> 1), Q + 4*(k & 1), NM + 16*(k & 1))
    PV = lambda k, h: f"v_smfmac_f32_32x32x32_bf16 {vr(O+16*(k&1),16)}, {vr(vreg(k>>1)+4*h,4)}, {vr(sb(k)+8*h,8)}, v3"
    def gl(): return [f"buffer_load_dword v6, v5, {S4(WS)}, s82 offen sc1", f"buffer_load_dword v7, v5, {S4(WS)}, s82 offen offset:128 sc1"]
    ev = []
    for k in range(0, 129):
        kt = k >> 1
        post = []
        if k % 4 == 0 and kt + 2 < 64:
            if (kt + 2) % 16 == 0: post.append("KVCHECK")
            post += rd([kt + 2, kt + 3])
        if k % 4 == 2 and kt + 1 < 64:
            post.append("s_waitcnt lgkmcnt(0)")
            if kt == 45: post.append("ds_write_b32 v59, v58")
            if kt == 51: post += gl()
            if kt == 25: post.append("KV1")
        if k > 0: ev.append([PV(k - 1, 1), 16*k + 2, post, k])
        if k + 2 < 128: ev.append([QK(k + 2), 0, ["Z1S"] if k == OPT.get("z1s", 33) else [], k])
        if k < 128: ev.append([PV(k, 0), 16*k + 10, [], k])
    gaps = OPT.get("gaps", (3, 6, 9))
    pos = 0; p = 7
    for i, (ins, lo, post, k) in enumerate(ev):
        if i > 0: p = next((p + g for g in gaps if p + g >= lo), max(lo, p + gaps[0]))
        p = min(p, 2048)
        while pos < p:
            if pos % 256 == 0: fine(a, f"k{pos//16}")
            a(f"v_exp_f32 v{sb(pos>>4) + (pos&15)}, v{sb(pos>>4) + (pos&15)}"); pos += 1
        if lo > 2048: a("s_nop 1")
        if i == 0: a("s_waitcnt lgkmcnt(0)")
        if ins.startswith("v_mfma"): assert p <= 16*(k + 2) - 12, (k, p)
        a(ins)
        for l in post:
            if l == "KVCHECK": lds_poll(a, f"L_kvp{k}", 60, 16 + (k + 4) // 2, T)
            elif l == "Z1S":
                a("s_cmp_eq_u32 s61, 7")
                a("s_cbranch_scc1 L_noz1s")
                for i_ in range(4): store4(a, 32 + 4*i_, 4, "s69", i_*1024)
                a.label("L_noz1s")
            elif l == "KV1":
                a("s_waitcnt vmcnt(0)")
                cnt_add(a, 77, 60, 58, 2)
                cnt_add(a, 93, 60, 58, 1)
            else: a(l)
    assert pos == 2048
    a("s_setprio 3")
    a("ds_write_b32 v59, v58 offset:96")
    a(f"s_mov_b32 s70, {f32(2.0**64)}")
    a(f"s_mov_b32 s71, {f32(2.0**-64)}")
    a(f"s_mov_b32 s91, {SPIN}")
    a.label("L_ag")
    a("s_waitcnt vmcnt(0)")
    a(f"v_or_b32 v{T}, v6, v7")
    a(f"v_cmp_gt_i32 vcc, 0, v{T}")
    a("s_sub_u32 s91, s91, 1")
    a("s_cbranch_scc1 L_agd")
    a("s_cmp_eq_u64 vcc, 0")
    a("s_cbranch_scc1 L_agd")
    for l in gl(): a(l)
    a("s_branch L_ag")
    a.label("L_agd")
    a("s_nop 4")
    a(f"v_max_f32 v{T}, v{O+8}, v{O+24}")
    a(f"v_min_f32 v{T+1}, v{O+8}, v{O+24}")
    a(f"v_add_f32 v{T+2}, v{O+8}, v{O+24}")
    a(f"v_cmp_gt_f32 s[72:73], s70, v{T}")
    a(f"v_cmp_lt_f32 s[74:75], s71, v{T+1}")
    a(f"v_cmp_o_f32 vcc, v{T+2}, v{T+2}")
    a("s_nop 1")
    a("s_and_b64 s[72:73], s[72:73], s[74:75]")
    a("s_and_b64 s[72:73], s[72:73], vcc")
    a("s_cmp_eq_u64 s[72:73], -1")
    a("s_cbranch_scc0 L_slow")
    a.label("L_afin")
    fine(a, "fin")
    for q in range(2):
        o = O + 16*q
        a(f"v_rcp_f32 v{T}, v{o+8}")
        a("s_nop 0")
        a(f"v_mul_f32 v{T}, v{T}, v{6+q}")
        for r in range(8): a(f"v_mul_f32 v{o+r}, v{o+r}, v{T}")
        for p in range(4): a(f"v_cvt_pk_bf16_f32 v{T+4+4*q+p}, v{o+2*p}, v{o+2*p+1}")
        store4(a, T + 4 + 4*q, 4, "s83" if q == 0 else "s84")
    g1_final(a)
    a.label("L_slow")
    a(f"v_mov_b32 v{T}, 0xff800000")
    a(f"v_mov_b32 v{T+1}, 0xff800000")
    a("s_mov_b32 s81, s79")
    a("s_mov_b32 s69, 64")
    a.label("L_s1")
    load4(a, KS, 4, "s81")
    a("s_waitcnt vmcnt(0)")
    mfma(a, S, KS, Q, "0")
    mfma(a, S + 16, KS, Q + 4, "0")
    a("s_nop 7"); a("s_nop 3")
    for q in range(2):
        for p in range(0, 16, 2): a(f"v_max3_f32 v{T+q}, v{T+q}, v{S+16*q+p}, v{S+16*q+p+1}")
    a("s_add_u32 s81, s81, 2048")
    a("s_sub_u32 s69, s69, 1")
    a("s_cmp_lg_u32 s69, 0")
    a("s_cbranch_scc1 L_s1")
    for q in range(2): halfsum(a, T + q, T + 2, "v_max_f32")
    for r in range(O, O + 32): a(f"v_mov_b32 v{r}, 0")
    a("s_mov_b32 s81, s79")
    a("s_mov_b32 s69, 64")
    a.label("L_s2")
    load4(a, KS, 4, "s81")
    a("s_mov_b64 exec, s[86:87]")
    load4(a, VS, 2, "s81")
    load4(a, VS + 4, 2, "s81", 512)
    a("s_mov_b64 exec, -1")
    a("s_waitcnt vmcnt(0)")
    mfma(a, S, KS, Q, "0")
    mfma(a, S + 16, KS, Q + 4, "0")
    a("s_nop 7"); a("s_nop 3")
    for q in range(2):
        for p in range(16): a(f"v_sub_f32 v{S+16*q+p}, v{S+16*q+p}, v{T+q}")
        for p in range(16): a(f"v_exp_f32 v{S+16*q+p}, v{S+16*q+p}")
    a("s_nop 1")
    for q in range(2):
        for s_ in range(2):
            a(f"v_smfmac_f32_32x32x32_bf16 {vr(O+16*q,16)}, {vr(VS+4*s_,4)}, {vr(S+16*q+8*s_,8)}, v3")
    a("s_add_u32 s81, s81, 2048")
    a("s_sub_u32 s69, s69, 1")
    a("s_cmp_lg_u32 s69, 0")
    a("s_cbranch_scc1 L_s2")
    a("s_nop 7"); a("s_nop 3")
    a("s_branch L_afin")

def main():
    ref = open(f"cdna_kernels/{NAME}.s.ref").read().split("\n")
    out = [l for l in ref if l.startswith(";") and "@launch" not in l]
    k = NAME + "_kernel"
    out.append("; @launch grid=(256,1,1) block=(512,1,1) lds=163840")
    out += ['.amdgcn_target "amdgcn-amd-amdhsa--gfx950"', ".text"]
    a = Asm(); gen(a)
    bad = check(a.lines, k)
    out += [f".globl {k}", ".p2align 8", f".type {k},@function", f"{k}:"] + a.lines
    out += ['.section .rodata,"a"', ".p2align 6", f".amdhsa_kernel {k}", "  .amdhsa_next_free_vgpr 256", "  .amdhsa_next_free_sgpr 102",
            "  .amdhsa_accum_offset 256", "  .amdhsa_group_segment_fixed_size 0", "  .amdhsa_kernarg_size 96",
            "  .amdhsa_user_sgpr_count 2", "  .amdhsa_user_sgpr_kernarg_segment_ptr 1", "  .amdhsa_system_sgpr_workgroup_id_x 1",
            "  .amdhsa_float_denorm_mode_32 3", ".end_amdhsa_kernel"]
    open(sys.argv[1], "w").write("\n".join(out) + "\n")
    if OPT["stamp"]: json.dump(NAMES, open(sys.argv[1] + ".json", "w"))
    print("hazards:", bad, "lines:", len(out))
main()
```

```python
import sys, struct, re, json
from asmlib import Asm, vr, sr, check

NAME = "gated_mix__softmax_full_mha__mixer_gmlp__prompt"
MB = 1 << 20
QF, KVF, Z1F, Z2F, AF, WF = 0, 2*MB, 6*MB, 10*MB, 14*MB, 20*MB
GG = 22*MB
STATS = 22*MB + 65536
FLG = 22*MB + 512*1024
CNT = FLG
CU, CO, CZ, CS, CW, CY, CQ = 128, 256, 384, 832, 896, 1024, 1536
WS_SIZE = 28*MB
def f32(x): return "0x%08x" % struct.unpack("<I", struct.pack("<f", x))[0]
LOG2E = 1.4426950408889634
QSCALE = 0.25 * LOG2E
GC1 = -2.0 * LOG2E * 0.7978845608028654
GC2 = GC1 * 0.044715
SPIN = 1 << 16
SLOT = 36864
GSCR = 148480
SCR = 114688

OPT = dict(stamp=False)
for a_ in sys.argv[2:]:
    k_, v_ = a_.split("=")
    OPT[k_] = eval(v_)

SLP = OPT.get("slp", 2)
CST = OPT.get("cst", 256)
WS, DBG, SA, SB_, SC, SD = 28, 32, 36, 40, 44, 48
def srd(a, d, p, size):
    a(f"s_mov_b32 s{d}, s{p}")
    a(f"s_mov_b32 s{d+1}, s{p+1}")
    a(f"s_mov_b32 s{d+2}, {size}")
    a(f"s_mov_b32 s{d+3}, 0x20000")
def S4(d): return f"s[{d}:{d+3}]"

FINE = dict(n=0, pool=[], names=[])
NAMES = {}
def fine_init(a, v):
    FINE["n"] = 0; FINE["names"] = []; FINE["v"] = v; FINE["pend"] = []; FINE["pool"] = []
    if OPT["stamp"]: a(f"v_mov_b32 v{v}, 0")
def fine_pool(pool): FINE["pool"] = list(pool)
def fine(a, name=""):
    if not OPT["stamp"]: return
    p = FINE["pool"][len(FINE["pend"])]
    a(f"{'s_memtime' if OPT.get('cyc') else 's_memrealtime'} s[{p}:{p+1}]")
    FINE["pend"].append(p); FINE["names"].append(name)
def fine_flush(a):
    if not OPT["stamp"]: return
    a("s_waitcnt lgkmcnt(0)")
    for p in FINE["pend"]:
        a(f"v_writelane_b32 v{FINE['v']}, s{p}, {FINE['n'] + 2}"); FINE["n"] += 1
    FINE["pend"] = []
def fine_dump(a, grp, t):
    if not OPT["stamp"]: return
    v = FINE["v"]
    a("s_memrealtime s[98:99]")
    a("s_memtime s[100:101]")
    fine_flush(a)
    if OPT.get("cyc"):
        a("s_mov_b32 s96, s94"); a("s_mov_b32 s98, s100"); NAMES["cyc"] = 1
    a("s_sub_u32 s100, s100, s94")
    a(f"v_writelane_b32 v{v}, s100, 0")
    a(f"v_writelane_b32 v{v}, s96, 1")
    a(f"v_writelane_b32 v{v}, s98, {FINE['n'] + 2}")
    NAMES[f"0,{grp}"] = ["start"] + FINE["names"] + ["end"]
    a("s_lshl_b32 s98, s2, 4")
    a("s_add_u32 s98, s98, s56")
    a("s_lshl_b32 s98, s98, 8")
    a(f"s_add_u32 s98, s98, {24*MB}")
    a(f"v_lshlrev_b32 v{t}, 2, v0")
    a(f"buffer_store_dword v{v}, v{t}, {S4(WS)}, s98 offen")
    if OPT.get("spin") and OPT["spin"][0] == grp:
        a(f"s_cmp_lg_u32 s2, {OPT.get('spinwg', 40)}")
        a("s_cbranch_scc1 L_end")
        a(f"v_readlane_b32 s60, v{v}, {1 + NAMES[f'0,{grp}'].index(OPT['spin'][1])}")
        a("s_mov_b32 s62, 200000")
        a.label("L_spin")
        a("s_memrealtime s[96:97]")
        a("s_waitcnt lgkmcnt(0)")
        a("s_sub_u32 s61, s96, s60")
        a("s_sub_u32 s62, s62, 1")
        a("s_cbranch_scc1 L_end")
        a("s_cmp_lt_u32 s61, 10000")
        a("s_cbranch_scc1 L_spin")

def mfma_s(d, A, B, c=None):
    cc = vr(d, 16) if c is None else (c if isinstance(c, str) else vr(c, 16))
    return f"v_mfma_f32_32x32x16_bf16 {vr(d,16)}, {vr(A,4)}, {vr(B,4)}, {cc}"
def mfma(a, d, A, B, c=None): a(mfma_s(d, A, B, c))
def store4(a, v, voff, soff, off=0):
    a(f"buffer_store_dwordx4 {vr(v,4)}, v{voff}, {S4(WS)}, {soff} offen offset:{off} sc1")
def load4(a, v, voff, soff, off=0):
    a(f"buffer_load_dwordx4 {vr(v,4)}, v{voff}, {S4(WS)}, {soff} offen offset:{off} sc1")

def swz_row_voffs(a, base, stride_shift, tmp=1):
    t, u = tmp, base + 3
    a(f"v_lshrrev_b32 v{t}, 4, v0")
    a(f"v_and_b32 v{u}, 7, v0")
    a(f"v_xor_b32 v{u}, v{u}, v{t}")
    a(f"v_lshrrev_b32 v{t}, 3, v0")
    a(f"v_lshlrev_b32 v{t}, {stride_shift}, v{t}")
    a(f"v_lshl_add_u32 v{base}, v{u}, 4, v{t}")
    st = 1 << stride_shift
    a(f"v_xor_b32 v{base+1}, 64, v{base}")
    a(f"v_add_u32 v{base+1}, {8*st - 1024}, v{base+1}")
    a(f"v_add_u32 v{base+2}, {16*st - 2048}, v{base}")
    a(f"v_add_u32 v{base+3}, {16*st - 2048}, v{base+1}")

def swz_read_addrs(a, base, sbase, tmp=1):
    t, u = tmp, base + 3
    a(f"v_bfe_u32 v{t}, v0, 1, 3")
    a(f"v_lshrrev_b32 v{u}, 5, v0")
    a(f"v_xor_b32 v{t}, v{t}, v{u}")
    a(f"v_lshlrev_b32 v{t}, 4, v{t}")
    a(f"v_and_b32 v{u}, 31, v0")
    a(f"v_lshl_add_u32 v{t}, v{u}, 7, v{t}")
    a(f"v_add_u32 v{base}, s{sbase}, v{t}")
    for ks in (1, 2, 3):
        a(f"v_xor_b32 v{base+ks}, {ks*32}, v{base}")

def tr_addr(a, d, hh_shift, row_shift, swz, add, tmp=1):
    a(f"v_lshrrev_b32 v{tmp}, 5, v0")
    a(f"v_lshlrev_b32 v{d}, {hh_shift}, v{tmp}")
    a(f"v_bfe_u32 v{tmp}, v0, 2, 2")
    a(f"v_lshl_add_u32 v{d}, v{tmp}, {row_shift}, v{d}")
    if swz:
        a(f"v_bfe_u32 v{tmp}, v0, 3, 1")
        a(f"v_lshl_add_u32 v{d}, v{tmp}, 6, v{d}")
    a(f"v_bfe_u32 v{tmp}, v0, 4, 1")
    a(f"v_lshl_add_u32 v{d}, v{tmp}, 5, v{d}")
    a(f"v_and_b32 v{tmp}, 3, v0")
    a(f"v_lshl_add_u32 v{d}, v{tmp}, 3, v{d}")
    if add: a(f"v_add_u32 v{d}, {add}, v{d}")

def gelu_list(x, t, C1, C2, n=16):
    if OPT.get("pk", 1):
        assert C2 == C1 + 1 and C1 % 2 == 0
        R = range(0, n, 2)
        L = [f"v_pk_mul_f32 {vr(t+p,2)}, {vr(x+p,2)}, {vr(x+p,2)}" for p in R]
        L += [f"v_pk_fma_f32 {vr(t+p,2)}, {vr(t+p,2)}, {vr(C1,2)}, {vr(C1,2)} op_sel:[0,1,0] op_sel_hi:[1,1,0]" for p in R]
        L += [f"v_pk_mul_f32 {vr(t+p,2)}, {vr(t+p,2)}, {vr(x+p,2)}" for p in R]
        L += [f"v_exp_f32 v{t+p}, v{t+p}" for p in range(n)]
        L += [f"v_pk_add_f32 {vr(t+p,2)}, {vr(t+p,2)}, 1.0 op_sel_hi:[1,0]" for p in R]
        L += [f"v_rcp_f32 v{t+p}, v{t+p}" for p in range(n)]
        L += [f"v_pk_mul_f32 {vr(x+p,2)}, {vr(x+p,2)}, {vr(t+p,2)}" for p in R]
        return L
    L = [f"v_mul_f32 v{t+p}, v{x+p}, v{x+p}" for p in range(n)]
    L += [f"v_fma_f32 v{t+p}, v{t+p}, v{C2}, v{C1}" for p in range(n)]
    L += [f"v_mul_f32 v{t+p}, v{t+p}, v{x+p}" for p in range(n)]
    L += [f"v_exp_f32 v{t+p}, v{t+p}" for p in range(n)]
    L += [f"v_add_f32 v{t+p}, 1.0, v{t+p}" for p in range(n)]
    L += [f"v_rcp_f32 v{t+p}, v{t+p}" for p in range(n)]
    L += [f"v_mul_f32 v{x+p}, v{x+p}, v{t+p}" for p in range(n)]
    return L

def halfsum(a, v, t, op="v_add_f32"):
    a(f"v_mov_b32 v{t}, v{v}")
    a("s_nop 1")
    a(f"v_permlane32_swap_b32 v{v}, v{t}")
    a(f"{op} v{v}, v{v}, v{t}")

def set_flag(a, sidx, vz, vone, word=False):
    if not word:
        a(f"s_lshl_b32 s{sidx}, s{sidx}, 2")
        a(f"s_add_u32 s{sidx}, s{sidx}, s57")
    a(f"s_lshl_b32 s{sidx}, s{sidx}, 2")
    a(f"s_add_u32 s{sidx}, s{sidx}, {FLG}")
    a("s_mov_b64 exec, 1")
    a(f"buffer_store_dword v{vone}, v{vz}, {S4(WS)}, s{sidx} offen sc1")
    a("s_mov_b64 exec, -1")

def cnt_add(a, sline, vl7, vone, reps):
    a(f"s_mul_i32 s{sline}, s{sline}, {CST}")
    a(f"s_add_u32 s{sline}, s{sline}, {CNT}")
    a(f"s_mov_b64 exec, {(1 << reps) - 1}")
    a(f"buffer_atomic_add v{vone}, v{vl7}, {S4(WS)}, s{sline} offen sc1")
    a("s_mov_b64 exec, -1")
def cnt_issue(a, voff, tmp, mask):
    a(f"s_mov_b64 exec, {mask}")
    a(f"v_mov_b32 v{tmp}, 0")
    a(f"buffer_atomic_add v{tmp}, v{voff}, {S4(WS)}, s90 offen sc0 sc1")
def cnt_poll(a, lbl, voff, tmp, mask, target, first_issued=False, sleep=0):
    a(f"s_mov_b32 s91, {SPIN}")
    if not first_issued: cnt_issue(a, voff, tmp, mask)
    a.label(lbl)
    a("s_waitcnt vmcnt(0)")
    a(f"v_cmp_gt_u32 vcc, {target}, v{tmp}")
    a("s_sub_u32 s91, s91, 1")
    a(f"s_cbranch_scc1 {lbl}d")
    a("s_cmp_eq_u64 vcc, 0")
    a(f"s_cbranch_scc1 {lbl}d")
    if sleep: a(f"s_sleep {sleep}")
    cnt_issue(a, voff, tmp, "vcc")
    a(f"s_branch {lbl}")
    a.label(lbl + "d")
    a("s_mov_b64 exec, -1")
def poll_issue(a, voff, tmp, n=1, srd_=None, soff="s90"):
    srd_ = WS if srd_ is None else srd_
    a(f"buffer_load_dword{'x%d' % n if n > 1 else ''} {vr(tmp, n)}, v{voff}, {S4(srd_)}, {soff} offen sc1")
def poll_flags(a, lbl, voff, tmp, n=1, srd_=None, soff="s90", first_issued=False, sleep=0, mask=None):
    issue = lambda: poll_issue(a, voff, tmp, n, srd_, soff)
    a(f"s_mov_b32 s91, {SPIN}")
    if not first_issued: issue()
    a.label(lbl)
    a("s_waitcnt vmcnt(0)")
    for i in range(1, n): a(f"v_min_u32 v{tmp}, v{tmp}, v{tmp+i}")
    a(f"v_cmp_eq_u32 vcc, 0, v{tmp}")
    a("s_sub_u32 s91, s91, 1")
    a(f"s_cbranch_scc1 {lbl}d")
    a("s_cmp_eq_u64 vcc, 0")
    a(f"s_cbranch_scc1 {lbl}d")
    if sleep: a(f"s_sleep {sleep}")
    if mask: a(f"s_and_b64 exec, vcc, {mask}")
    issue()
    a(f"s_branch {lbl}")
    a.label(lbl + "d")
    if mask: a("s_mov_b64 exec, -1")

def slot_of(g): return 1024 + ((g + 1) % 4) * SLOT
class Win:
    def __init__(self, regs, span): self.regs = regs; self.base = 0; self.span = span
    def at(self, base):
        L = []
        if base < self.base or base + self.span - self.base > 65536:
            L = [f"v_add_u32 v{r}, {(base - self.base) & 0xffffffff}, v{r}" for r in self.regs]
            self.base = base
        return L, base - self.base

def gen(a):
    a("s_cmp_ge_u32 s2, 256")
    a("s_cbranch_scc1 L_end")
    if OPT["stamp"]:
        a("s_memrealtime s[96:97]"); a("s_memtime s[94:95]")
    a("s_load_dwordx16 s[4:19], s[0:1], 0")
    a("s_load_dwordx8 s[20:27], s[0:1], 64")
    a("v_lshrrev_b32 v1, 6, v0")
    a("s_and_b32 s52, s2, 7")
    a("v_readfirstlane_b32 s56, v1")
    a("s_lshr_b32 s53, s2, 3")
    a("v_and_b32 v0, 63, v0")
    a("s_and_b32 s57, s56, 3")
    a("s_and_b32 s63, s53, 3")
    a("s_lshr_b32 s54, s52, 1")
    a("s_lshl_b32 s54, s54, 2")
    a("s_add_u32 s54, s54, s63")
    a("s_lshr_b32 s61, s53, 2")
    a("s_and_b32 s59, s52, 1")
    a("s_lshl_b32 s55, s59, 3")
    a("s_add_u32 s55, s55, s61")
    a("s_sub_u32 s62, s55, s59")
    rotm = OPT.get("rotm", 2)
    if rotm == 0:
        a("s_lshl_b32 s63, s63, 1")
        a("s_add_u32 s63, s63, s61")
    else:
        a("s_lshr_b32 s3, s61, 1")
        a("s_xor_b32 s63, s63, s3")
        a(f"s_and_b32 s63, s63, {rotm - 1}")
        a("s_lshl_b32 s59, s59, 2")
        a("s_add_u32 s63, s63, s59")
        a("s_and_b32 s59, s52, 6")
        a("s_add_u32 s63, s63, s59")
        a("s_and_b32 s59, s61, 1")
        a("s_lshl_b32 s59, s59, 1")
        a("s_add_u32 s63, s63, s59")
    a(f"s_and_b32 s63, s63, {0 if OPT.get('norot') else 7}")
    a("s_lshl_b32 s58, s54, 2")
    a("s_add_u32 s58, s58, s57")
    a("s_lshl_b32 s60, s57, 12")
    a(f"s_mov_b32 s90, {FLG}")
    a("s_cmp_lt_u32 s56, 4")
    a("s_cbranch_scc1 L_g1")
    g2_front(a)
    g2_spatial(a)
    g2_final(a)
    a.raw(".p2align 6")
    a.label("L_g1")
    g1_front(a)
    g1_att(a)
    a.label("L_end")
    a("s_endpgm")

XF = 128
def g2_front(a):
    X, WQ, WI, MISC = SA, SB_, SC, SD
    swz_row_voffs(a, 2, 10)
    a("v_lshrrev_b32 v1, 2, v0")
    a("v_mul_u32_u24 v10, 3072, v1")
    a("v_and_b32 v1, 4, v1")
    a("v_and_b32 v11, 7, v0")
    a("v_xor_b32 v11, v11, v1")
    a("v_lshlrev_b32 v11, 4, v11")
    a("v_lshrrev_b32 v1, 3, v0")
    a("v_mul_u32_u24 v6, 3072, v1")
    a("v_mul_u32_u24 v12, 3584, v1")
    a("v_add_u32 v6, v6, v11")
    a("v_add_u32 v12, v12, v11")
    a(f"v_add_u32 v7, {8*3072-2048}, v6")
    a(f"v_add_u32 v8, {1792-1024}, v12")
    a(f"v_add_u32 v9, {8*3584+1792-3072}, v12")
    a("v_and_b32 v1, 3, v0")
    a("v_lshl_add_u32 v10, v1, 4, v10")
    a("s_lshl_b32 s64, s58, 15")
    a(f"s_mul_i32 s65, s57, {16*3072}")
    a("s_lshl_b32 s59, s55, 6")
    a("s_add_u32 s66, s65, s59")
    a("s_add_u32 s66, s66, 2048")
    a("s_and_b32 s59, s55, 1")
    a("s_lshl_b32 s59, s59, 10")
    a("s_add_u32 s65, s65, s59")
    a("s_lshr_b32 s59, s55, 1")
    a("s_lshl_b32 s59, s59, 7")
    a("s_add_u32 s65, s65, s59")
    a(f"s_mul_i32 s67, s57, {16*3584}")
    a("s_lshl_b32 s68, s62, 7")
    a("s_add_u32 s67, s67, s68")
    a("s_lshl_b32 s69, s57, 10")
    a("s_waitcnt lgkmcnt(0)")
    srd(a, X, 4, 2048*1024)
    srd(a, WQ, 6, 512*3072)
    srd(a, WI, 12, 512*3584)
    a("s_cmp_eq_u32 s61, 7")
    a("s_cbranch_scc1 L_light")
    g2_pass1(a, False)
    g2_z(a)
    a("s_branch L_g2b")
    a.label("L_light")
    st = json.dumps(FINE); so = OPT["stamp"]; OPT["stamp"] = False
    g2_pass1(a, True)
    g2_light(a)
    OPT["stamp"] = so; FINE.update(json.loads(st))
    if so: a(f"v_mov_b32 v{FINE['v']}, 1")
    a.label("L_g2b")

def g2_pass1(a, light):
    X, WQ, WI, MISC = SA, SB_, SC, SD
    WFR, XG, ACC = 32, 48, 64
    def chunk_dma(c):
        slot = slot_of(c)
        P = [[f"s_add_u32 s70, s63, {c}", "s_and_b32 s70, s70, 7", "s_lshl_b32 s59, s70, 7", f"s_add_u32 m0, s60, {slot}", "s_add_u32 s59, s59, s64"] +
             [f"buffer_load_dwordx4 v{2+q}, {S4(X)}, s59 offen offset:{q*1024} lds" for q in range(2)],
             [f"buffer_load_dwordx4 v{2+q}, {S4(X)}, s59 offen offset:{q*1024} lds" for q in range(2, 4)] +
             [f"s_mul_i32 s71, s70, {64*3072}", f"s_add_u32 m0, s69, {slot + 32768}", "s_add_u32 s59, s71, s66",
              f"buffer_load_dwordx4 v10, {S4(WQ)}, s59 offen lds"],
             [f"s_add_u32 m0, s60, {slot + 16384}", "s_add_u32 s59, s71, s65"] +
             [f"buffer_load_dwordx4 v{6+q}, {S4(WQ)}, s59 offen offset:{q*2048} lds" for q in range(2)], []]
        if not light:
            P[3] = [f"s_mul_i32 s59, s70, {64*3584}", "s_add_u32 s59, s59, s67"] + \
                   [f"buffer_load_dwordx4 v{8+q}, {S4(WI)}, s59 offen offset:{q*2048+1024} lds" for q in range(2)]
        return P
    def z1_dma(g):
        P = [[f"s_add_u32 s70, s63, {4*(g-8)}", "s_add_u32 s70, s70, s57", "s_and_b32 s70, s70, 7", f"s_mul_i32 s70, s70, {64*3584}",
              "s_add_u32 s70, s70, s68", "s_lshl_b32 s71, s57, 13"], [], [], []]
        for h in range(2):
            P[2*h] += [f"s_add_u32 m0, s71, {slot_of(g) + h*4096}", f"s_add_u32 s59, s70, {h*32*3584}"]
            for q in range(4):
                P[2*h + q//2].append(f"buffer_load_dwordx4 v{12+q}, {S4(WI)}, s59 offen offset:{q*1024} lds")
        return P
    gsize = [7]*8 + [0, 0] if light else [9]*8 + [8, 8]
    def parts(g):
        if g < 8: return chunk_dma(g)
        return [[], [], [], []] if light or (g == 9 and OPT.get("g9", 0)) else z1_dma(g)
    def group(g):
        if light and g == 1:
            a(f"s_add_u32 m0, s69, {GSCR}")
            a("s_nop 0")
            a(f"buffer_load_dwordx4 v25, {S4(MISC)}, 0 offen lds")
        for p in parts(g):
            for l in p: a(l)
    group(0)
    srd(a, WS, 26, WS_SIZE)
    for q in (1, 2, 3): a(f"v_add_u32 v{12+q}, {q*(8*3584-1024)}, v12")
    swz_read_addrs(a, 16, 60)
    tr_addr(a, 20, 11, 7, True, 16384 + 1024)
    a("v_xor_b32 v21, 64, v20")
    if light:
        srd(a, MISC, 20, 1024)
        a("v_lshlrev_b32 v24, 4, v0")
        a("s_lshl_b32 s59, s63, 7")
        a("v_add_u32 v25, s59, v24")
        a("v_and_b32 v25, 1023, v25")
        a("v_lshrrev_b32 v1, 5, v0")
        a(f"s_add_u32 s59, s69, {GSCR}")
        a("v_lshl_add_u32 v28, v1, 4, s59")
    fine_init(a, 31); fine_pool([4, 6, 10, 12, 8, 26, 48, 50, 84, 86, 20]);
    sp_setup_w(a)
    if not light: g2_z_setup(a)
    fine(a, "setup")
    group(1)
    win = Win(range(16, 22), 16384)
    def reads(n):
        c, ks = n >> 2, n & 3
        pre, so = win.at(slot_of(c))
        R = [f"ds_read_b128 {vr(XG + 4*(n&1), 4)}, v{16+ks} offset:{so}"]
        if light:
            R.append(f"ds_read_b128 {vr(WFR + 8*(n&1), 4)}, v28 offset:{n*32}")
        else:
            for t in range(2):
                for v in range(2):
                    R.append(f"ds_read_b64_tr_b16 {vr(WFR + 8*(n&1) + 4*t + 2*v, 2)}, v{20+t} offset:{so + ks*4096 + v*512}")
        return pre, R
    def boundary(c):
        if OPT.get("diagsl") and c > 0: a(f"s_sleep {OPT['diagsl']}")
        a(f"s_waitcnt vmcnt({gsize[c+1]})")
        a("s_barrier")
        fine(a, f"b{c}")
    if OPT.get("p1p"): a(f"s_setprio {OPT['p1p']}")
    boundary(0)
    pre, R = reads(0)
    for l in pre + R: a(l)
    P = parts(2)
    for l in P.pop(0): a(l)
    for n in range(32):
        ks = n & 3
        M = lambda t: mfma(a, ACC + 16*t, WFR + 8*(n&1) + 4*t, XG + 4*(n&1), "0" if n == 0 else None)
        pre, R = reads(n + 1) if n < 31 else ([], [])
        a(f"s_waitcnt lgkmcnt({0 if light else 2})")
        M(0)
        if n == 31:
            if not light: a("s_waitcnt lgkmcnt(0)"); M(1)
            break
        if ks == 3:
            boundary((n >> 2) + 1)
            assert not P
            P = parts((n >> 2) + 3)
            if n >= 23 and OPT.get("zfast", 2) == 1: P = [P[0] + P[1], P[2] + P[3], [], []]
            if n >= OPT.get("zf0", 27) and OPT.get("zfast", 2) == 2:
                for p_ in P:
                    for l in p_: a(l)
                P = [[], [], [], []]
        nr = 3 if OPT.get("rd2", 1) else 5
        for l in pre + R[:nr]: a(l)
        if not light:
            a(f"s_waitcnt lgkmcnt({nr})")
            M(1)
        for l in R[nr:] + P.pop(0): a(l)
        touch(a, n) if n else None
    if OPT.get("p1p"): a("s_setprio 0")
    touch(a, 31)
    fine(a, "p1")

RSCR = 152576
def relayout_load(a):
    a("s_lshl_b32 s93, s2, 2")
    a("s_add_u32 s93, s93, s57")
    a("s_cmp_ge_u32 s93, 704")
    a("s_cbranch_scc1 L_norl")
    a("s_lshr_b32 s59, s93, 3")
    a("s_lshl_b32 s59, s59, 14")
    srd(a, SA, 8, 512*1024)
    a("s_cmp_lt_u32 s93, 256")
    a("s_cbranch_scc1 L_rwo")
    srd(a, SA, 18, 896*1024)
    a(f"s_sub_u32 s59, s59, {32*16384}")
    a.label("L_rwo")
    a("s_and_b32 s3, s93, 7")
    a("s_lshl_b32 s3, s3, 7")
    a("s_add_u32 s59, s59, s3")
    a("v_lshrrev_b32 v8, 3, v0")
    a("v_lshlrev_b32 v8, 6, v8")
    a("v_and_or_b32 v8, v0, 7, v8")
    a("v_lshlrev_b32 v8, 4, v8")
    a(f"s_add_u32 m0, s80, {RSCR}")
    a("s_nop 0")
    a(f"buffer_load_dwordx4 v8, {S4(SA)}, s59 offen lds")
    a(f"s_add_u32 s59, s59, {8192 - 1024}")
    a(f"buffer_load_dwordx4 v8, {S4(SA)}, s59 offen offset:1024 lds")
    a.label("L_norl")
    tr_addr(a, 119, 9, 7, False, RSCR, tmp=8)
    a("v_add_u32 v119, s80, v119")
def relayout_read(a, d):
    for nt in range(2):
        for v in range(2):
            a(f"ds_read_b64_tr_b16 {vr(d + nt*4 + v*2, 2)}, v119 offset:{v*1024 + nt*64}")
def relayout_offsets(a):
    a("s_and_b32 s3, s93, 7")
    a(f"s_mul_i32 s3, s3, {2*88*1024}")
    a("s_lshr_b32 s88, s93, 3")
    a("s_lshl_b32 s88, s88, 10")
    a("s_add_u32 s88, s88, s3")
    a(f"s_add_u32 s88, s88, {WF}")
    a("s_cmp_ge_u32 s93, 704")
    a(f"s_cselect_b32 s88, {WS_SIZE}, s88")
    a(f"s_add_u32 s89, s88, {88*1024}")
    a("s_and_b32 s3, s93, 7")
    a("s_lshl_b32 s3, s3, 4")
    a("s_lshr_b32 s93, s93, 6")
    a("s_add_u32 s93, s93, s3")
    a(f"s_add_u32 s93, s93, {CW}")

C1, C2, SUM, SQ = 24, 25, 26, 28
def g2_z_setup(a):
    a(f"v_mov_b32 v{C1}, {f32(GC1)}")
    a(f"v_mov_b32 v{C2}, {f32(GC2)}")
    for r in range(SUM, SUM + 4): a(f"v_mov_b32 v{r}, 0")
    a("v_lshlrev_b32 v96, 4, v0")
    a("v_and_b32 v1, 31, v0")
    a("v_lshlrev_b32 v97, 3, v1")
    a("v_lshrrev_b32 v98, 5, v0")
    a("v_mul_u32_u24 v98, 7168, v98")
    a("v_add_u32 v98, v98, v97")
    a("v_bfe_u32 v1, v0, 1, 3")
    a("v_lshrrev_b32 v99, 5, v0")
    a("v_xor_b32 v1, v1, v99")
    a("v_and_b32 v99, 31, v0")
    a("v_lshlrev_b32 v99, 6, v99")
    a("v_lshl_add_u32 v99, v1, 3, v99")
    a(f"s_add_u32 s59, s60, {SCR}")
    a("v_add_u32 v99, s59, v99")
    for i in (1, 2, 3): a(f"v_xor_b32 v{99+i}, {16*i}, v99")
    tr_addr(a, 103, 9, 6, False, 0)
    a("v_bfe_u32 v1, v0, 3, 1")
    a("v_lshrrev_b32 v104, 5, v0")
    a("v_lshl_or_b32 v1, v104, 2, v1")
    a("v_lshlrev_b32 v1, 3, v1")
    a("v_xor_b32 v103, v103, v1")
    a("v_add_u32 v103, s59, v103")
    a("v_xor_b32 v104, 16, v103")
    a(f"v_mul_u32_u24 v105, {CST}, v0")
    a("v_mov_b32 v106, 1")
    a(f"s_mul_i32 s59, s58, {CST}")
    a(f"s_add_u32 s59, s59, {CNT - FLG + CS*CST}")
    a("v_mov_b32 v107, s59")
    a("s_mul_i32 s79, s54, 14336")
    a("s_lshl_b32 s59, s57, 8")
    a("s_add_u32 s79, s79, s59")
    a(f"s_add_u32 s79, s79, {STATS}")
    a("s_add_u32 s80, s79, 4096")
    a("s_lshl_b32 s59, s62, 10")
    a("s_add_u32 s81, s79, s59")
    a("s_lshl_b32 s82, s62, 18")
    a("s_lshl_b32 s59, s58, 11")
    a("s_add_u32 s82, s82, s59")
    a(f"s_add_u32 s82, s82, {Z2F}")
    a("s_add_u32 s83, s82, 131072")
    a("s_lshl_b32 s78, s62, 2")
    a("s_lshr_b32 s59, s54, 2")
    a("s_add_u32 s78, s78, s59")
    a("s_lshl_b32 s78, s78, 3")
    a(f"s_add_u32 s78, s78, {CZ}")

def touch(a, when):
    if OPT.get("tch", 0) == when:
        a("s_mov_b64 exec, 0xffff")
        a(f"buffer_load_dword v127, v{WV+4}, {S4(WSP)}, s92 offen")
        a("s_mov_b64 exec, -1")

def g2_z(a):
    WFR, ACC, T = 32, 64, 48
    fine_flush(a)
    a("s_load_dwordx16 s[36:51], s[24:25], 0")
    a("s_lshl_b32 s59, s57, 2")
    a("v_mov_b32 v22, s59")
    a("v_mov_b32 v23, 0")
    a("s_nop 7")
    for ti in range(2):
        x = ACC + 16*ti
        for i, l in enumerate(gelu_list(x, T, C1, C2)):
            a(l)
        for p in range(0, 16, 2):
            if OPT.get("pk", 1):
                a(f"v_pk_add_f32 {vr(SUM,2)}, {vr(SUM,2)}, {vr(x+p,2)}")
                a(f"v_pk_fma_f32 {vr(SQ,2)}, {vr(x+p,2)}, {vr(x+p,2)}, {vr(SQ,2)}")
            else:
                for h in range(2):
                    a(f"v_add_f32 v{SUM+h}, v{SUM+h}, v{x+p+h}")
                    a(f"v_fmac_f32 v{SQ+h}, v{x+p+h}, v{x+p+h}")
    a(f"s_waitcnt vmcnt({1 if OPT.get('tch', 0) >= 27 else 0})")
    a("ds_write_b32 v22, v106 offset:176")
    a(f"v_add_f32 v{SUM}, v{SUM}, v{SUM+1}")
    a(f"v_add_f32 v{SUM+1}, v{SQ}, v{SQ+1}")
    halfsum(a, SUM, T)
    halfsum(a, SUM+1, T+1)
    a(f"v_and_b32 v{SUM+1}, 0x7fffffff, v{SUM+1}")
    a("s_waitcnt lgkmcnt(0)")
    for r in range(38, 52, 2): a(f"s_and_b64 s[36:37], s[36:37], s[{r}:{r+1}]")
    a("s_and_b32 s36, s36, s37")
    a("s_cbranch_scc1 L_clr2d")
    srd(a, SA, 24, 256)
    a(f"v_and_b32 v{T}, 15, v0")
    a(f"v_lshlrev_b32 v{T}, 2, v{T}")
    poll_flags(a, "L_clr2", T, T + 1, srd_=SA, soff="0")
    a(f"buffer_store_dwordx2 {vr(SUM,2)}, v97, {S4(WS)}, s81 offen sc1")
    a("s_mov_b64 exec, 1")
    a(f"buffer_atomic_add v106, v107, {S4(WS)}, s90 offen sc1")
    a("s_mov_b64 exec, -1")
    fine(a, "g2")
    a("s_setprio 2")
    lds_poll(a, "L_bz1", 23, 176, T)
    lds_poll(a, "L_bz2", 23, 192, T)
    if OPT.get("w0", 0) == 0:
        for g in wdma(0, WV):
            for m in g: a(m)
    sp_setup_a(a)
    S = 112
    def st_try():
        for i in range(7):
            a(f"buffer_load_dwordx2 {vr(S+2*i,2)}, v98, {S4(WS)}, {'s79' if i < 4 else 's80'} offen offset:{(i%4)*1024} sc1")
        a("s_waitcnt vmcnt(0)")
        a(f"v_or3_b32 v{T}, v{S+1}, v{S+3}, v{S+5}")
        a(f"v_or3_b32 v{T}, v{T}, v{S+7}, v{S+9}")
        a(f"v_or3_b32 v{T}, v{T}, v{S+11}, v{S+13}")
        a(f"v_cmp_gt_i32 vcc, 0, v{T}")
    if OPT.get("hint", 1) == 0:
        st_try()
        a("s_nop 0")
        a("s_cmp_eq_u64 vcc, 0")
        a("s_cbranch_scc1 L_stpd")
    cnt_poll(a, "L_spr", 107, S, 1, 14, sleep=SLP)
    a(f"s_mov_b32 s91, {SPIN}")
    a.label("L_stp")
    st_try()
    a("s_sub_u32 s91, s91, 1")
    a("s_cbranch_scc1 L_stpd")
    a("s_cmp_lg_u64 vcc, 0")
    a("s_cbranch_scc1 L_stp")
    a.label("L_stpd")
    fine(a, "stat")
    if OPT.get("w0", 0) == 3:
        for g in wdma(0):
            for m in g: a(m)
    for i in range(1, 7):
        a(f"v_add_f32 v{S}, v{S}, v{S+2*i}")
        a(f"v_add_f32 v{S+1}, v{S+1}, v{S+2*i+1}")
    halfsum(a, S, T)
    halfsum(a, S+1, T+1)
    a(f"v_mul_f32 v{S}, {f32(1.0/896)}, v{S}")
    a(f"v_mul_f32 v{S+1}, {f32(1.0/896)}, v{S+1}")
    a(f"v_fma_f32 v{S+1}, -v{S}, v{S}, v{S+1}")
    a(f"v_max_f32 v{S+1}, 0, v{S+1}")
    a(f"v_add_f32 v{S+1}, {f32(1e-5)}, v{S+1}")
    a(f"v_rsq_f32 v{S+2}, v{S+1}")
    a("s_nop 0")
    a(f"v_mul_f32 v{S+3}, -v{S}, v{S+2}")
    for ti in range(2):
        x = ACC + 16*ti
        for p in range(16): a(f"v_fma_f32 v{x+p}, v{x+p}, v{S+2}, v{S+3}")
        o = T + 8*ti
        for p in range(8): a(f"v_cvt_pk_bf16_f32 v{o+p}, v{x+2*p}, v{x+2*p+1}")
        for i in range(4): a(f"ds_write_b64 v{99+i}, {vr(o+2*i,2)} offset:{ti*2048}")
    a("s_waitcnt lgkmcnt(0)")
    for ti in range(2):
        for k in range(2):
            for v in range(2):
                a(f"ds_read_b64_tr_b16 {vr(WFR + ti*8 + k*4 + v*2, 2)}, v{103+v} offset:{ti*2048 + k*1024 + v*256}")
    for ti in range(2):
        for k in range(2):
            a(f"s_waitcnt lgkmcnt({6 - 2*(ti*2+k)})")
            store4(a, WFR + ti*8 + k*4, 96, "s82" if ti == 0 else "s83", k*1024)
    fine(a, "ln")
    a("s_mov_b32 s70, s78")
    fine_flush(a)
    sp_setup_b(a)
    a("s_waitcnt vmcnt(0)")
    cnt_add(a, 70, 105, 106, 8)
    fine(a, "fz")

KV0 = 16
def kv_batch(b, v, sm=92, sg=71, sr_=58):
    return [[f"s_add_u32 m0, s{sm}, {n*8192}", f"s_add_u32 s59, s{sr_}, {n*8192}", "s_and_b32 s59, s59, 0x1ffff", f"s_add_u32 s59, s59, s{sg}",
             f"buffer_load_dwordx4 v{v}, {S4(WS)}, s59 offen sc1 lds",
             f"buffer_load_dwordx4 v{v}, {S4(WS)}, s59 offen offset:1024 sc1 lds"] for n in range(4*b, 4*b + 4)]

def g2_light(a):
    a("v_lshlrev_b32 v96, 4, v0")
    a("s_nop 7"); a("s_nop 2")
    a(f"v_mul_f32 v4, {f32(-LOG2E)}, v64")
    a("v_exp_f32 v4, v4")
    a("v_and_b32 v5, 31, v0")
    a("v_add_f32 v4, 1.0, v4")
    a("v_rcp_f32 v4, v4")
    a("v_lshlrev_b32 v5, 2, v5")
    a("v_and_b32 v4, 0x7fffffff, v4")
    a("s_lshl_b32 s59, s57, 2")
    a("v_mov_b32 v22, s59")
    a("v_mov_b32 v23, 0")
    a("v_mov_b32 v24, 1")
    a("ds_write_b32 v22, v24 offset:176")
    a("s_setprio 2")
    lds_poll(a, "L_bz3", 23, 176, 48)
    lds_poll(a, "L_bz4", 23, 192, 48)
    a("s_bitcmp1_b32 s52, 0")
    a("s_cbranch_scc1 L_nog")
    a("s_lshl_b32 s59, s58, 7")
    a(f"s_add_u32 s59, s59, {GG}")
    a(f"buffer_store_dword v4, v5, {S4(WS)}, s59 offen sc1")
    a.label("L_nog")
    if OPT.get("w0", 0) != 1:
        for g in wdma(0, WV):
            for m in g: a(m)
    sp_setup_a(a)
    sp_setup_b(a)
    a("s_waitcnt vmcnt(0)")

TILES = [(0, 0), (0, 1), (0, 2), (0, 3), (1, 0), (1, 1), (1, 2)]
def lds_poll(a, lbl, vz, off, t):
    a(f"s_mov_b32 s91, {SPIN}")
    a.label(lbl)
    a(f"ds_read_b128 {vr(t,4)}, v{vz} offset:{off}")
    a("s_waitcnt lgkmcnt(0)")
    a(f"v_and_b32 v{t}, v{t}, v{t+1}")
    a(f"v_and_b32 v{t+2}, v{t+2}, v{t+3}")
    a(f"v_and_b32 v{t}, v{t}, v{t+2}")
    a("s_sub_u32 s91, s91, 1")
    a(f"v_readfirstlane_b32 s3, v{t}")
    a(f"s_cbranch_scc1 {lbl}d")
    a("s_cmp_lg_u32 s3, 0")
    a(f"s_cbranch_scc1 {lbl}d")
    a("s_sleep 2")
    a(f"s_branch {lbl}")
    a.label(lbl + "d")

WV = 107 + 1
WSP = DBG
def sp_setup_w(a):
    a("s_lshr_b32 s76, s52, 1")
    a("s_lshl_b32 s76, s76, 3")
    a("s_and_b32 s59, s53, 7")
    a("s_add_u32 s76, s76, s59")
    a("s_and_b32 s77, s52, 1")
    a("s_lshl_b32 s77, s77, 2")
    a("s_lshr_b32 s59, s53, 3")
    a("s_add_u32 s77, s77, s59")
    a("s_lshl_b32 s93, s59, 1")
    if OPT.get("srot", 0) == 1:
        a("s_and_b32 s59, s52, 1")
        a("s_add_u32 s93, s93, s59")
    if OPT.get("srot", 0) == 0: a("s_mov_b32 s93, 0")
    if OPT.get("srot", 0) == 3: a("s_add_u32 s93, s93, s53")
    if OPT.get("srot", 0) >= 4: a(f"s_and_b32 s93, s53, {[7, 6, 4][OPT['srot'] - 4]}")
    a("s_and_b32 s59, s77, 1")
    a("s_lshl_b32 s74, s76, 1")
    a("s_add_u32 s74, s74, s59")
    a("s_xor_b32 s75, s74, 1")
    a("s_lshl_b32 s59, s57, 10")
    for i in range(2):
        a(f"s_lshl_b32 s{74+i}, s{74+i}, 17")
        a(f"s_add_u32 s{74+i}, s{74+i}, s59")
    a("s_lshl_b32 s72, s57, 13")
    a("s_add_u32 s72, s72, 0x20000")
    a("s_add_u32 s73, s72, 4096")
    srd(a, WSP, 14, 2048*4096)
    swz_row_voffs(a, WV, 12)
    a(f"v_and_b32 v{WV+4}, 7, v0")
    a(f"v_lshlrev_b32 v{WV+4}, 12, v{WV+4}")
    a("v_bfe_u32 v1, v0, 3, 1")
    a(f"v_lshl_add_u32 v{WV+4}, v1, 7, v{WV+4}")
    a("s_lshl_b32 s92, s76, 3")
    a("s_add_u32 s92, s92, s77")
    a("s_lshl_b32 s92, s92, 15")
    a("s_add_u32 s92, s92, s59")
def wdma(st, v=2, ts=(0, 1)):
    P = []
    for t in ts:
        pre = [f"s_add_u32 s3, s93, {st}", "s_and_b32 s3, s3, 7", "s_lshl_b32 s3, s3, 7"]
        pre += [f"s_mov_b32 m0, s{72+t}", f"s_add_u32 s59, s3, s{74+t}"]
        for q in range(4):
            P.append(pre + [f"buffer_load_dwordx4 v{v+q}, {S4(WSP)}, s59 offen offset:{q*1024} lds"]); pre = []
    return P

def sp_setup_a(a):
    a("s_mov_b32 s54, s76")
    a("s_mov_b32 s55, s77")
    a("s_and_b32 s58, s55, 1")
    a("s_lshl_b32 s60, s54, 1")
    a("s_add_u32 s60, s60, s58")
    a("s_xor_b32 s61, s60, 1")
    a("s_lshr_b32 s59, s55, 1")
    a("s_mul_i32 s59, s59, 7")
    a("s_add_u32 s65, s59, 3")
    a("s_lshl_b32 s62, s58, 2")
    a("s_add_u32 s62, s62, s59")
    a("s_add_u32 s63, s62, 1")
    a("s_add_u32 s64, s62, 2")
    a("s_lshl_b32 s59, s57, 15")
    a(f"s_add_u32 s59, s59, {Z2F}")
    for i in range(4):
        a(f"s_lshl_b32 s{66+i}, s{62+i}, 17")
        a(f"s_add_u32 s{66+i}, s{66+i}, s59")
    srd(a, SB_, 16, 4096)
    a("v_lshlrev_b32 v1, 4, v0")
    for q in range(4): a(f"v_mov_b32 v{2+q}, v{WV+q}")
    swz_read_addrs(a, 6, 72, tmp=10)
    a("v_mov_b32 v14, 0")
    a("v_mov_b32 v15, 1")
    a("s_lshl_b32 s59, s57, 2")
    a("s_add_u32 s59, s59, 32")
    a("v_mov_b32 v13, s59")
    a("v_lshrrev_b32 v10, 4, v0")
    a("s_lshr_b32 s59, s62, 1")
    a("v_mov_b32 v18, s59")
    a("s_lshr_b32 s59, s64, 1")
    a("v_mov_b32 v16, s59")
    a("v_cmp_eq_u32 vcc, 1, v10")
    a("s_lshr_b32 s59, s65, 1")
    a("v_mov_b32 v17, s59")
    a("v_cndmask_b32 v18, v18, v16, vcc")
    a("v_cmp_eq_u32 vcc, 2, v10")
    a("s_lshl_b32 s59, s57, 3")
    a("s_and_b32 s3, s53, 7")
    a("v_cndmask_b32 v18, v18, v17, vcc")
    a("s_add_u32 s59, s59, s3")
    a("v_lshl_add_u32 v10, v18, 5, s59")
    a(f"v_mul_u32_u24 v10, {CST}, v10")
    a(f"v_add_u32 v10, {CNT - FLG + CZ*CST}, v10")
    a("v_and_b32 v16, 3, v0")
    a("s_lshr_b32 s59, s54, 1")
    a(f"s_add_u32 s59, s59, {CY}")
    a("v_lshl_add_u32 v12, v18, 4, s59")
    out_ids(a, 38, 39)
    a("s_lshl_b32 s59, s39, 4")
    a(f"s_add_u32 s59, s59, {CW - 48}")
    a("v_cmp_lt_u32 vcc, 47, v0")
    a("v_add_u32 v17, s59, v0")
    a("s_nop 0")
    a("v_cndmask_b32 v12, v12, v17, vcc")
    a(f"v_mul_u32_u24 v12, {CST}, v12")
    a("s_lshl_b32 s48, s39, 1")
    a("s_and_b32 s59, s57, 1")
    a("s_add_u32 s48, s48, s59")
    a("s_xor_b32 s49, s48, 1")
    a(f"s_mul_i32 s59, s57, {14*1024}")
    a(f"s_add_u32 s59, s59, {WF + 32*1024}")
    for i in range(2):
        a(f"s_mul_i32 s{48+i}, s{48+i}, {88*1024}")
        a(f"s_add_u32 s{48+i}, s{48+i}, s59")
def sp_setup_b(a):
    for n, (t, f) in enumerate(TILES):
        a(f"s_mul_i32 s59, s{60+t}, 28")
        a(f"s_add_u32 s59, s59, s{62+f}")
        a(f"s_lshl_b32 s59, s59, 11")
        a(f"s_add_u32 s{76+n}, s59, {Z1F}")
        a(f"s_mul_i32 s59, s{60+t}, 44")
        a(f"s_add_u32 s59, s59, s{62+f}")
        a(f"s_lshl_b32 s59, s59, 11")
        a(f"s_add_u32 s{83+n}, s59, {AF + 32*1024}")
    a("s_lshl_b32 s59, s52, 2")
    a("s_lshr_b32 s71, s53, 3")
    a("s_add_u32 s59, s59, s71")
    a("s_lshl_b32 s71, s59, 17")
    a("s_lshl_b32 s92, s57, 11")
    a("s_add_u32 s71, s71, s92")
    a(f"s_add_u32 s71, s71, {KVF}")
    a(f"s_and_b32 s58, s53, {7 if OPT.get('krot', 0) else 0}")
    a("s_lshl_b32 s58, s58, 14")

WUREG = [16, 20, 24, 28] + [48 + 16*ks + 4*f for f in range(4) for ks in range(4)] + list(range(224, 256, 4))
def g2_spatial(a):
    BSP = SB_
    WFR, ZS, ACC, T = 16, 48, 112, 224
    FV = 11
    if OPT["stamp"]:
        fine_flush(a); a(f"v_mov_b32 v{FV}, v{FINE['v']}"); FINE["v"] = FV
        fine_pool([4, 6, 8, 10, 12, 14, 16, 18, 20, 24, 26])
    def zbase(st):
        return [f"s_add_u32 s59, s93, {st}", "s_and_b32 s59, s59, 7", "s_lshl_b32 s59, s59, 12"] + \
               [f"s_add_u32 s{44+i}, s59, s{66+i}" for i in range(4)]
    zl = lambda ks, f: f"buffer_load_dwordx4 {vr(ZS + 16*ks + 4*f, 4)}, v1, {S4(WS)}, s{44+f} offen offset:{ks*1024} sc1"
    wset = lambda st: WFR if st % 2 == 0 else T
    def wread(st, ts=(0, 1)): return [f"ds_read_b128 {vr(wset(st) + 16*t + 4*ks, 4)}, v{6+ks} offset:{t*4096}" for ks in range(4) for t in ts]
    emit = lambda P: [a(l) for p in P for l in p]
    a("ds_write_b32 v13, v15 offset:128")
    if OPT.get("w0", 0) == 1:
        emit(wdma(0))
        a("s_waitcnt vmcnt(0)")
    for l in wread(0): a(l)
    lds_poll(a, "L_sc1", 14, OPT.get("sc1", 144), 224)
    emit(wdma(1))
    emit(kv_batch(1, 1))
    a("s_mov_b32 s50, 0x10001"); a("s_mov_b32 s51, 1")
    cnt_issue(a, 10, 48, "s[50:51]")
    a("s_waitcnt vmcnt(0)")
    a("ds_write_b32 v13, v15")
    fine(a, "kvl")
    cnt_poll(a, "L_pz", 10, 48, None, 16, first_issued=True, sleep=SLP)
    fine(a, "pz")
    for l in zbase(0): a(l)
    log = []
    for f in range(2):
        for ks in range(4): a(zl(ks, f)); log.append(("z", 0, ks, f))
    a("v_mov_b32 v10, 0")
    lds_poll(a, "L_sc2", 14, 160, 224)
    a("s_setprio 0")
    for f in range(2, 4):
        for ks in range(4): a(zl(ks, f)); log.append(("z", 0, ks, f))
    def wait_for(tag):
        idx = max(i for i, t in enumerate(log) if t == tag)
        a(f"s_waitcnt vmcnt({len(log) - 1 - idx})")
    def mm(st, f, ks):
        wait_for(("z", st, ks, f))
        for t in range(2 if f < 3 else 1):
            mfma(a, ACC + 16*TILES.index((t, f)), ZS + 16*ks + 4*f, wset(st) + 16*t + 4*ks, "0" if st + ks == 0 else None)
    kvq = kv_batch(2, 1) + kv_batch(3, 1)
    log[:0] = [("w", 1, 0), ("w", 1, 1)]
    for st in range(7):
        if st % 2 == 0: fine(a, f"s{st}")
        for l in zbase(st + 1): a(l)
        extra = []
        for f in range(4):
            for ks in range(4):
                j = 4*f + ks
                if j in (2, 8):
                    a("s_waitcnt lgkmcnt(0)")
                    if st < 6: extra = [(g, ("w", st + 2, j // 8), 1) for g in wdma(st + 2, ts=(j // 8,))]
                if j in (0, 6) and kvq: extra = [(kvq.pop(0), ("kv",), 2) for _ in range(2 if st == 0 else 1)]
                mm(st, f, ks)
                a(zl(ks, f)); log.append(("z", st + 1, ks, f))
                if st == 6 and j == 0:
                    a("s_mov_b32 s51, 0x07ff0001")
                    a("s_mov_b64 exec, s[50:51]")
                    a(f"buffer_atomic_add v10, v12, {S4(WS)}, s90 offen sc0 sc1"); log.append(("f",))
                    a("s_mov_b64 exec, -1")
                if extra:
                    g, tag, cnt = extra.pop(0)
                    for l in g: a(l)
                    log += [tag]*cnt
                if j in (0, 6):
                    wait_for(("w", st + 1, j // 6))
                    for l in wread(st + 1, (j // 6,)): a(l)
                    if j == 6 and st in (1, 3): a(f"ds_write_b32 v13, v15 offset:{8*(st+1)}")
                if st == 6 and j == 11:
                    wait_for(("f",))
                    a("s_setprio 2")
                    a("s_mov_b64 exec, s[50:51]")
                    a("v_cmp_gt_u32 vcc, 8, v10")
                    a("s_nop 1")
                    a("s_cmp_eq_u64 vcc, 0")
                    a("s_cbranch_scc1 L_pyd")
                    cnt_poll(a, "L_py", 12, 10, "vcc", 8, sleep=8)
                    a("v_and_b32 v2, 31, v0")
                    a("v_lshlrev_b32 v4, 2, v2")
                    a("v_lshlrev_b32 v2, 1, v2")
                    a("v_add_u32 v3, 0x10000, v1")
                    a("v_add_u32 v5, -16, v13")
                    lds_poll(a, "L_pa", 14, 0, 6)
                    a("s_setprio 0")
                    for t in range(2):
                        a(f"s_lshl_b32 s59, s{60+t}, 6")
                        a(f"buffer_load_ushort v{6+t}, v2, {S4(BSP)}, s59 offen")
                        a(f"s_lshl_b32 s{74+t}, s{60+t}, 7")
                        a(f"s_add_u32 s{74+t}, s{74+t}, {GG}")
                        a(f"buffer_load_dword v{8+t}, v4, {S4(WS)}, s{74+t} offen sc1")
                    log += [("b",)]*4
    a("s_lshl_b32 s66, s39, 1")
    a("s_lshr_b32 s59, s57, 1")
    a("s_add_u32 s66, s66, s59")
    a(f"s_mul_i32 s66, s66, {88*1024}")
    a("s_and_b32 s59, s57, 1")
    a("s_lshl_b32 s59, s59, 14")
    a("s_add_u32 s66, s66, s59")
    a(f"s_add_u32 s66, s66, {WF}")
    Z1R, B_, G_ = 32, 6, 8
    def gl():
        for t in range(2): a(f"buffer_load_dword v{G_+t}, v4, {S4(WS)}, s{74+t} offen sc1")
    owner = [0,0,0,0,1,1,1,1,2,2,2,3,3,3]
    def slot(n, src):
        si = src if src < owner[n] else src - 1
        ad = 2048 + (n*3 + si)*2048
        return (1, ad) if ad + 1024 < 65536 else (3, ad - 65536)
    st_ = json.dumps(FINE); log0 = list(log)
    for w in range(4):
        FINE.update(json.loads(st_)); log[:] = log0
        if w < 3:
            a(f"s_cmp_lg_u32 s57, {w}")
            a(f"s_cbranch_scc1 L_w{w+1}")
        mine = [n for n in range(14) if owner[n] == w]
        free = [ACC + 8*n for n in range(14) if owner[n] != w]
        U, CC = free[6], free[7]
        def writes(f):
            L = []
            for t in range(2 if f < 3 else 1):
                for n in (2*TILES.index((t, f)), 2*TILES.index((t, f)) + 1):
                    if owner[n] != w:
                        r, ad = slot(n, w)
                        L += [f"ds_write_b128 v{r}, {vr(ACC+8*n+4*i,4)} offset:{ad + 1024*i}" for i in range(2)]
            return L
        wn = [0]
        def wu():
            k = wn[0]; wn[0] += 1
            load4(a, WUREG[k], 1, f"s{48 + (k & 1)}", ((k >> 1) % 4)*1024); log.append(("u",))
            if k % 8 == 7:
                for i in range(2): a(f"s_add_u32 s{48+i}, s{48+i}, 4096")
        pend = []
        for f in range(4):
            for ks in range(4):
                mm(7, f, ks)
                if f == 0 and ks < len(mine):
                    load4(a, Z1R + 4*ks, 1, f"s{76 + (mine[ks]>>1)}", (mine[ks]&1)*1024); log.append(("y",))
                wu()
                if f == 1: wu()
                if ks == 1 and f > 0:
                    pend = writes(f - 1)
                    if f > 1: a("s_nop 3" if f == 2 else "s_nop 5")
                for _ in range(3):
                    if pend: a(pend.pop(0))
        fine(a, "mm")
        a("s_setprio 2")
        while wn[0] < 28: wu()
        a("s_nop 1")
        for l in writes(3): a(l)
        a("s_waitcnt lgkmcnt(0)")
        a("ds_write_b32 v5, v15")
        for g in range(2):
            a(f"s_add_u32 m0, s72, {g*4096}")
            a("s_nop 0")
            for i in range(4): a(f"buffer_load_dwordx4 v1, {S4(WS)}, s66 offen offset:{i*1024} sc1 lds")
            a("s_add_u32 s66, s66, 4096")
        log += [("o",)]*8
        wait_for(("y",))
        a(f"s_mov_b32 s91, {SPIN}")
        a.label(f"L_gp{w}")
        a(f"v_or_b32 v{U}, v{G_}, v{G_+1}")
        a(f"v_cmp_gt_i32 vcc, 0, v{U}")
        a("s_sub_u32 s91, s91, 1")
        a(f"s_cbranch_scc1 L_gp{w}d")
        a("s_cmp_eq_u64 vcc, 0")
        a(f"s_cbranch_scc1 L_gp{w}d")
        gl()
        a("s_waitcnt vmcnt(0)")
        a(f"s_branch L_gp{w}")
        a.label(f"L_gp{w}d")
        for t in range(2):
            a(f"v_sub_f32 v{CC+2*t}, 1.0, v{G_+t}")
            a(f"v_lshlrev_b32 v{B_+t}, 16, v{B_+t}")
            a(f"v_mul_f32 v{CC+1+2*t}, v{B_+t}, v{CC+2*t}")
        lds_poll(a, f"L_pb{w}", 14, 16, 6)
        fine(a, "pb")
        def rdp(i):
            n = mine[i]
            for si, src in enumerate([s_ for s_ in range(4) if s_ != w]):
                r, ad = slot(n, src)
                a(f"ds_read_b128 {vr(free[3*(i&1) + si], 4)}, v{r} offset:{ad}")
                a(f"ds_read_b128 {vr(free[3*(i&1) + si] + 4, 4)}, v{r} offset:{ad+1024}")
        rdp(0)
        for i, n in enumerate(mine):
            if i + 1 < len(mine):
                rdp(i + 1); a("s_waitcnt lgkmcnt(6)")
            else:
                a("s_waitcnt lgkmcnt(0)")
                a("ds_write_b32 v13, v15 offset:80")
            x = ACC + 8*n; t = TILES[n >> 1][0]
            for si in range(3):
                for p in range(0, 8, 2): a(f"v_pk_add_f32 {vr(x+p,2)}, {vr(x+p,2)}, {vr(free[3*(i&1) + si]+p,2)}")
            for p in range(0, 8, 2): a(f"v_pk_fma_f32 {vr(x+p,2)}, {vr(x+p,2)}, {vr(CC+2*t,2)}, {vr(CC+2*t,2)} op_sel:[0,0,1] op_sel_hi:[1,0,1]")
            for p in range(4):
                a(f"v_lshlrev_b32 v{U+2*p}, 16, v{Z1R+4*i+p}")
                a(f"v_and_b32 v{U+2*p+1}, 0xffff0000, v{Z1R+4*i+p}")
            for p in range(0, 8, 2): a(f"v_pk_mul_f32 {vr(x+p,2)}, {vr(x+p,2)}, {vr(U+p,2)}")
            o = Z1R + 4*i
            for p in range(4): a(f"v_cvt_pk_bf16_f32 v{o+p}, v{x+2*p}, v{x+2*p+1}")
            store4(a, o, 1, f"s{83 + (n>>1)}", (n&1)*1024)
        if w < 3:
            a("s_branch L_fin")
            a.label(f"L_w{w+1}")
    a.label("L_fin")

def out_ids(a, rp, nb):
    if OPT.get("fmap", 1):
        a(f"s_lshl_b32 s{rp}, s52, 2")
        a("s_and_b32 s59, s53, 3")
        a(f"s_add_u32 s{rp}, s{rp}, s59")
        a(f"s_lshr_b32 s{nb}, s53, 2")
    else:
        a(f"s_lshr_b32 s{rp}, s52, 1")
        a(f"s_lshl_b32 s{rp}, s{rp}, 3")
        a("s_and_b32 s59, s53, 7")
        a(f"s_add_u32 s{rp}, s{rp}, s59")
        a(f"s_and_b32 s{nb}, s52, 1")
        a(f"s_lshl_b32 s{nb}, s{nb}, 2")
        a("s_lshr_b32 s59, s53, 3")
        a(f"s_add_u32 s{nb}, s{nb}, s59")
def out_tiles(a, rp, cg):
    a(f"s_lshl_b32 s60, s{rp}, 1")
    a("s_lshr_b32 s59, s57, 1")
    a("s_add_u32 s60, s60, s59")
    a("s_xor_b32 s61, s60, 1")
    a(f"s_lshl_b32 s62, s{cg}, 1")
    a("s_and_b32 s59, s57, 1")
    a("s_add_u32 s62, s62, s59")
    a("s_xor_b32 s63, s62, 1")
def pair(a, reg, sb, ks, v=1, n=2):
    for i in range(n): load4(a, reg + 4*i, v, f"s{sb+i}", (ks % 4)*1024)
    if ks % 4 == 3:
        for i in range(n): a(f"s_add_u32 s{sb+i}, s{sb+i}, 4096")
WOL = (131072, 59392)
RED2, RED1 = 2048, 106496
def red_setup(a, grp, vl, vw, vr_, vo):
    def base(g, lam, v):
        a(f"s_xor_b32 s59, s57, {lam}")
        a(f"s_mul_i32 s59, s59, {14336 if g else 6144}")
        a(f"s_add_u32 s59, s59, {RED2 if g else RED1}")
        a(f"v_add_u32 v{v}, s59, v{vl}")
    for lam in range(4 if grp else 2): base(grp, lam, vw + lam)
    base(1 - grp, 0, vr_)
    a(f"v_and_b32 v{vo}, 31, v0")
    a(f"v_lshlrev_b32 v{vo}, 10, v{vo}")
    a(f"v_lshrrev_b32 v{vo+1}, 5, v0")
    a(f"v_lshl_add_u32 v{vo}, v{vo+1}, 4, v{vo}")
    a("s_lshl_b32 s76, s60, 15")
    a("s_lshl_b32 s59, s62, 6")
    a("s_add_u32 s76, s76, s59")
    srd(a, SC, 22, 2048*1024)
def red_final(a, grp, ACC, vw, vr_, vo, R):
    W = lambda lam, half, slot: [f"ds_write_b128 v{vw+lam}, {vr(ACC + 16*lam + 8*half + 4*i, 4)} offset:{slot*2048 + i*1024}" for i in range(2)]
    L = []
    if grp:
        for lam in (1, 2, 3): L += W(lam, 0, lam) + W(lam, 1, 3 + lam)
        L += W(0, 0, 0)
        src = [(vw, 4), (vw, 5), (vw, 6), (vr_, 1), (vr_, 2)]
    else:
        L += W(1, 0, 0) + W(1, 1, 2) + W(0, 1, 1)
        src = [(vw, 0), (vr_, 0), (vr_, 1), (vr_, 2), (vr_, 3)]
    for l in L: a(l)
    a("s_waitcnt lgkmcnt(0)")
    a("s_barrier")
    for j, (v, slot) in enumerate(src):
        for i in range(2): a(f"ds_read_b128 {vr(R + 8*j + 4*i, 4)}, v{v} offset:{slot*2048 + i*1024}")
    x = ACC + 8*grp
    for j in range(5):
        a(f"s_waitcnt lgkmcnt({8 - 2*j})")
        for p in range(0, 8, 2): a(f"v_pk_add_f32 {vr(x+p,2)}, {vr(x+p,2)}, {vr(R+8*j+p,2)}")
    for p in range(4): a(f"v_cvt_pk_bf16_f32 v{R+p}, v{x+2*p}, v{x+2*p+1}")
    a("s_nop 1")
    a(f"v_permlane32_swap_b32 v{R}, v{R+2}")
    a(f"v_permlane32_swap_b32 v{R+1}, v{R+3}")
    a(f"buffer_store_dwordx4 {vr(R,4)}, v{vo}, {S4(SC)}, s76 offen offset:{32*grp} {OPT.get('ost', '')}")

def g2_final(a):
    R, ACC = 176, 112
    D = 6
    fine(a, "u")
    fine_flush(a)
    out_tiles(a, 38, 39)
    a(f"s_mul_i32 s72, s57, {14*1024}")
    for i in range(2):
        a(f"s_mul_i32 s59, s{60+i}, {88*1024}")
        a(f"s_add_u32 s59, s59, s72")
        a(f"s_add_u32 s{64+i}, s59, {AF + 32*1024}")
    a("s_lshl_b32 s77, s54, 2")
    a(f"s_add_u32 s77, s77, {CU}")
    a("s_lshl_b32 s59, s38, 2")
    a("s_add_u32 s59, s59, s57")
    a(f"s_add_u32 s59, s59, {CU}")
    a(f"s_mul_i32 s59, s59, {CST}")
    a("v_mov_b32 v2, s59")
    a("s_lshr_b32 s59, s55, 1")
    a("s_add_u32 s77, s77, s59")
    a("v_mov_b32 v3, v13")
    a("s_lshl_b32 s67, s57, 13")
    red_setup(a, 1, 1, 5, 9, 12)
    lds_poll(a, "L_prd", 14, 112, R)
    a("s_waitcnt vmcnt(0)")
    cnt_add(a, 77, 14, 15, 1)
    fine(a, "fu")
    a("s_setprio 0")
    for g in range(2):
        a(f"s_add_u32 m0, s67, {WOL[1] + g*4096}")
        a("s_nop 0")
        for i in range(4): a(f"buffer_load_dwordx4 v1, {S4(WS)}, s66 offen offset:{i*1024} sc1 lds")
        a("s_add_u32 s66, s66, 4096")
    a("s_setprio 2")
    cnt_issue(a, 2, 4, 1)
    a("s_waitcnt vmcnt(0)")
    a("ds_write_b32 v3, v15 offset:96")
    cnt_poll(a, "L_pu", 2, 4, 1, 8, first_issued=True, sleep=SLP)
    fine(a, "pu")
    a("s_setprio 0")
    for ks in range(D): pair(a, R + 8*ks, 64, ks)
    if OPT.get("uwait", 0): lds_poll(a, "L_uw", 14, 96, 32)
    for ks in range(14):
        a(f"s_waitcnt vmcnt({2*min(13 - ks, D - 1)})")
        for lam in (1, 2, 3, 0):
            mfma(a, ACC + 16*lam, WUREG[2*ks + (lam & 1)], R + 8*(ks % D) + 4*(lam >> 1), "0" if ks == 0 else None)
        if ks + D < 14: pair(a, R + 8*(ks % D), 64, ks + D)
    fine(a, "um")
    a("s_nop 7"); a("s_nop 1")
    red_final(a, 1, ACC, 5, 9, 12, 16)
    fine_dump(a, 4, 2)
    a("s_endpgm")

def g1_final(a):
    WO, AO, ACC = 16, 144, 208
    out_ids(a, 54, 55)
    out_tiles(a, 54, 55)
    a("s_and_b32 s72, s57, 1")
    a("s_lshl_b32 s73, s72, 14")
    a(f"s_mul_i32 s59, s60, {88*1024}")
    a(f"s_add_u32 s59, s59, s73")
    a(f"s_add_u32 s64, s59, {AF}")
    a("s_mul_i32 s59, s72, 24576")
    a(f"s_add_u32 s59, s59, {WOL[0]}")
    a("v_add_u32 v6, s59, v4")
    a("s_lshl_b32 s59, s72, 13")
    a(f"s_sub_u32 s59, {WOL[0] + 16384}, s59")
    a("v_add_u32 v7, s59, v4")
    for i in range(2): a(f"v_add_u32 v{2+i}, {(WOL[1] - WOL[0]) & 0xffffffff}, v{6+i}")
    a("s_lshl_b32 s59, s54, 1")
    a("s_add_u32 s59, s59, s72")
    a("s_lshl_b32 s59, s59, 1")
    a("s_lshr_b32 s72, s57, 1")
    a("s_add_u32 s59, s59, s72")
    a(f"s_mul_i32 s59, s59, {CST}")
    a(f"s_add_u32 s59, s59, {CNT - FLG + CO*CST}")
    a("v_mov_b32 v8, s59")
    red_setup(a, 0, 4, 10, 12, 13)
    a("v_mov_b32 v9, 0")
    a("s_waitcnt vmcnt(0)")
    cnt_add(a, 85, 63, 58, 2)
    fine(a, "fo")
    cnt_poll(a, "L_po", 8, 240, 1, 16, sleep=SLP)
    fine(a, "po")
    for ks in range(16): pair(a, AO + 4*ks, 64, ks, v=4, n=1)
    lds_poll(a, "L_adn", 9, 96, 240)
    lds_poll(a, "L_wol", 9, 128, 240)
    def wr(ks):
        for lam in range(2): a(f"ds_read_b128 {vr(WO + 8*ks + 4*lam, 4)}, v{(6 if ks < 8 else 2)+lam} offset:{(ks % 8)*1024}")
    for ks in range(6): wr(ks)
    for ks in range(16):
        if ks + 6 < 16: wr(ks + 6)
        a(f"s_waitcnt vmcnt({15-ks}) lgkmcnt({2*min(6, 15-ks)})")
        for lam in (1, 0): mfma(a, ACC + 16*lam, WO + 8*ks + 4*lam, AO + 4*ks, "0" if ks == 0 else None)
    fine(a, "om")
    a("s_nop 7"); a("s_nop 2")
    red_final(a, 0, ACC, 10, 12, 13, 16)
    fine_dump(a, 0, 2)
    a("s_endpgm")

def g1_front(a):
    WFR, ACC, T = 32, 64, 8
    a("v_lshlrev_b32 v9, 4, v0")
    a("s_waitcnt lgkmcnt(0)")
    srd(a, WS, 26, WS_SIZE)
    srd(a, DBG, 24, 256)
    if OPT.get("pfc", 1):
        a("s_cmp_lg_u32 s57, 1")
        a("s_cbranch_scc1 L_nopc")
        a(f"s_getpc_b64 s[{SA}:{SA+1}]")
        a.label("L_pc")
        a(f"s_sub_u32 s{SA}, s{SA}, L_pc-{NAME}_kernel")
        a(f"s_subb_u32 s{SA+1}, s{SA+1}, 0")
        a(f"s_mov_b32 s{SA+2}, L_end-{NAME}_kernel")
        a(f"s_mov_b32 s{SA+3}, 0x20000")
        a("v_lshlrev_b32 v17, 7, v0")
        a("s_and_b32 s59, s53, 7")
        a("s_lshl_b32 s59, s59, 13")
        a(f"buffer_load_dword v125, v17, {S4(SA)}, s59 offen")
        a.label("L_nopc")
    def touches():
        if OPT.get("pfz", 1):
            srd(a, SC, 12, 512*3584)
            a("v_and_b32 v126, 31, v0")
            a("v_mul_u32_u24 v126, 3584, v126")
            a("s_lshl_b32 s88, s62, 7")
            a("s_and_b32 s89, s58, 15")
            a(f"s_mul_i32 s89, s89, {32*3584}")
            a("s_add_u32 s89, s89, s88")
            a("s_cmp_lg_u32 s57, 2")
            a("s_cbranch_scc1 L_nopz")
            a(f"s_mul_i32 s59, s54, {32*3584}")
            a("s_add_u32 s59, s59, s88")
            a(f"buffer_load_dword v125, v126, {S4(SC)}, s59 offen")
            a.label("L_nopz")
        if OPT.get("pfw", 0):
            a("s_cmp_lg_u32 s57, 3")
            a("s_cbranch_scc1 L_notlb")
        if OPT.get("tlb", 0):
            a("v_lshlrev_b32 v17, 20, v0")
            a("s_mov_b64 exec, 0x7fffff")
            a(f"buffer_load_dword v125, v17, {S4(WS)}, 0 offen")
            a("s_mov_b64 exec, 1")
            a(f"buffer_load_dword v125, v17, {S4(DBG)}, 0 offen offset:128")
            srd(a, SA, 22, 2048*1024)
            a("s_mov_b64 exec, 3")
            a(f"buffer_load_dword v125, v17, {S4(SA)}, 0 offen")
            srd(a, SA, 16, 4096)
            a(f"buffer_load_dword v125, v17, {S4(SA)}, 0 offen")
            a("s_mov_b64 exec, -1")
        if OPT.get("pfw", 0):
            srd(a, SA, 14, 2048*4096)
            a("v_and_b32 v17, 7, v0")
            a("v_lshlrev_b32 v17, 12, v17")
            a("v_bfe_u32 v18, v0, 3, 2")
            a("v_lshl_add_u32 v17, v18, 10, v17")
            a("v_lshrrev_b32 v18, 5, v0")
            a("v_lshl_add_u32 v17, v18, 7, v17")
            a("s_lshr_b32 s59, s52, 1")
            a("s_lshl_b32 s59, s59, 3")
            a("s_and_b32 s3, s53, 7")
            a("s_add_u32 s59, s59, s3")
            a("s_lshl_b32 s59, s59, 1")
            a("s_and_b32 s3, s52, 1")
            a("s_add_u32 s59, s59, s3")
            a("s_lshl_b32 s59, s59, 2")
            a("s_lshr_b32 s3, s53, 3")
            a("s_add_u32 s59, s59, s3")
            a("s_lshl_b32 s59, s59, 15")
            if OPT.get("srot", 0) >= 4:
                a(f"s_and_b32 s3, s53, {[7, 6, 4][OPT['srot'] - 4]}")
                a("s_lshl_b32 s3, s3, 7")
                a("s_add_u32 s59, s59, s3")
            if OPT.get("pfw", 0) == 1: a("s_mov_b32 exec_hi, 0")
            a(f"buffer_load_dword v125, v17, {S4(SA)}, s59 offen")
            a("s_mov_b64 exec, -1")
            a.label("L_notlb")
    if OPT.get("tpos", 0) == 0: touches()
    a("s_cmp_lg_u32 s55, 15")
    a("s_cbranch_scc1 L_noclr")
    a("s_cmp_lg_u32 s57, 0")
    a("s_cbranch_scc1 L_noclr")
    for r in range(12, 16): a(f"v_mov_b32 v{r}, -1")
    a("v_mov_b32 v16, 0")
    a(f"v_mul_u32_u24 v17, {CST}, v0")
    a("v_lshlrev_b32 v18, 3, v0")
    a(f"s_mul_i32 s59, s54, {64*CST}")
    a(f"s_add_u32 s59, s59, {CNT}")
    a(f"buffer_store_dword v16, v17, {S4(WS)}, s59 offen sc1")
    a(f"s_add_u32 s59, s59, {1024*CST}")
    a(f"buffer_store_dword v16, v17, {S4(WS)}, s59 offen sc1")
    a("s_lshl_b32 s59, s54, 9")
    a(f"s_add_u32 s59, s59, {GG}")
    a(f"buffer_store_dwordx2 v[12:13], v18, {S4(WS)}, s59 offen sc1")
    a("s_mul_i32 s59, s54, 14336")
    a(f"s_add_u32 s59, s59, {STATS}")
    for i in range(14):
        store4(a, 12, 9, "s59", (i % 4)*1024)
        if i % 4 == 3: a("s_add_u32 s59, s59, 4096")
    a("v_mov_b32 v17, 1")
    a("s_lshl_b32 s59, s54, 2")
    a("s_waitcnt vmcnt(0)")
    a("s_mov_b64 exec, 1")
    a(f"buffer_store_dword v17, v16, {S4(DBG)}, s59 offen sc1")
    a("s_mov_b64 exec, -1")
    a.label("L_noclr")
    fine_init(a, 127); fine_pool([4, 6, 8, 10, 14, 16, 18, 20, 24, 26, 36, 38, 40, 42, 48, 50])
    swz_read_addrs(a, 112, 60)
    tr_addr(a, 116, 11, 7, True, 16384)
    a("v_xor_b32 v117, 64, v116")
    tr_addr(a, 118, 9, 6, False, 32768)
    a("v_and_b32 v120, 0x33, v0")
    a("v_bfe_u32 v1, v0, 2, 1")
    a("v_lshl_or_b32 v120, v1, 3, v120")
    a("v_bfe_u32 v1, v0, 3, 1")
    a("v_lshl_or_b32 v120, v1, 2, v120")
    a("v_lshlrev_b32 v120, 4, v120")
    a("v_and_b32 v121, 15, v0")
    a("v_lshrrev_b32 v1, 5, v0")
    a("v_lshl_or_b32 v121, v1, 4, v121")
    a("v_lshlrev_b32 v121, 4, v121")
    a("v_bfe_u32 v1, v0, 4, 1")
    a("v_lshl_or_b32 v121, v1, 17, v121")
    a("s_lshl_b32 s59, s55, 7")
    a("s_add_u32 s59, s59, s58")
    a("s_lshl_b32 s70, s59, 11")
    a(f"s_add_u32 s70, s70, {KVF}")
    a("s_lshr_b32 s59, s55, 1")
    a("s_lshl_b32 s59, s59, 8")
    a("s_add_u32 s59, s59, s58")
    a("s_lshl_b32 s64, s59, 11")
    a(f"s_add_u32 s64, s64, {KVF}")
    a("s_mov_b32 s68, 131072")
    a("v_mov_b32 v122, 1.0")
    a("s_bitcmp1_b32 s55, 0")
    a("s_cbranch_scc1 L_isk")
    a("s_lshl_b32 s64, s59, 10")
    if QF: a(f"s_add_u32 s64, s64, {QF}")
    a("s_mov_b32 s68, 65536")
    a(f"v_mov_b32 v122, {f32(QSCALE)}")
    a("v_mov_b32 v120, v9")
    a.label("L_isk")
    for i in range(3): a(f"s_add_u32 s{65+i}, s{64+i}, s68")
    a("s_lshr_b32 s71, s55, 1")
    a("s_lshl_b32 s71, s71, 4")
    a("s_and_b32 s59, s54, 12")
    a("s_add_u32 s71, s71, s59")
    a("s_lshl_b32 s71, s71, 1")
    a(f"s_add_u32 s71, s71, {CQ}")
    a("v_and_b32 v123, 15, v0")
    a("v_lshlrev_b32 v123, 2, v123")
    g1_att_setup(a)
    a("ds_write_b32 v5, v60")
    a("ds_write_b32 v5, v60 offset:128")
    a("s_mul_i32 s69, s58, 28")
    a("s_lshl_b32 s59, s62, 1")
    a("s_add_u32 s69, s69, s59")
    a("s_lshl_b32 s69, s69, 11")
    a(f"s_add_u32 s69, s69, {Z1F}")
    a("s_lshl_b32 s77, s62, 4")
    a("s_add_u32 s77, s77, s54")
    a(f"s_add_u32 s77, s77, {CY}")
    a(f"s_add_u32 s59, s2, {CY + 256}")
    a("s_cmp_eq_u32 s61, 7")
    a(f"s_cselect_b32 s69, {WS_SIZE}, s69")
    a("s_cselect_b32 s77, s59, s77")
    if OPT.get("tpos", 0) == 1: touches()
    relayout_load(a)
    a("s_waitcnt lgkmcnt(0)")
    fine(a, "setup")
    win = Win(range(112, 119), 16384)
    def reads(n):
        c, ks = n >> 2, n & 3
        pre, so = win.at(slot_of(c))
        R = [f"ds_read_b128 {vr(XF + 4*n, 4)}, v{112+ks} offset:{so}"]
        for t in range(2):
            for v in range(2):
                R.append(f"ds_read_b64_tr_b16 {vr(WFR + 12*(n&1) + 4*t + 2*v, 2)}, v{116+t} offset:{so + ks*4096 + v*512}")
        for v in range(2):
            R.append(f"ds_read_b64_tr_b16 {vr(WFR + 12*(n&1) + 8 + 2*v, 2)}, v118 offset:{so + ks*1024 + v*256}")
        return pre, R
    a("s_barrier")
    pre, R = reads(0)
    for l in pre + R: a(l)
    for n in range(32):
        ks = n & 3
        xf = XF + 4*n; wf = WFR + 12*(n&1); c0 = "0" if n == 0 else None
        M = lambda t: mfma(a, ACC + 16*t, wf + 4*t, xf, c0) if t < 2 else mfma(a, ACC + 32, xf, wf + 8, c0)
        pre, R = reads(n + 1) if n < 31 else ([], [])
        a("s_waitcnt lgkmcnt(4)")
        M(0)
        if n == 31:
            a("s_waitcnt lgkmcnt(2)"); M(1)
            a("s_waitcnt lgkmcnt(0)"); M(2)
            break
        if ks == 3: a("s_barrier")
        if n == OPT.get("pfz2", 10): a(f"buffer_load_dword v125, v126, {S4(SC)}, s89 offen")
        for l in pre + R[0:3]: a(l)
        a("s_waitcnt lgkmcnt(5)"); M(1)
        if OPT.get("rd1", 1):
            for l in R[3:5]: a(l)
            a("s_waitcnt lgkmcnt(5)"); M(2)
            for l in R[5:7]: a(l)
        else:
            for l in R[3:7]: a(l)
            a("s_waitcnt lgkmcnt(7)"); M(2)
    fine(a, "p1")
    a(f"s_load_dwordx16 s[36:51], s[{DBG}:{DBG+1}], 0")
    a("s_nop 6")
    for t in range(3):
        acc = ACC + 16*t
        if t < 2:
            for p in range(16): a(f"v_mul_f32 v{acc+p}, v{acc+p}, v122")
        for p in range(8): a(f"v_cvt_pk_bf16_f32 v{T+8*t+p}, v{acc+2*p}, v{acc+2*p+1}")
        for h in range(2):
            if t < 2: store4(a, T + 8*t + 4*h, 120, f"s{64 + 2*t + h}")
            else: store4(a, T + 8*t + 4*h, 121, "s70", 1024 + 512*h)
    fine(a, "st")
    tr_addr(a, 116, 10, 7, True, slot_of(8), tmp=118)
    a("v_xor_b32 v117, 64, v116")
    a(f"v_mov_b32 v112, {f32(GC1)}")
    a(f"v_mov_b32 v113, {f32(GC2)}")
    relayout_offsets(a)
    a("s_waitcnt vmcnt(6)")
    relayout_read(a, 96)
    a("s_waitcnt lgkmcnt(0)")
    for r in range(38, 52, 2): a(f"s_and_b64 s[36:37], s[36:37], s[{r}:{r+1}]")
    a("s_and_b32 s36, s36, s37")
    a("s_cbranch_scc1 L_clr1d")
    poll_flags(a, "L_clr1", 123, 124, srd_=DBG, soff="0")
    a("ds_write_b32 v59, v58 offset:192")
    G9 = OPT.get("g9", 0)
    if G9:
        srd(a, SC, 12, 512*3584)
        a("v_lshrrev_b32 v118, 2, v0")
        a("v_and_b32 v118, 4, v118")
        a("v_and_b32 v120, 7, v0")
        a("v_xor_b32 v120, v120, v118")
        a("v_lshrrev_b32 v118, 3, v0")
        a("v_mul_u32_u24 v118, 3584, v118")
        a("v_lshl_add_u32 v120, v120, 4, v118")
        for q in (1, 2, 3): a(f"v_add_u32 v{120+q}, {q*(8*3584-1024)}, v120")
        a("s_add_u32 s64, s63, 4")
        a("s_add_u32 s64, s64, s57")
        a("s_and_b32 s64, s64, 7")
        a(f"s_mul_i32 s64, s64, {64*3584}")
        a("s_lshl_b32 s59, s62, 7")
        a("s_add_u32 s64, s64, s59")
        a("s_lshl_b32 s65, s57, 13")
    a("s_mov_b32 s66, 0")
    a("s_waitcnt vmcnt(0)")
    cnt_add(a, 71, 63, 58, 8)
    fine(a, "ack")
    a("s_cmp_eq_u32 s61, 7")
    a("s_cbranch_scc1 L_noz1")
    if G9:
        for h in range(2):
            a(f"s_add_u32 m0, s65, {slot_of(9) + h*4096}")
            a(f"s_add_u32 s59, s64, {h*32*3584}")
            for q in range(4): a(f"buffer_load_dwordx4 v{120+q}, {S4(SC)}, s59 offen offset:{q*1024} lds")
    lds_poll(a, "L_bz0", 60, 176, 104)
    fine(a, "bZ")
    def rd(n, t):
        if n == 16: a(f"v_add_u32 v{116+t}, {SLOT}, v{116+t}")
        for v in range(2):
            a(f"ds_read_b64_tr_b16 {vr(WFR + 8*(n%3) + 4*t + 2*v, 2)}, v{116+t} offset:{(n%16)*2048 + v*512}")
    b = Asm(); att_init(b); ini = list(b.lines)
    for n in range(2):
        for t in range(2): rd(n, t)
    Q1, Q2 = OPT.get("q1", 10), OPT.get("q2", 21)
    for n in range(32):
        for t in range(2):
            a(f"s_waitcnt lgkmcnt({min(6, 2*(63 - 2*n - t))})")
            mfma(a, ACC + 16*t, WFR + 8*(n%3) + 4*t, XF + 4*n, "0" if n == 0 else None)
            if n == 14 and t == 0: lds_poll(a, "L_g9", 60, 208 if G9 else 192, 104)
            if n + 2 < 32: rd(n + 2, t)
            if n >= 17:
                for _ in range(3 if n < 19 else 2 if n < 27 else 4):
                    if ini: a(ini.pop(0))
        if n == Q1:
            if G9:
                a("s_waitcnt vmcnt(0)")
                a("ds_write_b32 v59, v58 offset:208")
            cnt_issue(a, 61, 114, 15); a("s_mov_b64 exec, -1")
        if n == Q2: att_try(a, "a")
    assert not ini
    a(f"s_setprio {OPT.get('g1p', 3)}")
    for r in range(8): a(f"v_mov_b32 v{48+r}, v{96+r}")
    fine(a, "z1")
    att_try(a, "b")
    z1_gelu(a, 0)
    z1_gelu(a, 1)
    a("s_branch L_z1d")
    a.label("L_noz1")
    att_init(a)
    for r in range(8): a(f"v_mov_b32 v{48+r}, v{96+r}")
    lds_poll(a, "L_bz5", 60, 176, 104)
    lds_poll(a, "L_bz6", 60, 192, 104)
    cnt_issue(a, 61, 114, 15)
    a.label("L_z1d")
    fine(a, "g1")

def att_loads(a, L):
    a("s_add_u32 s59, s79, s76")
    load4(a, KS, 4, "s59")
    load4(a, Q, 4, "s78")
    load4(a, Q + 4, 4, "s78", 1024)
    for n, g in enumerate(kv_batch(0, 4, 80, 81, 76)):
        for l in g[:-2]: a(l)
        if n == 0:
            a("s_cmp_eq_u32 s57, 0")
            a(f"s_cbranch_scc1 L_skipk0{L}")
        a(g[-2])
        if n == 0: a.label(f"L_skipk0{L}")
        a(g[-1])
def att_try(a, L):
    a("s_cmp_lg_u32 s66, 0")
    a(f"s_cbranch_scc1 L_try{L}d")
    a("s_waitcnt vmcnt(0)")
    a("v_cmp_gt_u32 s[64:65], 32, v114")
    a("s_nop 0")
    a("s_and_b32 s64, s64, 15")
    a(f"s_cbranch_scc1 L_try{L}n")
    a("s_mov_b32 s66, 1")
    att_loads(a, L)
    a(f"s_branch L_try{L}d")
    a.label(f"L_try{L}n")
    cnt_issue(a, 61, 114, 15); a("s_mov_b64 exec, -1")
    a.label(f"L_try{L}d")

Q, KS, VS, S_, NM, O_, T_ = 8, 16, 160, 64, 128, 200, 232
def att_init(a):
    T = 115
    a(f"v_and_b32 v{T}, 27, v0")
    a(f"v_cmp_eq_u32 vcc, 16, v{T}")
    a(f"v_mov_b32 v{T}, 0x3f803f80")
    a("s_nop 0")
    a(f"v_cndmask_b32 v{VS}, 0, v{T}, vcc")
    for r in range(VS + 1, VS + 32): a(f"v_mov_b32 v{r}, v{VS}")
    for r in range(O_, O_ + 32): a(f"v_mov_b32 v{r}, 0")
def z1_gelu(a, ti):
    x = 64 + 16*ti
    for l in gelu_list(x, 96, 112, 113): a(l)
    for p in range(8): a(f"v_cvt_pk_bf16_f32 v{32+8*ti+p}, v{x+2*p}, v{x+2*p+1}")
def g1_att_setup(a):
    T = 62
    a("s_lshl_b32 s72, s52, 2")
    a("s_lshr_b32 s59, s53, 3")
    a("s_add_u32 s72, s72, s59")
    a("s_and_b32 s74, s53, 7")
    a("s_lshl_b32 s73, s74, 3")
    a("s_lshl_b32 s59, s57, 1")
    a("s_add_u32 s73, s73, s59")
    a("s_lshl_b32 s78, s72, 6")
    a("s_add_u32 s78, s78, s73")
    a("s_lshl_b32 s78, s78, 10")
    if QF: a(f"s_add_u32 s78, s78, {QF}")
    a("s_lshl_b32 s79, s72, 17")
    a(f"s_add_u32 s79, s79, {KVF}")
    a("s_lshl_b32 s80, s57, 11")
    a("s_add_u32 s81, s79, s80")
    a(f"s_and_b32 s76, s53, {7 if OPT.get('krot', 0) else 0}")
    a("s_lshl_b32 s76, s76, 14")
    a("s_lshl_b32 s82, s73, 7")
    a(f"s_add_u32 s82, s82, {GG}")
    a("s_mov_b32 s86, 0xffff")
    a("s_mov_b32 s87, 0xffff")
    a("s_mul_i32 s83, s73, 88")
    a("s_add_u32 s83, s83, s72")
    a("s_lshl_b32 s83, s83, 10")
    a(f"s_add_u32 s83, s83, {AF}")
    a(f"s_add_u32 s84, s83, {88*1024}")
    a("s_lshr_b32 s85, s72, 4")
    a("s_add_u32 s85, s85, s73")
    a("s_lshl_b32 s85, s85, 1")
    a(f"s_add_u32 s85, s85, {CO}")
    a("v_lshlrev_b32 v4, 4, v0")
    a("v_and_b32 v5, 31, v0")
    a("s_lshr_b32 s59, s72, 2")
    a("s_lshl_b32 s59, s59, 5")
    a("s_add_u32 s59, s59, s74")
    a(f"s_add_u32 s59, s59, {CQ}")
    a("v_lshl_add_u32 v61, v0, 3, s59")
    a(f"v_mul_u32_u24 v61, {CST}, v61")
    a(f"v_mul_u32_u24 v63, {CST}, v0")
    a("v_lshlrev_b32 v5, 2, v5")
    a("v_mov_b32 v3, 0xdddd")
    a("v_mov_b32 v1, v4")
    a("v_and_b32 v2, 15, v0")
    a(f"v_lshrrev_b32 v{T}, 5, v0")
    a(f"v_lshl_or_b32 v2, v{T}, 4, v2")
    a("v_lshlrev_b32 v2, 4, v2")
    a("v_add_u32 v2, 1024, v2")
    a("v_add_u32 v56, 0x10000, v1")
    a("v_add_u32 v57, 0x10000, v2")
    a("v_mov_b32 v58, 1")
    a("s_lshl_b32 s59, s57, 2")
    a("v_mov_b32 v59, s59")
    a("v_mov_b32 v60, 0")

def g1_att(a):
    S, O, T = S_, O_, T_
    a("s_cmp_lg_u32 s66, 0")
    a("s_cbranch_scc1 L_ldone")
    a("s_mov_b64 exec, 15")
    cnt_poll(a, "L_pq", 61, 114, 15, 32, first_issued=True, sleep=SLP)
    att_loads(a, "c")
    a.label("L_ldone")
    if OPT["stamp"]:
        a("v_mov_b32 v250, v127"); FINE["v"] = 250; fine_flush(a)
    fine(a, "pq")
    kreg = lambda kt: KS + 4*(kt & 3)
    vreg = lambda kt: VS + 8*(kt & 3)
    def rd(kts, skipk=()):
        L = []
        for kt in kts:
            if kt not in skipk:
                L.append(f"ds_read_b128 {vr(kreg(kt),4)}, v{1 if kt < 32 else 56} offset:{(kt % 32)*2048}")
        L.append("s_mov_b64 exec, s[86:87]")
        for kt in kts:
            for s_ in range(2):
                L.append(f"ds_read_b128 {vr(vreg(kt)+4*s_,4)}, v{2 if kt < 32 else 57} offset:{(kt % 32)*2048 + s_*512}")
        L.append("s_mov_b64 exec, -1")
        return L
    a("s_waitcnt vmcnt(7)")
    mfma(a, S, KS, Q, "0")
    mfma(a, S + 16, KS, Q + 4, "0")
    a("s_nop 7"); a("s_nop 2")
    for q in (0, 1):
        s_, d = S + 16*q, T + q
        a(f"v_max3_f32 v{d}, v{s_}, v{s_+1}, v{s_+2}")
        for p in range(3, 15, 2): a(f"v_max3_f32 v{d}, v{d}, v{s_+p}, v{s_+p+1}")
        a(f"v_max_f32 v{d}, v{d}, v{s_+15}")
        halfsum(a, d, T + 2, "v_max_f32")
        for r in range(16): a(f"v_sub_f32 v{NM + 16*q + r}, 0, v{d}")
        a("s_nop 1")
        mfma(a, s_, KS, Q + 4*q, NM + 16*q)
        if q == 0:
            a("s_waitcnt vmcnt(0)")
            a("ds_write_b32 v59, v58 offset:144")
    lds_poll(a, "L_kv0", 60, 144, T)
    fine(a, "kv")
    for l in rd([0, 1, 2, 3], skipk=(0,)): a(l)
    a("s_setprio 0")
    SB = [S, S + 16, S + 32]
    sb = lambda k: SB[k % 3]
    QK = lambda k: mfma_s(sb(k), kreg(k >> 1), Q + 4*(k & 1), NM + 16*(k & 1))
    PV = lambda k, h: f"v_smfmac_f32_32x32x32_bf16 {vr(O+16*(k&1),16)}, {vr(vreg(k>>1)+4*h,4)}, {vr(sb(k)+8*h,8)}, v3"
    def gl(): return [f"buffer_load_dword v6, v5, {S4(WS)}, s82 offen sc1", f"buffer_load_dword v7, v5, {S4(WS)}, s82 offen offset:128 sc1"]
    z0, zd = OPT.get("z1s", 21), OPT.get("z1d", 6)
    late = {z0 + zd*i: [f"buffer_store_dwordx4 {vr(32 + 4*i, 4)}, v4, {S4(WS)}, {'s69' if i < 4 else 's%d' % (84 + i)} offen offset:{(i % 4)*1024 if i < 4 else 0} sc1"] for i in range(6)}
    late[z0 + zd*6 + 4] = ["KV1"]
    ev = []
    for k in range(0, 129):
        kt = k >> 1
        post = []
        if k % 4 == 0 and kt + 2 < 64:
            if (kt + 2) % 16 == 0: post.append("KVCHECK")
            post += rd([kt + 2, kt + 3])
            if (kt + 4) % 16 == 0 and kt + 4 < 64: post.append(f"ds_read_b128 {vr(T,4)}, v60 offset:{16 + kt + 4}")
        if k % 4 == 2 and kt + 1 < 64:
            post.append("s_waitcnt lgkmcnt(0)")
            if kt == 45: post.append("ds_write_b32 v59, v58")
            if kt == 51: post += gl()
        if k > 0: ev.append([PV(k - 1, 1), 16*k + 2, post, k])
        if k + 2 < 128: ev.append([QK(k + 2), 0, late.get(k, []), k])
        if k < 128: ev.append([PV(k, 0), 16*k + 10, [], k])
    gaps = OPT.get("gaps", (3, 6, 9))
    pos = 0; p = 7
    for i, (ins, lo, post, k) in enumerate(ev):
        if i > 0: p = next((p + g for g in gaps if p + g >= lo), max(lo, p + gaps[0]))
        p = min(p, 2048)
        while pos < p:
            if pos % 256 == 0: fine(a, f"k{pos//16}")
            a(f"v_exp_f32 v{sb(pos>>4) + (pos&15)}, v{sb(pos>>4) + (pos&15)}"); pos += 1
        if lo > 2048: a("s_nop 1")
        if i == 0: a("s_waitcnt lgkmcnt(0)")
        if ins.startswith("v_mfma"): assert p <= 16*(k + 2) - 12, (k, p)
        a(ins)
        for l in post:
            if l == "KVCHECK":
                a(f"v_min3_u32 v{T}, v{T}, v{T+1}, v{T+2}")
                a(f"v_and_b32 v{T}, v{T}, v{T+3}")
                a(f"v_cmp_eq_u32 vcc, 0, v{T}")
                a("s_nop 0")
                a("s_cmp_eq_u64 vcc, 0")
                a(f"s_cbranch_scc1 L_kvp{k}d")
                lds_poll(a, f"L_kvp{k}", 60, 16 + (k + 4) // 2, T)
            elif l == "KV1":
                a("s_waitcnt vmcnt(0)")
                cnt_add(a, 77, 60, 58, 2)
                cnt_add(a, 93, 60, 58, 1)
            else: a(l)
    assert pos == 2048
    a("s_setprio 3")
    a(f"s_mov_b32 s70, {f32(2.0**64)}")
    a(f"s_mov_b32 s71, {f32(2.0**-64)}")
    a(f"s_mov_b32 s91, {SPIN}")
    a.label("L_ag")
    a("s_waitcnt vmcnt(0)")
    a(f"v_or_b32 v{T}, v6, v7")
    a(f"v_cmp_gt_i32 vcc, 0, v{T}")
    a("s_sub_u32 s91, s91, 1")
    a("s_cbranch_scc1 L_agd")
    a("s_cmp_eq_u64 vcc, 0")
    a("s_cbranch_scc1 L_agd")
    for l in gl(): a(l)
    a("s_branch L_ag")
    a.label("L_agd")
    a("s_nop 4")
    a(f"v_max_f32 v{T}, v{O+8}, v{O+24}")
    a(f"v_min_f32 v{T+1}, v{O+8}, v{O+24}")
    a(f"v_add_f32 v{T+2}, v{O+8}, v{O+24}")
    a(f"v_cmp_gt_f32 s[72:73], s70, v{T}")
    a(f"v_cmp_lt_f32 s[74:75], s71, v{T+1}")
    a(f"v_cmp_o_f32 vcc, v{T+2}, v{T+2}")
    a("s_nop 1")
    a("s_and_b64 s[72:73], s[72:73], s[74:75]")
    a("s_and_b64 s[72:73], s[72:73], vcc")
    a("s_cmp_eq_u64 s[72:73], -1")
    a("s_cbranch_scc0 L_slow")
    a.label("L_afin")
    fine(a, "fin")
    for q in range(2):
        o = O + 16*q
        a(f"v_rcp_f32 v{T}, v{o+8}")
        a("s_nop 0")
        a(f"v_mul_f32 v{T}, v{T}, v{6+q}")
        for r in range(8): a(f"v_mul_f32 v{o+r}, v{o+r}, v{T}")
        for p in range(4): a(f"v_cvt_pk_bf16_f32 v{T+4+4*q+p}, v{o+2*p}, v{o+2*p+1}")
        store4(a, T + 4 + 4*q, 4, "s83" if q == 0 else "s84")
    a("ds_write_b32 v59, v58 offset:96")
    g1_final(a)
    a.label("L_slow")
    a(f"v_mov_b32 v{T}, 0xff800000")
    a(f"v_mov_b32 v{T+1}, 0xff800000")
    a("s_mov_b32 s81, s79")
    a("s_mov_b32 s69, 64")
    a.label("L_s1")
    load4(a, KS, 4, "s81")
    a("s_waitcnt vmcnt(0)")
    mfma(a, S, KS, Q, "0")
    mfma(a, S + 16, KS, Q + 4, "0")
    a("s_nop 7"); a("s_nop 3")
    for q in range(2):
        for p in range(0, 16, 2): a(f"v_max3_f32 v{T+q}, v{T+q}, v{S+16*q+p}, v{S+16*q+p+1}")
    a("s_add_u32 s81, s81, 2048")
    a("s_sub_u32 s69, s69, 1")
    a("s_cmp_lg_u32 s69, 0")
    a("s_cbranch_scc1 L_s1")
    for q in range(2): halfsum(a, T + q, T + 2, "v_max_f32")
    for r in range(O, O + 32): a(f"v_mov_b32 v{r}, 0")
    a("s_mov_b32 s81, s79")
    a("s_mov_b32 s69, 64")
    a.label("L_s2")
    load4(a, KS, 4, "s81")
    a("s_mov_b64 exec, s[86:87]")
    load4(a, VS, 2, "s81")
    load4(a, VS + 4, 2, "s81", 512)
    a("s_mov_b64 exec, -1")
    a("s_waitcnt vmcnt(0)")
    mfma(a, S, KS, Q, "0")
    mfma(a, S + 16, KS, Q + 4, "0")
    a("s_nop 7"); a("s_nop 3")
    for q in range(2):
        for p in range(16): a(f"v_sub_f32 v{S+16*q+p}, v{S+16*q+p}, v{T+q}")
        for p in range(16): a(f"v_exp_f32 v{S+16*q+p}, v{S+16*q+p}")
    a("s_nop 1")
    for q in range(2):
        for s_ in range(2):
            a(f"v_smfmac_f32_32x32x32_bf16 {vr(O+16*q,16)}, {vr(VS+4*s_,4)}, {vr(S+16*q+8*s_,8)}, v3")
    a("s_add_u32 s81, s81, 2048")
    a("s_sub_u32 s69, s69, 1")
    a("s_cmp_lg_u32 s69, 0")
    a("s_cbranch_scc1 L_s2")
    a("s_nop 7"); a("s_nop 3")
    a("s_branch L_afin")

def main():
    ref = open(f"cdna_kernels/{NAME}.s.ref").read().split("\n")
    out = [l for l in ref if l.startswith(";") and "@launch" not in l]
    k = NAME + "_kernel"
    out.append("; @launch grid=(256,1,1) block=(512,1,1) lds=163840")
    out += ['.amdgcn_target "amdgcn-amd-amdhsa--gfx950"', ".text"]
    a = Asm(); gen(a)
    bad = check(a.lines, k)
    out += [f".globl {k}", ".p2align 8", f".type {k},@function", f"{k}:"] + a.lines
    out += ['.section .rodata,"a"', ".p2align 6", f".amdhsa_kernel {k}", "  .amdhsa_next_free_vgpr 256", "  .amdhsa_next_free_sgpr 102",
            "  .amdhsa_accum_offset 256", "  .amdhsa_group_segment_fixed_size 0", "  .amdhsa_kernarg_size 96",
            "  .amdhsa_user_sgpr_count 2", "  .amdhsa_user_sgpr_kernarg_segment_ptr 1", "  .amdhsa_system_sgpr_workgroup_id_x 1",
            "  .amdhsa_float_denorm_mode_32 3", ".end_amdhsa_kernel"]
    open(sys.argv[1], "w").write("\n".join(out) + "\n")
    if OPT["stamp"]: json.dump(NAMES, open(sys.argv[1] + ".json", "w"))
    print("hazards:", bad, "lines:", len(out))
main()
```

```python
import sys, struct, re, json
from asmlib import Asm, vr, sr, check

NAME = "gated_mix__softmax_full_mha__mixer_gmlp__prompt"
MB = 1 << 20
QF, KVF, Z1F, Z2F, AF, WF = 0, 2*MB, 6*MB, 10*MB, 14*MB, 20*MB
GG = 22*MB
STATS = 22*MB + 65536
FLG = 22*MB + 512*1024
CNT = FLG
CU, CS, CZ, CW, CY, CQ, CO = 0, 256, 384, 896, 1024, 1536, 1792
WS_SIZE = 28*MB
def f32(x): return "0x%08x" % struct.unpack("<I", struct.pack("<f", x))[0]
LOG2E = 1.4426950408889634
QSCALE = 0.25 * LOG2E
GC1 = -2.0 * LOG2E * 0.7978845608028654
GC2 = GC1 * 0.044715
SPIN = 1 << 16
SLOT = 36864
GSCR = 148480
SCR = 114688

OPT = dict(stamp=False)
for a_ in sys.argv[2:]:
    k_, v_ = a_.split("=")
    OPT[k_] = eval(v_)

SLP = OPT.get("slp", 2)
CST = OPT.get("cst", 256)
WS, DBG, SA, SB_, SC, SD = 28, 32, 36, 40, 44, 48
def srd(a, d, p, size):
    a(f"s_mov_b32 s{d}, s{p}")
    a(f"s_mov_b32 s{d+1}, s{p+1}")
    a(f"s_mov_b32 s{d+2}, {size}")
    a(f"s_mov_b32 s{d+3}, 0x20000")
def S4(d): return f"s[{d}:{d+3}]"

FINE = dict(n=0, pool=[], names=[])
NAMES = {}
def fine_init(a, v):
    FINE["n"] = 0; FINE["names"] = []; FINE["v"] = v; FINE["pend"] = []; FINE["pool"] = []
    if OPT["stamp"]: a(f"v_mov_b32 v{v}, 0")
def fine_pool(pool): FINE["pool"] = list(pool)
def fine(a, name=""):
    if not OPT["stamp"]: return
    p = FINE["pool"][len(FINE["pend"])]
    a(f"{'s_memtime' if OPT.get('cyc') else 's_memrealtime'} s[{p}:{p+1}]")
    FINE["pend"].append(p); FINE["names"].append(name)
def fine_flush(a):
    if not OPT["stamp"]: return
    a("s_waitcnt lgkmcnt(0)")
    for p in FINE["pend"]:
        a(f"v_writelane_b32 v{FINE['v']}, s{p}, {FINE['n'] + 2}"); FINE["n"] += 1
    FINE["pend"] = []
def fine_dump(a, grp, t):
    if not OPT["stamp"]: return
    v = FINE["v"]
    a("s_memrealtime s[98:99]")
    a("s_memtime s[100:101]")
    fine_flush(a)
    if OPT.get("cyc"):
        a("s_mov_b32 s96, s94"); a("s_mov_b32 s98, s100"); NAMES["cyc"] = 1
    a("s_sub_u32 s100, s100, s94")
    a(f"v_writelane_b32 v{v}, s100, 0")
    a(f"v_writelane_b32 v{v}, s96, 1")
    a(f"v_writelane_b32 v{v}, s98, {FINE['n'] + 2}")
    NAMES[f"0,{grp}"] = ["start"] + FINE["names"] + ["end"]
    a("s_lshl_b32 s98, s2, 4")
    a("s_add_u32 s98, s98, s56")
    a("s_lshl_b32 s98, s98, 8")
    a(f"s_add_u32 s98, s98, {24*MB}")
    a(f"v_lshlrev_b32 v{t}, 2, v0")
    a(f"buffer_store_dword v{v}, v{t}, {S4(WS)}, s98 offen")
    if OPT.get("spin") and OPT["spin"][0] == grp:
        a(f"s_cmp_lg_u32 s2, {OPT.get('spinwg', 40)}")
        a("s_cbranch_scc1 L_end")
        a(f"v_readlane_b32 s60, v{v}, {1 + NAMES[f'0,{grp}'].index(OPT['spin'][1])}")
        a("s_mov_b32 s62, 200000")
        a.label("L_spin")
        a("s_memrealtime s[96:97]")
        a("s_waitcnt lgkmcnt(0)")
        a("s_sub_u32 s61, s96, s60")
        a("s_sub_u32 s62, s62, 1")
        a("s_cbranch_scc1 L_end")
        a("s_cmp_lt_u32 s61, 10000")
        a("s_cbranch_scc1 L_spin")

def mfma_s(d, A, B, c=None):
    cc = vr(d, 16) if c is None else (c if isinstance(c, str) else vr(c, 16))
    return f"v_mfma_f32_32x32x16_bf16 {vr(d,16)}, {vr(A,4)}, {vr(B,4)}, {cc}"
def mfma(a, d, A, B, c=None): a(mfma_s(d, A, B, c))
def store4(a, v, voff, soff, off=0):
    a(f"buffer_store_dwordx4 {vr(v,4)}, v{voff}, {S4(WS)}, {soff} offen offset:{off} sc1")
def load4(a, v, voff, soff, off=0):
    a(f"buffer_load_dwordx4 {vr(v,4)}, v{voff}, {S4(WS)}, {soff} offen offset:{off} sc1")

def swz_row_voffs(a, base, stride_shift, tmp=1):
    t, u = tmp, base + 3
    a(f"v_lshrrev_b32 v{t}, 4, v0")
    a(f"v_and_b32 v{u}, 7, v0")
    a(f"v_xor_b32 v{u}, v{u}, v{t}")
    a(f"v_lshrrev_b32 v{t}, 3, v0")
    a(f"v_lshlrev_b32 v{t}, {stride_shift}, v{t}")
    a(f"v_lshl_add_u32 v{base}, v{u}, 4, v{t}")
    st = 1 << stride_shift
    a(f"v_xor_b32 v{base+1}, 64, v{base}")
    a(f"v_add_u32 v{base+1}, {8*st - 1024}, v{base+1}")
    a(f"v_add_u32 v{base+2}, {16*st - 2048}, v{base}")
    a(f"v_add_u32 v{base+3}, {16*st - 2048}, v{base+1}")

def swz_read_addrs(a, base, sbase, tmp=1):
    t, u = tmp, base + 3
    a(f"v_bfe_u32 v{t}, v0, 1, 3")
    a(f"v_lshrrev_b32 v{u}, 5, v0")
    a(f"v_xor_b32 v{t}, v{t}, v{u}")
    a(f"v_lshlrev_b32 v{t}, 4, v{t}")
    a(f"v_and_b32 v{u}, 31, v0")
    a(f"v_lshl_add_u32 v{t}, v{u}, 7, v{t}")
    a(f"v_add_u32 v{base}, s{sbase}, v{t}")
    for ks in (1, 2, 3):
        a(f"v_xor_b32 v{base+ks}, {ks*32}, v{base}")

def tr_addr(a, d, hh_shift, row_shift, swz, add, tmp=1):
    a(f"v_lshrrev_b32 v{tmp}, 5, v0")
    a(f"v_lshlrev_b32 v{d}, {hh_shift}, v{tmp}")
    a(f"v_bfe_u32 v{tmp}, v0, 2, 2")
    a(f"v_lshl_add_u32 v{d}, v{tmp}, {row_shift}, v{d}")
    if swz:
        a(f"v_bfe_u32 v{tmp}, v0, 3, 1")
        a(f"v_lshl_add_u32 v{d}, v{tmp}, 6, v{d}")
    a(f"v_bfe_u32 v{tmp}, v0, 4, 1")
    a(f"v_lshl_add_u32 v{d}, v{tmp}, 5, v{d}")
    a(f"v_and_b32 v{tmp}, 3, v0")
    a(f"v_lshl_add_u32 v{d}, v{tmp}, 3, v{d}")
    if add: a(f"v_add_u32 v{d}, {add}, v{d}")

def gelu_list(x, t, C1, C2, n=16, pk=True):
    if pk:
        assert C2 == C1 + 1 and C1 % 2 == 0
        R = range(0, n, 2)
        L = [f"v_pk_mul_f32 {vr(t+p,2)}, {vr(x+p,2)}, {vr(x+p,2)}" for p in R]
        L += [f"v_pk_fma_f32 {vr(t+p,2)}, {vr(t+p,2)}, {vr(C1,2)}, {vr(C1,2)} op_sel:[0,1,0] op_sel_hi:[1,1,0]" for p in R]
        L += [f"v_pk_mul_f32 {vr(t+p,2)}, {vr(t+p,2)}, {vr(x+p,2)}" for p in R]
        L += [f"v_exp_f32 v{t+p}, v{t+p}" for p in range(n)]
        L += [f"v_pk_add_f32 {vr(t+p,2)}, {vr(t+p,2)}, 1.0 op_sel_hi:[1,0]" for p in R]
        L += [f"v_rcp_f32 v{t+p}, v{t+p}" for p in range(n)]
        L += [f"v_pk_mul_f32 {vr(x+p,2)}, {vr(x+p,2)}, {vr(t+p,2)}" for p in R]
        return L
    L = [f"v_mul_f32 v{t+p}, v{x+p}, v{x+p}" for p in range(n)]
    L += [f"v_fma_f32 v{t+p}, v{t+p}, v{C2}, v{C1}" for p in range(n)]
    L += [f"v_mul_f32 v{t+p}, v{t+p}, v{x+p}" for p in range(n)]
    L += [f"v_exp_f32 v{t+p}, v{t+p}" for p in range(n)]
    L += [f"v_add_f32 v{t+p}, 1.0, v{t+p}" for p in range(n)]
    L += [f"v_rcp_f32 v{t+p}, v{t+p}" for p in range(n)]
    L += [f"v_mul_f32 v{x+p}, v{x+p}, v{t+p}" for p in range(n)]
    return L

def halfsum(a, v, t, op="v_add_f32"):
    a(f"v_mov_b32 v{t}, v{v}")
    a("s_nop 1")
    a(f"v_permlane32_swap_b32 v{v}, v{t}")
    a(f"{op} v{v}, v{v}, v{t}")

def set_flag(a, sidx, vz, vone, word=False):
    if not word:
        a(f"s_lshl_b32 s{sidx}, s{sidx}, 2")
        a(f"s_add_u32 s{sidx}, s{sidx}, s57")
    a(f"s_lshl_b32 s{sidx}, s{sidx}, 2")
    a(f"s_add_u32 s{sidx}, s{sidx}, {FLG}")
    a("s_mov_b64 exec, 1")
    a(f"buffer_store_dword v{vone}, v{vz}, {S4(WS)}, s{sidx} offen sc1")
    a("s_mov_b64 exec, -1")

def cnt_add(a, sline, vl7, vone, reps):
    a(f"s_mul_i32 s{sline}, s{sline}, {CST}")
    a(f"s_add_u32 s{sline}, s{sline}, {CNT}")
    a(f"s_mov_b64 exec, {(1 << reps) - 1}")
    a(f"buffer_atomic_add v{vone}, v{vl7}, {S4(WS)}, s{sline} offen sc1")
    a("s_mov_b64 exec, -1")
def cnt_issue(a, voff, tmp, mask):
    a(f"s_mov_b64 exec, {mask}")
    a(f"v_mov_b32 v{tmp}, 0")
    a(f"buffer_atomic_add v{tmp}, v{voff}, {S4(WS)}, s90 offen sc0 sc1")
def cnt_poll(a, lbl, voff, tmp, mask, target, first_issued=False, sleep=0):
    a(f"s_mov_b32 s91, {SPIN}")
    if not first_issued: cnt_issue(a, voff, tmp, mask)
    a.label(lbl)
    a("s_waitcnt vmcnt(0)")
    a(f"v_cmp_gt_u32 vcc, {target}, v{tmp}")
    a("s_sub_u32 s91, s91, 1")
    a(f"s_cbranch_scc1 {lbl}d")
    a("s_cmp_eq_u64 vcc, 0")
    a(f"s_cbranch_scc1 {lbl}d")
    if sleep: a(f"s_sleep {sleep}")
    cnt_issue(a, voff, tmp, "vcc")
    a(f"s_branch {lbl}")
    a.label(lbl + "d")
    a("s_mov_b64 exec, -1")
def cnt_pipe(a, lbl, voff, tmp, mask, target, depth, first_issued=False):
    if depth < 2: return cnt_poll(a, lbl, voff, tmp, mask, target, first_issued, SLP)
    gap = OPT.get("pgap", 3) if depth > 2 else OPT.get("pgap2", 5)
    def issue(r):
        a(f"v_mov_b32 v{r}, 0")
        a(f"buffer_atomic_add v{r}, v{voff}, {S4(WS)}, s90 offen sc0 sc1")
    def check(r):
        a(f"v_cmp_gt_u32 vcc, {target}, v{r}")
        a("s_sub_u32 s91, s91, 1")
        a(f"s_cbranch_scc1 {lbl}d")
        a("s_and_b64 exec, exec, vcc")
        a(f"s_cbranch_scc0 {lbl}d")
    a(f"s_mov_b32 s91, {SPIN}")
    if first_issued:
        a("s_waitcnt vmcnt(0)")
        check(tmp)
    else: a(f"s_mov_b64 exec, {mask}")
    for i in range(depth - 1):
        issue(tmp + i); a(f"s_sleep {gap + 1}")
    a.label(lbl)
    for i in range(depth):
        issue(tmp + (i + depth - 1) % depth)
        a(f"s_sleep {gap}")
        a(f"s_waitcnt vmcnt({depth - 1})")
        check(tmp + i)
    a(f"s_branch {lbl}")
    a.label(lbl + "d")
    a("s_mov_b64 exec, -1")
def poll_issue(a, voff, tmp, n=1, srd_=None, soff="s90"):
    srd_ = WS if srd_ is None else srd_
    a(f"buffer_load_dword{'x%d' % n if n > 1 else ''} {vr(tmp, n)}, v{voff}, {S4(srd_)}, {soff} offen sc1")
def poll_flags(a, lbl, voff, tmp, n=1, srd_=None, soff="s90", first_issued=False, sleep=0, mask=None):
    issue = lambda: poll_issue(a, voff, tmp, n, srd_, soff)
    a(f"s_mov_b32 s91, {SPIN}")
    if not first_issued: issue()
    a.label(lbl)
    a("s_waitcnt vmcnt(0)")
    for i in range(1, n): a(f"v_min_u32 v{tmp}, v{tmp}, v{tmp+i}")
    a(f"v_cmp_eq_u32 vcc, 0, v{tmp}")
    a("s_sub_u32 s91, s91, 1")
    a(f"s_cbranch_scc1 {lbl}d")
    a("s_cmp_eq_u64 vcc, 0")
    a(f"s_cbranch_scc1 {lbl}d")
    if sleep: a(f"s_sleep {sleep}")
    if mask: a(f"s_and_b64 exec, vcc, {mask}")
    issue()
    a(f"s_branch {lbl}")
    a.label(lbl + "d")
    if mask: a("s_mov_b64 exec, -1")

def slot_of(g): return 1024 + ((g + 1) % 4) * SLOT
class Win:
    def __init__(self, regs, span): self.regs = regs; self.base = 0; self.span = span
    def at(self, base):
        L = []
        if base < self.base or base + self.span - self.base > 65536:
            L = [f"v_add_u32 v{r}, {(base - self.base) & 0xffffffff}, v{r}" for r in self.regs]
            self.base = base
        return L, base - self.base

def gen(a):
    a("s_cmp_ge_u32 s2, 256")
    a("s_cbranch_scc1 L_end")
    if OPT["stamp"]:
        a("s_memrealtime s[96:97]"); a("s_memtime s[94:95]")
    a("s_load_dwordx16 s[4:19], s[0:1], 0")
    a("s_load_dwordx8 s[20:27], s[0:1], 64")
    if OPT.get("pfc", 2) == 2:
        a("v_cmp_gt_u32 vcc, 16, v0")
        a(f"s_getpc_b64 s[{SD}:{SD+1}]")
        a.label("L_pc")
        a("s_and_saveexec_b64 s[60:61], vcc")
        a("s_cbranch_execz L_nopc")
        a(f"s_sub_u32 s{SD}, s{SD}, L_pc-{NAME}_kernel")
        a(f"s_subb_u32 s{SD+1}, s{SD+1}, 0")
        a(f"s_mov_b32 s{SD+2}, L_end-{NAME}_kernel")
        a(f"s_mov_b32 s{SD+3}, 0x20000")
        a("v_lshlrev_b32 v1, 12, v0")
        a("s_lshr_b32 s59, s2, 3")
        a("s_lshl_b32 s59, s59, 7")
        a(f"buffer_load_dword v125, v1, {S4(SD)}, s59 offen")
        a.label("L_nopc")
        a("s_mov_b64 exec, -1")
    a("v_lshrrev_b32 v1, 6, v0")
    a("s_and_b32 s52, s2, 7")
    a("v_readfirstlane_b32 s56, v1")
    a("s_lshr_b32 s53, s2, 3")
    a("v_and_b32 v0, 63, v0")
    a("s_and_b32 s57, s56, 3")
    a("s_and_b32 s63, s53, 3")
    a("s_lshr_b32 s54, s52, 1")
    a("s_lshl_b32 s54, s54, 2")
    a("s_add_u32 s54, s54, s63")
    a("s_lshr_b32 s61, s53, 2")
    a("s_and_b32 s59, s52, 1")
    a("s_lshl_b32 s55, s59, 3")
    a("s_add_u32 s55, s55, s61")
    a("s_sub_u32 s62, s55, s59")
    rotm = OPT.get("rotm", 3)
    if rotm == 3: a("s_mov_b32 s63, s52")
    elif rotm == 5:
        a("s_xor_b32 s63, s63, s61")
        a("s_and_b32 s63, s63, 1")
        a("s_lshl_b32 s63, s63, 2")
        a("s_add_u32 s63, s63, s52")
    elif rotm == 4:
        a("s_and_b32 s63, s63, 1")
        a("s_lshl_b32 s63, s63, 2")
        a("s_add_u32 s63, s63, s52")
    elif rotm == 0:
        a("s_lshl_b32 s63, s63, 1")
        a("s_add_u32 s63, s63, s61")
    else:
        a("s_lshr_b32 s3, s61, 1")
        a("s_xor_b32 s63, s63, s3")
        a(f"s_and_b32 s63, s63, {rotm - 1}")
        a("s_lshl_b32 s59, s59, 2")
        a("s_add_u32 s63, s63, s59")
        a("s_and_b32 s59, s52, 6")
        a("s_add_u32 s63, s63, s59")
        a("s_and_b32 s59, s61, 1")
        a("s_lshl_b32 s59, s59, 1")
        a("s_add_u32 s63, s63, s59")
    a(f"s_and_b32 s63, s63, {0 if OPT.get('norot', 0) else 7}")
    a("s_lshl_b32 s58, s54, 2")
    a("s_add_u32 s58, s58, s57")
    a("s_lshl_b32 s60, s57, 12")
    a(f"s_mov_b32 s90, {FLG}")
    a("s_cmp_lt_u32 s56, 4")
    a("s_cbranch_scc1 L_g1")
    g2_front(a)
    g2_spatial(a)
    g2_final(a)
    a.raw(".p2align 6")
    a.label("L_g1")
    g1_front(a)
    g1_att(a)
    clearer(a)
    a.label("L_end")
    a("s_endpgm")

XF = 128
def g2_front(a):
    X, WQ, WI, MISC = SA, SB_, SC, SD
    swz_row_voffs(a, 2, 10)
    a("v_lshrrev_b32 v1, 2, v0")
    a("v_mul_u32_u24 v10, 3072, v1")
    a("v_and_b32 v1, 4, v1")
    a("v_and_b32 v11, 7, v0")
    a("v_xor_b32 v11, v11, v1")
    a("v_lshlrev_b32 v11, 4, v11")
    a("v_lshrrev_b32 v1, 3, v0")
    a("v_mul_u32_u24 v6, 3072, v1")
    a("v_mul_u32_u24 v12, 3584, v1")
    a("v_add_u32 v6, v6, v11")
    a("v_add_u32 v12, v12, v11")
    a(f"v_add_u32 v7, {8*3072-2048}, v6")
    a(f"v_add_u32 v8, {1792-1024}, v12")
    a(f"v_add_u32 v9, {8*3584+1792-3072}, v12")
    a("v_and_b32 v1, 3, v0")
    a("v_lshl_add_u32 v10, v1, 4, v10")
    a("s_lshl_b32 s64, s58, 15")
    a(f"s_mul_i32 s65, s57, {16*3072}")
    a("s_lshl_b32 s59, s55, 6")
    a("s_add_u32 s66, s65, s59")
    a("s_add_u32 s66, s66, 2048")
    a("s_and_b32 s59, s55, 1")
    a("s_lshl_b32 s59, s59, 10")
    a("s_add_u32 s65, s65, s59")
    a("s_lshr_b32 s59, s55, 1")
    a("s_lshl_b32 s59, s59, 7")
    a("s_add_u32 s65, s65, s59")
    a(f"s_mul_i32 s67, s57, {16*3584}")
    a("s_lshl_b32 s68, s62, 7")
    a("s_add_u32 s67, s67, s68")
    a("s_lshl_b32 s69, s57, 10")
    a("s_waitcnt lgkmcnt(0)")
    srd(a, X, 4, 2048*1024)
    srd(a, WQ, 6, 512*3072)
    srd(a, WI, 12, 512*3584)
    a("s_cmp_eq_u32 s61, 7")
    a("s_cbranch_scc1 L_light")
    g2_pass1(a, False)
    g2_z(a)
    a("s_branch L_g2b")
    a.label("L_light")
    st = json.dumps(FINE); so = OPT["stamp"]; OPT["stamp"] = False
    g2_pass1(a, True)
    g2_light(a)
    OPT["stamp"] = so; FINE.update(json.loads(st))
    if so: a(f"v_mov_b32 v{FINE['v']}, 1")
    a.label("L_g2b")

def g2_pass1(a, light):
    X, WQ, WI, MISC = SA, SB_, SC, SD
    WFR, XG, ACC = 32, 48, 64
    def chunk_dma(c):
        slot = slot_of(c)
        P = [[f"s_add_u32 s70, s63, {c}", "s_and_b32 s70, s70, 7", "s_lshl_b32 s59, s70, 7", f"s_add_u32 m0, s60, {slot}", "s_add_u32 s59, s59, s64"] +
             [f"buffer_load_dwordx4 v{2+q}, {S4(X)}, s59 offen offset:{q*1024} lds" for q in range(2)],
             [f"buffer_load_dwordx4 v{2+q}, {S4(X)}, s59 offen offset:{q*1024} lds" for q in range(2, 4)] +
             [f"s_mul_i32 s71, s70, {64*3072}", f"s_add_u32 m0, s69, {slot + 32768}", "s_add_u32 s59, s71, s66",
              f"buffer_load_dwordx4 v10, {S4(WQ)}, s59 offen lds"],
             [f"s_add_u32 m0, s60, {slot + 16384}", "s_add_u32 s59, s71, s65"] +
             [f"buffer_load_dwordx4 v{6+q}, {S4(WQ)}, s59 offen offset:{q*2048} lds" for q in range(2)], []]
        if not light:
            P[3] = [f"s_mul_i32 s59, s70, {64*3584}", "s_add_u32 s59, s59, s67"] + \
                   [f"buffer_load_dwordx4 v{8+q}, {S4(WI)}, s59 offen offset:{q*2048+1024} lds" for q in range(2)]
        return P
    def z1_dma(g):
        P = [[f"s_add_u32 s70, s63, {4*(g-8)}", "s_add_u32 s70, s70, s57", "s_and_b32 s70, s70, 7", f"s_mul_i32 s70, s70, {64*3584}",
              "s_add_u32 s70, s70, s68", "s_lshl_b32 s71, s57, 13"], [], [], []]
        for h in range(2):
            P[2*h] += [f"s_add_u32 m0, s71, {slot_of(g) + h*4096}", f"s_add_u32 s59, s70, {h*32*3584}"]
            for q in range(4):
                P[2*h + q//2].append(f"buffer_load_dwordx4 v{12+q}, {S4(WI)}, s59 offen offset:{q*1024} lds")
        return P
    gsize = [7]*8 + [0, 0] if light else [9]*8 + [8, 8]
    def parts(g):
        if g < 8: return chunk_dma(g)
        return [[], [], [], []] if light or (g == 9 and OPT.get("g9", 0)) else z1_dma(g)
    def group(g, np_=4):
        if light and g == 1:
            a(f"s_add_u32 m0, s69, {GSCR}")
            a("s_nop 0")
            a(f"buffer_load_dwordx4 v25, {S4(MISC)}, 0 offen lds")
        for p in parts(g)[:np_]:
            for l in p: a(l)
    group(0)
    srd(a, WS, 26, WS_SIZE)
    for q in (1, 2, 3): a(f"v_add_u32 v{12+q}, {q*(8*3584-1024)}, v12")
    swz_read_addrs(a, 16, 60)
    tr_addr(a, 20, 11, 7, True, 16384 + 1024)
    a("v_xor_b32 v21, 64, v20")
    if light:
        srd(a, MISC, 20, 1024)
        a("v_lshlrev_b32 v24, 4, v0")
        a("s_lshl_b32 s59, s63, 7")
        a("v_add_u32 v25, s59, v24")
        a("v_and_b32 v25, 1023, v25")
        a("v_lshrrev_b32 v1, 5, v0")
        a(f"s_add_u32 s59, s69, {GSCR}")
        a("v_lshl_add_u32 v28, v1, 4, s59")
    fine_init(a, 31); fine_pool([4, 6, 10, 12, 8, 26, 48, 50, 84, 86, 20]);
    SU = OPT.get("su", 1)
    b = Asm()
    sp_setup_w(b)
    if not light: g2_z_setup(b)
    side = [l.replace("s59", "s88") for l in b.lines]
    assert not any(re.match(r"\s*s_(cselect|cbranch|addc|subb|cmp)", l) or "vcc" in l for l in side)
    if OPT.get("fst"): fine(a, "g0")
    if SU == 0:
        for l in side: a(l)
        side = []
    fine(a, "setup")
    G1N = OPT.get("g1n", 2)
    group(1, G1N)
    if OPT.get("fst"): fine(a, "g1")
    if SU == 2:
        for l in side[:OPT.get("sun", 40)]: a(l)
        side = side[OPT.get("sun", 40):]
    win = Win(range(16, 22), 16384)
    def reads(n):
        c, ks = n >> 2, n & 3
        pre, so = win.at(slot_of(c))
        R = [f"ds_read_b128 {vr(XG + 4*(n&1), 4)}, v{16+ks} offset:{so}"]
        if light:
            R.append(f"ds_read_b128 {vr(WFR + 8*(n&1), 4)}, v28 offset:{n*32}")
        else:
            for t in range(2):
                for v in range(2):
                    R.append(f"ds_read_b64_tr_b16 {vr(WFR + 8*(n&1) + 4*t + 2*v, 2)}, v{20+t} offset:{so + ks*4096 + v*512}")
        return pre, R
    def boundary(c):
        if OPT.get("diagsl") and 0 < c <= OPT.get("diagn", 7): a(f"s_sleep {OPT['diagsl']}")
        a(f"s_waitcnt vmcnt({gsize[c+1] if c else sum('buffer_load' in l for p in parts(1)[:G1N] for l in p)})")
        a("s_barrier")
        if not (OPT.get("fst") and c in (3, 5)): fine(a, f"b{c}")
    if OPT.get("p1p"): a(f"s_setprio {OPT['p1p']}")
    boundary(0)
    pre, R = reads(0)
    for l in pre + R: a(l)
    P = parts(2)
    if G1N < 4:
        for p in parts(1)[G1N:]:
            for l in p: a(l)
        P = [[], P[0] + P[1], P[2], P[3]]
    for l in P.pop(0): a(l)
    for n in range(32):
        ks = n & 3
        M = lambda t: mfma(a, ACC + 16*t, WFR + 8*(n&1) + 4*t, XG + 4*(n&1), "0" if n == 0 else None)
        pre, R = reads(n + 1) if n < 31 else ([], [])
        a(f"s_waitcnt lgkmcnt({0 if light else 2})")
        M(0)
        if n == 31:
            if not light: a("s_waitcnt lgkmcnt(0)"); M(1)
            break
        if ks == 3:
            boundary((n >> 2) + 1)
            assert not P
            P = parts((n >> 2) + 3)
            if n >= 23 and OPT.get("zfast", 2) == 1: P = [P[0] + P[1], P[2] + P[3], [], []]
            if n >= OPT.get("zf0", 23) and OPT.get("zfast", 2) == 2:
                for p_ in P:
                    for l in p_: a(l)
                P = [[], [], [], []]
        nr = 3 if OPT.get("rd2", 1) else 5
        for l in pre + R[:nr]: a(l)
        if not light:
            a(f"s_waitcnt lgkmcnt({nr})")
            M(1)
        for l in R[nr:] + P.pop(0): a(l)
        for _ in range(OPT.get("sup", 8)):
            if side: a(side.pop(0))
        touch(a, n) if n else None
        if n == 27 and not light:
            srd(a, SA, 24, 256)
            poll_issue(a, 113, 114, srd_=SA, soff="0")
    assert not side
    if OPT.get("p1p"): a("s_setprio 0")
    touch(a, 31)
    fine(a, "p1")

RSCR = 152576
def relayout_load(a):
    a("s_lshl_b32 s93, s2, 2")
    a("s_add_u32 s93, s93, s57")
    a("s_lshr_b32 s59, s93, 3")
    a("s_lshl_b32 s59, s59, 14")
    srd(a, SA, 8, 512*1024)
    a("s_cmp_lt_u32 s93, 256")
    a("s_cbranch_scc1 L_rwo")
    srd(a, SA, 18, 896*1024)
    a(f"s_sub_u32 s59, s59, {32*16384}")
    a.label("L_rwo")
    a("s_and_b32 s3, s93, 7")
    a("s_lshl_b32 s3, s3, 7")
    a("s_add_u32 s59, s59, s3")
    a("v_lshrrev_b32 v8, 3, v0")
    a("v_lshlrev_b32 v8, 6, v8")
    a("v_and_or_b32 v8, v0, 7, v8")
    a("v_lshlrev_b32 v8, 4, v8")
    a(f"s_add_u32 m0, s80, {RSCR}")
    a("s_nop 0")
    a(f"buffer_load_dwordx4 v8, {S4(SA)}, s59 offen lds")
    a(f"s_add_u32 s59, s59, {8192 - 1024}")
    a(f"buffer_load_dwordx4 v8, {S4(SA)}, s59 offen offset:1024 lds")
    tr_addr(a, 119, 9, 7, False, RSCR, tmp=10)
    a("v_add_u32 v119, s80, v119")
def relayout_read(a, d):
    for nt in range(2):
        for v in range(2):
            a(f"ds_read_b64_tr_b16 {vr(d + nt*4 + v*2, 2)}, v119 offset:{v*1024 + nt*64}")
def relayout_offsets(a):
    a("s_and_b32 s3, s93, 7")
    a(f"s_mul_i32 s3, s3, {2*88*1024}")
    a("s_lshr_b32 s88, s93, 3")
    a("s_lshl_b32 s88, s88, 10")
    a("s_add_u32 s88, s88, s3")
    a(f"s_add_u32 s88, s88, {WF}")
    a("s_cmp_ge_u32 s93, 704")
    a(f"s_cselect_b32 s88, {WS_SIZE}, s88")
    a(f"s_add_u32 s89, s88, {88*1024}")
    a("s_and_b32 s3, s93, 7")
    a("s_lshl_b32 s3, s3, 4")
    a("s_lshr_b32 s93, s93, 6")
    a("s_add_u32 s93, s93, s3")
    a(f"s_add_u32 s93, s93, {CW}")

C1, C2, SUM, SQ = 24, 25, 26, 28
def g2_z_setup(a):
    a(f"v_mov_b32 v{C1}, {f32(GC1)}")
    a(f"v_mov_b32 v{C2}, {f32(GC2)}")
    for r in range(SUM, SUM + 4): a(f"v_mov_b32 v{r}, 0")
    a("v_lshlrev_b32 v96, 4, v0")
    a("v_and_b32 v1, 31, v0")
    a("v_lshlrev_b32 v97, 3, v1")
    a("v_lshrrev_b32 v98, 5, v0")
    a("v_mul_u32_u24 v98, 7168, v98")
    a("v_add_u32 v98, v98, v97")
    a("v_bfe_u32 v1, v0, 1, 3")
    a("v_lshrrev_b32 v99, 5, v0")
    a("v_xor_b32 v1, v1, v99")
    a("v_and_b32 v99, 31, v0")
    a("v_lshlrev_b32 v99, 6, v99")
    a("v_lshl_add_u32 v99, v1, 3, v99")
    a(f"s_add_u32 s59, s60, {SCR}")
    a("v_add_u32 v99, s59, v99")
    for i in (1, 2, 3): a(f"v_xor_b32 v{99+i}, {16*i}, v99")
    tr_addr(a, 103, 9, 6, False, 0)
    a("v_bfe_u32 v1, v0, 3, 1")
    a("v_lshrrev_b32 v104, 5, v0")
    a("v_lshl_or_b32 v1, v104, 2, v1")
    a("v_lshlrev_b32 v1, 3, v1")
    a("v_xor_b32 v103, v103, v1")
    a("v_add_u32 v103, s59, v103")
    a("v_xor_b32 v104, 16, v103")
    a(f"v_mul_u32_u24 v105, {CST}, v0")
    a("v_mov_b32 v106, 1")
    a("v_and_b32 v113, 15, v0")
    a("v_lshlrev_b32 v113, 2, v113")
    a(f"s_mul_i32 s59, s58, {2*CST}")
    a(f"s_add_u32 s59, s59, {CNT - FLG + CS*CST}")
    a("s_and_b32 s3, s62, 1")
    a("v_xor_b32 v107, s3, v0")
    a(f"v_mul_u32_u24 v107, {CST}, v107")
    a("v_add_u32 v107, s59, v107")
    a("s_mul_i32 s79, s54, 14336")
    a("s_lshl_b32 s59, s57, 8")
    a("s_add_u32 s79, s79, s59")
    a(f"s_add_u32 s79, s79, {STATS}")
    a("s_add_u32 s80, s79, 4096")
    a("s_lshl_b32 s59, s62, 10")
    a("s_add_u32 s81, s79, s59")
    a("s_lshl_b32 s82, s62, 18")
    a("s_lshl_b32 s59, s58, 11")
    a("s_add_u32 s82, s82, s59")
    a(f"s_add_u32 s82, s82, {Z2F}")
    a("s_add_u32 s83, s82, 131072")
    a("s_lshl_b32 s78, s62, 2")
    a("s_lshr_b32 s59, s54, 2")
    a("s_add_u32 s78, s78, s59")
    a("s_lshl_b32 s78, s78, 3")
    a(f"s_add_u32 s78, s78, {CZ}")

def touch(a, when):
    if OPT.get("tch", 0) == when:
        a("s_mov_b64 exec, 0xffff")
        a(f"buffer_load_dword v127, v{WV+4}, {S4(WSP)}, s92 offen")
        a("s_mov_b64 exec, -1")

def g2_z(a):
    WFR, ACC, T = 32, 64, 48
    fine_flush(a)
    a("s_nop 0")
    a("s_lshl_b32 s59, s57, 2")
    a("v_mov_b32 v22, s59")
    a("v_mov_b32 v23, 0")
    a("s_nop 7")
    for ti in range(2):
        x = ACC + 16*ti
        for i, l in enumerate(gelu_list(x, T, C1, C2, pk=not OPT.get("early", 0))):
            if OPT.get("early", 0) and ti == 0 and i == OPT.get("zb", 32):
                a("s_waitcnt vmcnt(0)")
                a("ds_write_b32 v22, v106 offset:176")
            a(l)
        for p in range(0, 16, 2):
            if not OPT.get("early", 0):
                a(f"v_pk_add_f32 {vr(SUM,2)}, {vr(SUM,2)}, {vr(x+p,2)}")
                a(f"v_pk_fma_f32 {vr(SQ,2)}, {vr(x+p,2)}, {vr(x+p,2)}, {vr(SQ,2)}")
            else:
                for h in range(2):
                    a(f"v_add_f32 v{SUM+h}, v{SUM+h}, v{x+p+h}")
                    a(f"v_fmac_f32 v{SQ+h}, v{x+p+h}, v{x+p+h}")
    a(f"s_waitcnt vmcnt({1 if OPT.get('tch', 0) >= 27 else 0})")
    a("ds_write_b32 v22, v106 offset:176")
    a(f"v_add_f32 v{SUM}, v{SUM}, v{SUM+1}")
    a(f"v_add_f32 v{SUM+1}, v{SQ}, v{SQ+1}")
    halfsum(a, SUM, T)
    halfsum(a, SUM+1, T+1)
    a(f"v_and_b32 v{SUM+1}, 0x7fffffff, v{SUM+1}")
    poll_flags(a, "L_clr2", 113, 114, srd_=SA, soff="0", first_issued=True)
    a(f"buffer_store_dwordx2 {vr(SUM,2)}, v97, {S4(WS)}, s81 offen sc1")
    a("s_mov_b64 exec, 3")
    a(f"buffer_atomic_add v106, v107, {S4(WS)}, s90 offen sc1")
    a("s_mov_b64 exec, -1")
    fine(a, "g2")
    a("s_setprio 2")
    lds_poll(a, "L_bz1", 23, 176, T)
    lds_poll(a, "L_bz2", 23, 192, T)
    if OPT.get("w0", 0) == 0:
        for g in wdma(0, WV):
            for m in g: a(m)
    sp_setup_a(a)
    S = 112
    def st_try():
        for i in range(7):
            a(f"buffer_load_dwordx2 {vr(S+2*i,2)}, v98, {S4(WS)}, {'s79' if i < 4 else 's80'} offen offset:{(i%4)*1024} sc1")
        a("s_waitcnt vmcnt(0)")
        a(f"v_or3_b32 v{T}, v{S+1}, v{S+3}, v{S+5}")
        a(f"v_or3_b32 v{T}, v{T}, v{S+7}, v{S+9}")
        a(f"v_or3_b32 v{T}, v{T}, v{S+11}, v{S+13}")
        a(f"v_cmp_gt_i32 vcc, 0, v{T}")
    if OPT.get("hint", 1) == 0:
        st_try()
        a("s_nop 0")
        a("s_cmp_eq_u64 vcc, 0")
        a("s_cbranch_scc1 L_stpd")
    cnt_pipe(a, "L_spr", 107, 136, 1, 14, OPT.get("pdz", 2))
    a(f"s_mov_b32 s91, {SPIN}")
    a.label("L_stp")
    st_try()
    a("s_sub_u32 s91, s91, 1")
    a("s_cbranch_scc1 L_stpd")
    a("s_cmp_lg_u64 vcc, 0")
    a("s_cbranch_scc1 L_stp")
    a.label("L_stpd")
    fine(a, "stat")
    if OPT.get("w0", 0) == 3:
        for g in wdma(0):
            for m in g: a(m)
    for i in range(1, 7):
        a(f"v_add_f32 v{S}, v{S}, v{S+2*i}")
        a(f"v_add_f32 v{S+1}, v{S+1}, v{S+2*i+1}")
    halfsum(a, S, T)
    halfsum(a, S+1, T+1)
    a(f"v_mul_f32 v{S}, {f32(1.0/896)}, v{S}")
    a(f"v_mul_f32 v{S+1}, {f32(1.0/896)}, v{S+1}")
    a(f"v_fma_f32 v{S+1}, -v{S}, v{S}, v{S+1}")
    a(f"v_max_f32 v{S+1}, 0, v{S+1}")
    a(f"v_add_f32 v{S+1}, {f32(1e-5)}, v{S+1}")
    a(f"v_rsq_f32 v{S+2}, v{S+1}")
    a("s_nop 0")
    a(f"v_mul_f32 v{S+3}, -v{S}, v{S+2}")
    for ti in range(2):
        x = ACC + 16*ti
        for p in range(16): a(f"v_fma_f32 v{x+p}, v{x+p}, v{S+2}, v{S+3}")
        o = T + 8*ti
        for p in range(8): a(f"v_cvt_pk_bf16_f32 v{o+p}, v{x+2*p}, v{x+2*p+1}")
        for i in range(4): a(f"ds_write_b64 v{99+i}, {vr(o+2*i,2)} offset:{ti*2048}")
    a("s_waitcnt lgkmcnt(0)")
    for ti in range(2):
        for k in range(2):
            for v in range(2):
                a(f"ds_read_b64_tr_b16 {vr(WFR + ti*8 + k*4 + v*2, 2)}, v{103+v} offset:{ti*2048 + k*1024 + v*256}")
    for ti in range(2):
        for k in range(2):
            a(f"s_waitcnt lgkmcnt({6 - 2*(ti*2+k)})")
            store4(a, WFR + ti*8 + k*4, 96, "s82" if ti == 0 else "s83", k*1024)
    fine(a, "ln")
    a("s_mov_b32 s70, s78")
    fine_flush(a)
    sp_setup_b(a)
    a("s_waitcnt vmcnt(0)")
    cnt_add(a, 70, 105, 106, 8)
    fine(a, "fz")

KV0 = 16
def kv_batch(b, v, sm=92, sg=71, sr_=58):
    return [[f"s_add_u32 m0, s{sm}, {n*8192}", f"s_add_u32 s59, s{sr_}, {n*8192}", "s_and_b32 s59, s59, 0x1ffff", f"s_add_u32 s59, s59, s{sg}",
             f"buffer_load_dwordx4 v{v}, {S4(WS)}, s59 offen sc1 lds",
             f"buffer_load_dwordx4 v{v}, {S4(WS)}, s59 offen offset:1024 sc1 lds"] for n in range(4*b, 4*b + 4)]

def g2_light(a):
    a("v_lshlrev_b32 v96, 4, v0")
    a("s_nop 7"); a("s_nop 2")
    a(f"v_mul_f32 v4, {f32(-LOG2E)}, v64")
    a("v_exp_f32 v4, v4")
    a("v_and_b32 v5, 31, v0")
    a("v_add_f32 v4, 1.0, v4")
    a("v_rcp_f32 v4, v4")
    a("v_lshlrev_b32 v5, 2, v5")
    a("v_and_b32 v4, 0x7fffffff, v4")
    a("s_lshl_b32 s59, s57, 2")
    a("v_mov_b32 v22, s59")
    a("v_mov_b32 v23, 0")
    a("v_mov_b32 v24, 1")
    a("ds_write_b32 v22, v24 offset:176")
    a("s_setprio 2")
    lds_poll(a, "L_bz3", 23, 176, 48)
    lds_poll(a, "L_bz4", 23, 192, 48)
    a("s_bitcmp1_b32 s52, 0")
    a("s_cbranch_scc1 L_nog")
    a("s_lshl_b32 s59, s58, 7")
    a(f"s_add_u32 s59, s59, {GG}")
    a(f"buffer_store_dword v4, v5, {S4(WS)}, s59 offen sc1")
    a.label("L_nog")
    if OPT.get("w0", 0) != 1:
        for g in wdma(0, WV):
            for m in g: a(m)
    sp_setup_a(a)
    sp_setup_b(a)
    a("s_waitcnt vmcnt(0)")

TILES = [(0, 0), (0, 1), (0, 2), (0, 3), (1, 0), (1, 1), (1, 2)]
def lds_poll(a, lbl, vz, off, t):
    a(f"s_mov_b32 s91, {SPIN}")
    a.label(lbl)
    a(f"ds_read_b128 {vr(t,4)}, v{vz} offset:{off}")
    a("s_waitcnt lgkmcnt(0)")
    a(f"v_and_b32 v{t}, v{t}, v{t+1}")
    a(f"v_and_b32 v{t+2}, v{t+2}, v{t+3}")
    a(f"v_and_b32 v{t}, v{t}, v{t+2}")
    a("s_sub_u32 s91, s91, 1")
    a(f"v_readfirstlane_b32 s3, v{t}")
    a(f"s_cbranch_scc1 {lbl}d")
    a("s_cmp_lg_u32 s3, 0")
    a(f"s_cbranch_scc1 {lbl}d")
    a("s_sleep 2")
    a(f"s_branch {lbl}")
    a.label(lbl + "d")

WV = 107 + 1
WSP = DBG
def sp_setup_w(a):
    a("s_lshr_b32 s76, s52, 1")
    a("s_lshl_b32 s76, s76, 3")
    a("s_and_b32 s59, s53, 7")
    a("s_add_u32 s76, s76, s59")
    a("s_and_b32 s77, s52, 1")
    a("s_lshl_b32 s77, s77, 2")
    a("s_lshr_b32 s59, s53, 3")
    a("s_add_u32 s77, s77, s59")
    a("s_lshl_b32 s93, s59, 1")
    if OPT.get("srot", 0) == 1:
        a("s_and_b32 s59, s52, 1")
        a("s_add_u32 s93, s93, s59")
    if OPT.get("srot", 0) == 0: a("s_mov_b32 s93, 0")
    if OPT.get("srot", 0) == 3: a("s_add_u32 s93, s93, s53")
    if OPT.get("srot", 0) >= 4: a(f"s_and_b32 s93, s53, {[7, 6, 4][OPT['srot'] - 4]}")
    a("s_and_b32 s59, s77, 1")
    a("s_lshl_b32 s74, s76, 1")
    a("s_add_u32 s74, s74, s59")
    a("s_xor_b32 s75, s74, 1")
    a("s_lshl_b32 s59, s57, 10")
    for i in range(2):
        a(f"s_lshl_b32 s{74+i}, s{74+i}, 17")
        a(f"s_add_u32 s{74+i}, s{74+i}, s59")
    a("s_lshl_b32 s72, s57, 13")
    a("s_add_u32 s72, s72, 0x20000")
    a("s_add_u32 s73, s72, 4096")
    srd(a, WSP, 14, 2048*4096)
    swz_row_voffs(a, WV, 12)
    a(f"v_and_b32 v{WV+4}, 7, v0")
    a(f"v_lshlrev_b32 v{WV+4}, 12, v{WV+4}")
    a("v_bfe_u32 v1, v0, 3, 1")
    a(f"v_lshl_add_u32 v{WV+4}, v1, 7, v{WV+4}")
    a("s_lshl_b32 s92, s76, 3")
    a("s_add_u32 s92, s92, s77")
    a("s_lshl_b32 s92, s92, 15")
    a("s_add_u32 s92, s92, s59")
def wdma(st, v=2, ts=(0, 1)):
    P = []
    for t in ts:
        pre = [f"s_add_u32 s3, s93, {st}", "s_and_b32 s3, s3, 7", "s_lshl_b32 s3, s3, 7"]
        pre += [f"s_mov_b32 m0, s{72+t}", f"s_add_u32 s59, s3, s{74+t}"]
        for q in range(4):
            P.append(pre + [f"buffer_load_dwordx4 v{v+q}, {S4(WSP)}, s59 offen offset:{q*1024} lds"]); pre = []
    return P

def sp_setup_a(a):
    a("s_mov_b32 s54, s76")
    a("s_mov_b32 s55, s77")
    a("s_and_b32 s58, s55, 1")
    a("s_lshl_b32 s60, s54, 1")
    a("s_add_u32 s60, s60, s58")
    a("s_xor_b32 s61, s60, 1")
    a("s_lshr_b32 s59, s55, 1")
    a("s_mul_i32 s59, s59, 7")
    a("s_add_u32 s65, s59, 3")
    a("s_lshl_b32 s62, s58, 2")
    a("s_add_u32 s62, s62, s59")
    a("s_add_u32 s63, s62, 1")
    a("s_add_u32 s64, s62, 2")
    a("s_lshl_b32 s59, s57, 15")
    a(f"s_add_u32 s59, s59, {Z2F}")
    for i in range(4):
        a(f"s_lshl_b32 s{66+i}, s{62+i}, 17")
        a(f"s_add_u32 s{66+i}, s{66+i}, s59")
    srd(a, SB_, 16, 4096)
    a("v_lshlrev_b32 v1, 4, v0")
    for q in range(4): a(f"v_mov_b32 v{2+q}, v{WV+q}")
    swz_read_addrs(a, 6, 72, tmp=10)
    a("v_mov_b32 v14, 0")
    a("v_mov_b32 v15, 1")
    a("s_lshl_b32 s59, s57, 2")
    a("s_add_u32 s59, s59, 32")
    a("v_mov_b32 v13, s59")
    a("v_lshrrev_b32 v10, 4, v0")
    a("s_lshr_b32 s59, s62, 1")
    a("v_mov_b32 v18, s59")
    a("s_lshr_b32 s59, s64, 1")
    a("v_mov_b32 v16, s59")
    a("v_cmp_eq_u32 vcc, 1, v10")
    a("s_lshr_b32 s59, s65, 1")
    a("v_mov_b32 v17, s59")
    a("v_cndmask_b32 v18, v18, v16, vcc")
    a("v_cmp_eq_u32 vcc, 2, v10")
    a("s_lshl_b32 s59, s57, 3")
    a("s_and_b32 s3, s53, 7")
    a("v_cndmask_b32 v18, v18, v17, vcc")
    a("s_add_u32 s59, s59, s3")
    a("v_lshl_add_u32 v10, v18, 5, s59")
    a(f"v_mul_u32_u24 v10, {CST}, v10")
    a(f"v_add_u32 v10, {CNT - FLG + CZ*CST}, v10")
    a("v_and_b32 v16, 3, v0")
    a("s_lshr_b32 s59, s54, 1")
    a(f"s_add_u32 s59, s59, {CY}")
    a("v_lshl_add_u32 v12, v18, 4, s59")
    out_ids(a, 38, 39)
    a("s_lshl_b32 s59, s39, 4")
    a(f"s_add_u32 s59, s59, {CW - 48}")
    a("v_cmp_lt_u32 vcc, 47, v0")
    a("v_add_u32 v17, s59, v0")
    a("s_nop 0")
    a("v_cndmask_b32 v12, v12, v17, vcc")
    a(f"v_mul_u32_u24 v12, {CST}, v12")
    a("s_lshl_b32 s48, s39, 1")
    a("s_and_b32 s59, s57, 1")
    a("s_add_u32 s48, s48, s59")
    a("s_xor_b32 s49, s48, 1")
    a(f"s_mul_i32 s59, s57, {14*1024}")
    a(f"s_add_u32 s59, s59, {WF + 32*1024}")
    for i in range(2):
        a(f"s_mul_i32 s{48+i}, s{48+i}, {88*1024}")
        a(f"s_add_u32 s{48+i}, s{48+i}, s59")
def sp_setup_b(a):
    for n, (t, f) in enumerate(TILES):
        a(f"s_mul_i32 s59, s{60+t}, 28")
        a(f"s_add_u32 s59, s59, s{62+f}")
        a(f"s_lshl_b32 s59, s59, 11")
        a(f"s_add_u32 s{76+n}, s59, {Z1F}")
        a(f"s_mul_i32 s59, s{60+t}, 44")
        a(f"s_add_u32 s59, s59, s{62+f}")
        a(f"s_lshl_b32 s59, s59, 11")
        a(f"s_add_u32 s{83+n}, s59, {AF + 32*1024}")
    a("s_lshl_b32 s59, s52, 2")
    a("s_lshr_b32 s71, s53, 3")
    a("s_add_u32 s59, s59, s71")
    a("s_lshl_b32 s71, s59, 17")
    a("s_lshl_b32 s92, s57, 11")
    a("s_add_u32 s71, s71, s92")
    a(f"s_add_u32 s71, s71, {KVF}")
    a(f"s_and_b32 s58, s53, {7 if OPT.get('krot', 0) else 0}")
    a("s_lshl_b32 s58, s58, 14")

WUREG = [16, 20, 24, 28] + [48 + 16*ks + 4*f for f in range(4) for ks in range(4)] + list(range(224, 256, 4))
def g2_spatial(a):
    BSP = SB_
    WFR, ZS, ACC, T = 16, 48, 112, 224
    FV = 11
    if OPT["stamp"]:
        fine_flush(a); a(f"v_mov_b32 v{FV}, v{FINE['v']}"); FINE["v"] = FV
        fine_pool([4, 6, 8, 10, 12, 14, 16, 18, 20, 24, 26])
    def zbase(st):
        return [f"s_add_u32 s59, s93, {st}", "s_and_b32 s59, s59, 7", "s_lshl_b32 s59, s59, 12"] + \
               [f"s_add_u32 s{44+i}, s59, s{66+i}" for i in range(4)]
    zl = lambda ks, f: f"buffer_load_dwordx4 {vr(ZS + 16*ks + 4*f, 4)}, v1, {S4(WS)}, s{44+f} offen offset:{ks*1024} sc1"
    wset = lambda st: WFR if st % 2 == 0 else T
    def wread(st, ts=(0, 1)): return [f"ds_read_b128 {vr(wset(st) + 16*t + 4*ks, 4)}, v{6+ks} offset:{t*4096}" for ks in range(4) for t in ts]
    emit = lambda P: [a(l) for p in P for l in p]
    a("ds_write_b32 v13, v15 offset:128")
    if OPT.get("w0", 0) == 1:
        emit(wdma(0))
        a("s_waitcnt vmcnt(0)")
    for l in wread(0): a(l)
    lds_poll(a, "L_sc1", 14, OPT.get("sc1", 144), 224)
    emit(wdma(1))
    emit(kv_batch(1, 1))
    a("s_mov_b32 s50, 0x10001"); a("s_mov_b32 s51, 1")
    cnt_issue(a, 10, 252, "s[50:51]")
    a("s_waitcnt vmcnt(0)")
    a("ds_write_b32 v13, v15")
    fine(a, "kvl")
    cnt_pipe(a, "L_pz", 10, 252, None, 16, OPT.get("pdz", 2), first_issued=True)
    fine(a, "pz")
    for l in zbase(0): a(l)
    log = []
    for f in range(2):
        for ks in range(4): a(zl(ks, f)); log.append(("z", 0, ks, f))
    a("v_mov_b32 v10, 0")
    lds_poll(a, "L_sc2", 14, 160, 224)
    a("s_setprio 0")
    for f in range(2, 4):
        for ks in range(4): a(zl(ks, f)); log.append(("z", 0, ks, f))
    def wait_for(tag):
        idx = max(i for i, t in enumerate(log) if t == tag)
        a(f"s_waitcnt vmcnt({len(log) - 1 - idx})")
    def mm(st, f, ks):
        wait_for(("z", st, ks, f))
        for t in range(2 if f < 3 else 1):
            mfma(a, ACC + 16*TILES.index((t, f)), ZS + 16*ks + 4*f, wset(st) + 16*t + 4*ks, "0" if st + ks == 0 else None)
    kvq = kv_batch(2, 1) + kv_batch(3, 1)
    log[:0] = [("w", 1, 0), ("w", 1, 1)]
    for st in range(7):
        if st % 2 == 0: fine(a, f"s{st}")
        for l in zbase(st + 1): a(l)
        extra = []
        for f in range(4):
            for ks in range(4):
                j = 4*f + ks
                if j in (2, 8):
                    a("s_waitcnt lgkmcnt(0)")
                    if st < 6: extra = [(g, ("w", st + 2, j // 8), 1) for g in wdma(st + 2, ts=(j // 8,))]
                if j in (0, 6) and kvq: extra = [(kvq.pop(0), ("kv",), 2) for _ in range(2 if st == 0 else 1)]
                mm(st, f, ks)
                a(zl(ks, f)); log.append(("z", st + 1, ks, f))
                if st == 6 and j == 0:
                    a("s_mov_b32 s51, 0x07ff0001")
                    a("s_mov_b64 exec, s[50:51]")
                    a(f"buffer_atomic_add v10, v12, {S4(WS)}, s90 offen sc0 sc1"); log.append(("f",))
                    a("s_mov_b64 exec, -1")
                if extra:
                    g, tag, cnt = extra.pop(0)
                    for l in g: a(l)
                    log += [tag]*cnt
                if j in (0, 6):
                    wait_for(("w", st + 1, j // 6))
                    for l in wread(st + 1, (j // 6,)): a(l)
                    if j == 6 and st in (1, 3): a(f"ds_write_b32 v13, v15 offset:{8*(st+1)}")
                if st == 6 and j == 11:
                    wait_for(("f",))
                    a("s_setprio 2")
                    a("s_mov_b64 exec, s[50:51]")
                    a("v_cmp_gt_u32 vcc, 8, v10")
                    a("s_nop 1")
                    a("s_cmp_eq_u64 vcc, 0")
                    a("s_cbranch_scc1 L_pyd")
                    cnt_poll(a, "L_py", 12, 10, "vcc", 8, sleep=8)
                    a("v_and_b32 v2, 31, v0")
                    a("v_lshlrev_b32 v4, 2, v2")
                    a("v_lshlrev_b32 v2, 1, v2")
                    a("v_add_u32 v3, 0x10000, v1")
                    a("v_add_u32 v5, -16, v13")
                    lds_poll(a, "L_pa", 14, 0, 6)
                    a("s_setprio 0")
                    for t in range(2):
                        a(f"s_lshl_b32 s59, s{60+t}, 6")
                        a(f"buffer_load_ushort v{6+t}, v2, {S4(BSP)}, s59 offen")
                        a(f"s_lshl_b32 s{74+t}, s{60+t}, 7")
                        a(f"s_add_u32 s{74+t}, s{74+t}, {GG}")
                        a(f"buffer_load_dword v{8+t}, v4, {S4(WS)}, s{74+t} offen sc1")
                    log += [("b",)]*4
    a("s_lshl_b32 s66, s39, 1")
    a("s_lshr_b32 s59, s57, 1")
    a("s_add_u32 s66, s66, s59")
    a(f"s_mul_i32 s66, s66, {88*1024}")
    a("s_and_b32 s59, s57, 1")
    a("s_lshl_b32 s59, s59, 14")
    a("s_add_u32 s66, s66, s59")
    a(f"s_add_u32 s66, s66, {WF}")
    Z1R, B_, G_ = 32, 6, 8
    def gl():
        for t in range(2): a(f"buffer_load_dword v{G_+t}, v4, {S4(WS)}, s{74+t} offen sc1")
    owner = [0,0,0,0,1,1,1,1,2,2,2,3,3,3]
    def slot(n, src):
        si = src if src < owner[n] else src - 1
        ad = 2048 + (n*3 + si)*2048
        return (1, ad) if ad + 1024 < 65536 else (3, ad - 65536)
    st_ = json.dumps(FINE); log0 = list(log)
    for w in range(4):
        FINE.update(json.loads(st_)); log[:] = log0
        if w < 3:
            a(f"s_cmp_lg_u32 s57, {w}")
            a(f"s_cbranch_scc1 L_w{w+1}")
        mine = [n for n in range(14) if owner[n] == w]
        free = [ACC + 8*n for n in range(14) if owner[n] != w]
        U, CC = free[6], free[7]
        def writes(f):
            L = []
            for t in range(2 if f < 3 else 1):
                for n in (2*TILES.index((t, f)), 2*TILES.index((t, f)) + 1):
                    if owner[n] != w:
                        r, ad = slot(n, w)
                        L += [f"ds_write_b128 v{r}, {vr(ACC+8*n+4*i,4)} offset:{ad + 1024*i}" for i in range(2)]
            return L
        wn = [0]
        def wu():
            k = wn[0]; wn[0] += 1
            load4(a, WUREG[k], 1, f"s{48 + (k & 1)}", ((k >> 1) % 4)*1024); log.append(("u",))
            if k % 8 == 7:
                for i in range(2): a(f"s_add_u32 s{48+i}, s{48+i}, 4096")
        pend = []
        for f in range(4):
            for ks in range(4):
                mm(7, f, ks)
                if f == 0 and ks < len(mine):
                    load4(a, Z1R + 4*ks, 1, f"s{76 + (mine[ks]>>1)}", (mine[ks]&1)*1024); log.append(("y",))
                wu()
                if f == 1: wu()
                if ks == 1 and f > 0:
                    pend = writes(f - 1)
                    if f > 1: a("s_nop 3" if f == 2 else "s_nop 5")
                for _ in range(3):
                    if pend: a(pend.pop(0))
        fine(a, "mm")
        a("s_setprio 2")
        while wn[0] < 28: wu()
        a("s_nop 1")
        for l in writes(3): a(l)
        a("s_waitcnt lgkmcnt(0)")
        a("ds_write_b32 v5, v15")
        for g in range(2):
            a(f"s_add_u32 m0, s72, {g*4096}")
            a("s_nop 0")
            for i in range(4): a(f"buffer_load_dwordx4 v1, {S4(WS)}, s66 offen offset:{i*1024} sc1 lds")
            a("s_add_u32 s66, s66, 4096")
        log += [("o",)]*8
        wait_for(("y",))
        a(f"s_mov_b32 s91, {SPIN}")
        a.label(f"L_gp{w}")
        a(f"v_or_b32 v{U}, v{G_}, v{G_+1}")
        a(f"v_cmp_gt_i32 vcc, 0, v{U}")
        a("s_sub_u32 s91, s91, 1")
        a(f"s_cbranch_scc1 L_gp{w}d")
        a("s_cmp_eq_u64 vcc, 0")
        a(f"s_cbranch_scc1 L_gp{w}d")
        gl()
        a("s_waitcnt vmcnt(0)")
        a(f"s_branch L_gp{w}")
        a.label(f"L_gp{w}d")
        for t in range(2):
            a(f"v_sub_f32 v{CC+2*t}, 1.0, v{G_+t}")
            a(f"v_lshlrev_b32 v{B_+t}, 16, v{B_+t}")
            a(f"v_mul_f32 v{CC+1+2*t}, v{B_+t}, v{CC+2*t}")
        lds_poll(a, f"L_pb{w}", 14, 16, 6)
        fine(a, "pb")
        def rdp(i):
            n = mine[i]
            for si, src in enumerate([s_ for s_ in range(4) if s_ != w]):
                r, ad = slot(n, src)
                a(f"ds_read_b128 {vr(free[3*(i&1) + si], 4)}, v{r} offset:{ad}")
                a(f"ds_read_b128 {vr(free[3*(i&1) + si] + 4, 4)}, v{r} offset:{ad+1024}")
        rdp(0)
        for i, n in enumerate(mine):
            if i + 1 < len(mine):
                rdp(i + 1); a("s_waitcnt lgkmcnt(6)")
            else:
                a("s_waitcnt lgkmcnt(0)")
                a("ds_write_b32 v13, v15 offset:80")
            x = ACC + 8*n; t = TILES[n >> 1][0]
            for si in range(3):
                for p in range(0, 8, 2): a(f"v_pk_add_f32 {vr(x+p,2)}, {vr(x+p,2)}, {vr(free[3*(i&1) + si]+p,2)}")
            for p in range(0, 8, 2): a(f"v_pk_fma_f32 {vr(x+p,2)}, {vr(x+p,2)}, {vr(CC+2*t,2)}, {vr(CC+2*t,2)} op_sel:[0,0,1] op_sel_hi:[1,0,1]")
            for p in range(4):
                a(f"v_lshlrev_b32 v{U+2*p}, 16, v{Z1R+4*i+p}")
                a(f"v_and_b32 v{U+2*p+1}, 0xffff0000, v{Z1R+4*i+p}")
            for p in range(0, 8, 2): a(f"v_pk_mul_f32 {vr(x+p,2)}, {vr(x+p,2)}, {vr(U+p,2)}")
            o = Z1R + 4*i
            for p in range(4): a(f"v_cvt_pk_bf16_f32 v{o+p}, v{x+2*p}, v{x+2*p+1}")
            store4(a, o, 1, f"s{83 + (n>>1)}", (n&1)*1024)
        if w < 3:
            a("s_branch L_fin")
            a.label(f"L_w{w+1}")
    a.label("L_fin")

def out_ids(a, rp, nb):
    if OPT.get("fmap", 1):
        a(f"s_lshl_b32 s{rp}, s52, 2")
        a("s_and_b32 s59, s53, 3")
        a(f"s_add_u32 s{rp}, s{rp}, s59")
        a(f"s_lshr_b32 s{nb}, s53, 2")
    else:
        a(f"s_lshr_b32 s{rp}, s52, 1")
        a(f"s_lshl_b32 s{rp}, s{rp}, 3")
        a("s_and_b32 s59, s53, 7")
        a(f"s_add_u32 s{rp}, s{rp}, s59")
        a(f"s_and_b32 s{nb}, s52, 1")
        a(f"s_lshl_b32 s{nb}, s{nb}, 2")
        a("s_lshr_b32 s59, s53, 3")
        a(f"s_add_u32 s{nb}, s{nb}, s59")
def out_tiles(a, rp, cg):
    a(f"s_lshl_b32 s60, s{rp}, 1")
    a("s_lshr_b32 s59, s57, 1")
    a("s_add_u32 s60, s60, s59")
    a("s_xor_b32 s61, s60, 1")
    a(f"s_lshl_b32 s62, s{cg}, 1")
    a("s_and_b32 s59, s57, 1")
    a("s_add_u32 s62, s62, s59")
    a("s_xor_b32 s63, s62, 1")
def pair(a, reg, sb, ks, v=1, n=2):
    for i in range(n): load4(a, reg + 4*i, v, f"s{sb+i}", (ks % 4)*1024)
    if ks % 4 == 3:
        for i in range(n): a(f"s_add_u32 s{sb+i}, s{sb+i}, 4096")
WOL = (131072, 59392)
RED2, RED1 = 2048, 106496
def red_setup(a, grp, vl, vw, vr_, vo):
    def base(g, lam, v):
        a(f"s_xor_b32 s59, s57, {lam}")
        a(f"s_mul_i32 s59, s59, {14336 if g else 6144}")
        a(f"s_add_u32 s59, s59, {RED2 if g else RED1}")
        a(f"v_add_u32 v{v}, s59, v{vl}")
    for lam in range(4 if grp else 2): base(grp, lam, vw + lam)
    base(1 - grp, 0, vr_)
    a(f"v_and_b32 v{vo}, 31, v0")
    a(f"v_lshlrev_b32 v{vo}, 10, v{vo}")
    a(f"v_lshrrev_b32 v{vo+1}, 5, v0")
    a(f"v_lshl_add_u32 v{vo}, v{vo+1}, 4, v{vo}")
    a("s_lshl_b32 s76, s60, 15")
    a("s_lshl_b32 s59, s62, 6")
    a("s_add_u32 s76, s76, s59")
    srd(a, SC, 22, 2048*1024)
def red_final(a, grp, ACC, vw, vr_, vo, R):
    W = lambda lam, half, slot: [f"ds_write_b128 v{vw+lam}, {vr(ACC + 16*lam + 8*half + 4*i, 4)} offset:{slot*2048 + i*1024}" for i in range(2)]
    L = []
    if grp:
        for lam in (1, 2, 3): L += W(lam, 0, lam) + W(lam, 1, 3 + lam)
        L += W(0, 0, 0)
        src = [(vw, 4), (vw, 5), (vw, 6), (vr_, 1), (vr_, 2)]
    else:
        L += W(1, 0, 0) + W(1, 1, 2) + W(0, 1, 1)
        src = [(vw, 0), (vr_, 0), (vr_, 1), (vr_, 2), (vr_, 3)]
    for l in L: a(l)
    a("s_waitcnt lgkmcnt(0)")
    a("s_barrier")
    for j, (v, slot) in enumerate(src):
        for i in range(2): a(f"ds_read_b128 {vr(R + 8*j + 4*i, 4)}, v{v} offset:{slot*2048 + i*1024}")
    x = ACC + 8*grp
    for j in range(5):
        a(f"s_waitcnt lgkmcnt({8 - 2*j})")
        for p in range(0, 8, 2): a(f"v_pk_add_f32 {vr(x+p,2)}, {vr(x+p,2)}, {vr(R+8*j+p,2)}")
    for p in range(4): a(f"v_cvt_pk_bf16_f32 v{R+p}, v{x+2*p}, v{x+2*p+1}")
    a("s_nop 1")
    a(f"v_permlane32_swap_b32 v{R}, v{R+2}")
    a(f"v_permlane32_swap_b32 v{R+1}, v{R+3}")
    a(f"buffer_store_dwordx4 {vr(R,4)}, v{vo}, {S4(SC)}, s76 offen offset:{32*grp} {OPT.get('ost', '')}")

def g2_final(a):
    R, ACC = 176, 112
    D = 6
    fine(a, "u")
    fine_flush(a)
    out_tiles(a, 38, 39)
    a(f"s_mul_i32 s72, s57, {14*1024}")
    for i in range(2):
        a(f"s_mul_i32 s59, s{60+i}, {88*1024}")
        a(f"s_add_u32 s59, s59, s72")
        a(f"s_add_u32 s{64+i}, s59, {AF + 32*1024}")
    a("s_lshl_b32 s59, s38, 2")
    a("s_add_u32 s59, s59, s57")
    a("s_lshl_b32 s59, s59, 1")
    a("s_and_b32 s77, s39, 1")
    a("s_add_u32 s59, s59, s77")
    a(f"s_mul_i32 s59, s59, {CST}")
    a("v_mov_b32 v2, s59")
    a("s_lshl_b32 s77, s54, 3")
    a("s_and_b32 s59, s55, 6")
    a("s_add_u32 s77, s77, s59")
    a(f"v_mul_u32_u24 v10, {CST}, v0")
    assert CU == 0
    a("v_mov_b32 v3, v13")
    a("s_lshl_b32 s67, s57, 13")
    red_setup(a, 1, 1, 5, 9, 12)
    lds_poll(a, "L_prd", 14, 112, R)
    a("s_waitcnt vmcnt(0)")
    cnt_add(a, 77, 10, 15, 2)
    fine(a, "fu")
    a("s_setprio 0")
    for g in range(2):
        a(f"s_add_u32 m0, s67, {WOL[1] + g*4096}")
        a("s_nop 0")
        for i in range(4): a(f"buffer_load_dwordx4 v1, {S4(WS)}, s66 offen offset:{i*1024} sc1 lds")
        a("s_add_u32 s66, s66, 4096")
    a("s_setprio 2")
    cnt_issue(a, 2, 36, 1)
    a("s_waitcnt vmcnt(0)")
    a("ds_write_b32 v3, v15 offset:96")
    cnt_pipe(a, "L_pu", 2, 36, 1, 8, OPT.get("pd", 3), first_issued=True)
    fine(a, "pu")
    a("s_setprio 0")
    for ks in range(D): pair(a, R + 8*ks, 64, ks)
    if OPT.get("uwait", 0): lds_poll(a, "L_uw", 14, 96, 32)
    for ks in range(14):
        a(f"s_waitcnt vmcnt({2*min(13 - ks, D - 1)})")
        if ks in (0, 7): fine(a, f"u{ks}")
        for lam in (1, 2, 3, 0):
            mfma(a, ACC + 16*lam, WUREG[2*ks + (lam & 1)], R + 8*(ks % D) + 4*(lam >> 1), "0" if ks == 0 else None)
        if ks + D < 14: pair(a, R + 8*(ks % D), 64, ks + D)
    fine(a, "um")
    a("s_nop 7"); a("s_nop 1")
    red_final(a, 1, ACC, 5, 9, 12, 16)
    fine_dump(a, 4, 2)
    a("s_endpgm")

def g1_final(a):
    WO, AO, ACC = 16, 144, 208
    out_ids(a, 54, 55)
    out_tiles(a, 54, 55)
    a("s_and_b32 s72, s57, 1")
    a("s_lshl_b32 s73, s72, 14")
    a(f"s_mul_i32 s59, s60, {88*1024}")
    a(f"s_add_u32 s59, s59, s73")
    a(f"s_add_u32 s64, s59, {AF}")
    a("s_mul_i32 s59, s72, 24576")
    a(f"s_add_u32 s59, s59, {WOL[0]}")
    a("v_add_u32 v6, s59, v4")
    a("s_lshl_b32 s59, s72, 13")
    a(f"s_sub_u32 s59, {WOL[0] + 16384}, s59")
    a("v_add_u32 v7, s59, v4")
    for i in range(2): a(f"v_add_u32 v{2+i}, {(WOL[1] - WOL[0]) & 0xffffffff}, v{6+i}")
    a("s_lshl_b32 s59, s54, 1")
    a("s_add_u32 s59, s59, s72")
    a("s_lshl_b32 s59, s59, 1")
    a("s_lshr_b32 s72, s57, 1")
    a("s_add_u32 s59, s59, s72")
    a("s_lshl_b32 s59, s59, 1")
    a("s_and_b32 s72, s55, 1")
    a("s_add_u32 s59, s59, s72")
    a(f"s_mul_i32 s59, s59, {CST}")
    a(f"s_add_u32 s59, s59, {CNT - FLG + CO*CST}")
    a("v_mov_b32 v8, s59")
    red_setup(a, 0, 4, 10, 12, 13)
    a("v_mov_b32 v9, 0")
    a("s_waitcnt vmcnt(0)")
    cnt_add(a, 85, 63, 58, 4)
    fine(a, "fo")
    cnt_pipe(a, "L_po", 8, 244, 1, 16, OPT.get("pd", 3))
    fine(a, "po")
    for ks in range(16): pair(a, AO + 4*ks, 64, ks, v=4, n=1)
    lds_poll(a, "L_adn", 9, 96, 240)
    lds_poll(a, "L_wol", 9, 128, 240)
    def wr(ks):
        for lam in range(2): a(f"ds_read_b128 {vr(WO + 8*ks + 4*lam, 4)}, v{(6 if ks < 8 else 2)+lam} offset:{(ks % 8)*1024}")
    for ks in range(6): wr(ks)
    for ks in range(16):
        if ks + 6 < 16: wr(ks + 6)
        a(f"s_waitcnt vmcnt({15-ks}) lgkmcnt({2*min(6, 15-ks)})")
        for lam in (1, 0): mfma(a, ACC + 16*lam, WO + 8*ks + 4*lam, AO + 4*ks, "0" if ks == 0 else None)
    fine(a, "om")
    a("s_nop 7"); a("s_nop 2")
    red_final(a, 0, ACC, 10, 12, 13, 16)
    fine_dump(a, 0, 2)
    a("s_endpgm")

def clearer(a):
    a.label("L_clear")
    for r in range(12, 16): a(f"v_mov_b32 v{r}, -1")
    a("v_mov_b32 v16, 0")
    a(f"v_mul_u32_u24 v17, {CST}, v0")
    a("v_lshlrev_b32 v18, 3, v0")
    a(f"s_mul_i32 s59, s54, {64*CST}")
    a(f"s_add_u32 s59, s59, {CNT}")
    a(f"buffer_store_dword v16, v17, {S4(WS)}, s59 offen sc1")
    a(f"s_add_u32 s59, s59, {1024*CST}")
    a(f"buffer_store_dword v16, v17, {S4(WS)}, s59 offen sc1")
    a("s_lshl_b32 s59, s54, 9")
    a(f"s_add_u32 s59, s59, {GG}")
    a(f"buffer_store_dwordx2 v[12:13], v18, {S4(WS)}, s59 offen sc1")
    a("s_mul_i32 s59, s54, 14336")
    a(f"s_add_u32 s59, s59, {STATS}")
    for i in range(14):
        store4(a, 12, 9, "s59", (i % 4)*1024)
        if i % 4 == 3: a("s_add_u32 s59, s59, 4096")
    a("v_mov_b32 v17, 1")
    a("s_lshl_b32 s59, s54, 2")
    a("s_waitcnt vmcnt(0)")
    a("s_mov_b64 exec, 1")
    a(f"buffer_store_dword v17, v16, {S4(DBG)}, s59 offen sc1")
    a("s_mov_b64 exec, -1")
    a("s_branch L_noclr")

def g1_front(a):
    WFR, ACC, T = 32, 64, 8
    a("v_lshlrev_b32 v9, 4, v0")
    a("s_waitcnt lgkmcnt(0)")
    srd(a, WS, 26, WS_SIZE)
    srd(a, DBG, 24, 256)
    if OPT.get("pfc", 2) == 1:
        a("s_cmp_lg_u32 s57, 1")
        a("s_cbranch_scc1 L_nopc")
        a(f"s_getpc_b64 s[{SA}:{SA+1}]")
        a.label("L_pc")
        a(f"s_sub_u32 s{SA}, s{SA}, L_pc-{NAME}_kernel")
        a(f"s_subb_u32 s{SA+1}, s{SA+1}, 0")
        a(f"s_mov_b32 s{SA+2}, L_end-{NAME}_kernel")
        a(f"s_mov_b32 s{SA+3}, 0x20000")
        a("v_lshlrev_b32 v17, 7, v0")
        a("s_and_b32 s59, s53, 7")
        a("s_lshl_b32 s59, s59, 13")
        a(f"buffer_load_dword v125, v17, {S4(SA)}, s59 offen")
        a.label("L_nopc")
    a("s_lshl_b32 s59, s55, 2")
    a("s_add_u32 s59, s59, s57")
    a("s_cmp_eq_u32 s59, 60")
    a("s_cbranch_scc1 L_clear")
    a.label("L_noclr")
    fine_init(a, 127); fine_pool([4, 6, 8, 10, 14, 16, 18, 20, 24, 26, 36, 38, 40, 42, 48, 50])
    swz_read_addrs(a, 112, 60)
    tr_addr(a, 116, 11, 7, True, 16384)
    a("v_xor_b32 v117, 64, v116")
    tr_addr(a, 118, 9, 6, False, 32768)
    a("v_lshlrev_b32 v10, 2, v0")
    a("v_mov_b32 v11, 0")
    a("ds_write_b32 v10, v11")
    a0 = a; a = Asm()
    srd(a, SC, 12, 512*3584)
    a("v_and_b32 v126, 31, v0")
    a("v_mul_u32_u24 v126, 3584, v126")
    a("s_lshl_b32 s88, s62, 7")
    a("s_and_b32 s89, s58, 15")
    a(f"s_mul_i32 s89, s89, {32*3584}")
    a("s_add_u32 s89, s89, s88")
    a("s_lshl_b32 s80, s57, 11")
    if "pfw2" in OPT:
        srd(a, SB_, 14, 2048*4096)
        a("v_and_b32 v124, 15, v0")
        a("v_lshlrev_b32 v124, 12, v124")
        a("v_bfe_u32 v10, v0, 4, 1")
        a("v_lshl_add_u32 v124, v10, 7, v124")
        a("s_lshr_b32 s92, s52, 1")
        a("s_lshl_b32 s92, s92, 3")
        a("s_and_b32 s3, s53, 7")
        a("s_add_u32 s92, s92, s3")
        a("s_lshl_b32 s92, s92, 2")
        a("s_lshr_b32 s3, s53, 3")
        a("s_add_u32 s92, s92, s3")
        a("s_lshl_b32 s92, s92, 16")
        a("s_lshl_b32 s3, s57, 10")
        a("s_add_u32 s92, s92, s3")
    relayout_load(a)
    a.lines[:] = [l.replace("s59", "s75") for l in a.lines]
    a("v_and_b32 v120, 0x33, v0")
    a("v_bfe_u32 v1, v0, 2, 1")
    a("v_lshl_or_b32 v120, v1, 3, v120")
    a("v_bfe_u32 v1, v0, 3, 1")
    a("v_lshl_or_b32 v120, v1, 2, v120")
    a("v_lshlrev_b32 v120, 4, v120")
    a("v_and_b32 v121, 15, v0")
    a("v_lshrrev_b32 v1, 5, v0")
    a("v_lshl_or_b32 v121, v1, 4, v121")
    a("v_lshlrev_b32 v121, 4, v121")
    a("v_bfe_u32 v1, v0, 4, 1")
    a("v_lshl_or_b32 v121, v1, 17, v121")
    a("s_lshl_b32 s59, s55, 7")
    a("s_add_u32 s59, s59, s58")
    a("s_lshl_b32 s70, s59, 11")
    a(f"s_add_u32 s70, s70, {KVF}")
    a("s_lshr_b32 s59, s55, 1")
    a("s_lshl_b32 s59, s59, 8")
    a("s_add_u32 s59, s59, s58")
    a("s_lshl_b32 s64, s59, 11")
    a(f"s_add_u32 s64, s64, {KVF}")
    a("s_mov_b32 s68, 131072")
    a("v_mov_b32 v122, 1.0")
    a("s_bitcmp1_b32 s55, 0")
    a("s_cbranch_scc1 L_isk")
    a("s_lshl_b32 s64, s59, 10")
    if QF: a(f"s_add_u32 s64, s64, {QF}")
    a("s_mov_b32 s68, 65536")
    a(f"v_mov_b32 v122, {f32(QSCALE)}")
    a("v_mov_b32 v120, v9")
    a.label("L_isk")
    for i in range(3): a(f"s_add_u32 s{65+i}, s{64+i}, s68")
    a("s_lshr_b32 s71, s55, 1")
    a("s_lshl_b32 s71, s71, 4")
    a("s_and_b32 s59, s54, 12")
    a("s_add_u32 s71, s71, s59")
    a("s_lshl_b32 s71, s71, 1")
    a(f"s_add_u32 s71, s71, {CQ}")
    a("v_and_b32 v123, 15, v0")
    a("v_lshlrev_b32 v123, 2, v123")
    g1_att_setup(a)
    a("s_mul_i32 s69, s58, 28")
    a("s_lshl_b32 s59, s62, 1")
    a("s_add_u32 s69, s69, s59")
    a("s_lshl_b32 s69, s69, 11")
    a(f"s_add_u32 s69, s69, {Z1F}")
    a("s_lshl_b32 s77, s62, 4")
    a("s_add_u32 s77, s77, s54")
    a(f"s_add_u32 s77, s77, {CY}")
    a(f"s_add_u32 s59, s2, {CY + 256}")
    a("s_cmp_eq_u32 s61, 7")
    a(f"s_cselect_b32 s69, {WS_SIZE}, s69")
    a("s_cselect_b32 s77, s59, s77")
    units = []; hold = False
    for l in a.lines:
        if hold or re.match(r"\s*s_(cselect|cbranch|addc|subb)", l): units[-1].append(l)
        else: units.append([l])
        if "s_cbranch" in l or " m0," in l: hold = True
        if l.endswith(":") or "offset:1024 lds" in l: hold = False
    a = a0
    rl = next(u for u in units if " m0," in u[0]); units.remove(rl)
    if not OPT.get("su1", 1):
        for u in units:
            for l in u: a.raw(l)
        units = []
    a("s_waitcnt lgkmcnt(0)")
    fine(a, "setup")
    win = Win(range(112, 119), 16384)
    def reads(n):
        c, ks = n >> 2, n & 3
        pre, so = win.at(slot_of(c))
        R = [f"ds_read_b128 {vr(XF + 4*n, 4)}, v{112+ks} offset:{so}"]
        for t in range(2):
            for v in range(2):
                R.append(f"ds_read_b64_tr_b16 {vr(WFR + 12*(n&1) + 4*t + 2*v, 2)}, v{116+t} offset:{so + ks*4096 + v*512}")
        for v in range(2):
            R.append(f"ds_read_b64_tr_b16 {vr(WFR + 12*(n&1) + 8 + 2*v, 2)}, v118 offset:{so + ks*1024 + v*256}")
        return pre, R
    a("s_barrier")
    pre, R = reads(0)
    for l in pre + R: a(l)
    for n in range(32):
        ks = n & 3
        xf = XF + 4*n; wf = WFR + 12*(n&1); c0 = "0" if n == 0 else None
        M = lambda t: mfma(a, ACC + 16*t, wf + 4*t, xf, c0) if t < 2 else mfma(a, ACC + 32, xf, wf + 8, c0)
        pre, R = reads(n + 1) if n < 31 else ([], [])
        a("s_waitcnt lgkmcnt(4)")
        M(0)
        if n == 31:
            a("s_waitcnt lgkmcnt(2)"); M(1)
            a("s_waitcnt lgkmcnt(0)"); M(2)
            break
        if ks == 3: a("s_barrier")
        if n == 25: poll_issue(a, 123, 124, srd_=DBG, soff="0")
        if n == OPT.get("rlp", 12):
            for l in rl: a.raw(l)
        for pos, v, srd_, so in ((OPT.get("pfz2", (99, 99)), 126, SC, 89), (OPT.get("pfw2", (99, 99)), 124, SB_, 92)):
            for h in range(2):
                if n == pos[h]:
                    a(f"s_mov_b32 exec_lo, {0xffff << (16*h)}")
                    a("s_mov_b32 exec_hi, 0")
                    a(f"buffer_load_dword v125, v{v}, {S4(srd_)}, s{so} offen")
                    a("s_mov_b64 exec, -1")
        for l in pre + R[0:3]: a(l)
        a("s_waitcnt lgkmcnt(5)"); M(1)
        if OPT.get("rd1", 1):
            for l in R[3:5]: a(l)
            a("s_waitcnt lgkmcnt(5)"); M(2)
            for l in R[5:7]: a(l)
        else:
            for l in R[3:7]: a(l)
            a("s_waitcnt lgkmcnt(7)"); M(2)
        for _ in range(OPT.get("sup1", 14)):
            if units:
                for l in units.pop(0): a.raw(l)
    assert not units
    fine(a, "p1")
    a("s_nop 7")
    for t in range(3):
        acc = ACC + 16*t
        if t < 2:
            for p in range(16): a(f"v_mul_f32 v{acc+p}, v{acc+p}, v122")
        for p in range(8): a(f"v_cvt_pk_bf16_f32 v{T+8*t+p}, v{acc+2*p}, v{acc+2*p+1}")
        for h in range(2):
            if t < 2: store4(a, T + 8*t + 4*h, 120, f"s{64 + 2*t + h}")
            else: store4(a, T + 8*t + 4*h, 121, "s70", 1024 + 512*h)
    fine(a, "st")
    tr_addr(a, 116, 10, 7, True, slot_of(8), tmp=118)
    a("v_xor_b32 v117, 64, v116")
    a(f"v_mov_b32 v112, {f32(GC1)}")
    a(f"v_mov_b32 v113, {f32(GC2)}")
    relayout_offsets(a)
    a("s_waitcnt vmcnt(6)")
    relayout_read(a, 96)
    a("v_cmp_eq_u32 vcc, 0, v124")
    a("s_waitcnt lgkmcnt(0)")
    a("s_cmp_eq_u64 vcc, 0")
    a("s_cbranch_scc1 L_clr1d")
    poll_flags(a, "L_clr1", 123, 124, srd_=DBG, soff="0")
    a("ds_write_b32 v59, v58 offset:192")
    G9 = OPT.get("g9", 0)
    if G9:
        srd(a, SC, 12, 512*3584)
        a("v_lshrrev_b32 v118, 2, v0")
        a("v_and_b32 v118, 4, v118")
        a("v_and_b32 v120, 7, v0")
        a("v_xor_b32 v120, v120, v118")
        a("v_lshrrev_b32 v118, 3, v0")
        a("v_mul_u32_u24 v118, 3584, v118")
        a("v_lshl_add_u32 v120, v120, 4, v118")
        for q in (1, 2, 3): a(f"v_add_u32 v{120+q}, {q*(8*3584-1024)}, v120")
        a("s_add_u32 s64, s63, 4")
        a("s_add_u32 s64, s64, s57")
        a("s_and_b32 s64, s64, 7")
        a(f"s_mul_i32 s64, s64, {64*3584}")
        a("s_lshl_b32 s59, s62, 7")
        a("s_add_u32 s64, s64, s59")
        a("s_lshl_b32 s65, s57, 13")
    a("s_mov_b32 s66, 0")
    EARLY = OPT.get("early", 0)
    def arrive():
        a("s_waitcnt vmcnt(0)")
        cnt_add(a, 71, 63, 58, 8)
    if not EARLY:
        arrive(); fine(a, "ack")
    else: a("s_mov_b32 s67, 0")
    a("s_cmp_eq_u32 s61, 7")
    a("s_cbranch_scc1 L_noz1")
    if G9:
        for h in range(2):
            a(f"s_add_u32 m0, s65, {slot_of(9) + h*4096}")
            a(f"s_add_u32 s59, s64, {h*32*3584}")
            for q in range(4): a(f"buffer_load_dwordx4 v{120+q}, {S4(SC)}, s59 offen offset:{q*1024} lds")
    lds_poll(a, "L_bz0", 60, 176, 104)
    fine(a, "bZ")
    def rd(n, t):
        if n == 16: a(f"v_add_u32 v{116+t}, {SLOT}, v{116+t}")
        for v in range(2):
            a(f"ds_read_b64_tr_b16 {vr(WFR + 8*(n%3) + 4*t + 2*v, 2)}, v{116+t} offset:{(n%16)*2048 + v*512}")
    b = Asm(); att_init(b); ini = list(b.lines)
    for n in range(2):
        for t in range(2): rd(n, t)
    Q1, Q2 = OPT.get("q1", 10), OPT.get("q2", 21)
    for n in range(32):
        for t in range(2):
            a(f"s_waitcnt lgkmcnt({min(6, 2*(63 - 2*n - t))})")
            mfma(a, ACC + 16*t, WFR + 8*(n%3) + 4*t, XF + 4*n, "0" if n == 0 else None)
            if n == 14 and t == 0: lds_poll(a, "L_g9", 60, 208 if G9 else 192, 104)
            if n + 2 < 32: rd(n + 2, t)
            if n >= 17:
                for _ in range(3 if n < 19 else 2 if n < 27 else 4):
                    if ini: a(ini.pop(0))
        if EARLY and 2 <= n <= EARLY and n % 2 == 0:
            a("s_cmp_lg_u32 s67, 0")
            a(f"s_cbranch_scc1 L_ar{n}")
            if n + 2 <= EARLY:
                a("s_getreg_b32 s3, hwreg(HW_REG_IB_STS, 0, 4)")
                a("s_cmp_lg_u32 s3, 0")
                a(f"s_cbranch_scc1 L_ar{n}")
            a("s_mov_b32 s67, 1")
            arrive()
            if n == 2: fine(a, "ack"); ackp = FINE["pend"][-1] if OPT["stamp"] else 0
            elif OPT["stamp"]: a(f"s_memrealtime s[{ackp}:{ackp+1}]")
            a.label(f"L_ar{n}")
        if n == Q1:
            if G9:
                a("s_waitcnt vmcnt(0)")
                a("ds_write_b32 v59, v58 offset:208")
            cnt_issue(a, 61, 114, 15); a("s_mov_b64 exec, -1")
        if n == Q2: att_try(a, "a")
    assert not ini
    a(f"s_setprio {OPT.get('g1p', 3)}")
    for r in range(8): a(f"v_mov_b32 v{48+r}, v{96+r}")
    fine(a, "z1")
    att_try(a, "b")
    z1_gelu(a, 0)
    if OPT.get("try3"): att_try(a, "e")
    z1_gelu(a, 1)
    a("s_branch L_z1d")
    a.label("L_noz1")
    if EARLY: arrive()
    att_init(a)
    for r in range(8): a(f"v_mov_b32 v{48+r}, v{96+r}")
    lds_poll(a, "L_bz5", 60, 176, 104)
    lds_poll(a, "L_bz6", 60, 192, 104)
    cnt_issue(a, 61, 114, 15)
    a.label("L_z1d")
    fine(a, "g1")

def att_loads(a, L):
    a("s_add_u32 s59, s79, s76")
    load4(a, KS, 4, "s59")
    load4(a, Q, 4, "s78")
    load4(a, Q + 4, 4, "s78", 1024)
    for n, g in enumerate(kv_batch(0, 4, 80, 81, 76)):
        for l in g[:-2]: a(l)
        if n == 0:
            a("s_cmp_eq_u32 s57, 0")
            a(f"s_cbranch_scc1 L_skipk0{L}")
        a(g[-2])
        if n == 0: a.label(f"L_skipk0{L}")
        a(g[-1])
def att_try(a, L):
    a("s_cmp_lg_u32 s66, 0")
    a(f"s_cbranch_scc1 L_try{L}d")
    a("s_waitcnt vmcnt(0)")
    a("v_cmp_gt_u32 s[64:65], 32, v114")
    a("s_nop 0")
    a("s_and_b32 s64, s64, 15")
    a(f"s_cbranch_scc1 L_try{L}n")
    a("s_mov_b32 s66, 1")
    a("ds_write_b32 v59, v58 offset:80")
    att_loads(a, L)
    a(f"s_branch L_try{L}d")
    a.label(f"L_try{L}n")
    cnt_issue(a, 61, 114, 15); a("s_mov_b64 exec, -1")
    a.label(f"L_try{L}d")

Q, KS, VS, S_, NM, O_, T_ = 8, 16, 160, 64, 128, 200, 232
def att_init(a):
    T = 115
    a(f"v_and_b32 v{T}, 27, v0")
    a(f"v_cmp_eq_u32 vcc, 16, v{T}")
    a(f"v_mov_b32 v{T}, 0x3f803f80")
    a("s_nop 0")
    a(f"v_cndmask_b32 v{VS}, 0, v{T}, vcc")
    for r in range(VS + 1, VS + 32): a(f"v_mov_b32 v{r}, v{VS}")
    for r in range(O_, O_ + 32): a(f"v_mov_b32 v{r}, 0")
def z1_gelu(a, ti):
    x = 64 + 16*ti
    for l in gelu_list(x, 96, 112, 113): a(l)
    for p in range(8): a(f"v_cvt_pk_bf16_f32 v{32+8*ti+p}, v{x+2*p}, v{x+2*p+1}")
def g1_att_setup(a):
    T = 62
    a("s_lshl_b32 s72, s52, 2")
    a("s_lshr_b32 s59, s53, 3")
    a("s_add_u32 s72, s72, s59")
    a("s_and_b32 s74, s53, 7")
    a("s_lshl_b32 s73, s74, 3")
    a("s_lshl_b32 s59, s57, 1")
    a("s_add_u32 s73, s73, s59")
    a("s_lshl_b32 s78, s72, 6")
    a("s_add_u32 s78, s78, s73")
    a("s_lshl_b32 s78, s78, 10")
    if QF: a(f"s_add_u32 s78, s78, {QF}")
    a("s_lshl_b32 s79, s72, 17")
    a(f"s_add_u32 s79, s79, {KVF}")
    a("s_lshl_b32 s80, s57, 11")
    a("s_add_u32 s81, s79, s80")
    a(f"s_and_b32 s76, s53, {7 if OPT.get('krot', 0) else 0}")
    a("s_lshl_b32 s76, s76, 14")
    a("s_lshl_b32 s82, s73, 7")
    a(f"s_add_u32 s82, s82, {GG}")
    a("s_mov_b32 s86, 0xffff")
    a("s_mov_b32 s87, 0xffff")
    a("s_mul_i32 s83, s73, 88")
    a("s_add_u32 s83, s83, s72")
    a("s_lshl_b32 s83, s83, 10")
    a(f"s_add_u32 s83, s83, {AF}")
    a(f"s_add_u32 s84, s83, {88*1024}")
    a("s_lshr_b32 s85, s72, 4")
    a("s_add_u32 s85, s85, s73")
    a("s_lshl_b32 s85, s85, 2")
    a(f"s_add_u32 s85, s85, {CO}")
    a("v_lshlrev_b32 v4, 4, v0")
    a("v_and_b32 v5, 31, v0")
    a("s_lshr_b32 s59, s72, 2")
    a("s_lshl_b32 s59, s59, 5")
    a("s_add_u32 s59, s59, s74")
    a(f"s_add_u32 s59, s59, {CQ}")
    a("v_lshl_add_u32 v61, v0, 3, s59")
    a(f"v_mul_u32_u24 v61, {CST}, v61")
    a(f"v_mul_u32_u24 v63, {CST}, v0")
    a("v_lshlrev_b32 v5, 2, v5")
    a("v_mov_b32 v3, 0xdddd")
    a("v_mov_b32 v1, v4")
    a("v_and_b32 v2, 15, v0")
    a(f"v_lshrrev_b32 v{T}, 5, v0")
    a(f"v_lshl_or_b32 v2, v{T}, 4, v2")
    a("v_lshlrev_b32 v2, 4, v2")
    a("v_add_u32 v2, 1024, v2")
    a("v_add_u32 v56, 0x10000, v1")
    a("v_add_u32 v57, 0x10000, v2")
    a("v_mov_b32 v58, 1")
    a("s_lshl_b32 s59, s57, 2")
    a("v_mov_b32 v59, s59")
    a("v_mov_b32 v60, 0")

def g1_att(a):
    S, O, T = S_, O_, T_
    a("s_cmp_lg_u32 s66, 0")
    a("s_cbranch_scc1 L_ldone")
    a("s_lshl_b64 exec, 1, s57")
    cnt_pipe(a, "L_pq", 61, 114, None, 32, OPT.get("pd", 3), first_issued=True)
    a("ds_write_b32 v59, v58 offset:80")
    lds_poll(a, "L_pq2", 60, 80, T)
    att_loads(a, "c")
    a.label("L_ldone")
    if OPT["stamp"]:
        a("v_mov_b32 v250, v127"); FINE["v"] = 250; fine_flush(a)
    fine(a, "pq")
    kreg = lambda kt: KS + 4*(kt & 3)
    vreg = lambda kt: VS + 8*(kt & 3)
    def rd(kts, skipk=()):
        L = []
        for kt in kts:
            if kt not in skipk:
                L.append(f"ds_read_b128 {vr(kreg(kt),4)}, v{1 if kt < 32 else 56} offset:{(kt % 32)*2048}")
        L.append("s_mov_b64 exec, s[86:87]")
        for kt in kts:
            for s_ in range(2):
                L.append(f"ds_read_b128 {vr(vreg(kt)+4*s_,4)}, v{2 if kt < 32 else 57} offset:{(kt % 32)*2048 + s_*512}")
        L.append("s_mov_b64 exec, -1")
        return L
    a("s_waitcnt vmcnt(7)")
    mfma(a, S, KS, Q, "0")
    mfma(a, S + 16, KS, Q + 4, "0")
    a("s_nop 7"); a("s_nop 2")
    for q in (0, 1):
        s_, d = S + 16*q, T + q
        a(f"v_max3_f32 v{d}, v{s_}, v{s_+1}, v{s_+2}")
        for p in range(3, 15, 2): a(f"v_max3_f32 v{d}, v{d}, v{s_+p}, v{s_+p+1}")
        a(f"v_max_f32 v{d}, v{d}, v{s_+15}")
        halfsum(a, d, T + 2, "v_max_f32")
        for r in range(16): a(f"v_sub_f32 v{NM + 16*q + r}, 0, v{d}")
        a("s_nop 1")
        mfma(a, s_, KS, Q + 4*q, NM + 16*q)
        if q == 0:
            a("s_waitcnt vmcnt(0)")
            a("ds_write_b32 v59, v58 offset:144")
    lds_poll(a, "L_kv0", 60, 144, T)
    fine(a, "kv")
    for l in rd([0, 1, 2, 3], skipk=(0,)): a(l)
    a("s_setprio 0")
    SB = [S, S + 16, S + 32]
    sb = lambda k: SB[k % 3]
    QK = lambda k: mfma_s(sb(k), kreg(k >> 1), Q + 4*(k & 1), NM + 16*(k & 1))
    PV = lambda k, h: f"v_smfmac_f32_32x32x32_bf16 {vr(O+16*(k&1),16)}, {vr(vreg(k>>1)+4*h,4)}, {vr(sb(k)+8*h,8)}, v3"
    def gl(): return [f"buffer_load_dword v6, v5, {S4(WS)}, s82 offen sc1", f"buffer_load_dword v7, v5, {S4(WS)}, s82 offen offset:128 sc1"]
    z0, zd = OPT.get("z1s", 21), OPT.get("z1d", 6)
    late = {z0 + zd*i: [f"buffer_store_dwordx4 {vr(32 + 4*i, 4)}, v4, {S4(WS)}, {'s69' if i < 4 else 's%d' % (84 + i)} offen offset:{(i % 4)*1024 if i < 4 else 0} sc1"] for i in range(6)}
    late[z0 + zd*6 + 4] = ["KV1"]
    ev = []
    for k in range(0, 129):
        kt = k >> 1
        post = []
        if k % 4 == 0 and kt + 2 < 64:
            if (kt + 2) % 16 == 0: post.append("KVCHECK")
            post += rd([kt + 2, kt + 3])
            if (kt + 4) % 16 == 0 and kt + 4 < 64: post.append(f"ds_read_b128 {vr(T,4)}, v60 offset:{16 + kt + 4}")
        if k % 4 == 2 and kt + 1 < 64:
            post.append("s_waitcnt lgkmcnt(0)")
            if kt == 45: post.append("ds_write_b32 v59, v58")
            if kt == 51: post += gl()
        if k > 0: ev.append([PV(k - 1, 1), 16*k + 2, post, k])
        if k + 2 < 128: ev.append([QK(k + 2), 0, late.get(k, []), k])
        if k < 128: ev.append([PV(k, 0), 16*k + 10, [], k])
    gaps = OPT.get("gaps", (3, 6, 9))
    pos = 0; p = 7
    for i, (ins, lo, post, k) in enumerate(ev):
        if i > 0: p = next((p + g for g in gaps if p + g >= lo), max(lo, p + gaps[0]))
        p = min(p, 2048)
        while pos < p:
            if pos % 256 == 0: fine(a, f"k{pos//16}")
            a(f"v_exp_f32 v{sb(pos>>4) + (pos&15)}, v{sb(pos>>4) + (pos&15)}"); pos += 1
        if lo > 2048: a("s_nop 1")
        if i == 0: a("s_waitcnt lgkmcnt(0)")
        if ins.startswith("v_mfma"): assert p <= 16*(k + 2) - 12, (k, p)
        a(ins)
        for l in post:
            if l == "KVCHECK":
                a(f"v_min3_u32 v{T}, v{T}, v{T+1}, v{T+2}")
                a(f"v_and_b32 v{T}, v{T}, v{T+3}")
                a(f"v_cmp_eq_u32 vcc, 0, v{T}")
                a("s_nop 0")
                a("s_cmp_eq_u64 vcc, 0")
                a(f"s_cbranch_scc1 L_kvp{k}d")
                lds_poll(a, f"L_kvp{k}", 60, 16 + (k + 4) // 2, T)
            elif l == "KV1":
                a("s_waitcnt vmcnt(0)")
                cnt_add(a, 77, 60, 58, 2)
                cnt_add(a, 93, 60, 58, 1)
            else: a(l)
    assert pos == 2048
    a("s_setprio 3")
    a(f"s_mov_b32 s70, {f32(2.0**64)}")
    a(f"s_mov_b32 s71, {f32(2.0**-64)}")
    a(f"s_mov_b32 s91, {SPIN}")
    a.label("L_ag")
    a("s_waitcnt vmcnt(0)")
    a(f"v_or_b32 v{T}, v6, v7")
    a(f"v_cmp_gt_i32 vcc, 0, v{T}")
    a("s_sub_u32 s91, s91, 1")
    a("s_cbranch_scc1 L_agd")
    a("s_cmp_eq_u64 vcc, 0")
    a("s_cbranch_scc1 L_agd")
    for l in gl(): a(l)
    a("s_branch L_ag")
    a.label("L_agd")
    a("s_nop 4")
    a(f"v_max_f32 v{T}, v{O+8}, v{O+24}")
    a(f"v_min_f32 v{T+1}, v{O+8}, v{O+24}")
    a(f"v_add_f32 v{T+2}, v{O+8}, v{O+24}")
    a(f"v_cmp_gt_f32 s[72:73], s70, v{T}")
    a(f"v_cmp_lt_f32 s[74:75], s71, v{T+1}")
    a(f"v_cmp_o_f32 vcc, v{T+2}, v{T+2}")
    a("s_nop 1")
    a("s_and_b64 s[72:73], s[72:73], s[74:75]")
    a("s_and_b64 s[72:73], s[72:73], vcc")
    a("s_cmp_eq_u64 s[72:73], -1")
    a("s_cbranch_scc0 L_slow")
    a.label("L_afin")
    fine(a, "fin")
    for q in range(2):
        o = O + 16*q
        a(f"v_rcp_f32 v{T}, v{o+8}")
        a("s_nop 0")
        a(f"v_mul_f32 v{T}, v{T}, v{6+q}")
        for r in range(8): a(f"v_mul_f32 v{o+r}, v{o+r}, v{T}")
        for p in range(4): a(f"v_cvt_pk_bf16_f32 v{T+4+4*q+p}, v{o+2*p}, v{o+2*p+1}")
        store4(a, T + 4 + 4*q, 4, "s83" if q == 0 else "s84")
    a("ds_write_b32 v59, v58 offset:96")
    g1_final(a)
    a.label("L_slow")
    a(f"v_mov_b32 v{T}, 0xff800000")
    a(f"v_mov_b32 v{T+1}, 0xff800000")
    a("s_mov_b32 s81, s79")
    a("s_mov_b32 s69, 64")
    a.label("L_s1")
    load4(a, KS, 4, "s81")
    a("s_waitcnt vmcnt(0)")
    mfma(a, S, KS, Q, "0")
    mfma(a, S + 16, KS, Q + 4, "0")
    a("s_nop 7"); a("s_nop 3")
    for q in range(2):
        for p in range(0, 16, 2): a(f"v_max3_f32 v{T+q}, v{T+q}, v{S+16*q+p}, v{S+16*q+p+1}")
    a("s_add_u32 s81, s81, 2048")
    a("s_sub_u32 s69, s69, 1")
    a("s_cmp_lg_u32 s69, 0")
    a("s_cbranch_scc1 L_s1")
    for q in range(2): halfsum(a, T + q, T + 2, "v_max_f32")
    for r in range(O, O + 32): a(f"v_mov_b32 v{r}, 0")
    a("s_mov_b32 s81, s79")
    a("s_mov_b32 s69, 64")
    a.label("L_s2")
    load4(a, KS, 4, "s81")
    a("s_mov_b64 exec, s[86:87]")
    load4(a, VS, 2, "s81")
    load4(a, VS + 4, 2, "s81", 512)
    a("s_mov_b64 exec, -1")
    a("s_waitcnt vmcnt(0)")
    mfma(a, S, KS, Q, "0")
    mfma(a, S + 16, KS, Q + 4, "0")
    a("s_nop 7"); a("s_nop 3")
    for q in range(2):
        for p in range(16): a(f"v_sub_f32 v{S+16*q+p}, v{S+16*q+p}, v{T+q}")
        for p in range(16): a(f"v_exp_f32 v{S+16*q+p}, v{S+16*q+p}")
    a("s_nop 1")
    for q in range(2):
        for s_ in range(2):
            a(f"v_smfmac_f32_32x32x32_bf16 {vr(O+16*q,16)}, {vr(VS+4*s_,4)}, {vr(S+16*q+8*s_,8)}, v3")
    a("s_add_u32 s81, s81, 2048")
    a("s_sub_u32 s69, s69, 1")
    a("s_cmp_lg_u32 s69, 0")
    a("s_cbranch_scc1 L_s2")
    a("s_nop 7"); a("s_nop 3")
    a("s_branch L_afin")

def main():
    ref = open(f"cdna_kernels/{NAME}.s.ref").read().split("\n")
    out = [l for l in ref if l.startswith(";") and "@launch" not in l]
    k = NAME + "_kernel"
    out.append("; @launch grid=(256,1,1) block=(512,1,1) lds=163840")
    out += ['.amdgcn_target "amdgcn-amd-amdhsa--gfx950"', ".text"]
    a = Asm(); gen(a)
    bad = check(a.lines, k)
    out += [f".globl {k}", ".p2align 8", f".type {k},@function", f"{k}:"] + a.lines
    out += ['.section .rodata,"a"', ".p2align 6", f".amdhsa_kernel {k}", "  .amdhsa_next_free_vgpr 256", "  .amdhsa_next_free_sgpr 102",
            "  .amdhsa_accum_offset 256", "  .amdhsa_group_segment_fixed_size 0", "  .amdhsa_kernarg_size 96",
            "  .amdhsa_user_sgpr_count 2", "  .amdhsa_user_sgpr_kernarg_segment_ptr 1", "  .amdhsa_system_sgpr_workgroup_id_x 1",
            "  .amdhsa_float_denorm_mode_32 3", ".end_amdhsa_kernel"]
    open(sys.argv[1], "w").write("\n".join(out) + "\n")
    if OPT["stamp"]: json.dump(NAMES, open(sys.argv[1] + ".json", "w"))
    print("hazards:", bad, "lines:", len(out))
main()
```

```python
import sys, struct, re, json
from asmlib import Asm, vr, sr, check

NAME = "gated_mix__softmax_full_mha__mixer_gmlp__prompt"
MB = 1 << 20
QF, KVF, Z1F, Z2F, AF, WF = 0, 2*MB, 6*MB, 10*MB, 14*MB, 20*MB
GG = 22*MB
STATS = 22*MB + 65536
FLG = 22*MB + 512*1024
CNT = FLG
CU, CS, CZ, CW, CY, CQ, CO = 0, 256, 384, 896, 1024, 1536, 1792
WS_SIZE = 28*MB
def f32(x): return "0x%08x" % struct.unpack("<I", struct.pack("<f", x))[0]
LOG2E = 1.4426950408889634
QSCALE = 0.25 * LOG2E
GC1 = -2.0 * LOG2E * 0.7978845608028654
GC2 = GC1 * 0.044715
SPIN = 1 << 16
SLOT = 36864
GSCR = 148480
SCR = 114688

OPT = dict(stamp=False, pfz2=(1, 5), pfw2=(3, 12), rlp=8, rotm=5)
for a_ in sys.argv[2:]:
    k_, v_ = a_.split("=")
    OPT[k_] = eval(v_)

SLP = OPT.get("slp", 2)
CST = OPT.get("cst", 256)
WS, DBG, SA, SB_, SC, SD = 28, 32, 36, 40, 44, 48
def srd(a, d, p, size):
    a(f"s_mov_b32 s{d}, s{p}")
    a(f"s_mov_b32 s{d+1}, s{p+1}")
    a(f"s_mov_b32 s{d+2}, {size}")
    a(f"s_mov_b32 s{d+3}, 0x20000")
def S4(d): return f"s[{d}:{d+3}]"

FINE = dict(n=0, pool=[], names=[])
NAMES = {}
def fine_init(a, v):
    FINE["n"] = 0; FINE["names"] = []; FINE["v"] = v; FINE["pend"] = []; FINE["pool"] = []
    if OPT["stamp"]: a(f"v_mov_b32 v{v}, 0")
def fine_pool(pool): FINE["pool"] = list(pool)
def fine(a, name=""):
    if not OPT["stamp"]: return
    p = FINE["pool"][len(FINE["pend"])]
    a(f"{'s_memtime' if OPT.get('cyc') else 's_memrealtime'} s[{p}:{p+1}]")
    FINE["pend"].append(p); FINE["names"].append(name)
def fine_flush(a):
    if not OPT["stamp"]: return
    a("s_waitcnt lgkmcnt(0)")
    for p in FINE["pend"]:
        a(f"v_writelane_b32 v{FINE['v']}, s{p}, {FINE['n'] + 2}"); FINE["n"] += 1
    FINE["pend"] = []
def fine_dump(a, grp, t):
    if not OPT["stamp"]: return
    v = FINE["v"]
    a("s_memrealtime s[98:99]")
    a("s_memtime s[100:101]")
    fine_flush(a)
    if OPT.get("cyc"):
        a("s_mov_b32 s96, s94"); a("s_mov_b32 s98, s100"); NAMES["cyc"] = 1
    a("s_sub_u32 s100, s100, s94")
    a(f"v_writelane_b32 v{v}, s100, 0")
    a(f"v_writelane_b32 v{v}, s96, 1")
    a(f"v_writelane_b32 v{v}, s98, {FINE['n'] + 2}")
    NAMES[f"0,{grp}"] = ["start"] + FINE["names"] + ["end"]
    a("s_lshl_b32 s98, s2, 4")
    a("s_add_u32 s98, s98, s56")
    a("s_lshl_b32 s98, s98, 8")
    a(f"s_add_u32 s98, s98, {24*MB}")
    a(f"v_lshlrev_b32 v{t}, 2, v0")
    a(f"buffer_store_dword v{v}, v{t}, {S4(WS)}, s98 offen")
    if OPT.get("spin") and OPT["spin"][0] == grp:
        a(f"s_cmp_lg_u32 s2, {OPT.get('spinwg', 40)}")
        a("s_cbranch_scc1 L_end")
        a(f"v_readlane_b32 s60, v{v}, {1 + NAMES[f'0,{grp}'].index(OPT['spin'][1])}")
        a("s_mov_b32 s62, 200000")
        a.label("L_spin")
        a("s_memrealtime s[96:97]")
        a("s_waitcnt lgkmcnt(0)")
        a("s_sub_u32 s61, s96, s60")
        a("s_sub_u32 s62, s62, 1")
        a("s_cbranch_scc1 L_end")
        a("s_cmp_lt_u32 s61, 10000")
        a("s_cbranch_scc1 L_spin")

def mfma_s(d, A, B, c=None):
    cc = vr(d, 16) if c is None else (c if isinstance(c, str) else vr(c, 16))
    return f"v_mfma_f32_32x32x16_bf16 {vr(d,16)}, {vr(A,4)}, {vr(B,4)}, {cc}"
def mfma(a, d, A, B, c=None): a(mfma_s(d, A, B, c))
def store4(a, v, voff, soff, off=0):
    a(f"buffer_store_dwordx4 {vr(v,4)}, v{voff}, {S4(WS)}, {soff} offen offset:{off} sc1")
def load4(a, v, voff, soff, off=0):
    a(f"buffer_load_dwordx4 {vr(v,4)}, v{voff}, {S4(WS)}, {soff} offen offset:{off} sc1")

def swz_row_voffs(a, base, stride_shift, tmp=1):
    t, u = tmp, base + 3
    a(f"v_lshrrev_b32 v{t}, 4, v0")
    a(f"v_and_b32 v{u}, 7, v0")
    a(f"v_xor_b32 v{u}, v{u}, v{t}")
    a(f"v_lshrrev_b32 v{t}, 3, v0")
    a(f"v_lshlrev_b32 v{t}, {stride_shift}, v{t}")
    a(f"v_lshl_add_u32 v{base}, v{u}, 4, v{t}")
    st = 1 << stride_shift
    a(f"v_xor_b32 v{base+1}, 64, v{base}")
    a(f"v_add_u32 v{base+1}, {8*st - 1024}, v{base+1}")
    a(f"v_add_u32 v{base+2}, {16*st - 2048}, v{base}")
    a(f"v_add_u32 v{base+3}, {16*st - 2048}, v{base+1}")

def swz_read_addrs(a, base, sbase, tmp=1):
    t, u = tmp, base + 3
    a(f"v_bfe_u32 v{t}, v0, 1, 3")
    a(f"v_lshrrev_b32 v{u}, 5, v0")
    a(f"v_xor_b32 v{t}, v{t}, v{u}")
    a(f"v_lshlrev_b32 v{t}, 4, v{t}")
    a(f"v_and_b32 v{u}, 31, v0")
    a(f"v_lshl_add_u32 v{t}, v{u}, 7, v{t}")
    a(f"v_add_u32 v{base}, s{sbase}, v{t}")
    for ks in (1, 2, 3):
        a(f"v_xor_b32 v{base+ks}, {ks*32}, v{base}")

def tr_addr(a, d, hh_shift, row_shift, swz, add, tmp=1):
    a(f"v_lshrrev_b32 v{tmp}, 5, v0")
    a(f"v_lshlrev_b32 v{d}, {hh_shift}, v{tmp}")
    a(f"v_bfe_u32 v{tmp}, v0, 2, 2")
    a(f"v_lshl_add_u32 v{d}, v{tmp}, {row_shift}, v{d}")
    if swz:
        a(f"v_bfe_u32 v{tmp}, v0, 3, 1")
        a(f"v_lshl_add_u32 v{d}, v{tmp}, 6, v{d}")
    a(f"v_bfe_u32 v{tmp}, v0, 4, 1")
    a(f"v_lshl_add_u32 v{d}, v{tmp}, 5, v{d}")
    a(f"v_and_b32 v{tmp}, 3, v0")
    a(f"v_lshl_add_u32 v{d}, v{tmp}, 3, v{d}")
    if add: a(f"v_add_u32 v{d}, {add}, v{d}")

def gelu_list(x, t, C1, C2, n=16, pk=True):
    if pk:
        assert C1 % 2 == 0 and C2 % 2 == 0
        R = range(0, n, 2)
        L = [f"v_pk_mul_f32 {vr(t+p,2)}, {vr(x+p,2)}, {vr(x+p,2)}" for p in R]
        L += [f"v_pk_fma_f32 {vr(t+p,2)}, {vr(t+p,2)}, {vr(C2,2)}, {vr(C1,2)}" for p in R]
        L += [f"v_pk_mul_f32 {vr(t+p,2)}, {vr(t+p,2)}, {vr(x+p,2)}" for p in R]
        L += [f"v_exp_f32 v{t+p}, v{t+p}" for p in range(n)]
        L += [f"v_pk_add_f32 {vr(t+p,2)}, {vr(t+p,2)}, s[0:1]" for p in R]
        L += [f"v_rcp_f32 v{t+p}, v{t+p}" for p in range(n)]
        L += [f"v_pk_mul_f32 {vr(x+p,2)}, {vr(x+p,2)}, {vr(t+p,2)}" for p in R]
        return L
    L = [f"v_mul_f32 v{t+p}, v{x+p}, v{x+p}" for p in range(n)]
    L += [f"v_fma_f32 v{t+p}, v{t+p}, v{C2}, v{C1}" for p in range(n)]
    L += [f"v_mul_f32 v{t+p}, v{t+p}, v{x+p}" for p in range(n)]
    L += [f"v_exp_f32 v{t+p}, v{t+p}" for p in range(n)]
    L += [f"v_add_f32 v{t+p}, 1.0, v{t+p}" for p in range(n)]
    L += [f"v_rcp_f32 v{t+p}, v{t+p}" for p in range(n)]
    L += [f"v_mul_f32 v{x+p}, v{x+p}, v{t+p}" for p in range(n)]
    return L

def halfsum(a, v, t, op="v_add_f32"):
    a(f"v_mov_b32 v{t}, v{v}")
    a("s_nop 1")
    a(f"v_permlane32_swap_b32 v{v}, v{t}")
    a(f"{op} v{v}, v{v}, v{t}")

def set_flag(a, sidx, vz, vone, word=False):
    if not word:
        a(f"s_lshl_b32 s{sidx}, s{sidx}, 2")
        a(f"s_add_u32 s{sidx}, s{sidx}, s57")
    a(f"s_lshl_b32 s{sidx}, s{sidx}, 2")
    a(f"s_add_u32 s{sidx}, s{sidx}, {FLG}")
    a("s_mov_b64 exec, 1")
    a(f"buffer_store_dword v{vone}, v{vz}, {S4(WS)}, s{sidx} offen sc1")
    a("s_mov_b64 exec, -1")

def cnt_add(a, sline, vl7, vone, reps):
    a(f"s_mul_i32 s{sline}, s{sline}, {CST}")
    a(f"s_add_u32 s{sline}, s{sline}, {CNT}")
    a(f"s_mov_b64 exec, {(1 << reps) - 1}")
    a(f"buffer_atomic_add v{vone}, v{vl7}, {S4(WS)}, s{sline} offen sc1")
    a("s_mov_b64 exec, -1")
def cnt_issue(a, voff, tmp, mask):
    a(f"s_mov_b64 exec, {mask}")
    a(f"v_mov_b32 v{tmp}, 0")
    a(f"buffer_atomic_add v{tmp}, v{voff}, {S4(WS)}, s90 offen sc0 sc1")
def cnt_poll(a, lbl, voff, tmp, mask, target, first_issued=False, sleep=0):
    a(f"s_mov_b32 s91, {SPIN}")
    if not first_issued: cnt_issue(a, voff, tmp, mask)
    a.label(lbl)
    a("s_waitcnt vmcnt(0)")
    a(f"v_cmp_gt_u32 vcc, {target}, v{tmp}")
    a("s_sub_u32 s91, s91, 1")
    a(f"s_cbranch_scc1 {lbl}d")
    a("s_cmp_eq_u64 vcc, 0")
    a(f"s_cbranch_scc1 {lbl}d")
    if sleep: a(f"s_sleep {sleep}")
    cnt_issue(a, voff, tmp, "vcc")
    a(f"s_branch {lbl}")
    a.label(lbl + "d")
    a("s_mov_b64 exec, -1")
def cnt_pipe(a, lbl, voff, tmp, mask, target, depth, first_issued=False):
    if depth < 2: return cnt_poll(a, lbl, voff, tmp, mask, target, first_issued, SLP)
    gap = OPT.get("pgap", 3) if depth > 2 else OPT.get("pgap2", 5)
    def issue(r):
        a(f"v_mov_b32 v{r}, 0")
        a(f"buffer_atomic_add v{r}, v{voff}, {S4(WS)}, s90 offen sc0 sc1")
    def check(r):
        a(f"v_cmp_gt_u32 vcc, {target}, v{r}")
        a("s_sub_u32 s91, s91, 1")
        a(f"s_cbranch_scc1 {lbl}d")
        a("s_and_b64 exec, exec, vcc")
        a(f"s_cbranch_scc0 {lbl}d")
    a(f"s_mov_b32 s91, {SPIN}")
    if first_issued:
        a("s_waitcnt vmcnt(0)")
        check(tmp)
    else: a(f"s_mov_b64 exec, {mask}")
    for i in range(depth - 1):
        issue(tmp + i); a(f"s_sleep {gap + 1}")
    a.label(lbl)
    for i in range(depth):
        issue(tmp + (i + depth - 1) % depth)
        a(f"s_sleep {gap}")
        a(f"s_waitcnt vmcnt({depth - 1})")
        check(tmp + i)
    a(f"s_branch {lbl}")
    a.label(lbl + "d")
    a("s_mov_b64 exec, -1")
def poll_issue(a, voff, tmp, n=1, srd_=None, soff="s90"):
    srd_ = WS if srd_ is None else srd_
    a(f"buffer_load_dword{'x%d' % n if n > 1 else ''} {vr(tmp, n)}, v{voff}, {S4(srd_)}, {soff} offen sc1")
def poll_flags(a, lbl, voff, tmp, n=1, srd_=None, soff="s90", first_issued=False, sleep=0, mask=None):
    issue = lambda: poll_issue(a, voff, tmp, n, srd_, soff)
    a(f"s_mov_b32 s91, {SPIN}")
    if not first_issued: issue()
    a.label(lbl)
    a("s_waitcnt vmcnt(0)")
    for i in range(1, n): a(f"v_min_u32 v{tmp}, v{tmp}, v{tmp+i}")
    a(f"v_cmp_eq_u32 vcc, 0, v{tmp}")
    a("s_sub_u32 s91, s91, 1")
    a(f"s_cbranch_scc1 {lbl}d")
    a("s_cmp_eq_u64 vcc, 0")
    a(f"s_cbranch_scc1 {lbl}d")
    if sleep: a(f"s_sleep {sleep}")
    if mask: a(f"s_and_b64 exec, vcc, {mask}")
    issue()
    a(f"s_branch {lbl}")
    a.label(lbl + "d")
    if mask: a("s_mov_b64 exec, -1")

def slot_of(g): return 1024 + ((g + 1) % 4) * SLOT
class Win:
    def __init__(self, regs, span): self.regs = regs; self.base = 0; self.span = span
    def at(self, base):
        L = []
        if base < self.base or base + self.span - self.base > 65536:
            L = [f"v_add_u32 v{r}, {(base - self.base) & 0xffffffff}, v{r}" for r in self.regs]
            self.base = base
        return L, base - self.base

def gen(a):
    a("s_cmp_ge_u32 s2, 256")
    a("s_cbranch_scc1 L_end")
    if OPT["stamp"]:
        a("s_memrealtime s[96:97]"); a("s_memtime s[94:95]")
    a("s_load_dwordx16 s[4:19], s[0:1], 0")
    a("s_load_dwordx8 s[20:27], s[0:1], 64")
    if OPT.get("pfc", 2) == 2:
        a("v_cmp_gt_u32 vcc, 16, v0")
        a(f"s_getpc_b64 s[{SD}:{SD+1}]")
        a.label("L_pc")
        a("s_and_saveexec_b64 s[60:61], vcc")
        a("s_cbranch_execz L_nopc")
        a(f"s_sub_u32 s{SD}, s{SD}, L_pc-{NAME}_kernel")
        a(f"s_subb_u32 s{SD+1}, s{SD+1}, 0")
        a(f"s_mov_b32 s{SD+2}, L_end-{NAME}_kernel")
        a(f"s_mov_b32 s{SD+3}, 0x20000")
        a("v_lshlrev_b32 v1, 12, v0")
        a("s_lshr_b32 s59, s2, 3")
        a("s_lshl_b32 s59, s59, 7")
        a(f"buffer_load_dword v125, v1, {S4(SD)}, s59 offen")
        a.label("L_nopc")
        a("s_mov_b64 exec, -1")
    a("v_lshrrev_b32 v1, 6, v0")
    a("s_and_b32 s52, s2, 7")
    a("v_readfirstlane_b32 s56, v1")
    a("s_lshr_b32 s53, s2, 3")
    a("v_and_b32 v0, 63, v0")
    a("s_and_b32 s57, s56, 3")
    a("s_and_b32 s63, s53, 3")
    a("s_lshr_b32 s54, s52, 1")
    a("s_lshl_b32 s54, s54, 2")
    a("s_add_u32 s54, s54, s63")
    a("s_lshr_b32 s61, s53, 2")
    a("s_and_b32 s59, s52, 1")
    a("s_lshl_b32 s55, s59, 3")
    a("s_add_u32 s55, s55, s61")
    a("s_sub_u32 s62, s55, s59")
    rotm = OPT.get("rotm", 3)
    if rotm == 3: a("s_mov_b32 s63, s52")
    elif rotm == 5:
        a("s_xor_b32 s63, s63, s61")
        a("s_and_b32 s63, s63, 1")
        a("s_lshl_b32 s63, s63, 2")
        a("s_add_u32 s63, s63, s52")
    elif rotm == 4:
        a("s_and_b32 s63, s63, 1")
        a("s_lshl_b32 s63, s63, 2")
        a("s_add_u32 s63, s63, s52")
    elif rotm == 0:
        a("s_lshl_b32 s63, s63, 1")
        a("s_add_u32 s63, s63, s61")
    else:
        a("s_lshr_b32 s3, s61, 1")
        a("s_xor_b32 s63, s63, s3")
        a(f"s_and_b32 s63, s63, {rotm - 1}")
        a("s_lshl_b32 s59, s59, 2")
        a("s_add_u32 s63, s63, s59")
        a("s_and_b32 s59, s52, 6")
        a("s_add_u32 s63, s63, s59")
        a("s_and_b32 s59, s61, 1")
        a("s_lshl_b32 s59, s59, 1")
        a("s_add_u32 s63, s63, s59")
    a(f"s_and_b32 s63, s63, {0 if OPT.get('norot', 0) else 7}")
    a("s_lshl_b32 s58, s54, 2")
    a("s_add_u32 s58, s58, s57")
    a("s_lshl_b32 s60, s57, 12")
    a(f"s_mov_b32 s90, {FLG}")
    a("s_cmp_lt_u32 s56, 4")
    a("s_cbranch_scc1 L_g1")
    g2_front(a)
    g2_spatial(a)
    g2_final(a)
    a.raw(".p2align 6")
    a.label("L_g1")
    g1_front(a)
    g1_att(a)
    clearer(a)
    a.label("L_end")
    a("s_endpgm")

XF = 128
def g2_front(a):
    X, WQ, WI, MISC = SA, SB_, SC, SD
    swz_row_voffs(a, 2, 10)
    a("v_lshrrev_b32 v1, 2, v0")
    a("v_mul_u32_u24 v10, 3072, v1")
    a("v_and_b32 v1, 4, v1")
    a("v_and_b32 v11, 7, v0")
    a("v_xor_b32 v11, v11, v1")
    a("v_lshlrev_b32 v11, 4, v11")
    a("v_lshrrev_b32 v1, 3, v0")
    a("v_mul_u32_u24 v6, 3072, v1")
    a("v_mul_u32_u24 v12, 3584, v1")
    a("v_add_u32 v6, v6, v11")
    a("v_add_u32 v12, v12, v11")
    a(f"v_add_u32 v7, {8*3072-2048}, v6")
    a(f"v_add_u32 v8, {1792-1024}, v12")
    a(f"v_add_u32 v9, {8*3584+1792-3072}, v12")
    a("v_and_b32 v1, 3, v0")
    a("v_lshl_add_u32 v10, v1, 4, v10")
    a("s_lshl_b32 s64, s58, 15")
    a(f"s_mul_i32 s65, s57, {16*3072}")
    a("s_lshl_b32 s59, s55, 6")
    a("s_add_u32 s66, s65, s59")
    a("s_add_u32 s66, s66, 2048")
    a("s_and_b32 s59, s55, 1")
    a("s_lshl_b32 s59, s59, 10")
    a("s_add_u32 s65, s65, s59")
    a("s_lshr_b32 s59, s55, 1")
    a("s_lshl_b32 s59, s59, 7")
    a("s_add_u32 s65, s65, s59")
    a(f"s_mul_i32 s67, s57, {16*3584}")
    a("s_lshl_b32 s68, s62, 7")
    a("s_add_u32 s67, s67, s68")
    a("s_lshl_b32 s69, s57, 10")
    a("s_waitcnt lgkmcnt(0)")
    srd(a, X, 4, 2048*1024)
    srd(a, WQ, 6, 512*3072)
    srd(a, WI, 12, 512*3584)
    a("s_cmp_eq_u32 s61, 7")
    a("s_cbranch_scc1 L_light")
    g2_pass1(a, False)
    g2_z(a)
    a("s_branch L_g2b")
    a.label("L_light")
    st = json.dumps(FINE); so = OPT["stamp"]; OPT["stamp"] = False
    g2_pass1(a, True)
    g2_light(a)
    OPT["stamp"] = so; FINE.update(json.loads(st))
    if so: a(f"v_mov_b32 v{FINE['v']}, 1")
    a.label("L_g2b")

def g2_pass1(a, light):
    X, WQ, WI, MISC = SA, SB_, SC, SD
    WFR, XG, ACC = 32, 48, 64
    def chunk_dma(c):
        slot = slot_of(c)
        P = [[f"s_add_u32 s70, s63, {c}", "s_and_b32 s70, s70, 7", "s_lshl_b32 s59, s70, 7", f"s_add_u32 m0, s60, {slot}", "s_add_u32 s59, s59, s64"] +
             [f"buffer_load_dwordx4 v{2+q}, {S4(X)}, s59 offen offset:{q*1024} lds" for q in range(2)],
             [f"buffer_load_dwordx4 v{2+q}, {S4(X)}, s59 offen offset:{q*1024} lds" for q in range(2, 4)] +
             [f"s_mul_i32 s71, s70, {64*3072}", f"s_add_u32 m0, s69, {slot + 32768}", "s_add_u32 s59, s71, s66",
              f"buffer_load_dwordx4 v10, {S4(WQ)}, s59 offen lds"],
             [f"s_add_u32 m0, s60, {slot + 16384}", "s_add_u32 s59, s71, s65"] +
             [f"buffer_load_dwordx4 v{6+q}, {S4(WQ)}, s59 offen offset:{q*2048} lds" for q in range(2)], []]
        if not light:
            P[3] = [f"s_mul_i32 s59, s70, {64*3584}", "s_add_u32 s59, s59, s67"] + \
                   [f"buffer_load_dwordx4 v{8+q}, {S4(WI)}, s59 offen offset:{q*2048+1024} lds" for q in range(2)]
        return P
    def z1_dma(g):
        P = [[f"s_add_u32 s70, s63, {4*(g-8)}", "s_add_u32 s70, s70, s57", "s_and_b32 s70, s70, 7", f"s_mul_i32 s70, s70, {64*3584}",
              "s_add_u32 s70, s70, s68", "s_lshl_b32 s71, s57, 13"], [], [], []]
        for h in range(2):
            P[2*h] += [f"s_add_u32 m0, s71, {slot_of(g) + h*4096}", f"s_add_u32 s59, s70, {h*32*3584}"]
            for q in range(4):
                P[2*h + q//2].append(f"buffer_load_dwordx4 v{12+q}, {S4(WI)}, s59 offen offset:{q*1024} lds")
        return P
    gsize = [7]*8 + [0, 0] if light else [9]*8 + [8, 8]
    def parts(g):
        if g < 8: return chunk_dma(g)
        return [[], [], [], []] if light or (g == 9 and OPT.get("g9", 0)) else z1_dma(g)
    def group(g, np_=4):
        if light and g == 1:
            a(f"s_add_u32 m0, s69, {GSCR}")
            a("s_nop 0")
            a(f"buffer_load_dwordx4 v25, {S4(MISC)}, 0 offen lds")
        for p in parts(g)[:np_]:
            for l in p: a(l)
    group(0)
    srd(a, WS, 26, WS_SIZE)
    for q in (1, 2, 3): a(f"v_add_u32 v{12+q}, {q*(8*3584-1024)}, v12")
    swz_read_addrs(a, 16, 60)
    tr_addr(a, 20, 11, 7, True, 16384 + 1024)
    a("v_xor_b32 v21, 64, v20")
    if light:
        srd(a, MISC, 20, 1024)
        a("v_lshlrev_b32 v24, 4, v0")
        a("s_lshl_b32 s59, s63, 7")
        a("v_add_u32 v25, s59, v24")
        a("v_and_b32 v25, 1023, v25")
        a("v_lshrrev_b32 v1, 5, v0")
        a(f"s_add_u32 s59, s69, {GSCR}")
        a("v_lshl_add_u32 v28, v1, 4, s59")
    fine_init(a, 31); fine_pool([4, 6, 10, 12, 8, 26, 48, 50, 84, 86, 20]);
    SU = OPT.get("su", 1)
    b = Asm()
    sp_setup_w(b)
    if not light: g2_z_setup(b)
    side = [l.replace("s59", "s88") for l in b.lines]
    assert not any(re.match(r"\s*s_(cselect|cbranch|addc|subb|cmp)", l) or "vcc" in l for l in side)
    if OPT.get("fst"): fine(a, "g0")
    if SU == 0:
        for l in side: a(l)
        side = []
    fine(a, "setup")
    G1N = OPT.get("g1n", 2)
    group(1, G1N)
    if OPT.get("fst"): fine(a, "g1")
    if SU == 2:
        for l in side[:OPT.get("sun", 40)]: a(l)
        side = side[OPT.get("sun", 40):]
    win = Win(range(16, 22), 16384)
    def reads(n):
        c, ks = n >> 2, n & 3
        pre, so = win.at(slot_of(c))
        R = [f"ds_read_b128 {vr(XG + 4*(n&1), 4)}, v{16+ks} offset:{so}"]
        if light:
            R.append(f"ds_read_b128 {vr(WFR + 8*(n&1), 4)}, v28 offset:{n*32}")
        else:
            for t in range(2):
                for v in range(2):
                    R.append(f"ds_read_b64_tr_b16 {vr(WFR + 8*(n&1) + 4*t + 2*v, 2)}, v{20+t} offset:{so + ks*4096 + v*512}")
        return pre, R
    def boundary(c):
        if OPT.get("diagsl") and 0 < c <= OPT.get("diagn", 7): a(f"s_sleep {OPT['diagsl']}")
        a(f"s_waitcnt vmcnt({gsize[c+1] if c else sum('buffer_load' in l for p in parts(1)[:G1N] for l in p)})")
        a("s_barrier")
        if not (OPT.get("fst") and c in (3, 5)): fine(a, f"b{c}")
    if OPT.get("p1p"): a(f"s_setprio {OPT['p1p']}")
    boundary(0)
    pre, R = reads(0)
    for l in pre + R: a(l)
    P = parts(2)
    if G1N < 4:
        for p in parts(1)[G1N:]:
            for l in p: a(l)
        P = [[], P[0] + P[1], P[2], P[3]]
    for l in P.pop(0): a(l)
    for n in range(32):
        ks = n & 3
        M = lambda t: mfma(a, ACC + 16*t, WFR + 8*(n&1) + 4*t, XG + 4*(n&1), "0" if n == 0 else None)
        pre, R = reads(n + 1) if n < 31 else ([], [])
        a(f"s_waitcnt lgkmcnt({0 if light else 2})")
        M(0)
        if n == 31:
            if not light: a("s_waitcnt lgkmcnt(0)"); M(1)
            break
        if ks == 3:
            boundary((n >> 2) + 1)
            assert not P
            P = parts((n >> 2) + 3)
            if n >= 23 and OPT.get("zfast", 2) == 1: P = [P[0] + P[1], P[2] + P[3], [], []]
            if n >= OPT.get("zf0", 23) and OPT.get("zfast", 2) == 2:
                for p_ in P:
                    for l in p_: a(l)
                P = [[], [], [], []]
        nr = 3 if OPT.get("rd2", 1) else 5
        for l in pre + R[:nr]: a(l)
        if not light:
            a(f"s_waitcnt lgkmcnt({nr})")
            M(1)
        for l in R[nr:] + P.pop(0): a(l)
        for _ in range(OPT.get("sup", 8)):
            if side: a(side.pop(0))
        touch(a, n) if n else None
        if n == 27 and not light:
            srd(a, SA, 24, 256)
            poll_issue(a, 113, 114, srd_=SA, soff="0")
    assert not side
    if OPT.get("p1p"): a("s_setprio 0")
    touch(a, 31)
    fine(a, "p1")

RSCR = 152576
def relayout_load(a):
    a("s_lshl_b32 s93, s2, 2")
    a("s_add_u32 s93, s93, s57")
    a("s_lshr_b32 s59, s93, 3")
    a("s_lshl_b32 s59, s59, 14")
    srd(a, SA, 8, 512*1024)
    a("s_cmp_lt_u32 s93, 256")
    a("s_cbranch_scc1 L_rwo")
    srd(a, SA, 18, 896*1024)
    a(f"s_sub_u32 s59, s59, {32*16384}")
    a.label("L_rwo")
    a("s_and_b32 s3, s93, 7")
    a("s_lshl_b32 s3, s3, 7")
    a("s_add_u32 s59, s59, s3")
    a("v_lshrrev_b32 v8, 3, v0")
    a("v_lshlrev_b32 v8, 6, v8")
    a("v_and_or_b32 v8, v0, 7, v8")
    a("v_lshlrev_b32 v8, 4, v8")
    a(f"s_add_u32 m0, s80, {RSCR}")
    a("s_nop 0")
    a(f"buffer_load_dwordx4 v8, {S4(SA)}, s59 offen lds")
    a(f"s_add_u32 s59, s59, {8192 - 1024}")
    a(f"buffer_load_dwordx4 v8, {S4(SA)}, s59 offen offset:1024 lds")
    tr_addr(a, 119, 9, 7, False, RSCR, tmp=10)
    a("v_add_u32 v119, s80, v119")
def relayout_read(a, d):
    for nt in range(2):
        for v in range(2):
            a(f"ds_read_b64_tr_b16 {vr(d + nt*4 + v*2, 2)}, v119 offset:{v*1024 + nt*64}")
def relayout_offsets(a):
    a("s_and_b32 s3, s93, 7")
    a(f"s_mul_i32 s3, s3, {2*88*1024}")
    a("s_lshr_b32 s88, s93, 3")
    a("s_lshl_b32 s88, s88, 10")
    a("s_add_u32 s88, s88, s3")
    a(f"s_add_u32 s88, s88, {WF}")
    a("s_cmp_ge_u32 s93, 704")
    a(f"s_cselect_b32 s88, {WS_SIZE}, s88")
    a(f"s_add_u32 s89, s88, {88*1024}")
    a("s_and_b32 s3, s93, 7")
    a("s_lshl_b32 s3, s3, 4")
    a("s_lshr_b32 s93, s93, 6")
    a("s_add_u32 s93, s93, s3")
    a(f"s_add_u32 s93, s93, {CW}")

C1, C2, SUM, SQ = 24, 26, 140, 142
def g2_z_setup(a):
    a("s_mov_b32 s0, 1.0")
    a("s_mov_b32 s1, 1.0")
    for h in range(2):
        a(f"v_mov_b32 v{C1+h}, {f32(GC1)}")
        a(f"v_mov_b32 v{C2+h}, {f32(GC2)}")
    for r in range(SUM, SUM + 4): a(f"v_mov_b32 v{r}, 0")
    a("v_lshlrev_b32 v96, 4, v0")
    a("v_and_b32 v1, 31, v0")
    a("v_lshlrev_b32 v97, 3, v1")
    a("v_lshrrev_b32 v98, 5, v0")
    a("v_mul_u32_u24 v98, 7168, v98")
    a("v_add_u32 v98, v98, v97")
    a("v_bfe_u32 v1, v0, 1, 3")
    a("v_lshrrev_b32 v99, 5, v0")
    a("v_xor_b32 v1, v1, v99")
    a("v_and_b32 v99, 31, v0")
    a("v_lshlrev_b32 v99, 6, v99")
    a("v_lshl_add_u32 v99, v1, 3, v99")
    a(f"s_add_u32 s59, s60, {SCR}")
    a("v_add_u32 v99, s59, v99")
    for i in (1, 2, 3): a(f"v_xor_b32 v{99+i}, {16*i}, v99")
    tr_addr(a, 103, 9, 6, False, 0)
    a("v_bfe_u32 v1, v0, 3, 1")
    a("v_lshrrev_b32 v104, 5, v0")
    a("v_lshl_or_b32 v1, v104, 2, v1")
    a("v_lshlrev_b32 v1, 3, v1")
    a("v_xor_b32 v103, v103, v1")
    a("v_add_u32 v103, s59, v103")
    a("v_xor_b32 v104, 16, v103")
    a(f"v_mul_u32_u24 v105, {CST}, v0")
    a("v_mov_b32 v106, 1")
    a("v_and_b32 v113, 15, v0")
    a("v_lshlrev_b32 v113, 2, v113")
    a(f"s_mul_i32 s59, s58, {2*CST}")
    a(f"s_add_u32 s59, s59, {CNT - FLG + CS*CST}")
    a("s_and_b32 s3, s62, 1")
    a("v_xor_b32 v107, s3, v0")
    a(f"v_mul_u32_u24 v107, {CST}, v107")
    a("v_add_u32 v107, s59, v107")
    a("s_mul_i32 s79, s54, 14336")
    a("s_lshl_b32 s59, s57, 8")
    a("s_add_u32 s79, s79, s59")
    a(f"s_add_u32 s79, s79, {STATS}")
    a("s_add_u32 s80, s79, 4096")
    a("s_lshl_b32 s59, s62, 10")
    a("s_add_u32 s81, s79, s59")
    a("s_lshl_b32 s82, s62, 18")
    a("s_lshl_b32 s59, s58, 11")
    a("s_add_u32 s82, s82, s59")
    a(f"s_add_u32 s82, s82, {Z2F}")
    a("s_add_u32 s83, s82, 131072")
    a("s_lshl_b32 s78, s62, 2")
    a("s_lshr_b32 s59, s54, 2")
    a("s_add_u32 s78, s78, s59")
    a("s_lshl_b32 s78, s78, 3")
    a(f"s_add_u32 s78, s78, {CZ}")

def touch(a, when):
    if OPT.get("tch", 0) == when:
        a("s_mov_b64 exec, 0xffff")
        a(f"buffer_load_dword v127, v{WV+4}, {S4(WSP)}, s92 offen")
        a("s_mov_b64 exec, -1")

def g2_z(a):
    WFR, ACC, T = 32, 64, 48
    fine_flush(a)
    a("s_nop 0")
    a("s_lshl_b32 s59, s57, 2")
    a("v_mov_b32 v22, s59")
    a("v_mov_b32 v23, 0")
    a("s_nop 7")
    for ti in range(2):
        x = ACC + 16*ti
        for i, l in enumerate(gelu_list(x, T, C1, C2, pk=not OPT.get("early", 0))):
            if OPT.get("early", 0) and ti == 0 and i == OPT.get("zb", 32):
                a("s_waitcnt vmcnt(0)")
                a("ds_write_b32 v22, v106 offset:176")
            a(l)
        for p in range(0, 16, 2):
            if not OPT.get("early", 0):
                a(f"v_pk_add_f32 {vr(SUM,2)}, {vr(SUM,2)}, {vr(x+p,2)}")
                a(f"v_pk_fma_f32 {vr(SQ,2)}, {vr(x+p,2)}, {vr(x+p,2)}, {vr(SQ,2)}")
            else:
                for h in range(2):
                    a(f"v_add_f32 v{SUM+h}, v{SUM+h}, v{x+p+h}")
                    a(f"v_fmac_f32 v{SQ+h}, v{x+p+h}, v{x+p+h}")
    a(f"s_waitcnt vmcnt({1 if OPT.get('tch', 0) >= 27 else 0})")
    a("ds_write_b32 v22, v106 offset:176")
    a(f"v_add_f32 v{SUM}, v{SUM}, v{SUM+1}")
    a(f"v_add_f32 v{SUM+1}, v{SQ}, v{SQ+1}")
    halfsum(a, SUM, T)
    halfsum(a, SUM+1, T+1)
    a(f"v_and_b32 v{SUM+1}, 0x7fffffff, v{SUM+1}")
    poll_flags(a, "L_clr2", 113, 114, srd_=SA, soff="0", first_issued=True)
    a(f"buffer_store_dwordx2 {vr(SUM,2)}, v97, {S4(WS)}, s81 offen sc1")
    a("s_mov_b64 exec, 3")
    a(f"buffer_atomic_add v106, v107, {S4(WS)}, s90 offen sc1")
    a("s_mov_b64 exec, -1")
    fine(a, "g2")
    a("s_setprio 2")
    lds_poll(a, "L_bz1", 23, 176, T)
    lds_poll(a, "L_bz2", 23, 192, T)
    if OPT.get("w0", 0) == 0:
        for g in wdma(0, WV):
            for m in g: a(m)
    sp_setup_a(a)
    S = 112
    def st_try():
        for i in range(7):
            a(f"buffer_load_dwordx2 {vr(S+2*i,2)}, v98, {S4(WS)}, {'s79' if i < 4 else 's80'} offen offset:{(i%4)*1024} sc1")
        a("s_waitcnt vmcnt(0)")
        a(f"v_or3_b32 v{T}, v{S+1}, v{S+3}, v{S+5}")
        a(f"v_or3_b32 v{T}, v{T}, v{S+7}, v{S+9}")
        a(f"v_or3_b32 v{T}, v{T}, v{S+11}, v{S+13}")
        a(f"v_cmp_gt_i32 vcc, 0, v{T}")
    if OPT.get("hint", 1) == 0:
        st_try()
        a("s_nop 0")
        a("s_cmp_eq_u64 vcc, 0")
        a("s_cbranch_scc1 L_stpd")
    cnt_pipe(a, "L_spr", 107, 136, 1, 14, OPT.get("pdz", 2))
    a(f"s_mov_b32 s91, {SPIN}")
    a.label("L_stp")
    st_try()
    a("s_sub_u32 s91, s91, 1")
    a("s_cbranch_scc1 L_stpd")
    a("s_cmp_lg_u64 vcc, 0")
    a("s_cbranch_scc1 L_stp")
    a.label("L_stpd")
    fine(a, "stat")
    if OPT.get("w0", 0) == 3:
        for g in wdma(0):
            for m in g: a(m)
    for i in range(1, 7):
        a(f"v_add_f32 v{S}, v{S}, v{S+2*i}")
        a(f"v_add_f32 v{S+1}, v{S+1}, v{S+2*i+1}")
    halfsum(a, S, T)
    halfsum(a, S+1, T+1)
    a(f"v_mul_f32 v{S}, {f32(1.0/896)}, v{S}")
    a(f"v_mul_f32 v{S+1}, {f32(1.0/896)}, v{S+1}")
    a(f"v_fma_f32 v{S+1}, -v{S}, v{S}, v{S+1}")
    a(f"v_max_f32 v{S+1}, 0, v{S+1}")
    a(f"v_add_f32 v{S+1}, {f32(1e-5)}, v{S+1}")
    a(f"v_rsq_f32 v{S+2}, v{S+1}")
    a("s_nop 0")
    a(f"v_mul_f32 v{S+3}, -v{S}, v{S+2}")
    for ti in range(2):
        x = ACC + 16*ti
        for p in range(16): a(f"v_fma_f32 v{x+p}, v{x+p}, v{S+2}, v{S+3}")
        o = T + 8*ti
        for p in range(8): a(f"v_cvt_pk_bf16_f32 v{o+p}, v{x+2*p}, v{x+2*p+1}")
        for i in range(4): a(f"ds_write_b64 v{99+i}, {vr(o+2*i,2)} offset:{ti*2048}")
    a("s_waitcnt lgkmcnt(0)")
    for ti in range(2):
        for k in range(2):
            for v in range(2):
                a(f"ds_read_b64_tr_b16 {vr(WFR + ti*8 + k*4 + v*2, 2)}, v{103+v} offset:{ti*2048 + k*1024 + v*256}")
    for ti in range(2):
        for k in range(2):
            a(f"s_waitcnt lgkmcnt({6 - 2*(ti*2+k)})")
            store4(a, WFR + ti*8 + k*4, 96, "s82" if ti == 0 else "s83", k*1024)
    fine(a, "ln")
    a("s_mov_b32 s70, s78")
    fine_flush(a)
    sp_setup_b(a)
    a("s_waitcnt vmcnt(0)")
    cnt_add(a, 70, 105, 106, 8)
    fine(a, "fz")

KV0 = 16
def kv_batch(b, v, sm=92, sg=71, sr_=58):
    return [[f"s_add_u32 m0, s{sm}, {n*8192}", f"s_add_u32 s59, s{sr_}, {n*8192}", "s_and_b32 s59, s59, 0x1ffff", f"s_add_u32 s59, s59, s{sg}",
             f"buffer_load_dwordx4 v{v}, {S4(WS)}, s59 offen sc1 lds",
             f"buffer_load_dwordx4 v{v}, {S4(WS)}, s59 offen offset:1024 sc1 lds"] for n in range(4*b, 4*b + 4)]

def g2_light(a):
    a("v_lshlrev_b32 v96, 4, v0")
    a("s_nop 7"); a("s_nop 2")
    a(f"v_mul_f32 v4, {f32(-LOG2E)}, v64")
    a("v_exp_f32 v4, v4")
    a("v_and_b32 v5, 31, v0")
    a("v_add_f32 v4, 1.0, v4")
    a("v_rcp_f32 v4, v4")
    a("v_lshlrev_b32 v5, 2, v5")
    a("v_and_b32 v4, 0x7fffffff, v4")
    a("s_lshl_b32 s59, s57, 2")
    a("v_mov_b32 v22, s59")
    a("v_mov_b32 v23, 0")
    a("v_mov_b32 v24, 1")
    a("ds_write_b32 v22, v24 offset:176")
    a("s_setprio 2")
    lds_poll(a, "L_bz3", 23, 176, 48)
    lds_poll(a, "L_bz4", 23, 192, 48)
    a("s_bitcmp1_b32 s52, 0")
    a("s_cbranch_scc1 L_nog")
    a("s_lshl_b32 s59, s58, 7")
    a(f"s_add_u32 s59, s59, {GG}")
    a(f"buffer_store_dword v4, v5, {S4(WS)}, s59 offen sc1")
    a.label("L_nog")
    if OPT.get("w0", 0) != 1:
        for g in wdma(0, WV):
            for m in g: a(m)
    sp_setup_a(a)
    sp_setup_b(a)
    a("s_waitcnt vmcnt(0)")

TILES = [(0, 0), (0, 1), (0, 2), (0, 3), (1, 0), (1, 1), (1, 2)]
def lds_poll(a, lbl, vz, off, t):
    a(f"s_mov_b32 s91, {SPIN}")
    a.label(lbl)
    a(f"ds_read_b128 {vr(t,4)}, v{vz} offset:{off}")
    a("s_waitcnt lgkmcnt(0)")
    a(f"v_and_b32 v{t}, v{t}, v{t+1}")
    a(f"v_and_b32 v{t+2}, v{t+2}, v{t+3}")
    a(f"v_and_b32 v{t}, v{t}, v{t+2}")
    a("s_sub_u32 s91, s91, 1")
    a(f"v_readfirstlane_b32 s3, v{t}")
    a(f"s_cbranch_scc1 {lbl}d")
    a("s_cmp_lg_u32 s3, 0")
    a(f"s_cbranch_scc1 {lbl}d")
    a("s_sleep 2")
    a(f"s_branch {lbl}")
    a.label(lbl + "d")

WV = 107 + 1
WSP = DBG
def sp_setup_w(a):
    a("s_lshr_b32 s76, s52, 1")
    a("s_lshl_b32 s76, s76, 3")
    a("s_and_b32 s59, s53, 7")
    a("s_add_u32 s76, s76, s59")
    a("s_and_b32 s77, s52, 1")
    a("s_lshl_b32 s77, s77, 2")
    a("s_lshr_b32 s59, s53, 3")
    a("s_add_u32 s77, s77, s59")
    a("s_lshl_b32 s93, s59, 1")
    if OPT.get("srot", 0) == 1:
        a("s_and_b32 s59, s52, 1")
        a("s_add_u32 s93, s93, s59")
    if OPT.get("srot", 0) == 0: a("s_mov_b32 s93, 0")
    if OPT.get("srot", 0) == 3: a("s_add_u32 s93, s93, s53")
    if OPT.get("srot", 0) >= 4: a(f"s_and_b32 s93, s53, {[7, 6, 4][OPT['srot'] - 4]}")
    a("s_and_b32 s59, s77, 1")
    a("s_lshl_b32 s74, s76, 1")
    a("s_add_u32 s74, s74, s59")
    a("s_xor_b32 s75, s74, 1")
    a("s_lshl_b32 s59, s57, 10")
    for i in range(2):
        a(f"s_lshl_b32 s{74+i}, s{74+i}, 17")
        a(f"s_add_u32 s{74+i}, s{74+i}, s59")
    a("s_lshl_b32 s72, s57, 13")
    a("s_add_u32 s72, s72, 0x20000")
    a("s_add_u32 s73, s72, 4096")
    srd(a, WSP, 14, 2048*4096)
    swz_row_voffs(a, WV, 12)
    a(f"v_and_b32 v{WV+4}, 7, v0")
    a(f"v_lshlrev_b32 v{WV+4}, 12, v{WV+4}")
    a("v_bfe_u32 v1, v0, 3, 1")
    a(f"v_lshl_add_u32 v{WV+4}, v1, 7, v{WV+4}")
    a("s_lshl_b32 s92, s76, 3")
    a("s_add_u32 s92, s92, s77")
    a("s_lshl_b32 s92, s92, 15")
    a("s_add_u32 s92, s92, s59")
def wdma(st, v=2, ts=(0, 1)):
    P = []
    for t in ts:
        pre = [f"s_add_u32 s3, s93, {st}", "s_and_b32 s3, s3, 7", "s_lshl_b32 s3, s3, 7"]
        pre += [f"s_mov_b32 m0, s{72+t}", f"s_add_u32 s59, s3, s{74+t}"]
        for q in range(4):
            P.append(pre + [f"buffer_load_dwordx4 v{v+q}, {S4(WSP)}, s59 offen offset:{q*1024} lds"]); pre = []
    return P

def sp_setup_a(a):
    a("s_mov_b32 s54, s76")
    a("s_mov_b32 s55, s77")
    a("s_and_b32 s58, s55, 1")
    a("s_lshl_b32 s60, s54, 1")
    a("s_add_u32 s60, s60, s58")
    a("s_xor_b32 s61, s60, 1")
    a("s_lshr_b32 s59, s55, 1")
    a("s_mul_i32 s59, s59, 7")
    a("s_add_u32 s65, s59, 3")
    a("s_lshl_b32 s62, s58, 2")
    a("s_add_u32 s62, s62, s59")
    a("s_add_u32 s63, s62, 1")
    a("s_add_u32 s64, s62, 2")
    a("s_lshl_b32 s59, s57, 15")
    a(f"s_add_u32 s59, s59, {Z2F}")
    for i in range(4):
        a(f"s_lshl_b32 s{66+i}, s{62+i}, 17")
        a(f"s_add_u32 s{66+i}, s{66+i}, s59")
    srd(a, SB_, 16, 4096)
    a("v_lshlrev_b32 v1, 4, v0")
    for q in range(4): a(f"v_mov_b32 v{2+q}, v{WV+q}")
    swz_read_addrs(a, 6, 72, tmp=10)
    a("v_mov_b32 v14, 0")
    a("v_mov_b32 v15, 1")
    a("s_lshl_b32 s59, s57, 2")
    a("s_add_u32 s59, s59, 32")
    a("v_mov_b32 v13, s59")
    a("v_lshrrev_b32 v10, 4, v0")
    a("s_lshr_b32 s59, s62, 1")
    a("v_mov_b32 v18, s59")
    a("s_lshr_b32 s59, s64, 1")
    a("v_mov_b32 v16, s59")
    a("v_cmp_eq_u32 vcc, 1, v10")
    a("s_lshr_b32 s59, s65, 1")
    a("v_mov_b32 v17, s59")
    a("v_cndmask_b32 v18, v18, v16, vcc")
    a("v_cmp_eq_u32 vcc, 2, v10")
    a("s_lshl_b32 s59, s57, 3")
    a("s_and_b32 s3, s53, 7")
    a("v_cndmask_b32 v18, v18, v17, vcc")
    a("s_add_u32 s59, s59, s3")
    a("v_lshl_add_u32 v10, v18, 5, s59")
    a(f"v_mul_u32_u24 v10, {CST}, v10")
    a(f"v_add_u32 v10, {CNT - FLG + CZ*CST}, v10")
    a("v_and_b32 v16, 3, v0")
    a("s_lshr_b32 s59, s54, 1")
    a(f"s_add_u32 s59, s59, {CY}")
    a("v_lshl_add_u32 v12, v18, 4, s59")
    out_ids(a, 38, 39)
    a("s_lshl_b32 s59, s39, 4")
    a(f"s_add_u32 s59, s59, {CW - 48}")
    a("v_cmp_lt_u32 vcc, 47, v0")
    a("v_add_u32 v17, s59, v0")
    a("s_nop 0")
    a("v_cndmask_b32 v12, v12, v17, vcc")
    a(f"v_mul_u32_u24 v12, {CST}, v12")
    a("s_lshl_b32 s48, s39, 1")
    a("s_and_b32 s59, s57, 1")
    a("s_add_u32 s48, s48, s59")
    a("s_xor_b32 s49, s48, 1")
    a(f"s_mul_i32 s59, s57, {14*1024}")
    a(f"s_add_u32 s59, s59, {WF + 32*1024}")
    for i in range(2):
        a(f"s_mul_i32 s{48+i}, s{48+i}, {88*1024}")
        a(f"s_add_u32 s{48+i}, s{48+i}, s59")
def sp_setup_b(a):
    for n, (t, f) in enumerate(TILES):
        a(f"s_mul_i32 s59, s{60+t}, 28")
        a(f"s_add_u32 s59, s59, s{62+f}")
        a(f"s_lshl_b32 s59, s59, 11")
        a(f"s_add_u32 s{76+n}, s59, {Z1F}")
        a(f"s_mul_i32 s59, s{60+t}, 44")
        a(f"s_add_u32 s59, s59, s{62+f}")
        a(f"s_lshl_b32 s59, s59, 11")
        a(f"s_add_u32 s{83+n}, s59, {AF + 32*1024}")
    a("s_lshl_b32 s59, s52, 2")
    a("s_lshr_b32 s71, s53, 3")
    a("s_add_u32 s59, s59, s71")
    a("s_lshl_b32 s71, s59, 17")
    a("s_lshl_b32 s92, s57, 11")
    a("s_add_u32 s71, s71, s92")
    a(f"s_add_u32 s71, s71, {KVF}")
    a(f"s_and_b32 s58, s53, {7 if OPT.get('krot', 0) else 0}")
    a("s_lshl_b32 s58, s58, 14")

WUREG = [16, 20, 24, 28] + [48 + 16*ks + 4*f for f in range(4) for ks in range(4)] + list(range(224, 256, 4))
def g2_spatial(a):
    BSP = SB_
    WFR, ZS, ACC, T = 16, 48, 112, 224
    FV = 11
    if OPT["stamp"]:
        fine_flush(a); a(f"v_mov_b32 v{FV}, v{FINE['v']}"); FINE["v"] = FV
        fine_pool([4, 6, 8, 10, 12, 14, 16, 18, 20, 24, 26])
    def zbase(st):
        return [f"s_add_u32 s59, s93, {st}", "s_and_b32 s59, s59, 7", "s_lshl_b32 s59, s59, 12"] + \
               [f"s_add_u32 s{44+i}, s59, s{66+i}" for i in range(4)]
    zl = lambda ks, f: f"buffer_load_dwordx4 {vr(ZS + 16*ks + 4*f, 4)}, v1, {S4(WS)}, s{44+f} offen offset:{ks*1024} sc1"
    wset = lambda st: WFR if st % 2 == 0 else T
    def wread(st, ts=(0, 1)): return [f"ds_read_b128 {vr(wset(st) + 16*t + 4*ks, 4)}, v{6+ks} offset:{t*4096}" for ks in range(4) for t in ts]
    emit = lambda P: [a(l) for p in P for l in p]
    a("ds_write_b32 v13, v15 offset:128")
    if OPT.get("w0", 0) == 1:
        emit(wdma(0))
        a("s_waitcnt vmcnt(0)")
    for l in wread(0): a(l)
    lds_poll(a, "L_sc1", 14, OPT.get("sc1", 144), 224)
    emit(wdma(1))
    emit(kv_batch(1, 1))
    a("s_mov_b32 s50, 0x10001"); a("s_mov_b32 s51, 1")
    cnt_issue(a, 10, 252, "s[50:51]")
    a("s_waitcnt vmcnt(0)")
    a("ds_write_b32 v13, v15")
    fine(a, "kvl")
    cnt_pipe(a, "L_pz", 10, 252, None, 16, OPT.get("pdz", 2), first_issued=True)
    fine(a, "pz")
    for l in zbase(0): a(l)
    log = []
    for f in range(2):
        for ks in range(4): a(zl(ks, f)); log.append(("z", 0, ks, f))
    a("v_mov_b32 v10, 0")
    lds_poll(a, "L_sc2", 14, 160, 224)
    a("s_setprio 0")
    for f in range(2, 4):
        for ks in range(4): a(zl(ks, f)); log.append(("z", 0, ks, f))
    def wait_for(tag):
        idx = max(i for i, t in enumerate(log) if t == tag)
        a(f"s_waitcnt vmcnt({len(log) - 1 - idx})")
    def mm(st, f, ks):
        wait_for(("z", st, ks, f))
        for t in range(2 if f < 3 else 1):
            mfma(a, ACC + 16*TILES.index((t, f)), ZS + 16*ks + 4*f, wset(st) + 16*t + 4*ks, "0" if st + ks == 0 else None)
    kvq = kv_batch(2, 1) + kv_batch(3, 1)
    log[:0] = [("w", 1, 0), ("w", 1, 1)]
    for st in range(7):
        if st % 2 == 0: fine(a, f"s{st}")
        for l in zbase(st + 1): a(l)
        extra = []
        for f in range(4):
            for ks in range(4):
                j = 4*f + ks
                if j in (2, 8):
                    a("s_waitcnt lgkmcnt(0)")
                    if st < 6: extra = [(g, ("w", st + 2, j // 8), 1) for g in wdma(st + 2, ts=(j // 8,))]
                if j in (0, 6) and kvq: extra = [(kvq.pop(0), ("kv",), 2) for _ in range(2 if st == 0 else 1)]
                mm(st, f, ks)
                a(zl(ks, f)); log.append(("z", st + 1, ks, f))
                if st == 6 and j == 0:
                    a("s_mov_b32 s51, 0x07ff0001")
                    a("s_mov_b64 exec, s[50:51]")
                    a(f"buffer_atomic_add v10, v12, {S4(WS)}, s90 offen sc0 sc1"); log.append(("f",))
                    a("s_mov_b64 exec, -1")
                if extra:
                    g, tag, cnt = extra.pop(0)
                    for l in g: a(l)
                    log += [tag]*cnt
                if j in (0, 6):
                    wait_for(("w", st + 1, j // 6))
                    for l in wread(st + 1, (j // 6,)): a(l)
                    if j == 6 and st in (1, 3): a(f"ds_write_b32 v13, v15 offset:{8*(st+1)}")
                if st == 6 and j == 11:
                    wait_for(("f",))
                    a("s_setprio 2")
                    a("s_mov_b64 exec, s[50:51]")
                    a("v_cmp_gt_u32 vcc, 8, v10")
                    a("s_nop 1")
                    a("s_cmp_eq_u64 vcc, 0")
                    a("s_cbranch_scc1 L_pyd")
                    cnt_poll(a, "L_py", 12, 10, "vcc", 8, sleep=8)
                    a("v_and_b32 v2, 31, v0")
                    a("v_lshlrev_b32 v4, 2, v2")
                    a("v_lshlrev_b32 v2, 1, v2")
                    a("v_add_u32 v3, 0x10000, v1")
                    a("v_add_u32 v5, -16, v13")
                    a("s_setprio 0")
                    for t in range(2):
                        a(f"s_lshl_b32 s59, s{60+t}, 6")
                        a(f"buffer_load_ushort v{6+t}, v2, {S4(BSP)}, s59 offen")
                        a(f"s_lshl_b32 s{74+t}, s{60+t}, 7")
                        a(f"s_add_u32 s{74+t}, s{74+t}, {GG}")
                        a(f"buffer_load_dword v{8+t}, v4, {S4(WS)}, s{74+t} offen sc1")
                    log += [("b",)]*4
    a("s_lshl_b32 s66, s39, 1")
    a("s_lshr_b32 s59, s57, 1")
    a("s_add_u32 s66, s66, s59")
    a(f"s_mul_i32 s66, s66, {88*1024}")
    a("s_and_b32 s59, s57, 1")
    a("s_lshl_b32 s59, s59, 14")
    a("s_add_u32 s66, s66, s59")
    a(f"s_add_u32 s66, s66, {WF}")
    Z1R, B_, G_ = 32, 6, 8
    def gl():
        for t in range(2): a(f"buffer_load_dword v{G_+t}, v4, {S4(WS)}, s{74+t} offen sc1")
    owner = [0,0,0,0,1,1,1,1,2,2,2,3,3,3]
    def slot(n, src):
        si = src if src < owner[n] else src - 1
        ad = 2048 + (n*3 + si)*2048
        return (1, ad) if ad + 1024 < 65536 else (3, ad - 65536)
    st_ = json.dumps(FINE); log0 = list(log)
    for w in range(4):
        FINE.update(json.loads(st_)); log[:] = log0
        if w < 3:
            a(f"s_cmp_lg_u32 s57, {w}")
            a(f"s_cbranch_scc1 L_w{w+1}")
        mine = [n for n in range(14) if owner[n] == w]
        free = [ACC + 8*n for n in range(14) if owner[n] != w]
        U, CC = free[6], free[7]
        def writes(f):
            L = []
            for t in range(2 if f < 3 else 1):
                for n in (2*TILES.index((t, f)), 2*TILES.index((t, f)) + 1):
                    if owner[n] != w:
                        r, ad = slot(n, w)
                        L += [f"ds_write_b128 v{r}, {vr(ACC+8*n+4*i,4)} offset:{ad + 1024*i}" for i in range(2)]
            return L
        wn = [0]
        def wu():
            k = wn[0]; wn[0] += 1
            load4(a, WUREG[k], 1, f"s{48 + (k & 1)}", ((k >> 1) % 4)*1024); log.append(("u",))
            if k % 8 == 7:
                for i in range(2): a(f"s_add_u32 s{48+i}, s{48+i}, 4096")
        pend = []
        for f in range(4):
            for ks in range(4):
                mm(7, f, ks)
                if f == 0 and ks < len(mine):
                    load4(a, Z1R + 4*ks, 1, f"s{76 + (mine[ks]>>1)}", (mine[ks]&1)*1024); log.append(("y",))
                if f == 1 and ks == 0:
                    a("s_setprio 2")
                    lds_poll(a, f"L_pa{w}", 14, 0, ZS + 4)
                    a("s_setprio 0")
                wu()
                if f == 1: wu()
                if ks == 1 and f > 0:
                    pend = writes(f - 1)
                    if f > 1: a("s_nop 3" if f == 2 else "s_nop 5")
                for _ in range(3):
                    if pend: a(pend.pop(0))
        fine(a, "mm")
        a("s_setprio 2")
        while wn[0] < 28: wu()
        a("s_nop 1")
        for l in writes(3): a(l)
        a("s_waitcnt lgkmcnt(0)")
        a("ds_write_b32 v5, v15")
        for g in range(2):
            a(f"s_add_u32 m0, s72, {g*4096}")
            a("s_nop 0")
            for i in range(4): a(f"buffer_load_dwordx4 v1, {S4(WS)}, s66 offen offset:{i*1024} sc1 lds")
            a("s_add_u32 s66, s66, 4096")
        log += [("o",)]*8
        wait_for(("y",))
        a(f"s_mov_b32 s91, {SPIN}")
        a.label(f"L_gp{w}")
        a(f"v_or_b32 v{U}, v{G_}, v{G_+1}")
        a(f"v_cmp_gt_i32 vcc, 0, v{U}")
        a("s_sub_u32 s91, s91, 1")
        a(f"s_cbranch_scc1 L_gp{w}d")
        a("s_cmp_eq_u64 vcc, 0")
        a(f"s_cbranch_scc1 L_gp{w}d")
        gl()
        a("s_waitcnt vmcnt(0)")
        a(f"s_branch L_gp{w}")
        a.label(f"L_gp{w}d")
        for t in range(2):
            a(f"v_sub_f32 v{CC+4*t}, 1.0, v{G_+t}")
            a(f"v_lshlrev_b32 v{B_+t}, 16, v{B_+t}")
            a(f"v_mov_b32 v{CC+4*t+1}, v{CC+4*t}")
            a(f"v_mul_f32 v{CC+4*t+2}, v{B_+t}, v{CC+4*t}")
            a(f"v_mov_b32 v{CC+4*t+3}, v{CC+4*t+2}")
        lds_poll(a, f"L_pb{w}", 14, 16, 6)
        fine(a, "pb")
        def rdp(i):
            n = mine[i]
            for si, src in enumerate([s_ for s_ in range(4) if s_ != w]):
                r, ad = slot(n, src)
                a(f"ds_read_b128 {vr(free[3*(i&1) + si], 4)}, v{r} offset:{ad}")
                a(f"ds_read_b128 {vr(free[3*(i&1) + si] + 4, 4)}, v{r} offset:{ad+1024}")
        rdp(0)
        for i, n in enumerate(mine):
            if i + 1 < len(mine):
                rdp(i + 1); a("s_waitcnt lgkmcnt(6)")
            else:
                a("s_waitcnt lgkmcnt(0)")
                a("ds_write_b32 v13, v15 offset:80")
            x = ACC + 8*n; t = TILES[n >> 1][0]
            for si in range(3):
                for p in range(0, 8, 2): a(f"v_pk_add_f32 {vr(x+p,2)}, {vr(x+p,2)}, {vr(free[3*(i&1) + si]+p,2)}")
            for p in range(0, 8, 2): a(f"v_pk_fma_f32 {vr(x+p,2)}, {vr(x+p,2)}, {vr(CC+4*t,2)}, {vr(CC+4*t+2,2)}")
            for p in range(4):
                a(f"v_lshlrev_b32 v{U+2*p}, 16, v{Z1R+4*i+p}")
                a(f"v_and_b32 v{U+2*p+1}, 0xffff0000, v{Z1R+4*i+p}")
            for p in range(0, 8, 2): a(f"v_pk_mul_f32 {vr(x+p,2)}, {vr(x+p,2)}, {vr(U+p,2)}")
            o = Z1R + 4*i
            for p in range(4): a(f"v_cvt_pk_bf16_f32 v{o+p}, v{x+2*p}, v{x+2*p+1}")
            store4(a, o, 1, f"s{83 + (n>>1)}", (n&1)*1024)
        if w < 3:
            a("s_branch L_fin")
            a.label(f"L_w{w+1}")
    a.label("L_fin")

def out_ids(a, rp, nb):
    if OPT.get("fmap", 1):
        a(f"s_lshl_b32 s{rp}, s52, 2")
        a("s_and_b32 s59, s53, 3")
        a(f"s_add_u32 s{rp}, s{rp}, s59")
        a(f"s_lshr_b32 s{nb}, s53, 2")
    else:
        a(f"s_lshr_b32 s{rp}, s52, 1")
        a(f"s_lshl_b32 s{rp}, s{rp}, 3")
        a("s_and_b32 s59, s53, 7")
        a(f"s_add_u32 s{rp}, s{rp}, s59")
        a(f"s_and_b32 s{nb}, s52, 1")
        a(f"s_lshl_b32 s{nb}, s{nb}, 2")
        a("s_lshr_b32 s59, s53, 3")
        a(f"s_add_u32 s{nb}, s{nb}, s59")
def out_tiles(a, rp, cg):
    a(f"s_lshl_b32 s60, s{rp}, 1")
    a("s_lshr_b32 s59, s57, 1")
    a("s_add_u32 s60, s60, s59")
    a("s_xor_b32 s61, s60, 1")
    a(f"s_lshl_b32 s62, s{cg}, 1")
    a("s_and_b32 s59, s57, 1")
    a("s_add_u32 s62, s62, s59")
    a("s_xor_b32 s63, s62, 1")
def pair(a, reg, sb, ks, v=1, n=2):
    for i in range(n): load4(a, reg + 4*i, v, f"s{sb+i}", (ks % 4)*1024)
    if ks % 4 == 3:
        for i in range(n): a(f"s_add_u32 s{sb+i}, s{sb+i}, 4096")
WOL = (131072, 59392)
RED2, RED1 = 2048, 106496
def red_setup(a, grp, vl, vw, vr_, vo):
    def base(g, lam, v):
        a(f"s_xor_b32 s59, s57, {lam}")
        a(f"s_mul_i32 s59, s59, {14336 if g else 6144}")
        a(f"s_add_u32 s59, s59, {RED2 if g else RED1}")
        a(f"v_add_u32 v{v}, s59, v{vl}")
    for lam in range(4 if grp else 2): base(grp, lam, vw + lam)
    base(1 - grp, 0, vr_)
    a(f"v_and_b32 v{vo}, 31, v0")
    a(f"v_lshlrev_b32 v{vo}, 10, v{vo}")
    a(f"v_lshrrev_b32 v{vo+1}, 5, v0")
    a(f"v_lshl_add_u32 v{vo}, v{vo+1}, 4, v{vo}")
    a("s_lshl_b32 s76, s60, 15")
    a("s_lshl_b32 s59, s62, 6")
    a("s_add_u32 s76, s76, s59")
    srd(a, SC, 22, 2048*1024)
def red_final(a, grp, ACC, vw, vr_, vo, R):
    W = lambda lam, half, slot: [f"ds_write_b128 v{vw+lam}, {vr(ACC + 16*lam + 8*half + 4*i, 4)} offset:{slot*2048 + i*1024}" for i in range(2)]
    L = []
    if grp:
        for lam in (1, 2, 3): L += W(lam, 0, lam) + W(lam, 1, 3 + lam)
        L += W(0, 0, 0)
        src = [(vw, 4), (vw, 5), (vw, 6), (vr_, 1), (vr_, 2)]
    else:
        L += W(1, 0, 0) + W(1, 1, 2) + W(0, 1, 1)
        src = [(vw, 0), (vr_, 0), (vr_, 1), (vr_, 2), (vr_, 3)]
    for l in L: a(l)
    a("s_waitcnt lgkmcnt(0)")
    a("s_barrier")
    for j, (v, slot) in enumerate(src):
        for i in range(2): a(f"ds_read_b128 {vr(R + 8*j + 4*i, 4)}, v{v} offset:{slot*2048 + i*1024}")
    x = ACC + 8*grp
    for j in range(5):
        a(f"s_waitcnt lgkmcnt({8 - 2*j})")
        for p in range(0, 8, 2): a(f"v_pk_add_f32 {vr(x+p,2)}, {vr(x+p,2)}, {vr(R+8*j+p,2)}")
    for p in range(4): a(f"v_cvt_pk_bf16_f32 v{R+p}, v{x+2*p}, v{x+2*p+1}")
    a("s_nop 1")
    a(f"v_permlane32_swap_b32 v{R}, v{R+2}")
    a(f"v_permlane32_swap_b32 v{R+1}, v{R+3}")
    a(f"buffer_store_dwordx4 {vr(R,4)}, v{vo}, {S4(SC)}, s76 offen offset:{32*grp} {OPT.get('ost', '')}")

def g2_final(a):
    R, ACC = 176, 112
    D = 6
    fine(a, "u")
    fine_flush(a)
    out_tiles(a, 38, 39)
    a(f"s_mul_i32 s72, s57, {14*1024}")
    for i in range(2):
        a(f"s_mul_i32 s59, s{60+i}, {88*1024}")
        a(f"s_add_u32 s59, s59, s72")
        a(f"s_add_u32 s{64+i}, s59, {AF + 32*1024}")
    a("s_lshl_b32 s59, s38, 2")
    a("s_add_u32 s59, s59, s57")
    a("s_lshl_b32 s59, s59, 1")
    a("s_and_b32 s77, s39, 1")
    a("s_add_u32 s59, s59, s77")
    a(f"s_mul_i32 s59, s59, {CST}")
    a("v_mov_b32 v2, s59")
    a("s_lshl_b32 s77, s54, 3")
    a("s_and_b32 s59, s55, 6")
    a("s_add_u32 s77, s77, s59")
    a(f"v_mul_u32_u24 v10, {CST}, v0")
    assert CU == 0
    a("v_mov_b32 v3, v13")
    a("s_lshl_b32 s67, s57, 13")
    red_setup(a, 1, 1, 5, 9, 12)
    lds_poll(a, "L_prd", 14, 112, R)
    a("s_waitcnt vmcnt(0)")
    cnt_add(a, 77, 10, 15, 2)
    fine(a, "fu")
    a("s_setprio 0")
    for g in range(2):
        a(f"s_add_u32 m0, s67, {WOL[1] + g*4096}")
        a("s_nop 0")
        for i in range(4): a(f"buffer_load_dwordx4 v1, {S4(WS)}, s66 offen offset:{i*1024} sc1 lds")
        a("s_add_u32 s66, s66, 4096")
    a("s_setprio 2")
    cnt_issue(a, 2, 36, 1)
    a("s_waitcnt vmcnt(0)")
    a("ds_write_b32 v3, v15 offset:96")
    cnt_pipe(a, "L_pu", 2, 36, 1, 8, OPT.get("pd", 3), first_issued=True)
    fine(a, "pu")
    a("s_setprio 0")
    for ks in range(D): pair(a, R + 8*ks, 64, ks)
    if OPT.get("uwait", 0): lds_poll(a, "L_uw", 14, 96, 32)
    for ks in range(14):
        a(f"s_waitcnt vmcnt({2*min(13 - ks, D - 1)})")
        if ks in (0, 7): fine(a, f"u{ks}")
        for lam in (1, 2, 3, 0):
            mfma(a, ACC + 16*lam, WUREG[2*ks + (lam & 1)], R + 8*(ks % D) + 4*(lam >> 1), "0" if ks == 0 else None)
        if ks + D < 14: pair(a, R + 8*(ks % D), 64, ks + D)
    fine(a, "um")
    a("s_nop 7"); a("s_nop 1")
    red_final(a, 1, ACC, 5, 9, 12, 16)
    fine_dump(a, 4, 2)
    a("s_endpgm")

def g1_final(a):
    WO, AO, ACC = 16, 144, 208
    out_ids(a, 54, 55)
    out_tiles(a, 54, 55)
    a("s_and_b32 s72, s57, 1")
    a("s_lshl_b32 s73, s72, 14")
    a(f"s_mul_i32 s59, s60, {88*1024}")
    a(f"s_add_u32 s59, s59, s73")
    a(f"s_add_u32 s64, s59, {AF}")
    a("s_mul_i32 s59, s72, 24576")
    a(f"s_add_u32 s59, s59, {WOL[0]}")
    a("v_add_u32 v6, s59, v4")
    a("s_lshl_b32 s59, s72, 13")
    a(f"s_sub_u32 s59, {WOL[0] + 16384}, s59")
    a("v_add_u32 v7, s59, v4")
    for i in range(2): a(f"v_add_u32 v{2+i}, {(WOL[1] - WOL[0]) & 0xffffffff}, v{6+i}")
    a("s_lshl_b32 s59, s54, 1")
    a("s_add_u32 s59, s59, s72")
    a("s_lshl_b32 s59, s59, 1")
    a("s_lshr_b32 s72, s57, 1")
    a("s_add_u32 s59, s59, s72")
    a("s_lshl_b32 s59, s59, 1")
    a("s_and_b32 s72, s55, 1")
    a("s_add_u32 s59, s59, s72")
    a(f"s_mul_i32 s59, s59, {CST}")
    a(f"s_add_u32 s59, s59, {CNT - FLG + CO*CST}")
    a("v_mov_b32 v8, s59")
    red_setup(a, 0, 4, 10, 12, 13)
    a("v_mov_b32 v9, 0")
    a("s_waitcnt vmcnt(0)")
    cnt_add(a, 85, 63, 58, 4)
    fine(a, "fo")
    cnt_pipe(a, "L_po", 8, 244, 1, 16, OPT.get("pd", 3))
    fine(a, "po")
    for ks in range(16): pair(a, AO + 4*ks, 64, ks, v=4, n=1)
    lds_poll(a, "L_adn", 9, 96, 240)
    lds_poll(a, "L_wol", 9, 128, 240)
    def wr(ks):
        for lam in range(2): a(f"ds_read_b128 {vr(WO + 8*ks + 4*lam, 4)}, v{(6 if ks < 8 else 2)+lam} offset:{(ks % 8)*1024}")
    for ks in range(6): wr(ks)
    for ks in range(16):
        if ks + 6 < 16: wr(ks + 6)
        a(f"s_waitcnt vmcnt({15-ks}) lgkmcnt({2*min(6, 15-ks)})")
        for lam in (1, 0): mfma(a, ACC + 16*lam, WO + 8*ks + 4*lam, AO + 4*ks, "0" if ks == 0 else None)
    fine(a, "om")
    a("s_nop 7"); a("s_nop 2")
    red_final(a, 0, ACC, 10, 12, 13, 16)
    fine_dump(a, 0, 2)
    a("s_endpgm")

def clearer(a):
    a.label("L_clear")
    for r in range(12, 16): a(f"v_mov_b32 v{r}, -1")
    a("v_mov_b32 v16, 0")
    a(f"v_mul_u32_u24 v17, {CST}, v0")
    a("v_lshlrev_b32 v18, 3, v0")
    a(f"s_mul_i32 s59, s54, {64*CST}")
    a(f"s_add_u32 s59, s59, {CNT}")
    a(f"buffer_store_dword v16, v17, {S4(WS)}, s59 offen sc1")
    a(f"s_add_u32 s59, s59, {1024*CST}")
    a(f"buffer_store_dword v16, v17, {S4(WS)}, s59 offen sc1")
    a("s_lshl_b32 s59, s54, 9")
    a(f"s_add_u32 s59, s59, {GG}")
    a(f"buffer_store_dwordx2 v[12:13], v18, {S4(WS)}, s59 offen sc1")
    a("s_mul_i32 s59, s54, 14336")
    a(f"s_add_u32 s59, s59, {STATS}")
    for i in range(14):
        store4(a, 12, 9, "s59", (i % 4)*1024)
        if i % 4 == 3: a("s_add_u32 s59, s59, 4096")
    a("v_mov_b32 v17, 1")
    a("s_lshl_b32 s59, s54, 2")
    a("s_waitcnt vmcnt(0)")
    a("s_mov_b64 exec, 1")
    a(f"buffer_store_dword v17, v16, {S4(DBG)}, s59 offen sc1")
    a("s_mov_b64 exec, -1")
    a("s_branch L_noclr")

def g1_front(a):
    WFR, ACC, T = 32, 64, 8
    a("v_lshlrev_b32 v9, 4, v0")
    a("s_waitcnt lgkmcnt(0)")
    srd(a, WS, 26, WS_SIZE)
    srd(a, DBG, 24, 256)
    if OPT.get("pfc", 2) == 1:
        a("s_cmp_lg_u32 s57, 1")
        a("s_cbranch_scc1 L_nopc")
        a(f"s_getpc_b64 s[{SA}:{SA+1}]")
        a.label("L_pc")
        a(f"s_sub_u32 s{SA}, s{SA}, L_pc-{NAME}_kernel")
        a(f"s_subb_u32 s{SA+1}, s{SA+1}, 0")
        a(f"s_mov_b32 s{SA+2}, L_end-{NAME}_kernel")
        a(f"s_mov_b32 s{SA+3}, 0x20000")
        a("v_lshlrev_b32 v17, 7, v0")
        a("s_and_b32 s59, s53, 7")
        a("s_lshl_b32 s59, s59, 13")
        a(f"buffer_load_dword v125, v17, {S4(SA)}, s59 offen")
        a.label("L_nopc")
    a("s_lshl_b32 s59, s55, 2")
    a("s_add_u32 s59, s59, s57")
    a("s_cmp_eq_u32 s59, 60")
    a("s_cbranch_scc1 L_clear")
    a.label("L_noclr")
    fine_init(a, 127); fine_pool([4, 6, 8, 10, 14, 16, 18, 20, 24, 26, 36, 38, 40, 42, 48, 50])
    swz_read_addrs(a, 112, 60)
    tr_addr(a, 116, 11, 7, True, 16384)
    a("v_xor_b32 v117, 64, v116")
    tr_addr(a, 118, 9, 6, False, 32768)
    a("v_lshlrev_b32 v10, 2, v0")
    a("v_mov_b32 v11, 0")
    a("ds_write_b32 v10, v11")
    a0 = a; a = Asm()
    srd(a, SC, 12, 512*3584)
    a("v_and_b32 v126, 31, v0")
    a("v_mul_u32_u24 v126, 3584, v126")
    a("s_lshl_b32 s88, s62, 7")
    a("s_and_b32 s89, s58, 15")
    a(f"s_mul_i32 s89, s89, {32*3584}")
    a("s_add_u32 s89, s89, s88")
    a("s_lshl_b32 s80, s57, 11")
    if "pfw2" in OPT:
        srd(a, SB_, 14, 2048*4096)
        a("v_and_b32 v124, 15, v0")
        a("v_lshlrev_b32 v124, 12, v124")
        a("v_bfe_u32 v10, v0, 4, 1")
        a("v_lshl_add_u32 v124, v10, 7, v124")
        a("s_lshr_b32 s92, s52, 1")
        a("s_lshl_b32 s92, s92, 3")
        a("s_and_b32 s3, s53, 7")
        a("s_add_u32 s92, s92, s3")
        a("s_lshl_b32 s92, s92, 2")
        a("s_lshr_b32 s3, s53, 3")
        a("s_add_u32 s92, s92, s3")
        a("s_lshl_b32 s92, s92, 16")
        a("s_lshl_b32 s3, s57, 10")
        a("s_add_u32 s92, s92, s3")
    relayout_load(a)
    a.lines[:] = [l.replace("s59", "s75") for l in a.lines]
    a("v_and_b32 v120, 0x33, v0")
    a("v_bfe_u32 v1, v0, 2, 1")
    a("v_lshl_or_b32 v120, v1, 3, v120")
    a("v_bfe_u32 v1, v0, 3, 1")
    a("v_lshl_or_b32 v120, v1, 2, v120")
    a("v_lshlrev_b32 v120, 4, v120")
    a("v_and_b32 v121, 15, v0")
    a("v_lshrrev_b32 v1, 5, v0")
    a("v_lshl_or_b32 v121, v1, 4, v121")
    a("v_lshlrev_b32 v121, 4, v121")
    a("v_bfe_u32 v1, v0, 4, 1")
    a("v_lshl_or_b32 v121, v1, 17, v121")
    a("s_lshl_b32 s59, s55, 7")
    a("s_add_u32 s59, s59, s58")
    a("s_lshl_b32 s70, s59, 11")
    a(f"s_add_u32 s70, s70, {KVF}")
    a("s_lshr_b32 s59, s55, 1")
    a("s_lshl_b32 s59, s59, 8")
    a("s_add_u32 s59, s59, s58")
    a("s_lshl_b32 s64, s59, 11")
    a(f"s_add_u32 s64, s64, {KVF}")
    a("s_mov_b32 s68, 131072")
    a("v_mov_b32 v122, 1.0")
    a("s_bitcmp1_b32 s55, 0")
    a("s_cbranch_scc1 L_isk")
    a("s_lshl_b32 s64, s59, 10")
    if QF: a(f"s_add_u32 s64, s64, {QF}")
    a("s_mov_b32 s68, 65536")
    a(f"v_mov_b32 v122, {f32(QSCALE)}")
    a("v_mov_b32 v120, v9")
    a.label("L_isk")
    for i in range(3): a(f"s_add_u32 s{65+i}, s{64+i}, s68")
    a("s_lshr_b32 s71, s55, 1")
    a("s_lshl_b32 s71, s71, 4")
    a("s_and_b32 s59, s54, 12")
    a("s_add_u32 s71, s71, s59")
    a("s_lshl_b32 s71, s71, 1")
    a(f"s_add_u32 s71, s71, {CQ}")
    a("v_and_b32 v123, 15, v0")
    a("v_lshlrev_b32 v123, 2, v123")
    g1_att_setup(a)
    a("s_mul_i32 s69, s58, 28")
    a("s_lshl_b32 s59, s62, 1")
    a("s_add_u32 s69, s69, s59")
    a("s_lshl_b32 s69, s69, 11")
    a(f"s_add_u32 s69, s69, {Z1F}")
    a("s_lshl_b32 s77, s62, 4")
    a("s_add_u32 s77, s77, s54")
    a(f"s_add_u32 s77, s77, {CY}")
    a(f"s_add_u32 s59, s2, {CY + 256}")
    a("s_cmp_eq_u32 s61, 7")
    a(f"s_cselect_b32 s69, {WS_SIZE}, s69")
    a("s_cselect_b32 s77, s59, s77")
    units = []; hold = False
    for l in a.lines:
        if hold or re.match(r"\s*s_(cselect|cbranch|addc|subb)", l): units[-1].append(l)
        else: units.append([l])
        if "s_cbranch" in l or " m0," in l: hold = True
        if l.endswith(":") or "offset:1024 lds" in l: hold = False
    a = a0
    rl = next(u for u in units if " m0," in u[0]); units.remove(rl)
    if not OPT.get("su1", 1):
        for u in units:
            for l in u: a.raw(l)
        units = []
    a("s_waitcnt lgkmcnt(0)")
    fine(a, "setup")
    win = Win(range(112, 119), 16384)
    def reads(n):
        c, ks = n >> 2, n & 3
        pre, so = win.at(slot_of(c))
        R = [f"ds_read_b128 {vr(XF + 4*n, 4)}, v{112+ks} offset:{so}"]
        for t in range(2):
            for v in range(2):
                R.append(f"ds_read_b64_tr_b16 {vr(WFR + 12*(n&1) + 4*t + 2*v, 2)}, v{116+t} offset:{so + ks*4096 + v*512}")
        for v in range(2):
            R.append(f"ds_read_b64_tr_b16 {vr(WFR + 12*(n&1) + 8 + 2*v, 2)}, v118 offset:{so + ks*1024 + v*256}")
        return pre, R
    a("s_barrier")
    pre, R = reads(0)
    for l in pre + R: a(l)
    for n in range(32):
        ks = n & 3
        xf = XF + 4*n; wf = WFR + 12*(n&1); c0 = "0" if n == 0 else None
        M = lambda t: mfma(a, ACC + 16*t, wf + 4*t, xf, c0) if t < 2 else mfma(a, ACC + 32, xf, wf + 8, c0)
        pre, R = reads(n + 1) if n < 31 else ([], [])
        a("s_waitcnt lgkmcnt(4)")
        M(0)
        if n == 31:
            a("s_waitcnt lgkmcnt(2)"); M(1)
            a("s_waitcnt lgkmcnt(0)"); M(2)
            break
        if ks == 3: a("s_barrier")
        if n == 25: poll_issue(a, 123, 124, srd_=DBG, soff="0")
        if n == OPT.get("rlp", 12):
            for l in rl: a.raw(l)
        for pos, v, srd_, so in ((OPT.get("pfz2", (99, 99)), 126, SC, 89), (OPT.get("pfw2", (99, 99)), 124, SB_, 92)):
            for h in range(2):
                if n == pos[h]:
                    a(f"s_mov_b32 exec_lo, {0xffff << (16*h)}")
                    a("s_mov_b32 exec_hi, 0")
                    a(f"buffer_load_dword v125, v{v}, {S4(srd_)}, s{so} offen")
                    a("s_mov_b64 exec, -1")
        for l in pre + R[0:3]: a(l)
        a("s_waitcnt lgkmcnt(5)"); M(1)
        if OPT.get("rd1", 1):
            for l in R[3:5]: a(l)
            a("s_waitcnt lgkmcnt(5)"); M(2)
            for l in R[5:7]: a(l)
        else:
            for l in R[3:7]: a(l)
            a("s_waitcnt lgkmcnt(7)"); M(2)
        for _ in range(OPT.get("sup1", 14)):
            if units:
                for l in units.pop(0): a.raw(l)
    assert not units
    fine(a, "p1")
    a("s_nop 7")
    for t in range(3):
        acc = ACC + 16*t
        if t < 2:
            for p in range(16): a(f"v_mul_f32 v{acc+p}, v{acc+p}, v122")
        for p in range(8): a(f"v_cvt_pk_bf16_f32 v{T+8*t+p}, v{acc+2*p}, v{acc+2*p+1}")
        for h in range(2):
            if t < 2: store4(a, T + 8*t + 4*h, 120, f"s{64 + 2*t + h}")
            else: store4(a, T + 8*t + 4*h, 121, "s70", 1024 + 512*h)
    fine(a, "st")
    tr_addr(a, 116, 10, 7, True, slot_of(8), tmp=118)
    a("v_xor_b32 v117, 64, v116")
    a("s_mov_b32 s0, 1.0")
    a("s_mov_b32 s1, 1.0")
    for h in range(2):
        a(f"v_mov_b32 v{112+h}, {f32(GC1)}")
        a(f"v_mov_b32 v{6+h}, {f32(GC2)}")
    relayout_offsets(a)
    a("s_waitcnt vmcnt(6)")
    relayout_read(a, 96)
    a("v_cmp_eq_u32 vcc, 0, v124")
    a("s_waitcnt lgkmcnt(0)")
    a("s_cmp_eq_u64 vcc, 0")
    a("s_cbranch_scc1 L_clr1d")
    poll_flags(a, "L_clr1", 123, 124, srd_=DBG, soff="0")
    a("ds_write_b32 v59, v58 offset:192")
    G9 = OPT.get("g9", 0)
    if G9:
        srd(a, SC, 12, 512*3584)
        a("v_lshrrev_b32 v118, 2, v0")
        a("v_and_b32 v118, 4, v118")
        a("v_and_b32 v120, 7, v0")
        a("v_xor_b32 v120, v120, v118")
        a("v_lshrrev_b32 v118, 3, v0")
        a("v_mul_u32_u24 v118, 3584, v118")
        a("v_lshl_add_u32 v120, v120, 4, v118")
        for q in (1, 2, 3): a(f"v_add_u32 v{120+q}, {q*(8*3584-1024)}, v120")
        a("s_add_u32 s64, s63, 4")
        a("s_add_u32 s64, s64, s57")
        a("s_and_b32 s64, s64, 7")
        a(f"s_mul_i32 s64, s64, {64*3584}")
        a("s_lshl_b32 s59, s62, 7")
        a("s_add_u32 s64, s64, s59")
        a("s_lshl_b32 s65, s57, 13")
    a("s_mov_b32 s66, 0")
    EARLY = OPT.get("early", 0)
    def arrive():
        a("s_waitcnt vmcnt(0)")
        cnt_add(a, 71, 63, 58, 8)
    if not EARLY:
        arrive(); fine(a, "ack")
    else: a("s_mov_b32 s67, 0")
    a("s_cmp_eq_u32 s61, 7")
    a("s_cbranch_scc1 L_noz1")
    if G9:
        for h in range(2):
            a(f"s_add_u32 m0, s65, {slot_of(9) + h*4096}")
            a(f"s_add_u32 s59, s64, {h*32*3584}")
            for q in range(4): a(f"buffer_load_dwordx4 v{120+q}, {S4(SC)}, s59 offen offset:{q*1024} lds")
    lds_poll(a, "L_bz0", 60, 176, 104)
    fine(a, "bZ")
    def rd(n, t):
        if n == 16: a(f"v_add_u32 v{116+t}, {SLOT}, v{116+t}")
        for v in range(2):
            a(f"ds_read_b64_tr_b16 {vr(WFR + 8*(n%3) + 4*t + 2*v, 2)}, v{116+t} offset:{(n%16)*2048 + v*512}")
    b = Asm(); att_init(b); ini = list(b.lines)
    for n in range(2):
        for t in range(2): rd(n, t)
    Q1, Q2 = OPT.get("q1", 10), OPT.get("q2", 21)
    for n in range(32):
        for t in range(2):
            a(f"s_waitcnt lgkmcnt({min(6, 2*(63 - 2*n - t))})")
            mfma(a, ACC + 16*t, WFR + 8*(n%3) + 4*t, XF + 4*n, "0" if n == 0 else None)
            if n == 14 and t == 0: lds_poll(a, "L_g9", 60, 208 if G9 else 192, 104)
            if n + 2 < 32: rd(n + 2, t)
            if n >= 17:
                for _ in range(3 if n < 19 else 2 if n < 27 else 4):
                    if ini: a(ini.pop(0))
        if EARLY and 2 <= n <= EARLY and n % 2 == 0:
            a("s_cmp_lg_u32 s67, 0")
            a(f"s_cbranch_scc1 L_ar{n}")
            if n + 2 <= EARLY:
                a("s_getreg_b32 s3, hwreg(HW_REG_IB_STS, 0, 4)")
                a("s_cmp_lg_u32 s3, 0")
                a(f"s_cbranch_scc1 L_ar{n}")
            a("s_mov_b32 s67, 1")
            arrive()
            if n == 2: fine(a, "ack"); ackp = FINE["pend"][-1] if OPT["stamp"] else 0
            elif OPT["stamp"]: a(f"s_memrealtime s[{ackp}:{ackp+1}]")
            a.label(f"L_ar{n}")
        if n == Q1:
            if G9:
                a("s_waitcnt vmcnt(0)")
                a("ds_write_b32 v59, v58 offset:208")
            cnt_issue(a, 61, 114, 15); a("s_mov_b64 exec, -1")
        if OPT.get("fz1") and n in (9, Q2): fine(a, f"n{n}")
        if n == Q2: att_try(a, "a")
        if OPT.get("fz1") and n == Q2: fine(a, "tra")
    assert not ini
    a(f"s_setprio {OPT.get('g1p', 3)}")
    for r in range(8): a(f"v_mov_b32 v{48+r}, v{96+r}")
    fine(a, "z1")
    att_try(a, "b")
    if OPT.get("fz1"): fine(a, "trb")
    z1_gelu(a, 0)
    if OPT.get("try3"): att_try(a, "e")
    z1_gelu(a, 1)
    a("s_branch L_z1d")
    a.label("L_noz1")
    if EARLY: arrive()
    att_init(a)
    for r in range(8): a(f"v_mov_b32 v{48+r}, v{96+r}")
    lds_poll(a, "L_bz5", 60, 176, 104)
    lds_poll(a, "L_bz6", 60, 192, 104)
    cnt_issue(a, 61, 114, 15)
    a.label("L_z1d")
    fine(a, "g1")

def att_loads(a, L):
    a("s_add_u32 s59, s79, s76")
    load4(a, KS, 4, "s59")
    load4(a, Q, 4, "s78")
    load4(a, Q + 4, 4, "s78", 1024)
    for n, g in enumerate(kv_batch(0, 4, 80, 81, 76)):
        for l in g[:-2]: a(l)
        if n == 0:
            a("s_cmp_eq_u32 s57, 0")
            a(f"s_cbranch_scc1 L_skipk0{L}")
        a(g[-2])
        if n == 0: a.label(f"L_skipk0{L}")
        a(g[-1])
def att_try(a, L):
    a("s_cmp_lg_u32 s66, 0")
    a(f"s_cbranch_scc1 L_try{L}d")
    a("s_waitcnt vmcnt(0)")
    a("v_cmp_gt_u32 s[64:65], 32, v114")
    a("s_nop 0")
    a("s_and_b32 s64, s64, 15")
    a(f"s_cbranch_scc1 L_try{L}n")
    a("s_mov_b32 s66, 1")
    a("ds_write_b32 v59, v58 offset:80")
    att_loads(a, L)
    a(f"s_branch L_try{L}d")
    a.label(f"L_try{L}n")
    cnt_issue(a, 61, 114, 15); a("s_mov_b64 exec, -1")
    a.label(f"L_try{L}d")

Q, KS, VS, S_, NM, O_, T_ = 8, 16, 160, 64, 128, 200, 232
def att_init(a):
    T = 115
    a(f"v_and_b32 v{T}, 27, v0")
    a(f"v_cmp_eq_u32 vcc, 16, v{T}")
    a(f"v_mov_b32 v{T}, 0x3f803f80")
    a("s_nop 0")
    a(f"v_cndmask_b32 v{VS}, 0, v{T}, vcc")
    for r in range(VS + 1, VS + 32): a(f"v_mov_b32 v{r}, v{VS}")
    for r in range(O_, O_ + 32): a(f"v_mov_b32 v{r}, 0")
def z1_gelu(a, ti):
    x = 64 + 16*ti
    for l in gelu_list(x, 96, 112, 6): a(l)
    for p in range(8): a(f"v_cvt_pk_bf16_f32 v{32+8*ti+p}, v{x+2*p}, v{x+2*p+1}")
def g1_att_setup(a):
    T = 62
    a("s_lshl_b32 s72, s52, 2")
    a("s_lshr_b32 s59, s53, 3")
    a("s_add_u32 s72, s72, s59")
    a("s_and_b32 s74, s53, 7")
    a("s_lshl_b32 s73, s74, 3")
    a("s_lshl_b32 s59, s57, 1")
    a("s_add_u32 s73, s73, s59")
    a("s_lshl_b32 s78, s72, 6")
    a("s_add_u32 s78, s78, s73")
    a("s_lshl_b32 s78, s78, 10")
    if QF: a(f"s_add_u32 s78, s78, {QF}")
    a("s_lshl_b32 s79, s72, 17")
    a(f"s_add_u32 s79, s79, {KVF}")
    a("s_lshl_b32 s80, s57, 11")
    a("s_add_u32 s81, s79, s80")
    a(f"s_and_b32 s76, s53, {7 if OPT.get('krot', 0) else 0}")
    a("s_lshl_b32 s76, s76, 14")
    a("s_lshl_b32 s82, s73, 7")
    a(f"s_add_u32 s82, s82, {GG}")
    a("s_mov_b32 s86, 0xffff")
    a("s_mov_b32 s87, 0xffff")
    a("s_mul_i32 s83, s73, 88")
    a("s_add_u32 s83, s83, s72")
    a("s_lshl_b32 s83, s83, 10")
    a(f"s_add_u32 s83, s83, {AF}")
    a(f"s_add_u32 s84, s83, {88*1024}")
    a("s_lshr_b32 s85, s72, 4")
    a("s_add_u32 s85, s85, s73")
    a("s_lshl_b32 s85, s85, 2")
    a(f"s_add_u32 s85, s85, {CO}")
    a("v_lshlrev_b32 v4, 4, v0")
    a("v_and_b32 v5, 31, v0")
    a("s_lshr_b32 s59, s72, 2")
    a("s_lshl_b32 s59, s59, 5")
    a("s_add_u32 s59, s59, s74")
    a(f"s_add_u32 s59, s59, {CQ}")
    a("v_lshl_add_u32 v61, v0, 3, s59")
    a(f"v_mul_u32_u24 v61, {CST}, v61")
    a(f"v_mul_u32_u24 v63, {CST}, v0")
    a("v_lshlrev_b32 v5, 2, v5")
    a("v_mov_b32 v3, 0xdddd")
    a("v_mov_b32 v1, v4")
    a("v_and_b32 v2, 15, v0")
    a(f"v_lshrrev_b32 v{T}, 5, v0")
    a(f"v_lshl_or_b32 v2, v{T}, 4, v2")
    a("v_lshlrev_b32 v2, 4, v2")
    a("v_add_u32 v2, 1024, v2")
    a("v_add_u32 v56, 0x10000, v1")
    a("v_add_u32 v57, 0x10000, v2")
    a("v_mov_b32 v58, 1")
    a("s_lshl_b32 s59, s57, 2")
    a("v_mov_b32 v59, s59")
    a("v_mov_b32 v60, 0")

def g1_att(a):
    S, O, T = S_, O_, T_
    a("s_cmp_lg_u32 s66, 0")
    a("s_cbranch_scc1 L_ldone")
    a("s_lshl_b64 exec, 1, s57")
    cnt_pipe(a, "L_pq", 61, 114, None, 32, OPT.get("pd", 3), first_issued=True)
    a("ds_write_b32 v59, v58 offset:80")
    lds_poll(a, "L_pq2", 60, 80, T)
    att_loads(a, "c")
    a.label("L_ldone")
    if OPT["stamp"]:
        a("v_mov_b32 v250, v127"); FINE["v"] = 250; fine_flush(a)
    fine(a, "pq")
    kreg = lambda kt: KS + 4*(kt & 3)
    vreg = lambda kt: VS + 8*(kt & 3)
    def rd(kts, skipk=()):
        L = []
        for kt in kts:
            if kt not in skipk:
                L.append(f"ds_read_b128 {vr(kreg(kt),4)}, v{1 if kt < 32 else 56} offset:{(kt % 32)*2048}")
        L.append("s_mov_b64 exec, s[86:87]")
        for kt in kts:
            for s_ in range(2):
                L.append(f"ds_read_b128 {vr(vreg(kt)+4*s_,4)}, v{2 if kt < 32 else 57} offset:{(kt % 32)*2048 + s_*512}")
        L.append("s_mov_b64 exec, -1")
        return L
    a("s_waitcnt vmcnt(7)")
    mfma(a, S, KS, Q, "0")
    mfma(a, S + 16, KS, Q + 4, "0")
    a("s_nop 7"); a("s_nop 2")
    for q in (0, 1):
        s_, d = S + 16*q, T + q
        a(f"v_max3_f32 v{d}, v{s_}, v{s_+1}, v{s_+2}")
        for p in range(3, 15, 2): a(f"v_max3_f32 v{d}, v{d}, v{s_+p}, v{s_+p+1}")
        a(f"v_max_f32 v{d}, v{d}, v{s_+15}")
        halfsum(a, d, T + 2, "v_max_f32")
        for r in range(16): a(f"v_sub_f32 v{NM + 16*q + r}, 0, v{d}")
        a("s_nop 1")
        mfma(a, s_, KS, Q + 4*q, NM + 16*q)
        if q == 0:
            a("s_waitcnt vmcnt(0)")
            a("ds_write_b32 v59, v58 offset:144")
    lds_poll(a, "L_kv0", 60, 144, T)
    fine(a, "kv")
    for l in rd([0, 1, 2, 3], skipk=(0,)): a(l)
    a(f"s_setprio {OPT.get('attp', 0)}")
    SB = [S, S + 16, S + 32]
    sb = lambda k: SB[k % 3]
    QK = lambda k: mfma_s(sb(k), kreg(k >> 1), Q + 4*(k & 1), NM + 16*(k & 1))
    PV = lambda k, h: f"v_smfmac_f32_32x32x32_bf16 {vr(O+16*(k&1),16)}, {vr(vreg(k>>1)+4*h,4)}, {vr(sb(k)+8*h,8)}, v3"
    def gl(): return [f"buffer_load_dword v6, v5, {S4(WS)}, s82 offen sc1", f"buffer_load_dword v7, v5, {S4(WS)}, s82 offen offset:128 sc1"]
    z0, zd = OPT.get("z1s", 21), OPT.get("z1d", 6)
    late = {z0 + zd*i: [f"buffer_store_dwordx4 {vr(32 + 4*i, 4)}, v4, {S4(WS)}, {'s69' if i < 4 else 's%d' % (84 + i)} offen offset:{(i % 4)*1024 if i < 4 else 0} sc1"] for i in range(6)}
    late[z0 + zd*6 + 4] = ["KV1"]
    ev = []
    for k in range(0, 129):
        kt = k >> 1
        post = []
        if k % 4 == 0 and kt + 2 < 64:
            if (kt + 2) % 16 == 0: post.append("KVCHECK")
            post += rd([kt + 2, kt + 3])
            if (kt + 4) % 16 == 0 and kt + 4 < 64: post.append(f"ds_read_b128 {vr(T,4)}, v60 offset:{16 + kt + 4}")
        if k % 4 == 2 and kt + 1 < 64:
            post.append("s_waitcnt lgkmcnt(0)")
            if kt == 43: post.append("ds_write_b32 v59, v58")
            if kt == 51: post += gl()
        if k > 0: ev.append([PV(k - 1, 1), 16*k + 2, post, k])
        if k + 2 < 128: ev.append([QK(k + 2), 0, late.get(k, []), k])
        if k < 128: ev.append([PV(k, 0), 16*k + 10, [], k])
    gaps = OPT.get("gaps", (3, 6, 9))
    pos = 0; p = 7
    for i, (ins, lo, post, k) in enumerate(ev):
        if i > 0 and OPT.get("gpol", 0) == 1:
            g = 3 if len(ev[i-1][2]) > 4 else 6
            slack = {"v_mfma": 16*(k + 2) - 12 - OPT.get("gsl", 0)}.get(ins[:6], 16*(k + 2) - 15 - OPT.get("gsl", 0) if lo % 16 == 2 else 16*(k + 3) - 18 - OPT.get("gsl", 0))
            if p + g > slack: g = 3
            while p + g < lo: g += 3
            p += g
        elif i > 0: p = next((p + g for g in gaps if p + g >= lo), max(lo, p + gaps[0]))
        p = min(p, 2048)
        while pos < p:
            if pos % 256 == 0: fine(a, f"k{pos//16}")
            a(f"v_exp_f32 v{sb(pos>>4) + (pos&15)}, v{sb(pos>>4) + (pos&15)}"); pos += 1
        if lo > 2048: a("s_nop 1")
        if i == 0: a("s_waitcnt lgkmcnt(0)")
        if ins.startswith("v_mfma"): assert p <= 16*(k + 2) - 12, (k, p)
        a(ins)
        for l in post:
            if l == "KVCHECK":
                a(f"v_min3_u32 v{T}, v{T}, v{T+1}, v{T+2}")
                a(f"v_and_b32 v{T}, v{T}, v{T+3}")
                a(f"v_cmp_eq_u32 vcc, 0, v{T}")
                a("s_nop 0")
                a("s_cmp_eq_u64 vcc, 0")
                a(f"s_cbranch_scc1 L_kvp{k}d")
                lds_poll(a, f"L_kvp{k}", 60, 16 + (k + 4) // 2, T)
            elif l == "KV1":
                a("s_waitcnt vmcnt(0)")
                cnt_add(a, 77, 60, 58, 2)
                cnt_add(a, 93, 60, 58, 1)
            else: a(l)
    assert pos == 2048
    a("s_setprio 3")
    a(f"s_mov_b32 s70, {f32(2.0**64)}")
    a(f"s_mov_b32 s71, {f32(2.0**-64)}")
    a(f"s_mov_b32 s91, {SPIN}")
    a.label("L_ag")
    a("s_waitcnt vmcnt(0)")
    a(f"v_or_b32 v{T}, v6, v7")
    a(f"v_cmp_gt_i32 vcc, 0, v{T}")
    a("s_sub_u32 s91, s91, 1")
    a("s_cbranch_scc1 L_agd")
    a("s_cmp_eq_u64 vcc, 0")
    a("s_cbranch_scc1 L_agd")
    for l in gl(): a(l)
    a("s_branch L_ag")
    a.label("L_agd")
    a("s_nop 4")
    a(f"v_max_f32 v{T}, v{O+8}, v{O+24}")
    a(f"v_min_f32 v{T+1}, v{O+8}, v{O+24}")
    a(f"v_add_f32 v{T+2}, v{O+8}, v{O+24}")
    a(f"v_cmp_gt_f32 s[72:73], s70, v{T}")
    a(f"v_cmp_lt_f32 s[74:75], s71, v{T+1}")
    a(f"v_cmp_o_f32 vcc, v{T+2}, v{T+2}")
    a("s_nop 1")
    a("s_and_b64 s[72:73], s[72:73], s[74:75]")
    a("s_and_b64 s[72:73], s[72:73], vcc")
    a("s_cmp_eq_u64 s[72:73], -1")
    a("s_cbranch_scc0 L_slow")
    a.label("L_afin")
    fine(a, "fin")
    for q in range(2):
        o = O + 16*q
        a(f"v_rcp_f32 v{T}, v{o+8}")
        a("s_nop 0")
        a(f"v_mul_f32 v{T}, v{T}, v{6+q}")
        for r in range(8): a(f"v_mul_f32 v{o+r}, v{o+r}, v{T}")
        for p in range(4): a(f"v_cvt_pk_bf16_f32 v{T+4+4*q+p}, v{o+2*p}, v{o+2*p+1}")
        store4(a, T + 4 + 4*q, 4, "s83" if q == 0 else "s84")
    a("ds_write_b32 v59, v58 offset:96")
    g1_final(a)
    a.label("L_slow")
    a(f"v_mov_b32 v{T}, 0xff800000")
    a(f"v_mov_b32 v{T+1}, 0xff800000")
    a("s_mov_b32 s81, s79")
    a("s_mov_b32 s69, 64")
    a.label("L_s1")
    load4(a, KS, 4, "s81")
    a("s_waitcnt vmcnt(0)")
    mfma(a, S, KS, Q, "0")
    mfma(a, S + 16, KS, Q + 4, "0")
    a("s_nop 7"); a("s_nop 3")
    for q in range(2):
        for p in range(0, 16, 2): a(f"v_max3_f32 v{T+q}, v{T+q}, v{S+16*q+p}, v{S+16*q+p+1}")
    a("s_add_u32 s81, s81, 2048")
    a("s_sub_u32 s69, s69, 1")
    a("s_cmp_lg_u32 s69, 0")
    a("s_cbranch_scc1 L_s1")
    for q in range(2): halfsum(a, T + q, T + 2, "v_max_f32")
    for r in range(O, O + 32): a(f"v_mov_b32 v{r}, 0")
    a("s_mov_b32 s81, s79")
    a("s_mov_b32 s69, 64")
    a.label("L_s2")
    load4(a, KS, 4, "s81")
    a("s_mov_b64 exec, s[86:87]")
    load4(a, VS, 2, "s81")
    load4(a, VS + 4, 2, "s81", 512)
    a("s_mov_b64 exec, -1")
    a("s_waitcnt vmcnt(0)")
    mfma(a, S, KS, Q, "0")
    mfma(a, S + 16, KS, Q + 4, "0")
    a("s_nop 7"); a("s_nop 3")
    for q in range(2):
        for p in range(16): a(f"v_sub_f32 v{S+16*q+p}, v{S+16*q+p}, v{T+q}")
        for p in range(16): a(f"v_exp_f32 v{S+16*q+p}, v{S+16*q+p}")
    a("s_nop 1")
    for q in range(2):
        for s_ in range(2):
            a(f"v_smfmac_f32_32x32x32_bf16 {vr(O+16*q,16)}, {vr(VS+4*s_,4)}, {vr(S+16*q+8*s_,8)}, v3")
    a("s_add_u32 s81, s81, 2048")
    a("s_sub_u32 s69, s69, 1")
    a("s_cmp_lg_u32 s69, 0")
    a("s_cbranch_scc1 L_s2")
    a("s_nop 7"); a("s_nop 3")
    a("s_branch L_afin")

def main():
    ref = open(f"cdna_kernels/{NAME}.s.ref").read().split("\n")
    out = [l for l in ref if l.startswith(";") and "@launch" not in l]
    k = NAME + "_kernel"
    out.append("; @launch grid=(256,1,1) block=(512,1,1) lds=163840")
    out += ['.amdgcn_target "amdgcn-amd-amdhsa--gfx950"', ".text"]
    a = Asm(); gen(a)
    bad = check(a.lines, k)
    out += [f".globl {k}", ".p2align 8", f".type {k},@function", f"{k}:"] + a.lines
    out += ['.section .rodata,"a"', ".p2align 6", f".amdhsa_kernel {k}", "  .amdhsa_next_free_vgpr 256", "  .amdhsa_next_free_sgpr 102",
            "  .amdhsa_accum_offset 256", "  .amdhsa_group_segment_fixed_size 0", "  .amdhsa_kernarg_size 96",
            "  .amdhsa_user_sgpr_count 2", "  .amdhsa_user_sgpr_kernarg_segment_ptr 1", "  .amdhsa_system_sgpr_workgroup_id_x 1",
            "  .amdhsa_float_denorm_mode_32 3", ".end_amdhsa_kernel"]
    open(sys.argv[1], "w").write("\n".join(out) + "\n")
    if OPT["stamp"]: json.dump(NAMES, open(sys.argv[1] + ".json", "w"))
    print("hazards:", bad, "lines:", len(out))
main()
```
